```python
import torch

def _softmax(x, axis=-1):
    return torch.softmax(x, dim=axis)
def _gelu(x):
    return torch.nn.functional.gelu(x, approximate="tanh")
def _silu(x):
    return torch.nn.functional.silu(x)
def _sigmoid(x):
    return torch.sigmoid(x)
def _layernorm(x, axis=-1, eps=1e-5):
    m = x.mean(dim=axis, keepdim=True)
    v = x.var(dim=axis, keepdim=True, unbiased=False)
    return (x - m) / torch.sqrt(v + eps)
def _scatter_add(tgt, idx, src, axis=0):
    return tgt.clone().index_add_(axis, idx, src)
def _segment_sum(src, seg, n):
    out = torch.zeros((n,) + src.shape[1:], dtype=src.dtype)
    return out.index_add_(0, seg, src)
def _pad(x, pw):
    flat = tuple(v for pair in reversed(pw) for v in pair)
    return torch.nn.functional.pad(x, flat)

kernel_name = 'sequential_preLN__ssm_conv_h3__mixer_s_mlp__prompt'

def setup_inputs():

    _w = (lambda a: (lambda t: t.to(torch.bfloat16) if t.is_floating_point() else t)(torch.as_tensor(a)))
    def _A_setup():
        B, S, D = 1, 2048, 512
        ks = 4
        return {
            "q": _w((lambda *s: torch.randn(*s, dtype=torch.bfloat16) * 0.05)(B, S, D)),
            "k": _w((lambda *s: torch.randn(*s, dtype=torch.bfloat16) * 0.4)(B, S, D)),
            "v": _w((lambda *s: torch.randn(*s, dtype=torch.bfloat16) * 0.4)(B, S, D)),
            "shift_k": _w((lambda *s: torch.randn(*s, dtype=torch.bfloat16) * 0.4)(D, ks) * 0.5),
            "ssm_k": _w((lambda *s: torch.randn(*s, dtype=torch.bfloat16) * 0.4)(D, S) * (1.0 / S ** 0.5)),
            "ssm_D": _w((lambda *s: torch.randn(*s, dtype=torch.bfloat16) * 0.4)(D)),
        }
    _A_in = _A_setup()

    def _B_setup():
        B, S, D, F = 1, 2048, 512, 1376
        return {
            "x":  _w((lambda *s: torch.randn(*s, dtype=torch.bfloat16) * 0.05)(B, S, D)),
            "w1": _w((lambda *s: torch.randn(*s, dtype=torch.bfloat16) * 3.2)(D, D) * (D ** -0.5)),
            "w2": _w((lambda *s: torch.randn(*s, dtype=torch.bfloat16) * 3.2)(D, D) * (D ** -0.5)),
            "w3": _w((lambda *s: torch.randn(*s, dtype=torch.bfloat16) * 3.2)(D, F) * (D ** -0.5)),
            "w4": _w((lambda *s: torch.randn(*s, dtype=torch.bfloat16) * 1.6)(F, D) * (F ** -0.5)),
        }
    _B_in = _B_setup()

    return {
        "A_q": _A_in["q"],
        "A_k": _A_in["k"],
        "A_v": _A_in["v"],
        "A_shift_k": _A_in["shift_k"],
        "A_ssm_k": _A_in["ssm_k"],
        "A_ssm_D": _A_in["ssm_D"],
        "B_x": _B_in["x"],
        "B_w1": _B_in["w1"],
        "B_w2": _B_in["w2"],
        "B_w3": _B_in["w3"],
        "B_w4": _B_in["w4"],
    }

def reference(A_q, A_k, A_v, A_shift_k, A_ssm_k, A_ssm_D, B_x, B_w1, B_w2, B_w3, B_w4):
    def _A_ref(q, k, v, shift_k, ssm_k, ssm_D):
        B, S, D = q.shape
        ks = shift_k.shape[-1]
        k_pad = _pad(k, ((0, 0), (ks - 1, 0), (0, 0)))
        k_shift = torch.zeros_like(k)
        for t in range(ks):
            k_shift = k_shift + k_pad[:, t:t + S, :] * shift_k[:, ks - 1 - t][None, None, :]
        kv = k_shift * v
        L = 2 * S
        kv_pad = _pad(kv, ((0, 0), (0, S), (0, 0)))
        kf_pad = _pad(ssm_k, ((0, 0), (0, S)))
        kv_f = (lambda x, axes=(-2,-1): torch.fft.rfft2(x.float(), dim=axes))(kv_pad[:, None, :, :], axes=(1, 2))
        kf_f = (lambda x, axes=(-2,-1): torch.fft.rfft2(x.float(), dim=axes))(kf_pad[:, None, :], axes=(1, 2))
        kf_f = (lambda x, *d: x.permute(*d))(kf_f, 1, 2, 0)
        y_f = kv_f * kf_f[None, :, :, :]
        y = (lambda x, s, axes=(-2,-1): torch.fft.irfft2(x, s=s, dim=axes).to(torch.bfloat16))(y_f, (1, L), axes=(1, 2))[:, 0, :S, :]
        y = y + kv * ssm_D[None, None, :]
        return q * y

    def _B_ref(x, w1, w2, w3, w4):
        B, S, D = x.shape
        h = _gelu(_layernorm(x, axis=-1) @ w1)
        c = D // 4
        g0 = _pad(h[:, :, 0*c:1*c], ((0, 0), (1, 0), (0, 0)))[:, :S, :]
        g1 = _pad(h[:, :, 1*c:2*c], ((0, 0), (0, 1), (0, 0)))[:, 1:, :]
        g2 = _pad(h[:, :, 2*c:3*c], ((0, 0), (2, 0), (0, 0)))[:, :S, :]
        g3 = _pad(h[:, :, 3*c:   ], ((0, 0), (0, 2), (0, 0)))[:, 2:, :]
        hs = torch.concatenate([g0, g1, g2, g3], axis=-1) @ w2
        x1 = x + hs
        h2 = _gelu(_layernorm(x1, axis=-1) @ w3) @ w4
        return x1 + h2

    x = A_q
    h = x + _A_ref(_layernorm(x, axis=-1), A_k, A_v, A_shift_k, A_ssm_k, A_ssm_D)
    h2 = h + _B_ref(_layernorm(h, axis=-1), B_w1, B_w2, B_w3, B_w4)
    return h2
```

```python
import re

TRANS = ('v_exp_f32', 'v_log_f32', 'v_rcp_f32', 'v_rsq_f32', 'v_sqrt_f32', 'v_sin_f32', 'v_cos_f32')

def regs_of(op):
    op = op.strip()
    op = re.sub(r'^-|^\||\|$', '', op)
    m = re.match(r'^abs\((.*)\)$', op)
    if m: op = m.group(1)
    m = re.match(r'^([vas])(\d+)$', op)
    if m: return {(m.group(1), int(m.group(2)))}
    m = re.match(r'^([vas])\[(\d+):(\d+)\]$', op)
    if m: return {(m.group(1), i) for i in range(int(m.group(2)), int(m.group(3)) + 1)}
    if op in ('vcc', 'vcc_lo', 'vcc_hi'): return {('vcc', 0)}
    if op == 'm0': return {('m0', 0)}
    if op in ('exec', 'exec_lo', 'exec_hi'): return {('exec', 0)}
    return set()

def split_ops(s):
    out = []; depth = 0; cur = ''
    for c in s:
        if c in '[(': depth += 1
        if c in '])': depth -= 1
        if c == ',' and depth == 0:
            out.append(cur.strip()); cur = ''
        else: cur += c
    if cur.strip(): out.append(cur.strip())
    return out

class Ins:
    def __init__(self, text):
        self.text = text
        t = text.split(';')[0].strip()
        self.label = t.endswith(':')
        self.directive = t.startswith('.')
        self.op = ''
        self.w = set(); self.r = set()
        self.kind = 'other'
        self.passes = 0
        self.srcc = set(); self.srcab = set(); self.sdata = set()
        self.dpp = False
        if self.label or self.directive or not t:
            self.kind = 'meta'; return
        parts = t.split(None, 1)
        op = self.op = parts[0]
        rest = parts[1] if len(parts) > 1 else ''
        ops = split_ops(rest)
        mods = ''
        if ops:
            sp = ops[-1].split(None, 1)
            if len(sp) > 1 and not ops[-1].startswith('hwreg') and not op.startswith('s_waitcnt'):
                ops[-1] = sp[0]; mods = sp[1]
        self.mods = mods
        R = [regs_of(o) for o in ops]
        allr = lambda l: set().union(*l) if l else set()
        if op.startswith('v_mfma'):
            self.kind = 'mfma'
            self.passes = 8 if '32x32x16' in op else (4 if '16x16x32' in op else 16)
            self.w = R[0]; self.srcab = R[1] | R[2]; self.srcc = R[3]; self.r = self.srcab | self.srcc
        elif op.startswith('v_'):
            self.kind = 'valu'
            self.r = {('exec', 0)}
            if op.startswith('v_cmp'):
                self.w = R[0]; self.r |= allr(R[1:])
                if op.startswith('v_cmpx'): self.w |= {('exec', 0)}
            elif op.startswith('v_permlane'):
                self.w = R[0] | R[1]; self.r |= R[0] | R[1]
            elif '_co_' in op:
                self.w = R[0] | R[1]; self.r |= allr(R[2:])
            elif op.startswith(('v_fmac', 'v_dot2c', 'v_writelane', 'v_pk_fmac')):
                self.w = R[0]; self.r |= allr(R)
            elif op == 'v_nop':
                pass
            else:
                self.w = R[0]; self.r |= allr(R[1:])
                if op.startswith('v_cndmask') and len(ops) == 3: self.r |= {('vcc', 0)}
            if any(k in mods for k in ('quad_perm', 'row_', 'wave_', 'bcast')):
                self.dpp = True; self.r |= R[0]
        elif op.startswith('ds_'):
            self.kind = 'ds'
            if op.startswith(('ds_read', 'ds_bpermute', 'ds_permute', 'ds_swizzle')):
                self.w = R[0]; self.r = allr(R[1:])
            else: self.r = allr(R)
        elif op.startswith(('buffer_', 'global_')):
            self.kind = 'vmem'
            if op.startswith(('buffer_wbl2', 'buffer_inv')): pass
            elif 'load' in op and (' lds' in ' ' + mods or '_lds_' in op):
                self.r = allr(R) | {('m0', 0)}; self.kind = 'vmem'; self.dma = True
            elif 'load' in op:
                self.w = R[0]; self.r = allr(R[1:])
            elif 'atomic' in op:
                self.r = allr(R)
                if 'sc0' in mods: self.w = R[0]
            else:
                self.r = allr(R)
                if 'x3' in op or 'x4' in op:
                    self.sdata = R[0] if op.startswith('buffer') else R[1]
        elif op.startswith('s_'):
            self.kind = 'salu'
            if op.startswith(('s_cmp', 's_cbranch', 's_branch', 's_waitcnt', 's_barrier', 's_nop', 's_endpgm', 's_sleep', 's_setprio', 's_bitcmp')):
                self.r = allr(R)
            else:
                self.w = R[0] if R else set(); self.r = allr(R[1:])
                if 'saveexec' in op: self.w |= {('exec', 0)}
        self.nstates = 1
        if op == 's_nop': self.nstates = int(rest) + 1

def vg(s): return {x for x in s if x[0] in 'va' and x[0] != 'vcc'}
def sg(s): return {x for x in s if x[0] in ('s', 'vcc')}

def need(p, c):
    n = 0
    if p.kind == 'valu':
        pv = vg(p.w); ps = sg(p.w)
        if c.kind == 'mfma' and pv & c.r: n = max(n, 2)
        if c.kind == 'valu':
            if c.op.startswith('v_permlane') and pv & c.r: n = max(n, 2)
            if c.dpp and pv & c.r: n = max(n, 2)
            if c.op.startswith(('v_readlane', 'v_readfirstlane')) and pv & c.r: n = max(n, 1)
            if ps & c.r:
                n = max(n, 4 if c.op.startswith(('v_readlane', 'v_writelane')) else 2)
            if p.op.replace('_e32', '').replace('_e64', '') in TRANS and pv & c.r and c.op.replace('_e32', '').replace('_e64', '') not in TRANS: n = max(n, 1)
            if p.op.startswith('v_dot') and (pv & (c.r | c.w)):
                if not (c.op == p.op and not (pv & (c.r - vg(c.w)))): n = max(n, 3)
            if ('op_sel' in p.mods or 'sdwa' in p.op or 'dst_sel' in p.mods) and pv & c.r: n = max(n, 1)
            if ('exec', 0) in p.w:
                if c.dpp: n = max(n, 5)
                elif c.op.startswith(('v_readlane', 'v_readfirstlane', 'v_writelane', 'v_permlane')): n = max(n, 4)
        if p.op.startswith('v_dot') and c.kind in ('ds', 'vmem', 'mfma') and pv & (c.r | c.w): n = max(n, 3)
        if c.kind == 'vmem' and ps & c.r: n = max(n, 5)
        if c.kind == 'mfma' and ('exec', 0) in p.w: n = max(n, 4)
        if c.kind == 'salu' and ps & c.r: n = max(n, 1)
    if p.kind == 'mfma':
        t1 = {2: 5, 4: 8, 8: 12, 16: 20}[p.passes]
        t2 = {2: 4, 4: 6, 8: 10, 16: 18}[p.passes]
        t3 = {2: 1, 4: 3, 8: 7, 16: 15}[p.passes]
        if c.kind == 'mfma':
            if p.w & c.srcab: n = max(n, t1)
            if p.w & c.srcc:
                if p.w == c.srcc and p.passes == c.passes: n = max(n, 2 if p.passes == 2 else 0)
                else: n = max(n, t2)
            elif p.w & c.w: n = max(n, t1)
        elif c.kind in ('valu', 'ds', 'vmem'):
            if p.w & (c.r | c.w): n = max(n, t1)
            if c.kind == 'valu' and p.srcc & c.w: n = max(n, t3)
    if p.kind == 'vmem' and p.sdata and c.kind != 'meta':
        if p.sdata & c.w: n = max(n, 2)
    if p.kind == 'salu' and ('m0', 0) in p.w and ('m0', 0) in c.r and c.kind in ('vmem', 'ds', 'valu'): n = max(n, 1)
    return n

class Asm:
    def __init__(self):
        self.L = []
    def __call__(self, text):
        for line in text.split('\n'):
            line = line.strip()
            if line: self.L.append(line)
    def finish(self):
        ins = [Ins(t) for t in self.L]
        labels = {i.text.split(':')[0]: k for k, i in enumerate(ins) if i.label}
        W = 24
        def preds(k):
            chains = []
            def walk(pos, acc, states):
                while True:
                    pos -= 1
                    if pos < 0 or states >= W:
                        chains.append(acc); return
                    i = ins[pos]
                    if i.label:
                        name = i.text.split(':')[0]
                        for b in branches.get(name, []):
                            if (b, name) not in seen:
                                seen.add((b, name)); walk(b + 1, list(acc), states); seen.discard((b, name))
                        continue
                    if i.kind == 'meta': continue
                    if i.op in ('s_branch', 's_endpgm') and acc_is_fallthrough(pos, acc, start):
                        return
                    acc = acc + [pos]; states += i.nstates + extra.get(pos, 0)
            seen = set(); start = k
            walk(k, [], 0)
            return chains
        def acc_is_fallthrough(pos, acc, start):
            nxt = acc[-1] if acc else start
            tgt = ins[pos].text.split()[-1] if ins[pos].op == 's_branch' else None
            if tgt is None: return True
            lab = labels[tgt]
            if lab < nxt and all(ins[j].kind == 'meta' for j in range(lab, nxt)): return False
            return True
        branches = {}
        for k, i in enumerate(ins):
            if i.op.startswith(('s_cbranch', 's_branch')):
                branches.setdefault(i.text.split(';')[0].split()[-1], []).append(k)
        extra = {}
        changed = True
        while changed:
            changed = False
            for k, c in enumerate(ins):
                if c.kind == 'meta': continue
                req = 0
                for ch in preds(k):
                    dist = 0
                    for p in ch:
                        n = need(ins[p], c)
                        if n > dist: req = max(req, n - dist)
                        dist += ins[p].nstates + extra.get(p, 0)
                if req > extra.get(k, 0):
                    extra[k] = req; changed = True
        out = []; self.nops = 0
        for k, i in enumerate(ins):
            e = extra.get(k, 0)
            self.nops += e
            while e > 0:
                n = min(e, 16); out.append('s_nop %d' % (n - 1)); e -= n
            out.append(i.text)
        return '\n'.join(('' if (l.endswith(':') or l.startswith('.')) else '  ') + l for l in out) + '\n'

def vr(a, n=1): return 'v%d' % a if n == 1 else 'v[%d:%d]' % (a, a + n - 1)
def ar(a, n=1): return 'a%d' % a if n == 1 else 'a[%d:%d]' % (a, a + n - 1)
def sr(a, n=1): return 's%d' % a if n == 1 else 's[%d:%d]' % (a, a + n - 1)
def ur(a, n=1):
    return vr(a, n) if a < 256 else ar(a - 256, n)
```

```python
import sys
from asmlib import *

MB = 1 << 20
KVR = 0; XT = 2 * MB; HT = 4 * MB; ZB = 6 * MB; X1B = 8 * MB; HB = 10 * MB
W1P = 16 * MB; W2P = W1P + 512 * 1024; W3P = W2P + 512 * 1024; W4P = W3P + 1408 * 1024
ST0 = 20 * MB
ST1 = ST0 + 65536
CARRY = 21 * MB
HTH = 176 * 512
EPS = 1e-5
import struct
def f2u(f): return struct.unpack('<I', struct.pack('<f', f))[0]
C0 = -2.0 * 0.7978845608028654 * 1.4426950408889634
C1 = C0 * 0.044715

def prologue(a, name):
    a('s_cmp_ge_u32 s2, 256')
    a('s_cbranch_scc1 %s_end' % name)
    a('s_load_dwordx16 s[4:19], s[0:1], 0')
    a('s_load_dwordx8 s[20:27], s[0:1], 64')
    a('s_load_dwordx4 s[28:31], s[0:1], 96')
    a('v_lshrrev_b32 v1, 6, v0')
    a('v_readfirstlane_b32 s48, v1')
    a('v_and_b32 v1, 63, v0')
    a('s_waitcnt lgkmcnt(0)')
    srd(a, 32, 30, 0x10000000)

def srd(a, d, p, size, off=None):
    if off is None:
        a('s_mov_b32 s%d, s%d' % (d, p)); a('s_mov_b32 s%d, s%d' % (d + 1, p + 1))
    else:
        a('s_add_u32 s%d, s%d, %s' % (d, p, off)); a('s_addc_u32 s%d, s%d, 0' % (d + 1, p + 1))
    a('s_mov_b32 s%d, 0x%x' % (d + 2, size)); a('s_mov_b32 s%d, 0x20000' % (d + 3))

def allreduce(a, regs, tmps):
    for m in ('quad_perm:[1,0,3,2]', 'quad_perm:[2,3,0,1]', 'row_half_mirror', 'row_mirror'):
        for r in regs: a('v_add_f32_dpp v%d, v%d, v%d %s row_mask:0xf bank_mask:0xf' % (r, r, r, m))
    for sw in ('v_permlane16_swap_b32', 'v_permlane32_swap_b32'):
        for r, t in zip(regs, tmps): a('v_mov_b32 v%d, v%d' % (t, r))
        for r, t in zip(regs, tmps): a('%s v%d, v%d' % (sw, r, t))
        for r, t in zip(regs, tmps): a('v_add_f32 v%d, v%d, v%d' % (r, r, t))

def k_prep(a):
    n = 'prep'
    prologue(a, n)
    a('s_cmp_ge_u32 s48, 4'); a('s_cbranch_scc1 prep_aux')
    srd(a, 36, 6, 2 * MB); srd(a, 40, 8, 2 * MB); srd(a, 44, 4, 2 * MB)
    a('s_lshr_b32 s49, s2, 3'); a('s_and_b32 s50, s2, 7')
    a('s_lshl_b32 s51, s49, 6'); a('s_lshl_b32 s52, s48, 4'); a('s_add_u32 s51, s51, s52')
    a('v_lshrrev_b32 v2, 5, v1'); a('v_lshl_add_u32 v2, v2, 3, s51')
    a('v_and_b32 v3, 31, v1'); a('s_lshl_b32 s52, s50, 5'); a('v_add_u32 v3, s52, v3')
    a('v_lshlrev_b32 v4, 10, v2'); a('v_lshl_add_u32 v4, v3, 2, v4')
    a('v_add_u32 v5, 0xfffff400, v4')
    a('v_lshlrev_b32 v6, 4, v3')
    a('s_movk_i32 s53, 0x1000')
    for i in range(3): a('buffer_load_dword v%d, v5, s[36:39], 0 offen offset:%d' % (16 + i, 1024 * i))
    for i in range(8): a('buffer_load_dword v%d, v4, s[36:39], %s offen offset:%d' % (19 + i, 's53' if i >= 4 else '0', 1024 * (i & 3)))
    a('global_load_dwordx4 v[44:47], v6, s[10:11]')
    for i in range(8): a('buffer_load_dword v%d, v4, s[40:43], %s offen offset:%d' % (28 + i, 's53' if i >= 4 else '0', 1024 * (i & 3)))
    for i in range(8): a('buffer_load_dword v%d, v4, s[44:47], %s offen offset:%d' % (36 + i, 's53' if i >= 4 else '0', 1024 * (i & 3)))
    a('v_lshlrev_b32 v7, 13, v3')
    a('v_lshlrev_b32 v8, 1, v2')
    a('v_add_u32 v9, v7, v8'); a('v_add_u32 v9, 0x%x, v9' % XT)
    a('v_sub_u32 v7, v7, v8'); a('v_add_u32 v7, %d, v7' % (4080 + KVR))
    a('s_mov_b32 s54, 0xffff0000'); a('s_mov_b32 s55, 0x05040100'); a('s_mov_b32 s56, 0x07060302')
    a('s_waitcnt vmcnt(16)')
    for i in range(11):
        a('v_lshlrev_b32 v%d, 16, v%d' % (48 + 2 * i, 16 + i)); a('v_and_b32 v%d, s54, v%d' % (49 + 2 * i, 16 + i))
    for j in range(4):
        for c in range(2):
            src = 44 + 2 * c + (j >> 1)
            a(('v_and_b32 v%d, s54, v%d' if j & 1 else 'v_lshlrev_b32 v%d, 16, v%d') % (70 + 2 * j + c, src))
    for i in range(8): a('v_pk_mul_f32 %s, %s, %s' % (vr(94 + 2 * i, 2), vr(48 + 2 * i, 2), vr(76, 2)))
    for t in (1, 2, 3):
        for i in range(8): a('v_pk_fma_f32 %s, %s, %s, %s' % (vr(94 + 2 * i, 2), vr(48 + 2 * (i + t), 2), vr(76 - 2 * t, 2), vr(94 + 2 * i, 2)))
    a('s_waitcnt vmcnt(8)')
    for i in range(8):
        a('v_lshlrev_b32 v%d, 16, v%d' % (78 + 2 * i, 28 + i)); a('v_and_b32 v%d, s54, v%d' % (79 + 2 * i, 28 + i))
    for i in range(8): a('v_pk_mul_f32 %s, %s, %s' % (vr(94 + 2 * i, 2), vr(94 + 2 * i, 2), vr(78 + 2 * i, 2)))
    for c in range(2):
        for i in range(4): a('v_cvt_pk_bf16_f32 v%d, v%d, v%d' % (112 + 4 * c + i, 94 + 2 * (7 - 2 * i) + c, 94 + 2 * (6 - 2 * i) + c))
    a('buffer_store_dwordx4 v[112:115], v7, s[32:35], 0 offen')
    a('buffer_store_dwordx4 v[116:119], v7, s[32:35], s53 offen')
    a('s_waitcnt vmcnt(2)')
    for c in range(2):
        for i in range(4): a('v_perm_b32 v%d, v%d, v%d, s%d' % (120 + 4 * c + i, 37 + 2 * i, 36 + 2 * i, 55 + c))
    a('buffer_store_dwordx4 v[120:123], v9, s[32:35], 0 offen')
    a('buffer_store_dwordx4 v[124:127], v9, s[32:35], s53 offen')
    a('s_endpgm')
    a('prep_aux:')
    a('s_sub_u32 s48, s48, 4')
    a('s_lshl_b32 s49, s2, 2'); a('s_add_u32 s49, s49, s48')
    a('s_lshl_b32 s50, s49, 11'); a('v_lshl_add_u32 v2, v1, 4, s50')
    a('global_load_dwordx4 v[16:19], v2, s[4:5]')
    a('global_load_dwordx4 v[20:23], v2, s[4:5] offset:1024')
    a('s_mov_b32 s55, 0x05040100'); a('s_mov_b32 s56, 0x07060302'); a('s_mov_b32 s54, 0xffff0000')
    a('v_and_b32 v3, 31, v1'); a('v_lshrrev_b32 v4, 5, v1')
    a('v_lshlrev_b32 v5, 13, v4'); a('v_lshl_add_u32 v5, v3, 2, v5')
    a('v_and_b32 v6, 9, v3'); a('v_lshlrev_b32 v6, 1, v6')
    a('v_and_b32 v7, 2, v3'); a('v_lshl_or_b32 v6, v7, 2, v6')
    a('v_and_b32 v7, 4, v3'); a('v_or_b32 v6, v6, v7')
    a('v_lshl_add_u32 v6, v4, 5, v6'); a('v_lshlrev_b32 v6, 4, v6')
    a('v_lshrrev_b32 v7, 4, v3'); a('v_lshl_add_u32 v6, v7, 10, v6')
    def typeA(sid, sd, vsrc, vdst):
        a('s_and_b32 s57, s%d, 7' % sid); a('s_lshr_b32 s58, s%d, 3' % sid)
        a('s_cmp_lt_u32 s58, 32')
        a('s_cselect_b32 s%d, s18, s20' % sd); a('s_cselect_b32 s%d, s19, s21' % (sd + 1))
        a('s_cselect_b32 s59, 0x%x, 0x%x' % (W1P, W2P - 32 * 2048) if False else 's_cselect_b32 s59, 0, 32')
        a('s_mov_b32 s68, 0x%x' % W1P); a('s_mov_b32 s69, 0x%x' % W2P); a('s_cselect_b32 s68, s68, s69')
        a('s_mov_b32 s70, 0x10000'); a('s_mov_b32 s71, 0x80000')
        a('s_cmp_lt_u32 s58, 64')
        a('s_cselect_b32 s%d, s%d, s24' % (sd, sd)); a('s_cselect_b32 s%d, s%d, s25' % (sd + 1, sd + 1))
        a('s_cselect_b32 s59, s59, 64')
        a('s_cselect_b32 s68, s68, 0x%x' % W4P); a('s_cselect_b32 s70, s70, %d' % (86 * 2048))
        a('s_cselect_b32 s%d, s71, %d' % (sd + 2, 1376 * 1024)); a('s_mov_b32 s%d, 0x20000' % (sd + 3))
        a('s_sub_u32 s58, s58, s59')
        a('s_mul_i32 s70, s70, s57'); a('s_add_u32 s68, s68, s70'); a('s_lshl_b32 s70, s58, 11'); a('s_add_u32 s68, s68, s70')
        a('v_add_u32 v%d, s68, v6' % vdst)
        a('s_lshl_b32 s70, s58, 14'); a('s_lshl_b32 s71, s57, 7'); a('s_add_u32 s70, s70, s71')
        a('v_add_u32 v%d, s70, v5' % vsrc)
    typeA(49, 36, 8, 9)
    for e in range(8): a('s_movk_i32 s%d, %d' % (60 + e, 1024 * e))
    for e in range(8): a('buffer_load_dword v%d, v8, s[36:39], s%d offen' % (24 + e, 60 + e))
    a('s_add_u32 s49, s49, 1024')
    a('s_mov_b32 s72, 0')
    a('s_cmp_ge_u32 s49, 1888'); a('s_cbranch_scc1 prep_t1done')
    a('s_mov_b32 s72, 1')
    a('s_cmp_ge_u32 s49, 1200'); a('s_cbranch_scc1 prep_t1B')
    typeA(49, 40, 10, 11)
    a('s_branch prep_t1load')
    a('prep_t1B:')
    srd(a, 40, 22, 512 * 2752)
    a('s_sub_u32 s57, s49, 1200'); a('s_and_b32 s58, s57, 15'); a('s_lshr_b32 s57, s57, 4')
    a('v_and_b32 v12, 15, v1'); a('v_lshrrev_b32 v13, 4, v1')
    a('s_mul_i32 s70, s58, %d' % (32 * 2752)); a('s_lshl_b32 s71, s57, 6'); a('s_add_u32 s70, s70, s71')
    a('v_mul_u32_u24 v10, %d, v13' % (8 * 2752)); a('v_lshl_add_u32 v10, v12, 2, v10'); a('v_add_u32 v10, s70, v10')
    a('s_lshl_b32 s70, s57, 15'); a('s_lshl_b32 s71, s58, 10'); a('s_add_u32 s70, s70, s71'); a('s_add_u32 s70, s70, 0x%x' % W3P)
    a('v_and_b32 v11, 7, v12'); a('v_lshlrev_b32 v11, 5, v11'); a('v_lshl_add_u32 v11, v13, 8, v11')
    a('v_lshrrev_b32 v12, 3, v12'); a('v_lshl_add_u32 v11, v12, 14, v11'); a('v_add_u32 v11, s70, v11')
    for e in range(8): a('s_movk_i32 s%d, %d' % (60 + e, 2752 * e))
    a('prep_t1load:')
    for e in range(8): a('buffer_load_dword v%d, v10, s[40:43], s%d offen' % (32 + e, 60 + e))
    a('s_waitcnt vmcnt(16)')
    a('s_branch prep_stats')
    a('prep_t1done:')
    a('s_waitcnt vmcnt(8)')
    a('prep_stats:')
    for r in range(2):
        for i in range(4):
            a('v_lshlrev_b32 v%d, 16, v%d' % (48 + 8 * r + 2 * i, 16 + 4 * r + i)); a('v_and_b32 v%d, s54, v%d' % (49 + 8 * r + 2 * i, 16 + 4 * r + i))
    for r in range(2): a('v_add_f32 v%d, v%d, v%d' % (64 + r, 48 + 8 * r, 49 + 8 * r))
    for i in range(2, 8):
        for r in range(2): a('v_add_f32 v%d, v%d, v%d' % (64 + r, 64 + r, 48 + 8 * r + i))
    allreduce(a, [64, 65], [66, 67])
    for r in range(2): a('v_mul_f32 v%d, 0x%x, v%d' % (64 + r, f2u(1.0 / 512), 64 + r))
    for i in range(8):
        for r in range(2): a('v_sub_f32 v%d, v%d, v%d' % (48 + 8 * r + i, 48 + 8 * r + i, 64 + r))
    for r in range(2): a('v_mul_f32 v%d, v%d, v%d' % (68 + r, 48 + 8 * r, 48 + 8 * r))
    for i in range(1, 8):
        for r in range(2): a('v_fmac_f32 v%d, v%d, v%d' % (68 + r, 48 + 8 * r + i, 48 + 8 * r + i))
    allreduce(a, [68, 69], [66, 67])
    a('v_mov_b32 v70, 0x%x' % f2u(EPS))
    for r in range(2): a('v_fmac_f32 v70, 0x%x, v%d' % (f2u(1.0 / 512), 68 + r) if False else 'v_fmamk_f32 v%d, v%d, 0x%x, v70' % (68 + r, 68 + r, f2u(1.0 / 512)))
    for r in range(2): a('v_rsq_f32 v%d, v%d' % (68 + r, 68 + r))
    a('s_lshl_b32 s50, s2, 5'); a('s_lshl_b32 s51, s48, 3'); a('s_add_u32 s50, s50, s51'); a('s_add_u32 s50, s50, 0x%x' % ST0)
    a('v_mov_b32 v2, s50')
    a('s_mov_b64 exec, 1')
    a('s_movk_i32 s53, 0x2000')
    a('buffer_store_dwordx2 v[64:65], v2, s[32:35], 0 offen')
    a('buffer_store_dwordx2 v[68:69], v2, s[32:35], s53 offen')
    a('s_mov_b64 exec, -1')
    a('s_waitcnt vmcnt(0)')
    for c in range(2):
        for i in range(4): a('v_perm_b32 v%d, v%d, v%d, s%d' % (72 + 4 * c + i, 25 + 2 * i, 24 + 2 * i, 55 + c))
    a('buffer_store_dwordx4 v[72:75], v9, s[32:35], 0 offen')
    a('buffer_store_dwordx4 v[76:79], v9, s[32:35], 0 offen offset:16')
    a('s_cmp_eq_u32 s72, 0'); a('s_cbranch_scc1 prep_end')
    for c in range(2):
        for i in range(4): a('v_perm_b32 v%d, v%d, v%d, s%d' % (80 + 4 * c + i, 33 + 2 * i, 32 + 2 * i, 55 + c))
    a('buffer_store_dwordx4 v[80:83], v11, s[32:35], 0 offen')
    a('buffer_store_dwordx4 v[84:87], v11, s[32:35], 0 offen offset:16')
    a('prep_end:')
    a('s_endpgm')

CS = 4160
L_E4 = 0
L_KV = 33280
L_RED = L_KV + 2 * 4608
CONV_LDS = L_RED + 16384
def k_conv(a):
    n = 'conv'
    prologue(a, n)
    a('s_lshr_b32 s49, s48, 1'); a('s_and_b32 s50, s48, 1')
    a('s_and_b32 s51, s2, 7'); a('s_lshl_b32 s51, s51, 6'); a('s_lshr_b32 s52, s2, 3'); a('s_lshl_b32 s52, s52, 1')
    a('s_add_u32 s51, s51, s52')
    a('s_lshl_b32 s53, s51, 1'); a('s_load_dword s54, s[14:15], s53')
    a('s_add_u32 s51, s51, s49')
    a('s_lshl_b32 s52, s51, 12')
    srd(a, 36, 12, 4096, 's52')
    a('s_lshl_b32 s53, s50, 11'); a('v_lshl_add_u32 v2, v1, 4, s53')
    a('v_add_u32 v3, -8, v2'); a('v_add_u32 v4, 1016, v2')
    a('buffer_load_dwordx2 v[16:17], v3, s[36:39], 0 offen')
    a('buffer_load_dwordx4 v[18:21], v2, s[36:39], 0 offen')
    a('buffer_load_dwordx2 v[22:23], v4, s[36:39], 0 offen')
    a('buffer_load_dwordx4 v[24:27], v2, s[36:39], 0 offen offset:1024')
    a('s_mul_i32 s55, s49, 4608'); a('s_add_u32 s55, s55, %d' % L_KV)
    a('s_add_u32 s56, s55, s53'); a('s_mov_b32 m0, s56')
    a('s_add_u32 s57, s52, %d' % KVR)
    a('buffer_load_dwordx4 v2, s[32:35], s57 offen lds')
    a('buffer_load_dwordx4 v2, s[32:35], s57 offen offset:1024 lds')
    a('v_and_b32 v5, 15, v1'); a('v_lshrrev_b32 v6, 4, v1')
    a('v_lshlrev_b32 v7, 4, v5'); a('v_lshl_add_u32 v7, v6, 2, v7'); a('s_lshl_b32 s56, s50, 10'); a('v_add_u32 v7, s56, v7')
    a('v_lshlrev_b32 v8, 1, v7'); a('v_lshlrev_b32 v9, 2, v7')
    a('s_add_u32 s57, s52, 0x%x' % XT)
    for i in range(4): a('buffer_load_dwordx2 %s, v8, s[32:35], s57 offen offset:%d' % (vr(208 + 2 * i, 2), 512 * i))
    a('s_mov_b32 s57, 0x%x' % ST0); a('s_mov_b32 s58, 0x%x' % (ST0 + 8192))
    for i in range(4): a('buffer_load_dwordx4 %s, v9, s[32:35], s57 offen offset:%d' % (vr(216 + 4 * i, 4), 1024 * i))
    for i in range(4): a('buffer_load_dwordx4 %s, v9, s[32:35], s58 offen offset:%d' % (vr(232 + 4 * i, 4), 1024 * i))
    for i in range(4): a('v_mov_b32 v%d, 0' % (28 + i))
    a('v_and_b32 v10, 31, v1'); a('v_lshlrev_b32 v10, 4, v10'); a('v_add_u32 v10, s55, v10')
    a('ds_write_b128 v10, v[28:31] offset:4096')
    a('s_mul_i32 s59, s49, %d' % (4 * CS))
    a('v_and_b32 v10, 1, v1'); a('v_lshlrev_b32 v10, 4, v10'); a('v_bfe_u32 v11, v1, 1, 2'); a('v_mul_u32_u24 v11, %d, v11' % CS)
    a('v_add3_u32 v10, v10, v11, s59')
    a('ds_write_b128 v10, v[28:31] offset:%d' % L_E4)
    a('v_add_u32 v10, s59, v2')
    a('s_waitcnt vmcnt(16)')
    for i in range(2):
        W = 16 + 6 * i
        if i == 1: a('s_waitcnt vmcnt(14)')
        b = 32 + 12 * i
        for x in range(4): a('v_alignbit_b32 v%d, v%d, v%d, 16' % (b + x, W + x + 1, W + x))
        for x in range(4): a('v_mov_b32 v%d, v%d' % (b + 4 + x, W + x + 1))
        for x in range(4): a('v_alignbit_b32 v%d, v%d, v%d, 16' % (b + 8 + x, W + x + 2, W + x + 1))
        o = L_E4 + 32 + 1024 * i
        a('ds_write_b128 v10, %s offset:%d' % (vr(W + 2, 4), o + 3 * CS))
        a('ds_write_b128 v10, %s offset:%d' % (vr(b, 4), o))
        a('ds_write_b128 v10, %s offset:%d' % (vr(b + 4, 4), o + CS))
        a('ds_write_b128 v10, %s offset:%d' % (vr(b + 8, 4), o + 2 * CS))
    a('v_and_b32 v11, 3, v5'); a('v_mul_u32_u24 v11, %d, v11' % CS); a('v_and_b32 v12, 12, v5'); a('v_lshl_add_u32 v11, v12, 1, v11')
    a('v_lshl_add_u32 v11, v6, 4, v11'); a('s_lshl_b32 s56, s50, 8'); a('s_add_u32 s57, s56, s59'); a('s_add_u32 s57, s57, %d' % (L_E4 + 8))
    a('v_add_u32 v11, s57, v11')
    a('v_lshlrev_b32 v12, 4, v6'); a('v_lshlrev_b32 v13, 5, v5'); a('v_sub_u32 v12, v12, v13')
    a('s_add_u32 s57, s56, s55'); a('s_add_u32 s57, s57, 480'); a('v_add_u32 v12, s57, v12')
    a('s_add_u32 s57, s55, %d' % (2 * (2044 - 768))); a('v_sub_u32 v13, s57, v8')
    a('v_lshlrev_b32 v14, 4, v1'); a('s_lshl_b32 s57, s48, 12'); a('s_xor_b32 s58, s57, 0x1000')
    a('v_add_u32 v15, s57, v14'); a('v_add_u32 v14, s58, v14')
    a('s_waitcnt vmcnt(12) lgkmcnt(0)')
    a('s_barrier')
    ACC = 16; FR = 48
    def A(st, x): return FR + 64 * st + 4 * x
    def B(st, x): return FR + 64 * st + 32 + 4 * x
    def reads(rho):
        st = rho & 1; l = []
        for x in range(8):
            l.append('ds_read_b64 %s, v11 offset:%d' % (vr(A(st, x), 2), 512 * x + 64 * rho))
            l.append('ds_read_b64 %s, v11 offset:%d' % (vr(A(st, x) + 2, 2), 512 * x + 64 * rho + 8))
            l.append('ds_read_b128 %s, v12 offset:%d' % (vr(B(st, x), 4), 512 * (7 - x) + 64 * rho))
        return l
    for r in reads(0): a(r)
    started = set()
    for rho in range(4):
        st = rho & 1
        nxt = reads(rho + 1) if rho < 3 else ['ds_read_b64 %s, v13 offset:%d' % (vr(176 + 2 * i, 2), 512 * (3 - i)) for i in range(4)]
        issued = 0; cnt = 0
        for x in range(8):
            pairs = [(x, b) for b in range(x + 1) if x + b <= 7] + [(aa, x) for aa in range(x) if aa + x <= 7]
            if rho == 0:
                a('s_waitcnt lgkmcnt(%d)' % min(15, 3 * (7 - x) + issued))
            elif x == 0:
                a('s_waitcnt lgkmcnt(0)')
            for (aa, bb) in pairs:
                t = aa + bb
                c = vr(ACC + 4 * t, 4) if t in started else '0'
                started.add(t)
                a('v_mfma_f32_16x16x32_bf16 %s, %s, %s, %s' % (vr(ACC + 4 * t, 4), vr(A(st, aa), 4), vr(B(st, bb), 4), c))
                cnt += 1
                if (rho > 0 or x >= 3) and issued < len(nxt) and cnt <= 30:
                    a(nxt[issued]); issued += 1
        while issued < len(nxt): a(nxt[issued]); issued += 1
    a('s_cmp_eq_u32 s50, 0'); a('s_cbranch_scc1 conv_k0')
    for v, lab in ((1, None), (0, 'conv_k0')):
        if lab: a(lab + ':')
        snd = 0 if v else 4; keep = 4 - snd
        for i in range(4): a('ds_write_b128 v14, %s offset:%d' % (vr(ACC + 4 * (snd + i), 4), L_RED + 1024 * i))
        a('s_waitcnt lgkmcnt(0)'); a('s_barrier')
        for i in range(4): a('ds_read_b128 %s, v15 offset:%d' % (vr(48 + 4 * i, 4), L_RED + 1024 * i))
        for i in range(4):
            a('s_waitcnt lgkmcnt(%d)' % (3 - i))
            for r in range(4): a('v_add_f32 v%d, v%d, v%d' % (48 + 4 * i + r, 48 + 4 * i + r, ACC + 4 * (keep + i) + r))
        if v: a('s_branch conv_epi')
    a('conv_epi:')
    a('s_lshl_b32 s56, s54, 16'); a('s_and_b32 s57, s54, 0xffff0000'); a('s_cmp_eq_u32 s49, 0'); a('s_cselect_b32 s54, s56, s57')
    a('s_mov_b32 s56, 0xffff0000')
    a('v_and_b32 v2, 1, v6'); a('v_lshlrev_b32 v2, 18, v2'); a('v_lshrrev_b32 v3, 2, v5'); a('v_lshl_add_u32 v2, v3, 16, v2')
    a('v_and_b32 v3, 3, v5'); a('v_lshl_add_u32 v2, v3, 5, v2'); a('v_lshrrev_b32 v3, 1, v6'); a('v_lshl_add_u32 v2, v3, 4, v2')
    a('s_lshl_b32 s57, s50, 20'); a('s_lshl_b32 s58, s51, 7'); a('s_add_u32 s57, s57, s58'); a('s_add_u32 s57, s57, 0x%x' % HT)
    a('s_add_u32 s58, s57, 0x80000')
    a('s_waitcnt vmcnt(0)')
    for i in range(4):
        kvv = 64; xx = 68
        a('v_and_b32 v%d, s56, v%d' % (kvv + 0, 177 + 2 * i)); a('v_lshlrev_b32 v%d, 16, v%d' % (kvv + 1, 177 + 2 * i))
        a('v_and_b32 v%d, s56, v%d' % (kvv + 2, 176 + 2 * i)); a('v_lshlrev_b32 v%d, 16, v%d' % (kvv + 3, 176 + 2 * i))
        a('v_lshlrev_b32 v%d, 16, v%d' % (xx + 0, 208 + 2 * i)); a('v_and_b32 v%d, s56, v%d' % (xx + 1, 208 + 2 * i))
        a('v_lshlrev_b32 v%d, 16, v%d' % (xx + 2, 209 + 2 * i)); a('v_and_b32 v%d, s56, v%d' % (xx + 3, 209 + 2 * i))
        for r in range(4): a('v_fmac_f32 v%d, s54, v%d' % (48 + 4 * i + r, kvv + r))
        for r in range(4): a('v_sub_f32 v%d, v%d, v%d' % (72 + r, xx + r, 216 + 4 * i + r))
        for r in range(4): a('v_mul_f32 v%d, v%d, v%d' % (72 + r, 72 + r, 232 + 4 * i + r))
        for r in range(4): a('v_fmac_f32 v%d, v%d, v%d' % (xx + r, 72 + r, 48 + 4 * i + r))
        o = 80 + 2 * i
        a('v_cvt_pk_bf16_f32 v%d, v%d, v%d' % (o, xx, xx + 1)); a('v_cvt_pk_bf16_f32 v%d, v%d, v%d' % (o + 1, xx + 2, xx + 3))
        if i & 1:
            a('v_permlane16_swap_b32 v%d, v%d' % (o - 2, o)); a('v_permlane16_swap_b32 v%d, v%d' % (o - 1, o + 1))
            a('buffer_store_dwordx4 %s, v2, s[32:35], s%d offen' % (vr(o - 2, 4), 57 + (i >> 1)))
    a('conv_end:')
    a('s_endpgm')

def tc_ids(a):
    a('s_and_b32 s49, s2, 7'); a('s_lshl_b32 s49, s49, 2'); a('s_bfe_u32 s50, s2, 0x20003'); a('s_add_u32 s49, s49, s50')
    a('s_lshr_b32 s50, s2, 5')
    a('s_and_b32 s51, s48, 1'); a('s_lshr_b32 s52, s48, 1')

G_RED = 65536
G_ST = G_RED + 49152
G_LDS = G_ST + 2048
ACC = 16
def acc(th, ch): return ACC + 32 * th + 16 * ch

def red_addrs(a):
    a('v_lshlrev_b32 v13, 4, v1')
    for slot in range(3):
        th, ch = slot >> 1, slot & 1
        a('s_xor_b32 s53, s48, %d' % ((1 - th) + 2 * (1 - ch))); a('s_mul_i32 s53, s53, 12288'); a('s_add_u32 s53, s53, %d' % (G_RED + 4096 * slot))
        a('v_add_u32 v%d, s53, v13' % (10 + slot))
    a('s_mul_i32 s53, s48, 12288'); a('s_add_u32 s53, s53, %d' % G_RED); a('v_add_u32 v13, s53, v13')

def red_write(slot):
    th, ch = slot >> 1, slot & 1
    return ['ds_write_b128 v%d, %s offset:%d' % (10 + slot, vr(acc(th, ch) + 4 * q, 4), 1024 * q) for q in range(4)]

def red_read_add(a, tmp, extra_outstanding=0):
    for i in range(12): a('ds_read_b128 %s, v13 offset:%d' % (vr(tmp + 4 * i, 4), 1024 * i))
    o = acc(1, 1)
    for i in range(12):
        a('s_waitcnt lgkmcnt(%d)' % (11 - i))
        for r in range(4): a('v_add_f32 v%d, v%d, v%d' % (o + 4 * (i & 3) + r, o + 4 * (i & 3) + r, tmp + 4 * i + r))

def load_w(a, wbase, nks_total, nks, ks0_expr, dst):
    a('s_mul_i32 s53, s50, %d' % (nks_total * 2048)); a('s_mul_i32 s54, s48, %d' % (ks0_expr * 2048)); a('s_add_u32 s53, s53, s54')
    a('s_add_u32 s53, s53, 0x%x' % wbase)
    a('s_lshl_b32 s54, s52, 10'); a('v_lshl_add_u32 v2, v1, 4, s54'); a('v_xor_b32 v3, 0x400, v2')
    for s in range(nks):
        if s and s % 2 == 0: a('s_add_u32 s53, s53, 4096')
        a('buffer_load_dwordx4 %s, v3, s[32:35], s53 offen offset:%d' % (ur(dst + 8 * s, 4), 2048 * (s & 1)))
        a('buffer_load_dwordx4 %s, v2, s[32:35], s53 offen offset:%d' % (ur(dst + 8 * s + 4, 4), 2048 * (s & 1)))

def gelu(a, t, ca, cb, ri, tmp, n):
    l = []
    for i in range(n): l.append('v_mul_f32 v%d, v%d, v%d' % (tmp + i, t + i, t + i))
    for i in range(n): l.append('v_fma_f32 v%d, v%d, v%d, v%d' % (tmp + i, tmp + i, cb, ca))
    for i in range(n): l.append('v_mul_f32 v%d, v%d, v%d' % (tmp + i, tmp + i, t + i))
    for i in range(n): l.append('v_exp_f32 v%d, v%d' % (tmp + i, tmp + i))
    for i in range(n): l.append('v_fma_f32 v%d, v%d, v%d, v%d' % (tmp + i, tmp + i, ri, ri))
    for i in range(n): l.append('v_rcp_f32 v%d, v%d' % (tmp + i, tmp + i))
    for i in range(n): l.append('v_mul_f32 v%d, v%d, v%d' % (t + i, t + i, tmp + i))
    return l

def carry_addr(a, v):
    a('s_lshl_b32 s53, s2, 15'); a('s_add_u32 s53, s53, 0x%x' % CARRY); a('v_lshl_add_u32 v%d, v0, 4, s53' % v)

def k_g1(a):
    n = 'g1'
    prologue(a, n); tc_ids(a)
    a('v_lshrrev_b32 v4, 4, v1'); a('v_and_b32 v4, 1, v4'); a('v_lshlrev_b32 v4, 6, v4'); a('v_lshlrev_b32 v5, 4, v1'); a('v_xor_b32 v4, v4, v5')
    a('s_lshl_b32 s56, s48, 14'); a('s_lshl_b32 s57, s49, 16'); a('s_add_u32 s57, s57, s56'); a('s_add_u32 s57, s57, 0x%x' % HT)
    for i in range(16):
        if i % 4 == 0:
            a('s_add_u32 s58, s56, %d' % (1024 * i)); a('s_mov_b32 m0, s58'); a('s_add_u32 s59, s57, %d' % (1024 * i))
        a('buffer_load_dwordx4 v4, s[32:35], s59 offen offset:%d lds' % (1024 * (i & 3)))
    WR = 256
    load_w(a, W1P, 32, 8, 8, WR)
    red_addrs(a)
    a('v_lshrrev_b32 v8, 5, v1'); a('v_bfe_u32 v9, v1, 2, 2')
    a('v_lshl_add_u32 v6, v8, 3, v9'); a('v_lshlrev_b32 v6, 7, v6')
    a('v_lshrrev_b32 v9, 1, v9'); a('v_xor_b32 v9, s51, v9'); a('v_lshl_add_u32 v6, v9, 6, v6')
    a('v_bfe_u32 v9, v1, 4, 1'); a('v_lshl_add_u32 v6, v9, 5, v6'); a('v_and_b32 v9, 3, v1'); a('v_lshl_add_u32 v7, v9, 3, v6')
    a('s_lshl_b32 s53, s50, 13'); a('s_lshl_b32 s54, s52, 12'); a('s_add_u32 s53, s53, s54'); a('v_add_u32 v14, s53, v7')
    a('v_add_u32 v7, s56, v7'); a('v_xor_b32 v6, 64, v7')
    BF = 80
    CSUM = 144
    for i in range(4): a('v_mov_b32 v%d, 0x3f803f80' % (224 + i))
    a('s_waitcnt vmcnt(0)')
    for s in range(8):
        for ch in range(2):
            a('v_mfma_f32_32x32x16_bf16 %s, %s, v[224:227], %s' % (vr(acc(0, ch), 16), ur(WR + 8 * s + 4 * ch, 4), vr(acc(0, ch), 16) if s else '0'))
    for th in range(2):
        for s in range(8):
            a('ds_read_b64_tr_b16 %s, v%d offset:%d' % (vr(BF + 32 * th + 4 * s, 2), 6 + th, 2048 * s))
            a('ds_read_b64_tr_b16 %s, v%d offset:%d' % (vr(BF + 32 * th + 4 * s + 2, 2), 6 + th, 2048 * s + 512))
    for q in range(4): a('ds_write_b128 v10, %s offset:%d' % (vr(acc(0, 0) + 4 * q, 4), 1024 * q))
    for q in range(4): a('ds_write_b128 v11, %s offset:%d' % (vr(acc(0, 1) + 4 * q, 4), 1024 * q))
    for q in range(4): a('ds_write_b128 v12, %s offset:%d' % (vr(acc(0, 0) + 4 * q, 4), 1024 * q))
    for i in range(16): a('v_mov_b32 v%d, v%d' % (acc(1, 1) + i, acc(0, 1) + i))
    a('s_waitcnt lgkmcnt(0)'); a('s_barrier')
    red_read_add(a, 160)
    for i in range(16): a('v_mov_b32 v%d, v%d' % (CSUM + i, acc(1, 1) + i))
    a('s_barrier')
    ST = 208
    for i in range(4): a('v_mov_b32 v%d, 0' % (ST + i))
    for th in range(2):
        wr = (red_write(0) + red_write(1)) if th else []
        for s in range(8):
            b = BF + 32 * th + 4 * s
            for ch in range(2):
                a('v_mfma_f32_32x32x16_bf16 %s, %s, %s, %s' % (vr(acc(th, ch), 16), ur(WR + 8 * s + 4 * ch, 4), vr(b, 4), vr(acc(th, ch), 16) if s else '0'))
                for i in range(2):
                    a('v_dot2c_f32_bf16 v%d, v%d, v224' % (ST + th, b + 2 * ch + i))
                    a('v_dot2c_f32_bf16 v%d, v%d, v%d' % (ST + 2 + th, b + 2 * ch + i, b + 2 * ch + i))
            if wr and s >= 1: a(wr.pop(0))
            if wr and s >= 7: a(wr.pop(0))
    a('v_permlane32_swap_b32 v208, v209'); a('v_permlane32_swap_b32 v210, v211')
    a('v_add_f32 v208, v208, v209'); a('v_add_f32 v209, v210, v211')
    a('s_xor_b32 s53, s51, 1'); a('s_lshl_b32 s53, s53, 5'); a('v_xor_b32 v2, s53, v1'); a('v_lshlrev_b32 v2, 3, v2')
    a('s_lshl_b32 s53, s48, 9'); a('s_add_u32 s53, s53, %d' % G_ST); a('v_add_u32 v2, s53, v2')
    a('ds_write_b64 v2, v[208:209]')
    for w in red_write(2): a(w)
    a('v_and_b32 v2, 31, v1'); a('s_lshl_b32 s53, s51, 5'); a('v_add_u32 v3, s53, v2'); a('v_lshlrev_b32 v2, 3, v3'); a('v_add_u32 v2, %d, v2' % G_ST)
    a('s_waitcnt lgkmcnt(0)'); a('s_barrier')
    for w in range(4): a('ds_read_b64 %s, v2 offset:%d' % (vr(208 + 2 * w, 2), 512 * w))
    HO = 216
    for s in range(2):
        a('ds_read_b64_tr_b16 %s, v14 offset:%d' % (vr(HO + 4 * s, 2), 2048 * s))
        a('ds_read_b64_tr_b16 %s, v14 offset:%d' % (vr(HO + 4 * s + 2, 2), 2048 * s + 512))
    a('s_waitcnt lgkmcnt(4)')
    for w in range(1, 4):
        a('v_add_f32 v208, v208, v%d' % (208 + 2 * w)); a('v_add_f32 v209, v209, v%d' % (209 + 2 * w))
    red_read_add(a, 80)
    a('v_mul_f32 v208, 0x%x, v208' % f2u(1.0 / 512))
    a('v_mul_f32 v210, v208, v208'); a('v_fma_f32 v209, v209, s60, -v210'.replace('s60', 's60'))
    a('v_max_f32 v209, 0, v209')
    a('v_add_f32 v210, 0x%x, v209' % f2u(EPS)); a('v_rsq_f32 v210, v210')
    a('v_mul_f32 v211, v210, v210'); a('v_mul_f32 v211, v211, v209'); a('v_add_f32 v211, 0x%x, v211' % f2u(EPS)); a('v_rsq_f32 v211, v211')
    a('v_mul_f32 v211, v211, v210')
    a('v_rcp_f32 v212, v211')
    a('v_mul_f32 v213, 0x%x, v211' % f2u(C0))
    a('v_mul_f32 v214, v211, v211'); a('v_mul_f32 v214, v214, v211'); a('v_mul_f32 v214, 0x%x, v214' % f2u(C1))
    o = acc(1, 1)
    for i in range(16): a('v_fma_f32 v%d, -v208, v%d, v%d' % (o + i, CSUM + i, o + i))
    for l in gelu(a, o, 213, 214, 212, 80, 16): a(l)
    a('s_lshr_b32 s53, s50, 1'); a('s_lshl_b32 s53, s53, 3'); a('s_lshr_b32 s53, 0xfe02ff01, s53'); a('s_sext_i32_i8 s53, s53')
    a('s_lshl_b32 s54, s49, 6'); a('s_add_u32 s53, s53, s54'); a('v_add_u32 v3, s53, v3')
    a('v_cmp_gt_u32 vcc, 0x800, v3')
    a('v_and_b32 v3, 0x7ff, v3')
    a('v_lshrrev_b32 v4, 5, v3'); a('v_lshlrev_b32 v4, 15, v4'); a('v_and_b32 v3, 31, v3'); a('v_lshl_add_u32 v4, v3, 4, v4')
    a('v_lshrrev_b32 v3, 5, v1'); a('v_lshl_add_u32 v4, v3, 9, v4')
    a('s_lshl_b32 s53, s50, 12'); a('s_lshl_b32 s54, s52, 11'); a('s_add_u32 s53, s53, s54'); a('s_add_u32 s53, s53, 0x%x' % ZB)
    for i in range(8): a('v_cvt_pk_bf16_f32 v%d, v%d, v%d' % (96 + i, o + 2 * i, o + 2 * i + 1))
    for i in range(8): a('v_cndmask_b32 v%d, 0, v%d, vcc' % (96 + i, 96 + i))
    a('buffer_store_dwordx4 v[96:99], v4, s[32:35], s53 offen')
    a('buffer_store_dwordx4 v[100:103], v4, s[32:35], s53 offen offset:1024')
    carry_addr(a, 5)
    a('s_movk_i32 s53, 0x1000'); a('s_movk_i32 s54, 0x2000')
    a('buffer_store_dwordx4 %s, v5, s[32:35], 0 offen' % vr(HO, 4))
    a('buffer_store_dwordx4 %s, v5, s[32:35], s53 offen' % vr(HO + 4, 4))
    a('buffer_store_dwordx4 v[208:211], v5, s[32:35], s54 offen')
    a('g1_end:')
    a('s_endpgm')

def ksplit_main(a, WR, BR, nks, pre_wait):
    for th in range(2):
        wr = (red_write(0) + red_write(1)) if th else []
        for s in range(nks):
            a('s_waitcnt vmcnt(%d)' % (2 * nks - 1 - (nks * th + s)))
            b = BR + 4 * (nks * th + s)
            for ch in range(2):
                a('v_mfma_f32_32x32x16_bf16 %s, %s, %s, %s' % (vr(acc(th, ch), 16), ur(WR + 8 * s + 4 * ch, 4), ur(b, 4), vr(acc(th, ch), 16) if s else '0'))
            if wr and s >= 1: a(wr.pop(0))
            if wr and s >= nks - 1: a(wr.pop(0))
    for w in red_write(2): a(w)
    a('s_waitcnt lgkmcnt(0)'); a('s_barrier')

def load_b(a, base, thstride, nks, ks_per_wave, dst, srdn=32):
    a('s_lshl_b32 s53, s49, 1'); a('s_add_u32 s53, s53, s51'); a('s_xor_b32 s54, s53, 1')
    a('s_mul_i32 s53, s53, %d' % thstride); a('s_mul_i32 s54, s54, %d' % thstride)
    a('s_mul_i32 s55, s48, %d' % (ks_per_wave * 1024)); a('s_add_u32 s55, s55, 0x%x' % base)
    a('s_add_u32 s53, s53, s55'); a('s_add_u32 s54, s54, s55')
    a('v_lshlrev_b32 v4, 4, v1')
    for th in range(2):
        sreg = 54 - th
        for s in range(nks):
            if s and s % 4 == 0: a('s_add_u32 s%d, s%d, 4096' % (sreg, sreg))
            a('buffer_load_dwordx4 %s, v4, s[%d:%d], s%d offen offset:%d' % (ur(dst + 4 * (nks * th + s), 4), srdn, srdn + 3, sreg, 1024 * (s & 3)))

def k_g2(a):
    n = 'g2'
    prologue(a, n); tc_ids(a)
    carry_addr(a, 5)
    a('s_movk_i32 s56, 0x1000'); a('s_movk_i32 s57, 0x2000')
    a('buffer_load_dwordx4 v[216:219], v5, s[32:35], 0 offen')
    a('buffer_load_dwordx4 v[220:223], v5, s[32:35], s56 offen')
    a('buffer_load_dwordx4 v[208:211], v5, s[32:35], s57 offen')
    WR = 256 + 64
    load_w(a, W2P, 32, 8, 8, WR)
    load_b(a, ZB, 32768, 8, 8, 80)
    red_addrs(a)
    ksplit_main(a, WR, 80, 8, 0)
    red_read_add(a, 80)
    o = acc(1, 1)
    a('s_mov_b32 s58, 0xffff0000')
    H = 144
    for i in range(8):
        a('v_lshlrev_b32 v%d, 16, v%d' % (H + 2 * i, 216 + i)); a('v_and_b32 v%d, s58, v%d' % (H + 2 * i + 1, 216 + i))
    for i in range(16): a('v_sub_f32 v%d, v%d, v208' % (80 + i, H + i))
    for i in range(16): a('v_fmac_f32 v%d, v%d, v210' % (o + i, 80 + i))
    for i in range(8): a('v_cvt_pk_bf16_f32 v%d, v%d, v%d' % (96 + i, o + 2 * i, o + 2 * i + 1))
    a('s_lshl_b32 s53, s49, 1'); a('s_add_u32 s53, s53, s51')
    a('s_lshl_b32 s54, s53, 15'); a('s_lshl_b32 s55, s50, 12'); a('s_add_u32 s54, s54, s55'); a('s_lshl_b32 s55, s52, 11'); a('s_add_u32 s54, s54, s55')
    a('s_add_u32 s54, s54, 0x%x' % X1B)
    a('buffer_store_dwordx4 v[96:99], v4, s[32:35], s54 offen')
    a('buffer_store_dwordx4 v[100:103], v4, s[32:35], s54 offen offset:1024')
    a('v_mov_b32 v104, 0'); a('v_mov_b32 v105, 0'); a('v_mov_b32 v106, 0x3f803f80')
    for i in range(8):
        a('v_dot2c_f32_bf16 v104, v%d, v106' % (96 + i)); a('v_dot2c_f32_bf16 v105, v%d, v%d' % (96 + i, 96 + i))
    for i in range(8):
        a('v_lshlrev_b32 v%d, 16, v%d' % (80 + 2 * i, 96 + i)); a('v_and_b32 v%d, s58, v%d' % (81 + 2 * i, 96 + i))
    for i in range(16): a('v_add_f32 v%d, v%d, v%d' % (H + i, H + i, 80 + i))
    a('v_permlane32_swap_b32 v104, v105'); a('v_add_f32 v104, v104, v105')
    a('s_lshl_b32 s54, s53, 12'); a('s_lshl_b32 s55, s50, 9'); a('s_add_u32 s54, s54, s55'); a('s_lshl_b32 s55, s52, 8'); a('s_add_u32 s54, s54, s55')
    a('s_add_u32 s54, s54, 0x%x' % ST1); a('v_lshlrev_b32 v2, 2, v1')
    a('buffer_store_dword v104, v2, s[32:35], s54 offen')
    for q in range(4):
        a('s_movk_i32 s56, 0x%x' % (0x1000 * (3 + q)))
        a('buffer_store_dwordx4 %s, v5, s[32:35], s56 offen' % vr(H + 4 * q, 4))
    a('g2_end:')
    a('s_endpgm')

def k_g3(a):
    n = 'g3'
    prologue(a, n); tc_ids(a)
    a('v_lshlrev_b32 v4, 4, v1')
    a('s_lshl_b32 s56, s48, 13'); a('s_lshl_b32 s57, s49, 16'); a('s_add_u32 s57, s57, s56'); a('s_add_u32 s57, s57, 0x%x' % X1B)
    for i in range(16):
        if i % 4 == 0:
            o = 32768 * (i >> 3) + 1024 * (i & 7)
            a('s_add_u32 s58, s56, %d' % o); a('s_mov_b32 m0, s58'); a('s_add_u32 s59, s57, %d' % o)
        a('buffer_load_dwordx4 v4, s[32:35], s59 offen offset:%d lds' % (1024 * (i & 3)))
    a('v_and_b32 v5, 15, v1'); a('v_lshrrev_b32 v6, 4, v1')
    a('v_lshlrev_b32 v7, 10, v6'); a('v_lshl_add_u32 v7, v5, 2, v7')
    a('s_lshl_b32 s58, s49, 13'); a('s_add_u32 s58, s58, 0x%x' % ST1); a('s_add_u32 s59, s58, 4096')
    SP = 112
    for tt in range(4):
        for p in range(4):
            for st in range(2):
                a('buffer_load_dword v%d, v7, s[32:35], s%d offen offset:%d' % (SP + 8 * tt + 2 * p + st, 58 + (tt >> 1), 256 * p + 128 * st + 64 * (tt & 1)))
    srd(a, 36, 30, 86 * 16384, '0x%x' % W3P)
    WR = [192, 256 + 128, 256 + 192]
    a('s_mul_i32 s53, s50, 11'); a('s_mul_i32 s54, s48, 3'); a('s_add_u32 s53, s53, s54')
    a('s_mov_b32 s61, s53')
    for j in range(3):
        a('s_add_u32 s54, s53, %d' % j); a('s_lshl_b32 s54, s54, 14')
        if j == 2:
            a('s_cmp_eq_u32 s48, 3'); a('s_cselect_b32 s54, 0x%x, s54' % (86 * 16384))
        for s in range(16):
            if s and s % 4 == 0: a('s_add_u32 s54, s54, 4096')
            a('buffer_load_dwordx4 %s, v4, s[36:39], s54 offen offset:%d' % (ur(WR[j] + 4 * s, 4), 1024 * (s & 3)))
    a('v_lshlrev_b32 v8, 9, v6'); a('v_lshl_add_u32 v8, v5, 4, v8')
    a('v_add_u32 v9, 0x8000, v8')
    a('s_waitcnt vmcnt(48)')
    STT = 144
    for tt in range(4):
        b = SP + 8 * tt
        for st in range(2):
            a('v_add_f32 v%d, v%d, v%d' % (b + st, b + st, b + 2 + st)); a('v_add_f32 v%d, v%d, v%d' % (b + 4 + st, b + 4 + st, b + 6 + st))
        for st in range(2): a('v_add_f32 v%d, v%d, v%d' % (b + st, b + st, b + 4 + st))
    regs = [SP + 8 * tt + st for tt in range(4) for st in range(2)]
    for sw in ('v_permlane16_swap_b32', 'v_permlane32_swap_b32'):
        for r in regs: a('v_mov_b32 v%d, v%d' % (r + 2, r))
        for r in regs: a('%s v%d, v%d' % (sw, r, r + 2))
        for r in regs: a('v_add_f32 v%d, v%d, v%d' % (r, r, r + 2))
    for tt in range(4):
        b = SP + 8 * tt; m = STT + 4 * tt
        a('v_mul_f32 v%d, s60, v%d' % (m, b))
        a('v_mul_f32 v%d, v%d, v%d' % (b, m, m)); a('v_fma_f32 v%d, v%d, s60, -v%d' % (b + 1, b + 1, b))
        a('v_max_f32 v%d, 0, v%d' % (b + 1, b + 1)); a('v_add_f32 v%d, 0x%x, v%d' % (b + 1, f2u(EPS), b + 1))
        a('v_rsq_f32 v%d, v%d' % (b, b + 1)); a('v_sqrt_f32 v%d, v%d' % (m + 3, b + 1))
        a('v_mul_f32 v%d, 0x%x, v%d' % (m + 1, f2u(C0), b))
        a('v_mul_f32 v%d, v%d, v%d' % (b + 1, b, b)); a('v_mul_f32 v%d, v%d, v%d' % (b + 1, b + 1, b)); a('v_mul_f32 v%d, 0x%x, v%d' % (m + 2, f2u(C1), b + 1))
    CSUM = 160
    for i in range(4): a('v_mov_b32 v%d, 0x3f803f80' % (172 + i))
    a('s_waitcnt vmcnt(0)')
    for s in range(16):
        for j in range(3):
            a('v_mfma_f32_16x16x32_bf16 %s, %s, v[172:175], %s' % (vr(CSUM + 4 * j, 4), ur(WR[j] + 4 * s, 4), vr(CSUM + 4 * j, 4) if s else '0'))
    a('s_barrier')
    A3 = 16
    BR = 64
    TMP = 96
    PK = 112
    srd(a, 40, 30, 64 * HTH, '0x%x' % HB)
    a('s_lshl_b32 s53, s49, 1'); a('s_mul_i32 s53, s53, %d' % HTH); a('s_lshl_b32 s54, s61, 10'); a('s_add_u32 s53, s53, s54')
    a('s_add_u32 s54, s53, %d' % HTH)
    a('s_cmp_eq_u32 s48, 3'); a('s_cselect_b32 s55, 0x%x, s53' % (64 * HTH)); a('s_cselect_b32 s56, 0x%x, s54' % (64 * HTH))
    def rd(k):
        tt, s = k >> 4, k & 15
        return 'ds_read_b128 %s, v%d offset:%d' % (vr(BR + 4 * (k & 7), 4), 8 + (tt >> 1), 2048 * s + 256 * (tt & 1))
    def epi(tt):
        o = A3 + 12 * tt; m = STT + 4 * tt
        l = ['v_fma_f32 v%d, -v%d, v%d, v%d' % (o + i, m, CSUM + i, o + i) for i in range(12)]
        l += gelu(a, o, m + 1, m + 2, m + 3, TMP, 12)
        for j in range(3):
            for i in range(2): l.append('v_cvt_pk_bf16_f32 v%d, v%d, v%d' % (PK + 4 * j + 2 * (tt & 1) + i, o + 4 * j + 2 * i, o + 4 * j + 2 * i + 1))
        if tt & 1:
            for j in range(3):
                l.append('v_permlane16_swap_b32 v%d, v%d' % (PK + 4 * j, PK + 4 * j + 2)); l.append('v_permlane16_swap_b32 v%d, v%d' % (PK + 4 * j + 1, PK + 4 * j + 3))
            for j in range(3):
                l.append('buffer_store_dwordx4 %s, v4, s[40:43], s%d offen offset:%d' % (vr(PK + 4 * j, 4), (55 if j == 2 else 53) + (tt >> 1), 1024 * j))
        return l
    for k in range(6): a(rd(k))
    pend = []
    for k in range(64):
        tt, s = k >> 4, k & 15
        if k + 6 < 64: a(rd(k + 6))
        a('s_waitcnt lgkmcnt(%d)' % min(6, 63 - k))
        for j in range(3):
            o = A3 + 12 * tt + 4 * j
            a('v_mfma_f32_16x16x32_bf16 %s, %s, %s, %s' % (vr(o, 4), ur(WR[j] + 4 * s, 4), vr(BR + 4 * (k & 7), 4), vr(o, 4) if s else '0'))
            if s >= 1:
                for _ in range(3 if j < 2 else 2):
                    if pend: a(pend.pop(0))
        if s == 15:
            while pend: a(pend.pop(0))
            pend = epi(tt)
    while pend: a(pend.pop(0))
    a('g3_end:')
    a('s_endpgm')

def k_g4(a):
    n = 'g4'
    prologue(a, n); tc_ids(a)
    carry_addr(a, 5)
    RES = 80
    WR = 256; BR = 80
    load_w(a, W4P, 86, 22, 22, WR)
    for q in range(4):
        a('s_movk_i32 s56, 0x%x' % (0x1000 * (3 + q)))
        a('buffer_load_dwordx4 %s, v5, s[32:35], s56 offen' % ar(192 + 4 * q, 4))
    a('s_waitcnt vmcnt(16)')
    a('s_cmp_lg_u32 s48, 3'); a('s_cbranch_scc1 g4_w')
    a('s_waitcnt vmcnt(0)')
    for i in range(16): a('v_accvgpr_write_b32 a%d, 0' % (160 + i))
    a('g4_w:')
    load_b(a, HB, HTH, 22, 22, BR)
    red_addrs(a)
    ksplit_main(a, WR, BR, 22, 0)
    red_read_add(a, 80)
    o = acc(1, 1)
    for i in range(16): a('v_accvgpr_read_b32 v%d, a%d' % (80 + i, 192 + i))
    for i in range(16): a('v_add_f32 v%d, v%d, v%d' % (o + i, o + i, 80 + i))
    for i in range(8): a('v_cvt_pk_bf16_f32 v%d, v%d, v%d' % (96 + i, o + 2 * i, o + 2 * i + 1))
    srd(a, 36, 26, 2 * MB)
    a('v_and_b32 v2, 31, v1'); a('v_lshlrev_b32 v2, 10, v2'); a('v_lshrrev_b32 v3, 5, v1'); a('v_lshl_add_u32 v2, v3, 4, v2')
    a('s_lshl_b32 s53, s49, 16'); a('s_lshl_b32 s54, s51, 15'); a('s_add_u32 s53, s53, s54')
    a('s_lshl_b32 s54, s50, 7'); a('s_add_u32 s53, s53, s54'); a('s_lshl_b32 s54, s52, 6'); a('s_add_u32 s53, s53, s54')
    a('buffer_store_dwordx4 v[96:99], v2, s[36:39], s53 offen')
    a('buffer_store_dwordx4 v[100:103], v2, s[36:39], s53 offen offset:32')
    a('g4_end:')
    a('s_endpgm')

def k_empty(a):
    a('s_endpgm')

KERNELS = [('prep', k_prep, 512, 0, 128, 128), ('conv', k_conv, 256, CONV_LDS, 256, 256), ('g1', k_g1, 256, G_LDS, 512, 256),
           ('g2', k_g2, 256, G_LDS, 512, 256), ('g3', k_g3, 256, 65536, 512, 256), ('g4', k_g4, 256, G_LDS, 512, 256)]

def generate(nempty=0):
    hdr = open('sequential_preLN__ssm_conv_h3__mixer_s_mlp__prompt.s.ref').read().split('; Override')[0]
    ks = list(KERNELS)
    out = hdr
    for name, fn, nt, lds, nv, ao in ks:
        out += '; @launch kernel=%s_kernel grid=(256,1,1) block=(%d,1,1) lds=%d\n' % (name, nt, lds)
    for i in range(nempty):
        out += '; @launch kernel=empty_kernel grid=(256,1,1) block=(256,1,1) lds=0\n'
    if nempty: ks.append(('empty', k_empty, 256, 0, 8, 8))
    out += '.amdgcn_target "amdgcn-amd-amdhsa--gfx950"\n.text\n'
    for name, fn, nt, lds, nv, ao in ks:
        a = Asm()
        if name in ('g1', 'g3'): a('s_mov_b32 s60, 0x%x' % f2u(1.0 / 512))
        fn(a)
        out += '.globl %s_kernel\n.p2align 8\n.type %s_kernel,@function\n%s_kernel:\n' % (name, name, name)
        out += a.finish()
        print(name, 'instrs', len(a.L), 'nops', a.nops, file=sys.stderr)
    out += '.section .rodata,"a"\n'
    for name, fn, nt, lds, nv, ao in ks:
        out += '''.p2align 6
.amdhsa_kernel %s_kernel
  .amdhsa_next_free_vgpr %d
  .amdhsa_next_free_sgpr 96
  .amdhsa_accum_offset %d
  .amdhsa_group_segment_fixed_size 0
  .amdhsa_kernarg_size 112
  .amdhsa_user_sgpr_count 2
  .amdhsa_user_sgpr_kernarg_segment_ptr 1
  .amdhsa_system_sgpr_workgroup_id_x 1
  .amdhsa_float_denorm_mode_32 3
.end_amdhsa_kernel
''' % (name, nv, ao)
    return out

if __name__ == '__main__':
    ne = int(sys.argv[2]) if len(sys.argv) > 2 else 0
    open(sys.argv[1], 'w').write(generate(ne))
```

```python
import sys
from asmlib import *

MB = 1 << 20
KVR = 0; XT = 2 * MB; HT = 4 * MB; ZB = 6 * MB; X1B = 8 * MB; HB = 10 * MB
W1P = 16 * MB; W2P = W1P + 512 * 1024; W3P = W2P + 512 * 1024; W4P = W3P + 1408 * 1024
ST0 = 20 * MB
ST1 = ST0 + 65536
CARRY = 21 * MB
HTH = 176 * 512
EPS = 1e-5
import struct
def f2u(f): return struct.unpack('<I', struct.pack('<f', f))[0]
C0 = -2.0 * 0.7978845608028654 * 1.4426950408889634
C1 = C0 * 0.044715

STAMP = False
KIDX = {'prep': 0, 'conv': 1, 'g1': 2, 'g2': 3, 'g3': 4, 'g4': 5}
def stamp_end(a, name, label):
    if STAMP:
        a('s_waitcnt vmcnt(0) lgkmcnt(0)')
        a('s_memrealtime s[92:93]'); a('s_waitcnt lgkmcnt(0)')
        a('s_lshl_b32 s94, s2, 7'); a('s_add_u32 s94, s94, 0x%x' % (64 * MB + KIDX[name] * 32768))
        a('v_lshrrev_b32 v1, 6, v0'); a('v_lshl_add_u32 v1, v1, 4, s94')
        a('v_mov_b32 v2, s90'); a('v_mov_b32 v3, s92'); a('v_mov_b32 v4, s88'); a('v_mov_b32 v5, s86')
        a('buffer_store_dwordx4 v[2:5], v1, s[32:35], 0 offen')
    if label: a(label + ':')
    a('s_endpgm')
def mid(a, i):
    if STAMP: a('s_memrealtime s[%d:%d]' % (88 - 2 * i, 89 - 2 * i))
def prologue(a, name):
    if STAMP: a('s_memrealtime s[90:91]'); a('s_mov_b32 s88, 0'); a('s_mov_b32 s86, 0')
    a('s_cmp_ge_u32 s2, 256')
    a('s_cbranch_scc1 %s_end' % name)
    a('s_load_dwordx16 s[4:19], s[0:1], 0')
    a('s_load_dwordx8 s[20:27], s[0:1], 64')
    a('s_load_dwordx4 s[28:31], s[0:1], 96')
    a('v_lshrrev_b32 v1, 6, v0')
    a('v_readfirstlane_b32 s48, v1')
    a('v_and_b32 v1, 63, v0')
    a('s_waitcnt lgkmcnt(0)')
    srd(a, 32, 30, 0x10000000)

def srd(a, d, p, size, off=None):
    if off is None:
        a('s_mov_b32 s%d, s%d' % (d, p)); a('s_mov_b32 s%d, s%d' % (d + 1, p + 1))
    else:
        a('s_add_u32 s%d, s%d, %s' % (d, p, off)); a('s_addc_u32 s%d, s%d, 0' % (d + 1, p + 1))
    a('s_mov_b32 s%d, 0x%x' % (d + 2, size)); a('s_mov_b32 s%d, 0x20000' % (d + 3))

def allreduce(a, regs, tmps):
    for m in ('quad_perm:[1,0,3,2]', 'quad_perm:[2,3,0,1]', 'row_half_mirror', 'row_mirror'):
        for r in regs: a('v_add_f32_dpp v%d, v%d, v%d %s row_mask:0xf bank_mask:0xf' % (r, r, r, m))
    for sw in ('v_permlane16_swap_b32', 'v_permlane32_swap_b32'):
        for r, t in zip(regs, tmps): a('v_mov_b32 v%d, v%d' % (t, r))
        for r, t in zip(regs, tmps): a('%s v%d, v%d' % (sw, r, t))
        for r, t in zip(regs, tmps): a('v_add_f32 v%d, v%d, v%d' % (r, r, t))

def k_prep(a):
    n = 'prep'
    prologue(a, n)
    a('s_cmp_ge_u32 s48, 4'); a('s_cbranch_scc1 prep_aux')
    srd(a, 36, 6, 2 * MB); srd(a, 40, 8, 2 * MB); srd(a, 44, 4, 2 * MB)
    a('s_lshr_b32 s49, s2, 3'); a('s_and_b32 s50, s2, 7')
    a('s_lshl_b32 s51, s49, 6'); a('s_lshl_b32 s52, s48, 4'); a('s_add_u32 s51, s51, s52')
    a('v_lshrrev_b32 v2, 5, v1'); a('v_lshl_add_u32 v2, v2, 3, s51')
    a('v_and_b32 v3, 31, v1'); a('s_lshl_b32 s52, s50, 5'); a('v_add_u32 v3, s52, v3')
    a('v_lshlrev_b32 v4, 10, v2'); a('v_lshl_add_u32 v4, v3, 2, v4')
    a('v_add_u32 v5, 0xfffff400, v4')
    a('v_lshlrev_b32 v6, 4, v3')
    a('s_movk_i32 s53, 0x1000')
    for i in range(3): a('buffer_load_dword v%d, v5, s[36:39], 0 offen offset:%d' % (16 + i, 1024 * i))
    for i in range(8): a('buffer_load_dword v%d, v4, s[36:39], %s offen offset:%d' % (19 + i, 's53' if i >= 4 else '0', 1024 * (i & 3)))
    a('global_load_dwordx4 v[44:47], v6, s[10:11]')
    for i in range(8): a('buffer_load_dword v%d, v4, s[40:43], %s offen offset:%d' % (28 + i, 's53' if i >= 4 else '0', 1024 * (i & 3)))
    for i in range(8): a('buffer_load_dword v%d, v4, s[44:47], %s offen offset:%d' % (36 + i, 's53' if i >= 4 else '0', 1024 * (i & 3)))
    a('v_lshlrev_b32 v7, 13, v3')
    a('v_lshlrev_b32 v8, 1, v2')
    a('v_add_u32 v9, v7, v8'); a('v_add_u32 v9, 0x%x, v9' % XT)
    a('v_sub_u32 v7, v7, v8'); a('v_add_u32 v7, %d, v7' % (4080 + KVR))
    a('s_mov_b32 s54, 0xffff0000'); a('s_mov_b32 s55, 0x05040100'); a('s_mov_b32 s56, 0x07060302')
    a('s_waitcnt vmcnt(16)'); mid(a, 0)
    for i in range(11):
        a('v_lshlrev_b32 v%d, 16, v%d' % (48 + 2 * i, 16 + i)); a('v_and_b32 v%d, s54, v%d' % (49 + 2 * i, 16 + i))
    for j in range(4):
        for c in range(2):
            src = 44 + 2 * c + (j >> 1)
            a(('v_and_b32 v%d, s54, v%d' if j & 1 else 'v_lshlrev_b32 v%d, 16, v%d') % (70 + 2 * j + c, src))
    for i in range(8): a('v_pk_mul_f32 %s, %s, %s' % (vr(94 + 2 * i, 2), vr(48 + 2 * i, 2), vr(76, 2)))
    for t in (1, 2, 3):
        for i in range(8): a('v_pk_fma_f32 %s, %s, %s, %s' % (vr(94 + 2 * i, 2), vr(48 + 2 * (i + t), 2), vr(76 - 2 * t, 2), vr(94 + 2 * i, 2)))
    a('s_waitcnt vmcnt(8)')
    for i in range(8):
        a('v_lshlrev_b32 v%d, 16, v%d' % (78 + 2 * i, 28 + i)); a('v_and_b32 v%d, s54, v%d' % (79 + 2 * i, 28 + i))
    for i in range(8): a('v_pk_mul_f32 %s, %s, %s' % (vr(94 + 2 * i, 2), vr(94 + 2 * i, 2), vr(78 + 2 * i, 2)))
    for c in range(2):
        for i in range(4): a('v_cvt_pk_bf16_f32 v%d, v%d, v%d' % (112 + 4 * c + i, 94 + 2 * (7 - 2 * i) + c, 94 + 2 * (6 - 2 * i) + c))
    a('buffer_store_dwordx4 v[112:115], v7, s[32:35], 0 offen')
    a('buffer_store_dwordx4 v[116:119], v7, s[32:35], s53 offen')
    a('s_waitcnt vmcnt(2)')
    for c in range(2):
        for i in range(4): a('v_perm_b32 v%d, v%d, v%d, s%d' % (120 + 4 * c + i, 37 + 2 * i, 36 + 2 * i, 55 + c))
    a('buffer_store_dwordx4 v[120:123], v9, s[32:35], 0 offen')
    a('buffer_store_dwordx4 v[124:127], v9, s[32:35], s53 offen')
    stamp_end(a, 'prep', None)
    a('prep_aux:')
    a('s_sub_u32 s48, s48, 4')
    a('s_lshl_b32 s49, s2, 2'); a('s_add_u32 s49, s49, s48')
    a('s_lshl_b32 s50, s49, 11'); a('v_lshl_add_u32 v2, v1, 4, s50')
    a('global_load_dwordx4 v[16:19], v2, s[4:5]')
    a('global_load_dwordx4 v[20:23], v2, s[4:5] offset:1024')
    a('s_mov_b32 s55, 0x05040100'); a('s_mov_b32 s56, 0x07060302'); a('s_mov_b32 s54, 0xffff0000')
    a('v_and_b32 v3, 31, v1'); a('v_lshrrev_b32 v4, 5, v1')
    a('v_lshlrev_b32 v5, 13, v4'); a('v_lshl_add_u32 v5, v3, 2, v5')
    a('v_and_b32 v6, 9, v3'); a('v_lshlrev_b32 v6, 1, v6')
    a('v_and_b32 v7, 2, v3'); a('v_lshl_or_b32 v6, v7, 2, v6')
    a('v_and_b32 v7, 4, v3'); a('v_or_b32 v6, v6, v7')
    a('v_lshl_add_u32 v6, v4, 5, v6'); a('v_lshlrev_b32 v6, 4, v6')
    a('v_lshrrev_b32 v7, 4, v3'); a('v_lshl_add_u32 v6, v7, 10, v6')
    def typeA(sid, sd, vsrc, vdst):
        a('s_and_b32 s57, s%d, 7' % sid); a('s_lshr_b32 s58, s%d, 3' % sid)
        a('s_cmp_lt_u32 s58, 32')
        a('s_cselect_b32 s%d, s18, s20' % sd); a('s_cselect_b32 s%d, s19, s21' % (sd + 1))
        a('s_cselect_b32 s59, 0x%x, 0x%x' % (W1P, W2P - 32 * 2048) if False else 's_cselect_b32 s59, 0, 32')
        a('s_mov_b32 s68, 0x%x' % W1P); a('s_mov_b32 s69, 0x%x' % W2P); a('s_cselect_b32 s68, s68, s69')
        a('s_mov_b32 s70, 0x10000'); a('s_mov_b32 s71, 0x80000')
        a('s_cmp_lt_u32 s58, 64')
        a('s_cselect_b32 s%d, s%d, s24' % (sd, sd)); a('s_cselect_b32 s%d, s%d, s25' % (sd + 1, sd + 1))
        a('s_cselect_b32 s59, s59, 64')
        a('s_cselect_b32 s68, s68, 0x%x' % W4P); a('s_cselect_b32 s70, s70, %d' % (86 * 2048))
        a('s_cselect_b32 s%d, s71, %d' % (sd + 2, 1376 * 1024)); a('s_mov_b32 s%d, 0x20000' % (sd + 3))
        a('s_sub_u32 s58, s58, s59')
        a('s_mul_i32 s70, s70, s57'); a('s_add_u32 s68, s68, s70'); a('s_lshl_b32 s70, s58, 11'); a('s_add_u32 s68, s68, s70')
        a('v_add_u32 v%d, s68, v6' % vdst)
        a('s_lshl_b32 s70, s58, 14'); a('s_lshl_b32 s71, s57, 7'); a('s_add_u32 s70, s70, s71')
        a('v_add_u32 v%d, s70, v5' % vsrc)
    typeA(49, 36, 8, 9)
    for e in range(8): a('s_movk_i32 s%d, %d' % (60 + e, 1024 * e))
    for e in range(8): a('buffer_load_dword v%d, v8, s[36:39], s%d offen' % (24 + e, 60 + e))
    a('s_add_u32 s49, s49, 1024')
    a('s_mov_b32 s72, 0')
    a('s_cmp_ge_u32 s49, 1888'); a('s_cbranch_scc1 prep_t1done')
    a('s_mov_b32 s72, 1')
    a('s_cmp_ge_u32 s49, 1200'); a('s_cbranch_scc1 prep_t1B')
    typeA(49, 40, 10, 11)
    a('s_branch prep_t1load')
    a('prep_t1B:')
    srd(a, 40, 22, 512 * 2752)
    a('s_sub_u32 s57, s49, 1200'); a('s_and_b32 s58, s57, 15'); a('s_lshr_b32 s57, s57, 4')
    a('v_and_b32 v12, 15, v1'); a('v_lshrrev_b32 v13, 4, v1')
    a('s_mul_i32 s70, s58, %d' % (32 * 2752)); a('s_lshl_b32 s71, s57, 6'); a('s_add_u32 s70, s70, s71')
    a('v_mul_u32_u24 v10, %d, v13' % (8 * 2752)); a('v_lshl_add_u32 v10, v12, 2, v10'); a('v_add_u32 v10, s70, v10')
    a('s_lshl_b32 s70, s57, 15'); a('s_lshl_b32 s71, s58, 10'); a('s_add_u32 s70, s70, s71'); a('s_add_u32 s70, s70, 0x%x' % W3P)
    a('v_and_b32 v11, 7, v12'); a('v_lshlrev_b32 v11, 5, v11'); a('v_lshl_add_u32 v11, v13, 8, v11')
    a('v_lshrrev_b32 v12, 3, v12'); a('v_lshl_add_u32 v11, v12, 14, v11'); a('v_add_u32 v11, s70, v11')
    for e in range(8): a('s_movk_i32 s%d, %d' % (60 + e, 2752 * e))
    a('prep_t1load:')
    for e in range(8): a('buffer_load_dword v%d, v10, s[40:43], s%d offen' % (32 + e, 60 + e))
    a('s_waitcnt vmcnt(16)')
    a('s_branch prep_stats')
    a('prep_t1done:')
    a('s_waitcnt vmcnt(8)')
    a('prep_stats:')
    for r in range(2):
        for i in range(4):
            a('v_lshlrev_b32 v%d, 16, v%d' % (48 + 8 * r + 2 * i, 16 + 4 * r + i)); a('v_and_b32 v%d, s54, v%d' % (49 + 8 * r + 2 * i, 16 + 4 * r + i))
    for r in range(2): a('v_add_f32 v%d, v%d, v%d' % (64 + r, 48 + 8 * r, 49 + 8 * r))
    for i in range(2, 8):
        for r in range(2): a('v_add_f32 v%d, v%d, v%d' % (64 + r, 64 + r, 48 + 8 * r + i))
    allreduce(a, [64, 65], [66, 67])
    for r in range(2): a('v_mul_f32 v%d, 0x%x, v%d' % (64 + r, f2u(1.0 / 512), 64 + r))
    for i in range(8):
        for r in range(2): a('v_sub_f32 v%d, v%d, v%d' % (48 + 8 * r + i, 48 + 8 * r + i, 64 + r))
    for r in range(2): a('v_mul_f32 v%d, v%d, v%d' % (68 + r, 48 + 8 * r, 48 + 8 * r))
    for i in range(1, 8):
        for r in range(2): a('v_fmac_f32 v%d, v%d, v%d' % (68 + r, 48 + 8 * r + i, 48 + 8 * r + i))
    allreduce(a, [68, 69], [66, 67])
    a('v_mov_b32 v70, 0x%x' % f2u(EPS))
    for r in range(2): a('v_fmac_f32 v70, 0x%x, v%d' % (f2u(1.0 / 512), 68 + r) if False else 'v_fmamk_f32 v%d, v%d, 0x%x, v70' % (68 + r, 68 + r, f2u(1.0 / 512)))
    for r in range(2): a('v_rsq_f32 v%d, v%d' % (68 + r, 68 + r))
    a('s_lshl_b32 s50, s2, 5'); a('s_lshl_b32 s51, s48, 3'); a('s_add_u32 s50, s50, s51'); a('s_add_u32 s50, s50, 0x%x' % ST0)
    a('v_mov_b32 v2, s50')
    a('s_mov_b64 exec, 1')
    a('s_movk_i32 s53, 0x2000')
    a('buffer_store_dwordx2 v[64:65], v2, s[32:35], 0 offen')
    a('buffer_store_dwordx2 v[68:69], v2, s[32:35], s53 offen')
    a('s_mov_b64 exec, -1')
    a('s_waitcnt vmcnt(0)')
    for c in range(2):
        for i in range(4): a('v_perm_b32 v%d, v%d, v%d, s%d' % (72 + 4 * c + i, 25 + 2 * i, 24 + 2 * i, 55 + c))
    a('buffer_store_dwordx4 v[72:75], v9, s[32:35], 0 offen')
    a('buffer_store_dwordx4 v[76:79], v9, s[32:35], 0 offen offset:16')
    a('s_cmp_eq_u32 s72, 0'); a('s_cbranch_scc1 prep_fin')
    for c in range(2):
        for i in range(4): a('v_perm_b32 v%d, v%d, v%d, s%d' % (80 + 4 * c + i, 33 + 2 * i, 32 + 2 * i, 55 + c))
    a('buffer_store_dwordx4 v[80:83], v11, s[32:35], 0 offen')
    a('buffer_store_dwordx4 v[84:87], v11, s[32:35], 0 offen offset:16')
    a('prep_fin:')
    stamp_end(a, 'prep', 'prep_end')

CS = 4160
L_E4 = 0
L_KV = 33280
L_RED = L_KV + 2 * 4608
CONV_LDS = L_RED + 16384
def k_conv(a):
    n = 'conv'
    prologue(a, n)
    a('s_lshr_b32 s49, s48, 1'); a('s_and_b32 s50, s48, 1')
    a('s_and_b32 s51, s2, 7'); a('s_lshl_b32 s51, s51, 6'); a('s_lshr_b32 s52, s2, 3'); a('s_lshl_b32 s52, s52, 1')
    a('s_add_u32 s51, s51, s52')
    a('s_lshl_b32 s53, s51, 1'); a('s_load_dword s54, s[14:15], s53')
    a('s_add_u32 s51, s51, s49')
    a('s_lshl_b32 s52, s51, 12')
    srd(a, 36, 12, 4096, 's52')
    a('s_lshl_b32 s53, s50, 11'); a('v_lshl_add_u32 v2, v1, 4, s53')
    a('v_add_u32 v3, -8, v2'); a('v_add_u32 v4, 1016, v2')
    a('buffer_load_dwordx2 v[16:17], v3, s[36:39], 0 offen')
    a('buffer_load_dwordx4 v[18:21], v2, s[36:39], 0 offen')
    a('buffer_load_dwordx2 v[22:23], v4, s[36:39], 0 offen')
    a('buffer_load_dwordx4 v[24:27], v2, s[36:39], 0 offen offset:1024')
    a('s_mul_i32 s55, s49, 4608'); a('s_add_u32 s55, s55, %d' % L_KV)
    a('s_add_u32 s56, s55, s53'); a('s_mov_b32 m0, s56')
    a('s_add_u32 s57, s52, %d' % KVR)
    a('buffer_load_dwordx4 v2, s[32:35], s57 offen lds')
    a('buffer_load_dwordx4 v2, s[32:35], s57 offen offset:1024 lds')
    a('v_and_b32 v5, 15, v1'); a('v_lshrrev_b32 v6, 4, v1')
    a('v_lshlrev_b32 v7, 4, v5'); a('v_lshl_add_u32 v7, v6, 2, v7'); a('s_lshl_b32 s56, s50, 10'); a('v_add_u32 v7, s56, v7')
    a('v_lshlrev_b32 v8, 1, v7'); a('v_lshlrev_b32 v9, 2, v7')
    a('s_add_u32 s57, s52, 0x%x' % XT)
    for i in range(4): a('buffer_load_dwordx2 %s, v8, s[32:35], s57 offen offset:%d' % (vr(208 + 2 * i, 2), 512 * i))
    a('s_mov_b32 s57, 0x%x' % ST0); a('s_mov_b32 s58, 0x%x' % (ST0 + 8192))
    for i in range(4): a('buffer_load_dwordx4 %s, v9, s[32:35], s57 offen offset:%d' % (vr(216 + 4 * i, 4), 1024 * i))
    for i in range(4): a('buffer_load_dwordx4 %s, v9, s[32:35], s58 offen offset:%d' % (vr(232 + 4 * i, 4), 1024 * i))
    for i in range(4): a('v_mov_b32 v%d, 0' % (28 + i))
    a('v_and_b32 v10, 31, v1'); a('v_lshlrev_b32 v10, 4, v10'); a('v_add_u32 v10, s55, v10')
    a('ds_write_b128 v10, v[28:31] offset:4096')
    a('s_mul_i32 s59, s49, %d' % (4 * CS))
    a('v_and_b32 v10, 1, v1'); a('v_lshlrev_b32 v10, 4, v10'); a('v_bfe_u32 v11, v1, 1, 2'); a('v_mul_u32_u24 v11, %d, v11' % CS)
    a('v_add3_u32 v10, v10, v11, s59')
    a('ds_write_b128 v10, v[28:31] offset:%d' % L_E4)
    a('v_add_u32 v10, s59, v2')
    a('s_waitcnt vmcnt(16)')
    for i in range(2):
        W = 16 + 6 * i
        if i == 1: a('s_waitcnt vmcnt(14)')
        b = 32 + 12 * i
        for x in range(4): a('v_alignbit_b32 v%d, v%d, v%d, 16' % (b + x, W + x + 1, W + x))
        for x in range(4): a('v_mov_b32 v%d, v%d' % (b + 4 + x, W + x + 1))
        for x in range(4): a('v_alignbit_b32 v%d, v%d, v%d, 16' % (b + 8 + x, W + x + 2, W + x + 1))
        o = L_E4 + 32 + 1024 * i
        a('ds_write_b128 v10, %s offset:%d' % (vr(W + 2, 4), o + 3 * CS))
        a('ds_write_b128 v10, %s offset:%d' % (vr(b, 4), o))
        a('ds_write_b128 v10, %s offset:%d' % (vr(b + 4, 4), o + CS))
        a('ds_write_b128 v10, %s offset:%d' % (vr(b + 8, 4), o + 2 * CS))
    a('v_and_b32 v11, 3, v5'); a('v_mul_u32_u24 v11, %d, v11' % CS); a('v_and_b32 v12, 12, v5'); a('v_lshl_add_u32 v11, v12, 1, v11')
    a('v_lshl_add_u32 v11, v6, 4, v11'); a('s_lshl_b32 s56, s50, 8'); a('s_add_u32 s57, s56, s59'); a('s_add_u32 s57, s57, %d' % (L_E4 + 8))
    a('v_add_u32 v11, s57, v11')
    a('v_lshlrev_b32 v12, 4, v6'); a('v_lshlrev_b32 v13, 5, v5'); a('v_sub_u32 v12, v12, v13')
    a('s_add_u32 s57, s56, s55'); a('s_add_u32 s57, s57, 480'); a('v_add_u32 v12, s57, v12')
    a('s_add_u32 s57, s55, %d' % (2 * (2044 - 768))); a('v_sub_u32 v13, s57, v8')
    a('v_lshlrev_b32 v14, 4, v1'); a('s_lshl_b32 s57, s48, 12'); a('s_xor_b32 s58, s57, 0x1000')
    a('v_add_u32 v15, s57, v14'); a('v_add_u32 v14, s58, v14')
    a('s_waitcnt vmcnt(12) lgkmcnt(0)')
    a('s_barrier'); mid(a, 0); a('s_waitcnt lgkmcnt(0)')
    ACC = 16; FR = 48
    def A(st, x): return FR + 64 * st + 4 * x
    def B(st, x): return FR + 64 * st + 32 + 4 * x
    def reads(rho):
        st = rho & 1; l = []
        for x in range(8):
            l.append('ds_read_b64 %s, v11 offset:%d' % (vr(A(st, x), 2), 512 * x + 64 * rho))
            l.append('ds_read_b64 %s, v11 offset:%d' % (vr(A(st, x) + 2, 2), 512 * x + 64 * rho + 8))
            l.append('ds_read_b128 %s, v12 offset:%d' % (vr(B(st, x), 4), 512 * (7 - x) + 64 * rho))
        return l
    for r in reads(0): a(r)
    started = set()
    for rho in range(4):
        st = rho & 1
        nxt = reads(rho + 1) if rho < 3 else ['ds_read_b64 %s, v13 offset:%d' % (vr(176 + 2 * i, 2), 512 * (3 - i)) for i in range(4)]
        issued = 0; cnt = 0
        for x in range(8):
            pairs = [(x, b) for b in range(x + 1) if x + b <= 7] + [(aa, x) for aa in range(x) if aa + x <= 7]
            if rho == 0:
                a('s_waitcnt lgkmcnt(%d)' % min(15, 3 * (7 - x) + issued))
            elif x == 0:
                a('s_waitcnt lgkmcnt(0)')
            for (aa, bb) in pairs:
                t = aa + bb
                c = vr(ACC + 4 * t, 4) if t in started else '0'
                started.add(t)
                a('v_mfma_f32_16x16x32_bf16 %s, %s, %s, %s' % (vr(ACC + 4 * t, 4), vr(A(st, aa), 4), vr(B(st, bb), 4), c))
                cnt += 1
                if (rho > 0 or x >= 3) and issued < len(nxt) and cnt <= 30:
                    a(nxt[issued]); issued += 1
        while issued < len(nxt): a(nxt[issued]); issued += 1
    a('s_cmp_eq_u32 s50, 0'); a('s_cbranch_scc1 conv_k0')
    for v, lab in ((1, None), (0, 'conv_k0')):
        if lab: a(lab + ':')
        snd = 0 if v else 4; keep = 4 - snd
        for i in range(4): a('ds_write_b128 v14, %s offset:%d' % (vr(ACC + 4 * (snd + i), 4), L_RED + 1024 * i))
        a('s_waitcnt lgkmcnt(0)'); a('s_barrier')
        for i in range(4): a('ds_read_b128 %s, v15 offset:%d' % (vr(48 + 4 * i, 4), L_RED + 1024 * i))
        for i in range(4):
            a('s_waitcnt lgkmcnt(%d)' % (3 - i))
            for r in range(4): a('v_add_f32 v%d, v%d, v%d' % (48 + 4 * i + r, 48 + 4 * i + r, ACC + 4 * (keep + i) + r))
        if v: a('s_branch conv_epi')
    a('conv_epi:'); mid(a, 1)
    a('s_lshl_b32 s56, s54, 16'); a('s_and_b32 s57, s54, 0xffff0000'); a('s_cmp_eq_u32 s49, 0'); a('s_cselect_b32 s54, s56, s57')
    a('s_mov_b32 s56, 0xffff0000')
    a('v_and_b32 v2, 1, v6'); a('v_lshlrev_b32 v2, 18, v2'); a('v_lshrrev_b32 v3, 2, v5'); a('v_lshl_add_u32 v2, v3, 16, v2')
    a('v_and_b32 v3, 3, v5'); a('v_lshl_add_u32 v2, v3, 5, v2'); a('v_lshrrev_b32 v3, 1, v6'); a('v_lshl_add_u32 v2, v3, 4, v2')
    a('s_lshl_b32 s57, s50, 20'); a('s_lshl_b32 s58, s51, 7'); a('s_add_u32 s57, s57, s58'); a('s_add_u32 s57, s57, 0x%x' % HT)
    a('s_add_u32 s58, s57, 0x80000')
    a('s_waitcnt vmcnt(0)')
    for i in range(4):
        kvv = 64; xx = 68
        a('v_and_b32 v%d, s56, v%d' % (kvv + 0, 177 + 2 * i)); a('v_lshlrev_b32 v%d, 16, v%d' % (kvv + 1, 177 + 2 * i))
        a('v_and_b32 v%d, s56, v%d' % (kvv + 2, 176 + 2 * i)); a('v_lshlrev_b32 v%d, 16, v%d' % (kvv + 3, 176 + 2 * i))
        a('v_lshlrev_b32 v%d, 16, v%d' % (xx + 0, 208 + 2 * i)); a('v_and_b32 v%d, s56, v%d' % (xx + 1, 208 + 2 * i))
        a('v_lshlrev_b32 v%d, 16, v%d' % (xx + 2, 209 + 2 * i)); a('v_and_b32 v%d, s56, v%d' % (xx + 3, 209 + 2 * i))
        for r in range(4): a('v_fmac_f32 v%d, s54, v%d' % (48 + 4 * i + r, kvv + r))
        for r in range(4): a('v_sub_f32 v%d, v%d, v%d' % (72 + r, xx + r, 216 + 4 * i + r))
        for r in range(4): a('v_mul_f32 v%d, v%d, v%d' % (72 + r, 72 + r, 232 + 4 * i + r))
        for r in range(4): a('v_fmac_f32 v%d, v%d, v%d' % (xx + r, 72 + r, 48 + 4 * i + r))
        o = 80 + 2 * i
        a('v_cvt_pk_bf16_f32 v%d, v%d, v%d' % (o, xx, xx + 1)); a('v_cvt_pk_bf16_f32 v%d, v%d, v%d' % (o + 1, xx + 2, xx + 3))
        if i & 1:
            a('v_permlane16_swap_b32 v%d, v%d' % (o - 2, o)); a('v_permlane16_swap_b32 v%d, v%d' % (o - 1, o + 1))
            a('buffer_store_dwordx4 %s, v2, s[32:35], s%d offen' % (vr(o - 2, 4), 57 + (i >> 1)))
    stamp_end(a, 'conv', 'conv_end')

def tc_ids(a):
    a('s_and_b32 s49, s2, 7'); a('s_lshl_b32 s49, s49, 2'); a('s_bfe_u32 s50, s2, 0x20003'); a('s_add_u32 s49, s49, s50')
    a('s_lshr_b32 s50, s2, 5')
    a('s_and_b32 s51, s48, 1'); a('s_lshr_b32 s52, s48, 1')

G_RED = 65536
G_ST = G_RED + 49152
G_LDS = G_ST + 2048
ACC = 16
def acc(th, ch): return ACC + 32 * th + 16 * ch

def red_addrs(a):
    a('v_lshlrev_b32 v13, 4, v1')
    for slot in range(3):
        th, ch = slot >> 1, slot & 1
        a('s_xor_b32 s53, s48, %d' % ((1 - th) + 2 * (1 - ch))); a('s_mul_i32 s53, s53, 12288'); a('s_add_u32 s53, s53, %d' % (G_RED + 4096 * slot))
        a('v_add_u32 v%d, s53, v13' % (10 + slot))
    a('s_mul_i32 s53, s48, 12288'); a('s_add_u32 s53, s53, %d' % G_RED); a('v_add_u32 v13, s53, v13')

def red_write(slot):
    th, ch = slot >> 1, slot & 1
    return ['ds_write_b128 v%d, %s offset:%d' % (10 + slot, vr(acc(th, ch) + 4 * q, 4), 1024 * q) for q in range(4)]

def red_read_add(a, tmp, extra_outstanding=0):
    for i in range(12): a('ds_read_b128 %s, v13 offset:%d' % (vr(tmp + 4 * i, 4), 1024 * i))
    o = acc(1, 1)
    for i in range(12):
        a('s_waitcnt lgkmcnt(%d)' % (11 - i))
        for r in range(4): a('v_add_f32 v%d, v%d, v%d' % (o + 4 * (i & 3) + r, o + 4 * (i & 3) + r, tmp + 4 * i + r))

def load_w(a, wbase, nks_total, nks, ks0_expr, dst):
    a('s_mul_i32 s53, s50, %d' % (nks_total * 2048)); a('s_mul_i32 s54, s48, %d' % (ks0_expr * 2048)); a('s_add_u32 s53, s53, s54')
    a('s_add_u32 s53, s53, 0x%x' % wbase)
    a('s_lshl_b32 s54, s52, 10'); a('v_lshl_add_u32 v2, v1, 4, s54'); a('v_xor_b32 v3, 0x400, v2')
    for s in range(nks):
        if s and s % 2 == 0: a('s_add_u32 s53, s53, 4096')
        a('buffer_load_dwordx4 %s, v3, s[32:35], s53 offen offset:%d' % (ur(dst + 8 * s, 4), 2048 * (s & 1)))
        a('buffer_load_dwordx4 %s, v2, s[32:35], s53 offen offset:%d' % (ur(dst + 8 * s + 4, 4), 2048 * (s & 1)))

def gelu(a, t, ca, cb, ri, tmp, n):
    l = []
    for i in range(n): l.append('v_mul_f32 v%d, v%d, v%d' % (tmp + i, t + i, t + i))
    for i in range(n): l.append('v_fma_f32 v%d, v%d, v%d, v%d' % (tmp + i, tmp + i, cb, ca))
    for i in range(n): l.append('v_mul_f32 v%d, v%d, v%d' % (tmp + i, tmp + i, t + i))
    for i in range(n): l.append('v_exp_f32 v%d, v%d' % (tmp + i, tmp + i))
    for i in range(n): l.append('v_fma_f32 v%d, v%d, v%d, v%d' % (tmp + i, tmp + i, ri, ri))
    for i in range(n): l.append('v_rcp_f32 v%d, v%d' % (tmp + i, tmp + i))
    for i in range(n): l.append('v_mul_f32 v%d, v%d, v%d' % (t + i, t + i, tmp + i))
    return l

def carry_addr(a, v):
    a('s_lshl_b32 s53, s2, 15'); a('s_add_u32 s53, s53, 0x%x' % CARRY); a('v_lshl_add_u32 v%d, v0, 4, s53' % v)

def k_g1(a):
    n = 'g1'
    prologue(a, n); tc_ids(a)
    a('v_lshrrev_b32 v4, 4, v1'); a('v_and_b32 v4, 1, v4'); a('v_lshlrev_b32 v4, 6, v4'); a('v_lshlrev_b32 v5, 4, v1'); a('v_xor_b32 v4, v4, v5')
    a('s_lshl_b32 s56, s48, 14'); a('s_lshl_b32 s57, s49, 16'); a('s_add_u32 s57, s57, s56'); a('s_add_u32 s57, s57, 0x%x' % HT)
    for i in range(16):
        if i % 4 == 0:
            a('s_add_u32 s58, s56, %d' % (1024 * i)); a('s_mov_b32 m0, s58'); a('s_add_u32 s59, s57, %d' % (1024 * i))
        a('buffer_load_dwordx4 v4, s[32:35], s59 offen offset:%d lds' % (1024 * (i & 3)))
    WR = 256
    load_w(a, W1P, 32, 8, 8, WR)
    red_addrs(a)
    a('v_lshrrev_b32 v8, 5, v1'); a('v_bfe_u32 v9, v1, 2, 2')
    a('v_lshl_add_u32 v6, v8, 3, v9'); a('v_lshlrev_b32 v6, 7, v6')
    a('v_lshrrev_b32 v9, 1, v9'); a('v_xor_b32 v9, s51, v9'); a('v_lshl_add_u32 v6, v9, 6, v6')
    a('v_bfe_u32 v9, v1, 4, 1'); a('v_lshl_add_u32 v6, v9, 5, v6'); a('v_and_b32 v9, 3, v1'); a('v_lshl_add_u32 v7, v9, 3, v6')
    a('s_lshl_b32 s53, s50, 13'); a('s_lshl_b32 s54, s52, 12'); a('s_add_u32 s53, s53, s54'); a('v_add_u32 v14, s53, v7')
    a('v_add_u32 v7, s56, v7'); a('v_xor_b32 v6, 64, v7')
    BF = 80
    CSUM = 144
    for i in range(4): a('v_mov_b32 v%d, 0x3f803f80' % (224 + i))
    a('s_waitcnt vmcnt(0)'); mid(a, 0); a('s_waitcnt lgkmcnt(0)')
    for s in range(8):
        for ch in range(2):
            a('v_mfma_f32_32x32x16_bf16 %s, %s, v[224:227], %s' % (vr(acc(0, ch), 16), ur(WR + 8 * s + 4 * ch, 4), vr(acc(0, ch), 16) if s else '0'))
    for th in range(2):
        for s in range(8):
            a('ds_read_b64_tr_b16 %s, v%d offset:%d' % (vr(BF + 32 * th + 4 * s, 2), 6 + th, 2048 * s))
            a('ds_read_b64_tr_b16 %s, v%d offset:%d' % (vr(BF + 32 * th + 4 * s + 2, 2), 6 + th, 2048 * s + 512))
    for q in range(4): a('ds_write_b128 v10, %s offset:%d' % (vr(acc(0, 0) + 4 * q, 4), 1024 * q))
    for q in range(4): a('ds_write_b128 v11, %s offset:%d' % (vr(acc(0, 1) + 4 * q, 4), 1024 * q))
    for q in range(4): a('ds_write_b128 v12, %s offset:%d' % (vr(acc(0, 0) + 4 * q, 4), 1024 * q))
    for i in range(16): a('v_mov_b32 v%d, v%d' % (acc(1, 1) + i, acc(0, 1) + i))
    a('s_waitcnt lgkmcnt(0)'); a('s_barrier')
    red_read_add(a, 160)
    for i in range(16): a('v_mov_b32 v%d, v%d' % (CSUM + i, acc(1, 1) + i))
    a('s_barrier')
    ST = 208
    for i in range(4): a('v_mov_b32 v%d, 0' % (ST + i))
    for th in range(2):
        wr = (red_write(0) + red_write(1)) if th else []
        for s in range(8):
            b = BF + 32 * th + 4 * s
            for ch in range(2):
                a('v_mfma_f32_32x32x16_bf16 %s, %s, %s, %s' % (vr(acc(th, ch), 16), ur(WR + 8 * s + 4 * ch, 4), vr(b, 4), vr(acc(th, ch), 16) if s else '0'))
                for i in range(2):
                    a('v_dot2c_f32_bf16 v%d, v%d, v224' % (ST + th, b + 2 * ch + i))
                    a('v_dot2c_f32_bf16 v%d, v%d, v%d' % (ST + 2 + th, b + 2 * ch + i, b + 2 * ch + i))
            if wr and s >= 1: a(wr.pop(0))
            if wr and s >= 7: a(wr.pop(0))
    a('v_permlane32_swap_b32 v208, v209'); a('v_permlane32_swap_b32 v210, v211')
    a('v_add_f32 v208, v208, v209'); a('v_add_f32 v209, v210, v211')
    a('s_xor_b32 s53, s51, 1'); a('s_lshl_b32 s53, s53, 5'); a('v_xor_b32 v2, s53, v1'); a('v_lshlrev_b32 v2, 3, v2')
    a('s_lshl_b32 s53, s48, 9'); a('s_add_u32 s53, s53, %d' % G_ST); a('v_add_u32 v2, s53, v2')
    a('ds_write_b64 v2, v[208:209]')
    for w in red_write(2): a(w)
    a('v_and_b32 v2, 31, v1'); a('s_lshl_b32 s53, s51, 5'); a('v_add_u32 v3, s53, v2'); a('v_lshlrev_b32 v2, 3, v3'); a('v_add_u32 v2, %d, v2' % G_ST)
    a('s_waitcnt lgkmcnt(0)'); a('s_barrier')
    for w in range(4): a('ds_read_b64 %s, v2 offset:%d' % (vr(208 + 2 * w, 2), 512 * w))
    HO = 216
    for s in range(2):
        a('ds_read_b64_tr_b16 %s, v14 offset:%d' % (vr(HO + 4 * s, 2), 2048 * s))
        a('ds_read_b64_tr_b16 %s, v14 offset:%d' % (vr(HO + 4 * s + 2, 2), 2048 * s + 512))
    a('s_waitcnt lgkmcnt(4)')
    for w in range(1, 4):
        a('v_add_f32 v208, v208, v%d' % (208 + 2 * w)); a('v_add_f32 v209, v209, v%d' % (209 + 2 * w))
    red_read_add(a, 80)
    a('v_mul_f32 v208, 0x%x, v208' % f2u(1.0 / 512))
    a('v_mul_f32 v210, v208, v208'); a('v_fma_f32 v209, v209, s60, -v210'.replace('s60', 's60'))
    a('v_max_f32 v209, 0, v209')
    a('v_add_f32 v210, 0x%x, v209' % f2u(EPS)); a('v_rsq_f32 v210, v210')
    a('v_mul_f32 v211, v210, v210'); a('v_mul_f32 v211, v211, v209'); a('v_add_f32 v211, 0x%x, v211' % f2u(EPS)); a('v_rsq_f32 v211, v211')
    a('v_mul_f32 v211, v211, v210')
    a('v_rcp_f32 v212, v211')
    a('v_mul_f32 v213, 0x%x, v211' % f2u(C0))
    a('v_mul_f32 v214, v211, v211'); a('v_mul_f32 v214, v214, v211'); a('v_mul_f32 v214, 0x%x, v214' % f2u(C1))
    o = acc(1, 1)
    for i in range(16): a('v_fma_f32 v%d, -v208, v%d, v%d' % (o + i, CSUM + i, o + i))
    for l in gelu(a, o, 213, 214, 212, 80, 16): a(l)
    a('s_lshr_b32 s53, s50, 1'); a('s_lshl_b32 s53, s53, 3'); a('s_lshr_b32 s53, 0xfe02ff01, s53'); a('s_sext_i32_i8 s53, s53')
    a('s_lshl_b32 s54, s49, 6'); a('s_add_u32 s53, s53, s54'); a('v_add_u32 v3, s53, v3')
    a('v_cmp_gt_u32 vcc, 0x800, v3')
    a('v_and_b32 v3, 0x7ff, v3')
    a('v_lshrrev_b32 v4, 5, v3'); a('v_lshlrev_b32 v4, 15, v4'); a('v_and_b32 v3, 31, v3'); a('v_lshl_add_u32 v4, v3, 4, v4')
    a('v_lshrrev_b32 v3, 5, v1'); a('v_lshl_add_u32 v4, v3, 9, v4')
    a('s_lshl_b32 s53, s50, 12'); a('s_lshl_b32 s54, s52, 11'); a('s_add_u32 s53, s53, s54'); a('s_add_u32 s53, s53, 0x%x' % ZB)
    for i in range(8): a('v_cvt_pk_bf16_f32 v%d, v%d, v%d' % (96 + i, o + 2 * i, o + 2 * i + 1))
    for i in range(8): a('v_cndmask_b32 v%d, 0, v%d, vcc' % (96 + i, 96 + i))
    a('buffer_store_dwordx4 v[96:99], v4, s[32:35], s53 offen')
    a('buffer_store_dwordx4 v[100:103], v4, s[32:35], s53 offen offset:1024')
    carry_addr(a, 5)
    a('s_movk_i32 s53, 0x1000'); a('s_movk_i32 s54, 0x2000')
    a('buffer_store_dwordx4 %s, v5, s[32:35], 0 offen' % vr(HO, 4))
    a('buffer_store_dwordx4 %s, v5, s[32:35], s53 offen' % vr(HO + 4, 4))
    a('buffer_store_dwordx4 v[208:211], v5, s[32:35], s54 offen')
    stamp_end(a, 'g1', 'g1_end')

def ksplit_main(a, WR, BR, nks, pre_wait):
    for th in range(2):
        wr = (red_write(0) + red_write(1)) if th else []
        for s in range(nks):
            a('s_waitcnt vmcnt(%d)' % (2 * nks - 1 - (nks * th + s)))
            b = BR + 4 * (nks * th + s)
            if th == 0 and s == 0: mid(a, 0)
            for ch in range(2):
                a('v_mfma_f32_32x32x16_bf16 %s, %s, %s, %s' % (vr(acc(th, ch), 16), ur(WR + 8 * s + 4 * ch, 4), ur(b, 4), vr(acc(th, ch), 16) if s else '0'))
            if wr and s >= 1: a(wr.pop(0))
            if wr and s >= nks - 1: a(wr.pop(0))
    for w in red_write(2): a(w)
    a('s_waitcnt lgkmcnt(0)'); a('s_barrier'); mid(a, 1); a('s_waitcnt lgkmcnt(0)')

def load_b(a, base, thstride, nks, ks_per_wave, dst, srdn=32):
    a('s_lshl_b32 s53, s49, 1'); a('s_add_u32 s53, s53, s51'); a('s_xor_b32 s54, s53, 1')
    a('s_mul_i32 s53, s53, %d' % thstride); a('s_mul_i32 s54, s54, %d' % thstride)
    a('s_mul_i32 s55, s48, %d' % (ks_per_wave * 1024)); a('s_add_u32 s55, s55, 0x%x' % base)
    a('s_add_u32 s53, s53, s55'); a('s_add_u32 s54, s54, s55')
    a('v_lshlrev_b32 v4, 4, v1')
    for th in range(2):
        sreg = 54 - th
        for s in range(nks):
            if s and s % 4 == 0: a('s_add_u32 s%d, s%d, 4096' % (sreg, sreg))
            a('buffer_load_dwordx4 %s, v4, s[%d:%d], s%d offen offset:%d' % (ur(dst + 4 * (nks * th + s), 4), srdn, srdn + 3, sreg, 1024 * (s & 3)))

def k_g2(a):
    n = 'g2'
    prologue(a, n); tc_ids(a)
    carry_addr(a, 5)
    a('s_movk_i32 s56, 0x1000'); a('s_movk_i32 s57, 0x2000')
    a('buffer_load_dwordx4 v[216:219], v5, s[32:35], 0 offen')
    a('buffer_load_dwordx4 v[220:223], v5, s[32:35], s56 offen')
    a('buffer_load_dwordx4 v[208:211], v5, s[32:35], s57 offen')
    WR = 256 + 64
    load_w(a, W2P, 32, 8, 8, WR)
    load_b(a, ZB, 32768, 8, 8, 80)
    red_addrs(a)
    ksplit_main(a, WR, 80, 8, 0)
    red_read_add(a, 80)
    o = acc(1, 1)
    a('s_mov_b32 s58, 0xffff0000')
    H = 144
    for i in range(8):
        a('v_lshlrev_b32 v%d, 16, v%d' % (H + 2 * i, 216 + i)); a('v_and_b32 v%d, s58, v%d' % (H + 2 * i + 1, 216 + i))
    for i in range(16): a('v_sub_f32 v%d, v%d, v208' % (80 + i, H + i))
    for i in range(16): a('v_fmac_f32 v%d, v%d, v210' % (o + i, 80 + i))
    for i in range(8): a('v_cvt_pk_bf16_f32 v%d, v%d, v%d' % (96 + i, o + 2 * i, o + 2 * i + 1))
    a('s_lshl_b32 s53, s49, 1'); a('s_add_u32 s53, s53, s51')
    a('s_lshl_b32 s54, s53, 15'); a('s_lshl_b32 s55, s50, 12'); a('s_add_u32 s54, s54, s55'); a('s_lshl_b32 s55, s52, 11'); a('s_add_u32 s54, s54, s55')
    a('s_add_u32 s54, s54, 0x%x' % X1B)
    a('buffer_store_dwordx4 v[96:99], v4, s[32:35], s54 offen')
    a('buffer_store_dwordx4 v[100:103], v4, s[32:35], s54 offen offset:1024')
    a('v_mov_b32 v104, 0'); a('v_mov_b32 v105, 0'); a('v_mov_b32 v106, 0x3f803f80')
    for i in range(8):
        a('v_dot2c_f32_bf16 v104, v%d, v106' % (96 + i)); a('v_dot2c_f32_bf16 v105, v%d, v%d' % (96 + i, 96 + i))
    for i in range(8):
        a('v_lshlrev_b32 v%d, 16, v%d' % (80 + 2 * i, 96 + i)); a('v_and_b32 v%d, s58, v%d' % (81 + 2 * i, 96 + i))
    for i in range(16): a('v_add_f32 v%d, v%d, v%d' % (H + i, H + i, 80 + i))
    a('v_permlane32_swap_b32 v104, v105'); a('v_add_f32 v104, v104, v105')
    a('s_lshl_b32 s54, s53, 12'); a('s_lshl_b32 s55, s50, 9'); a('s_add_u32 s54, s54, s55'); a('s_lshl_b32 s55, s52, 8'); a('s_add_u32 s54, s54, s55')
    a('s_add_u32 s54, s54, 0x%x' % ST1); a('v_lshlrev_b32 v2, 2, v1')
    a('buffer_store_dword v104, v2, s[32:35], s54 offen')
    for q in range(4):
        a('s_movk_i32 s56, 0x%x' % (0x1000 * (3 + q)))
        a('buffer_store_dwordx4 %s, v5, s[32:35], s56 offen' % vr(H + 4 * q, 4))
    stamp_end(a, 'g2', 'g2_end')

def k_g3(a):
    n = 'g3'
    prologue(a, n); tc_ids(a)
    a('v_lshlrev_b32 v4, 4, v1')
    a('s_lshl_b32 s56, s48, 13'); a('s_lshl_b32 s57, s49, 16'); a('s_add_u32 s57, s57, s56'); a('s_add_u32 s57, s57, 0x%x' % X1B)
    for i in range(16):
        if i % 4 == 0:
            o = 32768 * (i >> 3) + 1024 * (i & 7)
            a('s_add_u32 s58, s56, %d' % o); a('s_mov_b32 m0, s58'); a('s_add_u32 s59, s57, %d' % o)
        a('buffer_load_dwordx4 v4, s[32:35], s59 offen offset:%d lds' % (1024 * (i & 3)))
    a('v_and_b32 v5, 15, v1'); a('v_lshrrev_b32 v6, 4, v1')
    a('v_lshlrev_b32 v7, 10, v6'); a('v_lshl_add_u32 v7, v5, 2, v7')
    a('s_lshl_b32 s58, s49, 13'); a('s_add_u32 s58, s58, 0x%x' % ST1); a('s_add_u32 s59, s58, 4096')
    SP = 112
    for tt in range(4):
        for p in range(4):
            for st in range(2):
                a('buffer_load_dword v%d, v7, s[32:35], s%d offen offset:%d' % (SP + 8 * tt + 2 * p + st, 58 + (tt >> 1), 256 * p + 128 * st + 64 * (tt & 1)))
    srd(a, 36, 30, 86 * 16384, '0x%x' % W3P)
    WR = [192, 256 + 128, 256 + 192]
    a('s_mul_i32 s53, s50, 11'); a('s_mul_i32 s54, s48, 3'); a('s_add_u32 s53, s53, s54')
    a('s_mov_b32 s61, s53')
    for j in range(3):
        a('s_add_u32 s54, s53, %d' % j); a('s_lshl_b32 s54, s54, 14')
        if j == 2:
            a('s_cmp_eq_u32 s48, 3'); a('s_cselect_b32 s54, 0x%x, s54' % (86 * 16384))
        for s in range(16):
            if s and s % 4 == 0: a('s_add_u32 s54, s54, 4096')
            a('buffer_load_dwordx4 %s, v4, s[36:39], s54 offen offset:%d' % (ur(WR[j] + 4 * s, 4), 1024 * (s & 3)))
    a('v_lshlrev_b32 v8, 9, v6'); a('v_lshl_add_u32 v8, v5, 4, v8')
    a('v_add_u32 v9, 0x8000, v8')
    a('s_waitcnt vmcnt(48)')
    STT = 144
    for tt in range(4):
        b = SP + 8 * tt
        for st in range(2):
            a('v_add_f32 v%d, v%d, v%d' % (b + st, b + st, b + 2 + st)); a('v_add_f32 v%d, v%d, v%d' % (b + 4 + st, b + 4 + st, b + 6 + st))
        for st in range(2): a('v_add_f32 v%d, v%d, v%d' % (b + st, b + st, b + 4 + st))
    regs = [SP + 8 * tt + st for tt in range(4) for st in range(2)]
    for sw in ('v_permlane16_swap_b32', 'v_permlane32_swap_b32'):
        for r in regs: a('v_mov_b32 v%d, v%d' % (r + 2, r))
        for r in regs: a('%s v%d, v%d' % (sw, r, r + 2))
        for r in regs: a('v_add_f32 v%d, v%d, v%d' % (r, r, r + 2))
    for tt in range(4):
        b = SP + 8 * tt; m = STT + 4 * tt
        a('v_mul_f32 v%d, s60, v%d' % (m, b))
        a('v_mul_f32 v%d, v%d, v%d' % (b, m, m)); a('v_fma_f32 v%d, v%d, s60, -v%d' % (b + 1, b + 1, b))
        a('v_max_f32 v%d, 0, v%d' % (b + 1, b + 1)); a('v_add_f32 v%d, 0x%x, v%d' % (b + 1, f2u(EPS), b + 1))
        a('v_rsq_f32 v%d, v%d' % (b, b + 1)); a('v_sqrt_f32 v%d, v%d' % (m + 3, b + 1))
        a('v_mul_f32 v%d, 0x%x, v%d' % (m + 1, f2u(C0), b))
        a('v_mul_f32 v%d, v%d, v%d' % (b + 1, b, b)); a('v_mul_f32 v%d, v%d, v%d' % (b + 1, b + 1, b)); a('v_mul_f32 v%d, 0x%x, v%d' % (m + 2, f2u(C1), b + 1))
    CSUM = 160
    for i in range(4): a('v_mov_b32 v%d, 0x3f803f80' % (172 + i))
    a('s_waitcnt vmcnt(0)'); mid(a, 0); a('s_waitcnt lgkmcnt(0)')
    for s in range(16):
        for j in range(3):
            a('v_mfma_f32_16x16x32_bf16 %s, %s, v[172:175], %s' % (vr(CSUM + 4 * j, 4), ur(WR[j] + 4 * s, 4), vr(CSUM + 4 * j, 4) if s else '0'))
    a('s_barrier')
    A3 = 16
    BR = 64
    TMP = 96
    PK = 112
    srd(a, 40, 30, 64 * HTH, '0x%x' % HB)
    a('s_lshl_b32 s53, s49, 1'); a('s_mul_i32 s53, s53, %d' % HTH); a('s_lshl_b32 s54, s61, 10'); a('s_add_u32 s53, s53, s54')
    a('s_add_u32 s54, s53, %d' % HTH)
    a('s_cmp_eq_u32 s48, 3'); a('s_cselect_b32 s55, 0x%x, s53' % (64 * HTH)); a('s_cselect_b32 s56, 0x%x, s54' % (64 * HTH))
    def rd(k):
        tt, s = k >> 4, k & 15
        return 'ds_read_b128 %s, v%d offset:%d' % (vr(BR + 4 * (k & 7), 4), 8 + (tt >> 1), 2048 * s + 256 * (tt & 1))
    def epi(tt):
        o = A3 + 12 * tt; m = STT + 4 * tt
        l = ['v_fma_f32 v%d, -v%d, v%d, v%d' % (o + i, m, CSUM + i, o + i) for i in range(12)]
        l += gelu(a, o, m + 1, m + 2, m + 3, TMP, 12)
        for j in range(3):
            for i in range(2): l.append('v_cvt_pk_bf16_f32 v%d, v%d, v%d' % (PK + 4 * j + 2 * (tt & 1) + i, o + 4 * j + 2 * i, o + 4 * j + 2 * i + 1))
        if tt & 1:
            for j in range(3):
                l.append('v_permlane16_swap_b32 v%d, v%d' % (PK + 4 * j, PK + 4 * j + 2)); l.append('v_permlane16_swap_b32 v%d, v%d' % (PK + 4 * j + 1, PK + 4 * j + 3))
            for j in range(3):
                l.append('buffer_store_dwordx4 %s, v4, s[40:43], s%d offen offset:%d' % (vr(PK + 4 * j, 4), (55 if j == 2 else 53) + (tt >> 1), 1024 * j))
        return l
    for k in range(6): a(rd(k))
    pend = []
    for k in range(64):
        tt, s = k >> 4, k & 15
        if k + 6 < 64: a(rd(k + 6))
        a('s_waitcnt lgkmcnt(%d)' % min(6, 63 - k))
        for j in range(3):
            o = A3 + 12 * tt + 4 * j
            a('v_mfma_f32_16x16x32_bf16 %s, %s, %s, %s' % (vr(o, 4), ur(WR[j] + 4 * s, 4), vr(BR + 4 * (k & 7), 4), vr(o, 4) if s else '0'))
            if s >= 1:
                for _ in range(3 if j < 2 else 2):
                    if pend: a(pend.pop(0))
        if s == 15:
            while pend: a(pend.pop(0))
            pend = epi(tt)
    while pend: a(pend.pop(0))
    stamp_end(a, 'g3', 'g3_end')

def k_g4(a):
    n = 'g4'
    prologue(a, n); tc_ids(a)
    carry_addr(a, 5)
    RES = 80
    WR = 256; BR = 80
    load_w(a, W4P, 86, 22, 22, WR)
    for q in range(4):
        a('s_movk_i32 s56, 0x%x' % (0x1000 * (3 + q)))
        a('buffer_load_dwordx4 %s, v5, s[32:35], s56 offen' % ar(192 + 4 * q, 4))
    a('s_waitcnt vmcnt(16)')
    a('s_cmp_lg_u32 s48, 3'); a('s_cbranch_scc1 g4_w')
    a('s_waitcnt vmcnt(0)')
    for i in range(16): a('v_accvgpr_write_b32 a%d, 0' % (160 + i))
    a('g4_w:')
    load_b(a, HB, HTH, 22, 22, BR)
    red_addrs(a)
    ksplit_main(a, WR, BR, 22, 0)
    red_read_add(a, 80)
    o = acc(1, 1)
    for i in range(16): a('v_accvgpr_read_b32 v%d, a%d' % (80 + i, 192 + i))
    for i in range(16): a('v_add_f32 v%d, v%d, v%d' % (o + i, o + i, 80 + i))
    for i in range(8): a('v_cvt_pk_bf16_f32 v%d, v%d, v%d' % (96 + i, o + 2 * i, o + 2 * i + 1))
    srd(a, 36, 26, 2 * MB)
    a('v_and_b32 v2, 31, v1'); a('v_lshlrev_b32 v2, 10, v2'); a('v_lshrrev_b32 v3, 5, v1'); a('v_lshl_add_u32 v2, v3, 4, v2')
    a('s_lshl_b32 s53, s49, 16'); a('s_lshl_b32 s54, s51, 15'); a('s_add_u32 s53, s53, s54')
    a('s_lshl_b32 s54, s50, 7'); a('s_add_u32 s53, s53, s54'); a('s_lshl_b32 s54, s52, 6'); a('s_add_u32 s53, s53, s54')
    a('buffer_store_dwordx4 v[96:99], v2, s[36:39], s53 offen')
    a('buffer_store_dwordx4 v[100:103], v2, s[36:39], s53 offen offset:32')
    stamp_end(a, 'g4', 'g4_end')

def k_empty(a):
    a('s_endpgm')

KERNELS = [('prep', k_prep, 512, 0, 128, 128), ('conv', k_conv, 256, CONV_LDS, 256, 256), ('g1', k_g1, 256, G_LDS, 512, 256),
           ('g2', k_g2, 256, G_LDS, 512, 256), ('g3', k_g3, 256, 65536, 512, 256), ('g4', k_g4, 256, G_LDS, 512, 256)]

def generate(nempty=0):
    hdr = open('sequential_preLN__ssm_conv_h3__mixer_s_mlp__prompt.s.ref').read().split('; Override')[0]
    ks = list(KERNELS)
    out = hdr
    for name, fn, nt, lds, nv, ao in ks:
        out += '; @launch kernel=%s_kernel grid=(256,1,1) block=(%d,1,1) lds=%d\n' % (name, nt, lds)
    for i in range(nempty):
        out += '; @launch kernel=empty_kernel grid=(256,1,1) block=(256,1,1) lds=0\n'
    if nempty: ks.append(('empty', k_empty, 256, 0, 8, 8))
    out += '.amdgcn_target "amdgcn-amd-amdhsa--gfx950"\n.text\n'
    for name, fn, nt, lds, nv, ao in ks:
        a = Asm()
        if name in ('g1', 'g3'): a('s_mov_b32 s60, 0x%x' % f2u(1.0 / 512))
        fn(a)
        out += '.globl %s_kernel\n.p2align 8\n.type %s_kernel,@function\n%s_kernel:\n' % (name, name, name)
        out += a.finish()
        print(name, 'instrs', len(a.L), 'nops', a.nops, file=sys.stderr)
    out += '.section .rodata,"a"\n'
    for name, fn, nt, lds, nv, ao in ks:
        out += '''.p2align 6
.amdhsa_kernel %s_kernel
  .amdhsa_next_free_vgpr %d
  .amdhsa_next_free_sgpr 96
  .amdhsa_accum_offset %d
  .amdhsa_group_segment_fixed_size 0
  .amdhsa_kernarg_size 112
  .amdhsa_user_sgpr_count 2
  .amdhsa_user_sgpr_kernarg_segment_ptr 1
  .amdhsa_system_sgpr_workgroup_id_x 1
  .amdhsa_float_denorm_mode_32 3
.end_amdhsa_kernel
''' % (name, nv, ao)
    return out

if __name__ == '__main__':
    ne = int(sys.argv[2]) if len(sys.argv) > 2 else 0
    STAMP = len(sys.argv) > 3
    open(sys.argv[1], 'w').write(generate(ne))
```

```python
import sys, gen1
from asmlib import *
def make(ptr_off, base, stride, N):
    def k_probe(a):
        a('s_cmp_ge_u32 s2, 1'); a('s_cbranch_scc1 probe_end')
        a('s_load_dwordx2 s[4:5], s[0:1], %d' % ptr_off)
        a('v_mov_b32 v1, %d' % base); a('s_mov_b32 s10, 0')
        a('s_waitcnt lgkmcnt(0)')
        a('s_memtime s[12:13]')
        a('probe_loop:')
        a('global_load_dword v2, v1, s[4:5]')
        a('s_waitcnt vmcnt(0)')
        a('v_and_b32 v2, 0, v2'); a('v_add3_u32 v1, v1, v2, s11'.replace('s11', 's11'))
        a('s_add_u32 s10, s10, 1'); a('s_cmp_lt_u32 s10, %d' % N); a('s_cbranch_scc1 probe_loop')
        a('s_memtime s[14:15]'); a('s_load_dwordx2 s[4:5], s[0:1], 96'); a('s_waitcnt lgkmcnt(0)')
        a('s_sub_u32 s14, s14, s12'); a('v_mov_b32 v2, s14'); a('v_mov_b32 v1, 0'); a('global_store_dword v1, v2, s[4:5]')
        a('probe_end:'); a('s_endpgm')
    def wrap(a):
        a('s_mov_b32 s11, %d' % stride); k_probe(a)
    return wrap
def gen(path, ptr_off, base, stride, N):
    old = list(gen1.KERNELS)
    gen1.KERNELS.insert(0, ('probe', make(ptr_off, base, stride, N), 64, 0, 8, 8))
    s = gen1.generate(0).replace('kernel=probe_kernel grid=(256,1,1)', 'kernel=probe_kernel grid=(1,1,1)')
    gen1.KERNELS[:] = old
    open(path, 'w').write(s)
gen('p_none.s', 48, 0, 32768, 1)
gen('p_bx.s', 48, 0, 32768, 64)
gen('p_bx4k.s', 48, 0, 512, 64)
gen('p_ws.s', 104, 100 << 20, 32768, 64)
gen('p_wsend.s', 104, 250 << 20, 32768, 64)
gen('p_out.s', 88, 0, 32768, 64)
```

```python
import sys, struct
from asmlib import *

MB = 1 << 20
KVR = 0; XT = 2 * MB; HT = 4 * MB; ZB = 6 * MB; X1B = 8 * MB; HB = 10 * MB
W3P = 16 * MB; W4P = W3P + 1408 * 1024
ST0 = 20 * MB
ST1 = ST0 + 65536
FL = ST1 + 262144
FGL = 0x8000
F_A = FL; F_Z = FL + 0x1000; F_X = FL + 0x2000; F_F = FL + 0x3000
F_H = FL + 0x10000; F_P = FL + 0x14000
STAMPS = 64 * MB
HTH = 176 * 512
EPS = 1e-5
def f2u(f): return struct.unpack('<I', struct.pack('<f', f))[0]
C0 = -2.0 * 0.7978845608028654 * 1.4426950408889634
C1 = C0 * 0.044715
NAME = 'sequential_preLN__ssm_conv_h3__mixer_s_mlp__prompt_kernel'

CS = 4160
L_E4 = 0; L_KV = 33280; L_CRED = L_KV + 2 * 4608
L_S = 65536
L_PK = 131072
G_RED = 65536; G_ST = G_RED + 49152; G_ST2 = G_ST + 2048
LDS_BYTES = 147456

TAG = 's[80:81]'
class G:
    def __init__(self, stamp=False):
        self.a = Asm(); self.stamp_on = stamp; self.q = []; self.nst = 0; self.names = []
    def __call__(self, t): self.a(t)
    def vm(self, text, label=None):
        self.a(text); self.q.append(label)
    def wait(self, label, extra=''):
        idx = max(i for i, l in enumerate(self.q) if l == label)
        n = len(self.q) - 1 - idx
        assert n < 64
        self.a('s_waitcnt vmcnt(%d) %s' % (n, extra)); self.q = self.q[idx + 1:]
    def wait0(self, extra=''):
        self.a('s_waitcnt vmcnt(0) %s' % extra); self.q = []
    def stamp(self, name):
        if self.stamp_on:
            self.a('s_memrealtime s[90:91]'); self.a('s_waitcnt lgkmcnt(0)'); self.a('v_writelane_b32 v15, s90, %d' % self.nst)
            self.names.append(name); self.nst += 1

def srd(a, d, p, size, off=None):
    if off is None:
        a('s_mov_b32 s%d, s%d' % (d, p)); a('s_mov_b32 s%d, s%d' % (d + 1, p + 1))
    else:
        a('s_add_u32 s%d, s%d, %s' % (d, p, off)); a('s_addc_u32 s%d, s%d, 0' % (d + 1, p + 1))
    a('s_mov_b32 s%d, 0x%x' % (d + 2, size)); a('s_mov_b32 s%d, 0x20000' % (d + 3))

def allreduce(a, regs, tmps):
    for m in ('quad_perm:[1,0,3,2]', 'quad_perm:[2,3,0,1]', 'row_half_mirror', 'row_mirror'):
        for r in regs: a('v_add_f32_dpp v%d, v%d, v%d %s row_mask:0xf bank_mask:0xf' % (r, r, r, m))
    for sw in ('v_permlane16_swap_b32', 'v_permlane32_swap_b32'):
        for r, t in zip(regs, tmps): a('v_mov_b32 v%d, v%d' % (t, r))
        for r, t in zip(regs, tmps): a('%s v%d, v%d' % (sw, r, t))
        for r, t in zip(regs, tmps): a('v_add_f32 v%d, v%d, v%d' % (r, r, t))

npoll = [0]
def poll(a, vaddr, soff, dual, start='0', sleep=0, tmp=16):
    n = npoll[0]; npoll[0] += 1
    a('s_mov_b32 s82, %s' % start)
    a('Lpoll%d:' % n)
    if dual:
        a('s_cmp_lt_u32 s82, 32'); a('s_cselect_b32 s83, 0, 0x%x' % FGL); a('s_add_u32 s83, s83, %s' % soff)
        so = 's83'
    else: so = soff
    if sleep: a('s_sleep %d' % sleep)
    a('buffer_load_dwordx2 %s, v%d, s[32:35], %s offen sc1' % (vr(tmp, 2), vaddr, so))
    a('s_add_u32 s82, s82, 1'); a('s_cmp_gt_u32 s82, 0x20000'); a('s_cbranch_scc1 Lend')
    a.wait0()
    a('v_cmp_ne_u64 vcc, %s, %s' % (TAG, vr(tmp, 2)))
    a('s_cbranch_vccnz Lpoll%d' % n)

nsig = [0]
def signal(a, soff, dual, nrep=1, repstride=0, tmp=16):
    n = nsig[0]; nsig[0] += 1
    a('s_barrier')
    a('s_cmp_lg_u32 s48, 0'); a('s_cbranch_scc1 Lsig%d' % n)
    a('v_mov_b32 v%d, s80' % tmp); a('v_mov_b32 v%d, s81' % (tmp + 1))
    a('v_mul_u32_u24 v%d, %d, v1' % (tmp + 2, repstride))
    a('s_mov_b64 exec, %d' % ((1 << nrep) - 1))
    if dual:
        a('buffer_store_dwordx2 %s, v%d, s[32:35], %s offen' % (vr(tmp, 2), tmp + 2, soff))
        a('s_add_u32 s83, %s, 0x%x' % (soff, FGL))
        a('buffer_store_dwordx2 %s, v%d, s[32:35], s83 offen sc1' % (vr(tmp, 2), tmp + 2))
    else:
        a('buffer_store_dwordx2 %s, v%d, s[32:35], %s offen sc1' % (vr(tmp, 2), tmp + 2, soff))
    a('s_mov_b64 exec, -1')
    a('Lsig%d:' % n)

ACC = 16
def acc(th, ch): return ACC + 32 * th + 16 * ch
def red_write(slot, off=0):
    th, ch = slot >> 1, slot & 1
    return ['ds_write_b128 v%d, %s offset:%d' % (10 + slot, vr(acc(th, ch) + 4 * q, 4), off + 1024 * q) for q in range(4)]
def red_read_add(a, tmp, off=0, dst=None):
    for i in range(12): a('ds_read_b128 %s, v13 offset:%d' % (vr(tmp + 4 * i, 4), off + 1024 * i))
    o = acc(1, 1)
    for i in range(12):
        a('s_waitcnt lgkmcnt(%d)' % (11 - i))
        d = dst if (dst is not None and i >= 8) else o
        for r in (0, 2): a('v_pk_add_f32 %s, %s, %s' % (vr(d + 4 * (i & 3) + r, 2), vr(o + 4 * (i & 3) + r, 2), vr(tmp + 4 * i + r, 2)))

def gelu_plain(t, ca, cb, ri, tmp, n):
    l = []
    for i in range(n): l.append('v_mul_f32 v%d, v%d, v%d' % (tmp + i, t + i, t + i))
    for i in range(n): l.append('v_fma_f32 v%d, v%d, v%d, v%d' % (tmp + i, tmp + i, cb, ca))
    for i in range(n): l.append('v_mul_f32 v%d, v%d, v%d' % (tmp + i, tmp + i, t + i))
    for i in range(n): l.append('v_exp_f32 v%d, v%d' % (tmp + i, tmp + i))
    for i in range(n): l.append('v_fma_f32 v%d, v%d, v%d, v%d' % (tmp + i, tmp + i, ri, ri))
    for i in range(n): l.append('v_rcp_f32 v%d, v%d' % (tmp + i, tmp + i))
    for i in range(n): l.append('v_mul_f32 v%d, v%d, v%d' % (t + i, t + i, tmp + i))
    return l
def bc(r):
    return vr(r & ~1, 2), r & 1
def pk(op, d, srcs, neg=None):
    names = []; lo = []; hi = []
    for s in srcs:
        if isinstance(s, tuple): names.append(s[0]); lo.append(s[1]); hi.append(s[1])
        else: names.append(vr(s, 2)); lo.append(0); hi.append(1)
    t = '%s %s, %s' % (op, vr(d, 2), ', '.join(names))
    if lo != [0] * len(lo) or hi != [1] * len(hi):
        t += ' op_sel:[%s] op_sel_hi:[%s]' % (','.join(map(str, lo)), ','.join(map(str, hi)))
    if neg: t += ' neg_lo:[%s] neg_hi:[%s]' % (','.join(map(str, neg)), ','.join(map(str, neg)))
    return t
def gelu_pk(t, ca, cb, ri, tmp, n):
    l = []
    for i in range(0, n, 2): l.append(pk('v_pk_mul_f32', tmp + i, [t + i, t + i]))
    for i in range(0, n, 2): l.append(pk('v_pk_fma_f32', tmp + i, [tmp + i, bc(cb), bc(ca)]))
    for i in range(0, n, 2): l.append(pk('v_pk_mul_f32', tmp + i, [tmp + i, t + i]))
    for i in range(n): l.append('v_exp_f32 v%d, v%d' % (tmp + i, tmp + i))
    for i in range(0, n, 2): l.append(pk('v_pk_fma_f32', tmp + i, [tmp + i, bc(ri), bc(ri)]))
    for i in range(n): l.append('v_rcp_f32 v%d, v%d' % (tmp + i, tmp + i))
    for i in range(0, n, 2): l.append(pk('v_pk_mul_f32', t + i, [t + i, tmp + i]))
    return l

def build(stamp=False):
    npoll[0] = 0; nsig[0] = 0
    a = G(stamp)
    a('s_cmp_ge_u32 s2, 256'); a('s_cbranch_scc1 Lend')
    a('s_load_dwordx16 s[4:19], s[0:1], 0')
    a('s_load_dwordx8 s[20:27], s[0:1], 64')
    a('s_load_dwordx4 s[28:31], s[0:1], 96')
    a('s_memrealtime s[80:81]')
    a('s_getpc_b64 s[84:85]')
    a('v_lshrrev_b32 v1, 6, v0'); a('v_readfirstlane_b32 s48, v1'); a('v_and_b32 v1, 63, v0')
    if stamp: a('v_mov_b32 v15, 0')
    a('s_lshr_b32 s49, s2, 3'); a('s_and_b32 s50, s2, 7')
    a('s_and_b32 s51, s48, 1'); a('s_lshr_b32 s52, s48, 1')
    a('s_lshl_b32 s53, s49, 6'); a('s_lshl_b32 s54, s51, 5'); a('s_add_u32 s53, s53, s54')
    a('v_and_b32 v5, 15, v1'); a('v_lshrrev_b32 v6, 4, v1')
    a('v_lshl_add_u32 v2, v6, 3, s53')
    a('s_lshl_b32 s53, s50, 5'); a('s_lshl_b32 s54, s52, 4'); a('s_add_u32 s53, s53, s54'); a('v_add_u32 v3, s53, v5')
    a('v_lshlrev_b32 v4, 10, v2'); a('v_lshl_add_u32 v4, v3, 2, v4')
    a('v_add_u32 v7, 0xfffff400, v4'); a('v_lshlrev_b32 v8, 4, v3')
    a('s_movk_i32 s62, 0x1000'); a('s_mov_b32 s60, 0x%x' % f2u(1.0 / 512)); a('s_mov_b32 s61, 0xffff0000')
    a('s_waitcnt lgkmcnt(0)')
    a.stamp('start')
    srd(a, 36, 6, 2 * MB)
    for i in range(3): a.vm('buffer_load_dword v%d, v7, s[36:39], 0 offen offset:%d' % (16 + i, 1024 * i))
    for i in range(8): a.vm('buffer_load_dword v%d, v4, s[36:39], %s offen offset:%d' % (19 + i, 's62' if i >= 4 else '0', 1024 * (i & 3)))
    a.vm('global_load_dwordx4 v[44:47], v8, s[10:11]', 'k')
    srd(a, 40, 8, 2 * MB)
    for i in range(8): a.vm('buffer_load_dword v%d, v4, s[40:43], %s offen offset:%d' % (28 + i, 's62' if i >= 4 else '0', 1024 * (i & 3)), 'v')
    srd(a, 32, 30, 0x10000000)
    a('s_or_b32 s53, s2, s48'); a('s_cmp_lg_u32 s53, 0'); a('s_cbranch_scc1 Lnotag')
    a('v_mov_b32 v10, s80'); a('v_mov_b32 v11, s81'); a('v_mov_b32 v12, 0'); a('s_mov_b64 exec, 1')
    a('global_store_dwordx2 v12, v[10:11], s[28:29] sc1'); a('s_mov_b64 exec, -1')
    a('Lnotag:')
    srd(a, 44, 4, 2 * MB)
    for i in range(8): a.vm('buffer_load_dword v%d, v4, s[44:47], %s offen offset:%d' % (36 + i, 's62' if i >= 4 else '0', 1024 * (i & 3)), 'x')
    a('s_lshl_b32 s63, s2, 2'); a('s_add_u32 s63, s63, s48')
    a('s_lshl_b32 s53, s63, 11'); a('v_lshlrev_b32 v14, 4, v1'); a('v_add_u32 v9, s53, v14')
    a.vm('global_load_dwordx4 v[128:131], v9, s[4:5]'); a.vm('global_load_dwordx4 v[132:135], v9, s[4:5] offset:1024', 'xr')
    a('s_lshl_b32 s64, s50, 6'); a('s_lshl_b32 s53, s49, 1'); a('s_add_u32 s64, s64, s53')
    a('s_lshl_b32 s53, s64, 1'); a('s_load_dword s65, s[14:15], s53')
    a('s_add_u32 s64, s64, s52'); a('s_lshl_b32 s66, s64, 12')
    srd(a, 36, 12, 4096, 's66')
    a('s_lshl_b32 s67, s51, 11'); a('v_add_u32 v10, s67, v14')
    a('v_add_u32 v11, -8, v10'); a('v_add_u32 v12, 1016, v10')
    a.vm('buffer_load_dwordx2 v[136:137], v11, s[36:39], 0 offen')
    a.vm('buffer_load_dwordx4 v[138:141], v10, s[36:39], 0 offen')
    a.vm('buffer_load_dwordx2 v[142:143], v12, s[36:39], 0 offen')
    a.vm('buffer_load_dwordx4 v[144:147], v10, s[36:39], 0 offen offset:1024', 'K')
    a('s_lshl_b32 s53, s49, 10'); a('s_lshl_b32 s54, s48, 8'); a('s_add_u32 s53, s53, s54')
    a('v_and_b32 v11, 1, v1'); a('v_lshlrev_b32 v11, 7, v11'); a('v_add_u32 v11, s53, v11')
    a.vm('global_load_dword v148, v11, s[84:85]')
    a('s_lshl_b32 s68, s50, 2'); a('s_and_b32 s53, s49, 3'); a('s_add_u32 s68, s68, s53')
    a('s_lshr_b32 s69, s2, 5')
    a('v_and_b32 v11, 3, v1'); a('v_lshlrev_b32 v11, 12, v11'); a('v_bfe_u32 v12, v1, 2, 3'); a('v_lshl_add_u32 v11, v12, 7, v11')
    a('s_lshl_b32 s53, s50, 9'); a('s_add_u32 s53, s53, 0x%x' % (FL - 256))
    a.vm('buffer_load_dword v149, v11, s[32:35], s53 offen sc1')
    a('v_lshlrev_b32 v7, 13, v3'); a('v_lshlrev_b32 v8, 1, v2')
    a('v_add_u32 v9, v7, v8'); a('v_add_u32 v9, 0x%x, v9' % XT)
    a('v_sub_u32 v7, v7, v8'); a('v_add_u32 v7, %d, v7' % (4080 + KVR))
    a('s_mov_b32 s55, 0x05040100'); a('s_mov_b32 s56, 0x07060302')
    for i in range(4): a('v_mov_b32 v%d, 0' % (152 + i))
    a('s_mul_i32 s70, s52, 4608'); a('s_add_u32 s70, s70, %d' % L_KV)
    a('s_mul_i32 s71, s52, %d' % (4 * CS))
    a('v_and_b32 v11, 31, v1'); a('v_lshl_add_u32 v11, v11, 4, s70')
    a('ds_write_b128 v11, v[152:155] offset:4096')
    a('v_and_b32 v11, 1, v1'); a('v_lshlrev_b32 v11, 4, v11'); a('v_bfe_u32 v12, v1, 1, 2'); a('v_mul_u32_u24 v12, %d, v12' % CS)
    a('v_add3_u32 v11, v11, v12, s71')
    a('ds_write_b128 v11, v[152:155] offset:%d' % L_E4)
    a.wait('k')
    a.stamp('k landed')
    for i in range(11):
        a('v_lshlrev_b32 v%d, 16, v%d' % (48 + 2 * i, 16 + i)); a('v_and_b32 v%d, s61, v%d' % (49 + 2 * i, 16 + i))
    for j in range(4):
        for c in range(2):
            a(('v_and_b32 v%d, s61, v%d' if j & 1 else 'v_lshlrev_b32 v%d, 16, v%d') % (70 + 2 * j + c, 44 + 2 * c + (j >> 1)))
    for i in range(8): a(pk('v_pk_mul_f32', 94 + 2 * i, [48 + 2 * i, 76]))
    for t in (1, 2, 3):
        for i in range(8): a(pk('v_pk_fma_f32', 94 + 2 * i, [48 + 2 * (i + t), 76 - 2 * t, 94 + 2 * i]))
    a.wait('v')
    for i in range(8):
        a('v_lshlrev_b32 v%d, 16, v%d' % (78 + 2 * i, 28 + i)); a('v_and_b32 v%d, s61, v%d' % (79 + 2 * i, 28 + i))
    for i in range(8): a(pk('v_pk_mul_f32', 94 + 2 * i, [94 + 2 * i, 78 + 2 * i]))
    for c in range(2):
        for i in range(4): a('v_cvt_pk_bf16_f32 v%d, v%d, v%d' % (112 + 4 * c + i, 94 + 2 * (7 - 2 * i) + c, 94 + 2 * (6 - 2 * i) + c))
    a.vm('buffer_store_dwordx4 v[112:115], v7, s[32:35], 0 offen sc1')
    a.vm('buffer_store_dwordx4 v[116:119], v7, s[32:35], s62 offen sc1')
    a.wait('x')
    for c in range(2):
        for i in range(4): a('v_perm_b32 v%d, v%d, v%d, s%d' % (120 + 4 * c + i, 37 + 2 * i, 36 + 2 * i, 55 + c))
    a.vm('buffer_store_dwordx4 v[120:123], v9, s[32:35], 0 offen sc1')
    a.vm('buffer_store_dwordx4 v[124:127], v9, s[32:35], s62 offen sc1', 'st')
    a('v_mov_b32 v12, 0')
    a.vm('global_load_dwordx2 v[150:151], v12, s[28:29] sc1', 'tag')
    a.stamp('kv stored')
    a.wait('xr')
    for r in range(2):
        for i in range(4):
            a('v_lshlrev_b32 v%d, 16, v%d' % (48 + 8 * r + 2 * i, 128 + 4 * r + i)); a('v_and_b32 v%d, s61, v%d' % (49 + 8 * r + 2 * i, 128 + 4 * r + i))
    for r in range(2):
        b = 48 + 8 * r
        a(pk('v_pk_add_f32', 70 + 2 * r, [b, b + 2])); a(pk('v_pk_add_f32', 74 + 2 * r, [b + 4, b + 6]))
    for r in range(2): a(pk('v_pk_add_f32', 70 + 2 * r, [70 + 2 * r, 74 + 2 * r]))
    for r in range(2): a('v_add_f32 v%d, v%d, v%d' % (64 + r, 70 + 2 * r, 71 + 2 * r))
    allreduce(a, [64, 65], [66, 67])
    for r in range(2): a('v_mul_f32 v%d, s60, v%d' % (64 + r, 64 + r))
    for r in range(2):
        for i in range(0, 8, 2): a(pk('v_pk_add_f32', 48 + 8 * r + i, [48 + 8 * r + i, bc(64 + r)], neg=[0, 1]))
    for r in range(2):
        b = 48 + 8 * r
        a(pk('v_pk_mul_f32', 70 + 2 * r, [b, b]))
        for i in (2, 4, 6): a(pk('v_pk_fma_f32', 70 + 2 * r, [b + i, b + i, 70 + 2 * r]))
    for r in range(2): a('v_add_f32 v%d, v%d, v%d' % (68 + r, 70 + 2 * r, 71 + 2 * r))
    allreduce(a, [68, 69], [66, 67])
    for r in range(2): a('v_mul_f32 v%d, s60, v%d' % (68 + r, 68 + r))
    a('v_cvt_pk_bf16_f32 v68, v68, v69'); a('v_and_b32 v69, s61, v68'); a('v_lshlrev_b32 v68, 16, v68')
    for r in range(2): a('v_add_f32 v%d, 0x%x, v%d' % (68 + r, f2u(EPS), 68 + r))
    a('v_cvt_pk_bf16_f32 v68, v68, v69'); a('v_and_b32 v69, s61, v68'); a('v_lshlrev_b32 v68, 16, v68')
    for r in range(2): a('v_sqrt_f32 v%d, v%d' % (68 + r, 68 + r))
    a('v_cvt_pk_bf16_f32 v72, v68, v64'); a('v_cvt_pk_bf16_f32 v74, v69, v65')
    a.wait('K')
    a('v_add_u32 v10, s71, v10')
    for i in range(2):
        W = 136 + 6 * i; b = 16 + 12 * i
        for x in range(4): a('v_alignbit_b32 v%d, v%d, v%d, 16' % (b + x, W + x + 1, W + x))
        for x in range(4): a('v_mov_b32 v%d, v%d' % (b + 4 + x, W + x + 1))
        for x in range(4): a('v_alignbit_b32 v%d, v%d, v%d, 16' % (b + 8 + x, W + x + 2, W + x + 1))
        o = L_E4 + 32 + 1024 * i
        a('ds_write_b128 v10, %s offset:%d' % (vr(W + 2, 4), o + 3 * CS))
        a('ds_write_b128 v10, %s offset:%d' % (vr(b, 4), o))
        a('ds_write_b128 v10, %s offset:%d' % (vr(b + 4, 4), o + CS))
        a('ds_write_b128 v10, %s offset:%d' % (vr(b + 8, 4), o + 2 * CS))
    a('s_mov_b32 s82, 0')
    a('Ltag:')
    a.wait0()
    a('v_readfirstlane_b32 s80, v150'); a('v_readfirstlane_b32 s81, v151')
    a('s_or_b32 s53, s80, s81'); a('s_cbranch_scc1 Ltagok')
    a('global_load_dwordx2 v[150:151], v12, s[28:29] sc1')
    a('s_add_u32 s82, s82, 1'); a('s_cmp_gt_u32 s82, 0x20000'); a('s_cbranch_scc1 Lend')
    a('s_branch Ltag')
    a('Ltagok:')
    a.stamp('drained')
    a('s_lshl_b32 s53, s50, 9'); a('s_add_u32 s72, s53, 0x%x' % F_A); a('s_lshl_b32 s53, s49, 3'); a('s_add_u32 s53, s53, s72')
    signal(a, 's53', True)
    a('v_mov_b32 v73, s80'); a('v_mov_b32 v75, s80')
    a('s_lshl_b32 s53, s63, 4'); a('s_add_u32 s53, s53, 0x%x' % ST0); a('s_mov_b64 exec, 1')
    a('buffer_store_dwordx4 v[72:75], v12, s[32:35], s53 offen sc1'); a('s_mov_b64 exec, -1')
    a('v_and_b32 v11, 3, v5'); a('v_mul_u32_u24 v11, %d, v11' % CS); a('v_and_b32 v12, 12, v5'); a('v_lshl_add_u32 v11, v12, 1, v11')
    a('v_lshl_add_u32 v11, v6, 4, v11'); a('s_lshl_b32 s56, s51, 8'); a('s_add_u32 s57, s56, s71'); a('s_add_u32 s57, s57, %d' % (L_E4 + 8))
    a('v_add_u32 v11, s57, v11')
    a('v_lshlrev_b32 v12, 4, v6'); a('v_lshlrev_b32 v13, 5, v5'); a('v_sub_u32 v12, v12, v13')
    a('s_add_u32 s57, s56, s70'); a('s_add_u32 s57, s57, 480'); a('v_add_u32 v12, s57, v12')
    a('v_lshlrev_b32 v7, 4, v5'); a('v_lshl_add_u32 v7, v6, 2, v7'); a('s_lshl_b32 s56, s51, 10'); a('v_add_u32 v7, s56, v7')
    a('v_lshlrev_b32 v8, 1, v7'); a('v_lshlrev_b32 v9, 3, v7')
    a('s_add_u32 s57, s70, %d' % (2 * (2044 - 768))); a('v_sub_u32 v13, s57, v8')
    a('v_add_u32 v10, s67, v14')
    a('v_lshrrev_b32 v184, 3, v1'); a('v_lshlrev_b32 v184, 10, v184'); a('v_and_b32 v185, 7, v1'); a('v_bfe_u32 v186, v1, 4, 1')
    a('v_lshlrev_b32 v186, 2, v186'); a('v_xor_b32 v185, v185, v186'); a('v_lshl_add_u32 v184, v185, 4, v184')
    a('v_lshrrev_b32 v185, 2, v1'); a('v_mul_u32_u24 v185, 2752, v185'); a('v_and_b32 v186, 3, v1'); a('v_lshl_add_u32 v185, v186, 4, v185')
    a('v_and_b32 v4, 31, v1'); a('v_lshlrev_b32 v4, 3, v4')
    poll(a, 4, 's72', True)
    a.stamp('X0 seen')
    a('s_add_u32 s56, s70, s67'); a('s_mov_b32 m0, s56'); a('s_add_u32 s57, s66, %d' % KVR)
    a.vm('buffer_load_dwordx4 v10, s[32:35], s57 offen sc1 lds')
    a.vm('buffer_load_dwordx4 v10, s[32:35], s57 offen offset:1024 sc1 lds', 'kv')
    a('s_add_u32 s57, s66, 0x%x' % XT)
    for i in range(4): a.vm('buffer_load_dwordx2 %s, v8, s[32:35], s57 offen offset:%d sc1' % (vr(208 + 2 * i, 2), 512 * i), 'xT')
    srd(a, 36, 24, 1376 * 1024); srd(a, 40, 22, 512 * 2752); srd(a, 44, 18, 512 * 1024)
    a('s_and_b32 s53, s63, 7'); a('s_lshl_b32 s53, s53, 7'); a('s_lshr_b32 s54, s63, 3'); a('s_lshl_b32 s54, s54, 14'); a('s_add_u32 s73, s53, s54')
    a('s_sub_u32 s74, 1023, s63'); a('s_and_b32 s53, s74, 15'); a('s_mul_i32 s53, s53, %d' % (32 * 2752)); a('s_lshr_b32 s54, s74, 4'); a('s_lshl_b32 s54, s54, 6')
    a('s_add_u32 s75, s53, s54'); a('s_cmp_lt_u32 s74, 688'); a('s_cselect_b32 s75, s75, 0x400000')
    a('s_lshl_b32 s76, s48, 12'); a('s_add_u32 s76, s76, %d' % L_PK)
    a('s_lshl_b32 s77, s48, 14'); a('s_add_u32 s77, s77, %d' % L_S)
    a('s_lshl_b32 s78, s48, 17'); a('s_lshl_b32 s53, s69, 7'); a('s_add_u32 s78, s78, s53')
    bg = []
    bg.append(['s_mov_b32 m0, s76', ('buffer_load_dwordx4 v184, s[36:39], s73 offen lds', None)])
    bg.append(['s_add_u32 s53, s76, 1024', 's_mov_b32 m0, s53', 's_add_u32 s54, s73, 8192', ('buffer_load_dwordx4 v184, s[36:39], s54 offen lds', None)])
    bg.append(['s_add_u32 s53, s76, 2048', 's_mov_b32 m0, s53', ('buffer_load_dwordx4 v185, s[40:43], s75 offen lds', None)])
    bg.append(['s_add_u32 s53, s76, 3072', 's_mov_b32 m0, s53', 's_add_u32 s54, s75, %d' % (16 * 2752), ('buffer_load_dwordx4 v185, s[40:43], s54 offen lds', 'pk')])
    def wdma(srdn, label):
        l = []
        for i in range(16):
            l.append(['s_add_u32 s53, s77, %d' % (1024 * i), 's_mov_b32 m0, s53', 's_add_u32 s54, s78, %d' % (8192 * i),
                      ('buffer_load_dwordx4 v184, s[%d:%d], s54 offen lds' % (srdn, srdn + 3), label)])
        return l
    bg += wdma(44, 'w1')
    def stloads():
        return [['s_mov_b32 s54, 0x%x' % (ST0 + 4096 * (i >> 2)),
                 ('buffer_load_dwordx4 %s, v9, s[32:35], s54 offen offset:%d sc1' % (vr(216 + 4 * i, 4), 2048 * ((i >> 1) & 1) + 16 * (i & 1)), 'st0')] for i in range(8)]
    bg += stloads()
    def emit_bg(item):
        for x in item:
            if isinstance(x, tuple): a.vm(x[0], x[1])
            else: a(x)
    for _ in range(8): emit_bg(bg.pop(0))
    a.wait('kv', 'lgkmcnt(0)')
    a('s_barrier')
    a.stamp('conv go')
    CA = 16; FR = 48
    def A(st, x): return FR + 64 * st + 4 * x
    def B(st, x): return FR + 64 * st + 32 + 4 * x
    def reads(rho):
        st = rho & 1; l = []
        for x in range(8):
            l.append('ds_read_b64 %s, v11 offset:%d' % (vr(A(st, x), 2), 512 * x + 64 * rho))
            l.append('ds_read_b64 %s, v11 offset:%d' % (vr(A(st, x) + 2, 2), 512 * x + 64 * rho + 8))
            l.append('ds_read_b128 %s, v12 offset:%d' % (vr(B(st, x), 4), 512 * (7 - x) + 64 * rho))
        return l
    for r in reads(0): a(r)
    started = set()
    for rho in range(4):
        st = rho & 1
        nxt = reads(rho + 1) if rho < 3 else ['ds_read_b64 %s, v13 offset:%d' % (vr(176 + 2 * i, 2), 512 * (3 - i)) for i in range(4)]
        issued = 0; cnt = 0
        for x in range(8):
            pairs = [(x, b) for b in range(x + 1) if x + b <= 7] + [(aa, x) for aa in range(x) if aa + x <= 7]
            if rho == 0: a('s_waitcnt lgkmcnt(%d)' % min(15, 3 * (7 - x) + issued))
            elif x == 0: a('s_waitcnt lgkmcnt(0)')
            for (aa, bb) in pairs:
                t = aa + bb
                c = vr(CA + 4 * t, 4) if t in started else '0'
                started.add(t)
                a('v_mfma_f32_16x16x32_bf16 %s, %s, %s, %s' % (vr(CA + 4 * t, 4), vr(A(st, aa), 4), vr(B(st, bb), 4), c))
                cnt += 1
                if (rho > 0 or x >= 3) and issued < len(nxt) and cnt <= 30:
                    a(nxt[issued]); issued += 1
                if cnt % 4 == 0 and bg: emit_bg(bg.pop(0))
        while issued < len(nxt): a(nxt[issued]); issued += 1
    assert not bg
    a.stamp('conv mfma')
    a('s_lshl_b32 s53, s48, 12'); a('s_xor_b32 s54, s53, 0x1000'); a('v_add_u32 v3, s53, v14'); a('v_add_u32 v2, s54, v14')
    a('s_lshl_b32 s56, s65, 16'); a('s_and_b32 s57, s65, 0xffff0000'); a('s_cmp_eq_u32 s52, 0'); a('s_cselect_b32 s65, s56, s57')
    a('s_cmp_eq_u32 s51, 0'); a('s_cbranch_scc1 Lck0')
    for v, lab in ((1, None), (0, 'Lck0')):
        if lab: a(lab + ':')
        snd = 0 if v else 4; keep = 4 - snd
        for i in range(4): a('ds_write_b128 v2, %s offset:%d' % (vr(CA + 4 * (snd + i), 4), L_CRED + 1024 * i))
        for i in range(16): a('v_mov_b32 v%d, v%d' % (48 + i, CA + 4 * keep + i))
        if v: a('s_branch Lck1')
    a('Lck1:')
    a('s_waitcnt lgkmcnt(4)')
    for i in range(4):
        a('v_and_b32 v64, s61, v%d' % (177 + 2 * i)); a('v_lshlrev_b32 v65, 16, v%d' % (177 + 2 * i))
        a('v_and_b32 v66, s61, v%d' % (176 + 2 * i)); a('v_lshlrev_b32 v67, 16, v%d' % (176 + 2 * i))
        for r in range(4): a('v_fmac_f32 v%d, s65, v%d' % (48 + 4 * i + r, 64 + r))
    a('s_waitcnt lgkmcnt(0)'); a('s_barrier')
    for i in range(4): a('ds_read_b128 %s, v3 offset:%d' % (vr(64 + 4 * i, 4), L_CRED + 1024 * i))
    a('s_mov_b32 s82, 0')
    a('Lst0:')
    a.wait0()
    a('v_min3_u32 v2, v217, v219, v221'); a('v_max3_u32 v3, v217, v219, v221')
    for i in range(3, 15, 2):
        a('v_min3_u32 v2, v2, v%d, v%d' % (217 + 2 * i, 219 + 2 * i)); a('v_max3_u32 v3, v3, v%d, v%d' % (217 + 2 * i, 219 + 2 * i))
    a('v_min_u32 v2, v2, v247'); a('v_max_u32 v3, v3, v247')
    a('v_cmp_ne_u32 vcc, s80, v2'); a('v_cmp_ne_u32 s[54:55], s80, v3'); a('s_or_b64 vcc, vcc, s[54:55]')
    a('s_cbranch_vccz Lst0ok')
    for it in stloads():
        for x in it: a(x[0] if isinstance(x, tuple) else x)
    a('s_add_u32 s82, s82, 1'); a('s_cmp_gt_u32 s82, 0x20000'); a('s_cbranch_scc1 Lend')
    a('s_branch Lst0')
    a('Lst0ok:')
    a.stamp('stats ok')
    a('v_and_b32 v2, 1, v6'); a('v_lshlrev_b32 v2, 18, v2'); a('v_lshrrev_b32 v3, 2, v5'); a('v_lshl_add_u32 v2, v3, 16, v2')
    a('v_and_b32 v3, 3, v5'); a('v_lshl_add_u32 v2, v3, 5, v2'); a('v_lshrrev_b32 v3, 1, v6'); a('v_lshl_add_u32 v2, v3, 4, v2')
    a('s_lshl_b32 s57, s51, 20'); a('s_lshl_b32 s58, s64, 7'); a('s_add_u32 s57, s57, s58'); a('s_add_u32 s57, s57, 0x%x' % HT)
    a('s_add_u32 s58, s57, 0x80000')
    a('s_waitcnt lgkmcnt(0)')
    for i in range(0, 16, 2): a(pk('v_pk_add_f32', 48 + i, [48 + i, 64 + i]))
    for i in range(4):
        xx = 80; mm = 84; rs = 88
        a('v_lshlrev_b32 v%d, 16, v%d' % (xx + 0, 208 + 2 * i)); a('v_and_b32 v%d, s61, v%d' % (xx + 1, 208 + 2 * i))
        a('v_lshlrev_b32 v%d, 16, v%d' % (xx + 2, 209 + 2 * i)); a('v_and_b32 v%d, s61, v%d' % (xx + 3, 209 + 2 * i))
        for r in range(4): a('v_lshlrev_b32 v%d, 16, v%d' % (rs + r, 216 + 8 * i + 2 * r))
        for r in range(4): a('v_and_b32 v%d, s61, v%d' % (mm + r, 216 + 8 * i + 2 * r))
        for r in range(4): a('v_rcp_f32 v%d, v%d' % (rs + r, rs + r))
        for r in (0, 2): a(pk('v_pk_add_f32', mm + r, [xx + r, mm + r], neg=[0, 1]))
        for r in (0, 2): a(pk('v_pk_mul_f32', mm + r, [mm + r, rs + r]))
        for r in (0, 2): a(pk('v_pk_fma_f32', xx + r, [mm + r, 48 + 4 * i + r, xx + r]))
        o = 96 + 2 * i
        a('v_cvt_pk_bf16_f32 v%d, v%d, v%d' % (o, xx, xx + 1)); a('v_cvt_pk_bf16_f32 v%d, v%d, v%d' % (o + 1, xx + 2, xx + 3))
        if i & 1:
            a('v_permlane16_swap_b32 v%d, v%d' % (o - 2, o)); a('v_permlane16_swap_b32 v%d, v%d' % (o - 1, o + 1))
            a.vm('buffer_store_dwordx4 %s, v2, s[32:35], s%d offen sc1' % (vr(o - 2, 4), 57 + (i >> 1)), 'h')
    a.stamp('h stored')
    a('v_lshrrev_b32 v8, 5, v1'); a('v_bfe_u32 v9, v1, 2, 2')
    a('v_lshl_add_u32 v7, v8, 3, v9'); a('v_lshlrev_b32 v7, 7, v7'); a('v_lshrrev_b32 v9, 1, v9'); a('v_lshl_add_u32 v7, v9, 6, v7')
    a('v_bfe_u32 v9, v1, 4, 1'); a('v_lshl_add_u32 v7, v9, 5, v7')
    a('v_and_b32 v9, 3, v1'); a('v_lshl_add_u32 v187, v9, 3, v7')
    a('v_and_b32 v9, 1, v1'); a('v_lshl_add_u32 v7, v9, 4, v7'); a('v_bfe_u32 v9, v1, 1, 1'); a('v_lshl_add_u32 v188, v9, 3, v7')
    a('s_lshl_b32 s53, s52, 6'); a('s_add_u32 s53, s53, s77'); a('v_xor_b32 v9, s53, v188'); a('v_xor_b32 v8, 64, v9')
    def wtr(dst):
        for s in range(8):
            for ch in range(2):
                a('ds_read_b64_tr_b16 %s, v%d offset:%d' % (ur(dst + 8 * s + 4 * ch, 2), 8 + ch, 2048 * s))
                a('ds_read_b64_tr_b16 %s, v%d offset:%d' % (ur(dst + 8 * s + 4 * ch + 2, 2), 8 + ch, 2048 * s + 512))
    wtr(256)
    a('v_add_u32 v3, s76, v188'); a('v_xor_b32 v4, 64, v3')
    a('ds_read_b64_tr_b16 v[104:105], v3'); a('ds_read_b64_tr_b16 v[106:107], v3 offset:512')
    a('ds_read_b64_tr_b16 v[108:109], v4'); a('ds_read_b64_tr_b16 v[110:111], v4 offset:512')
    a('v_lshlrev_b32 v3, 3, v6'); a('v_bfe_u32 v4, v1, 2, 2'); a('v_add_u32 v3, v3, v4'); a('v_lshlrev_b32 v3, 6, v3'); a('v_and_b32 v4, 3, v1')
    a('v_lshl_add_u32 v3, v4, 3, v3'); a('v_add_u32 v3, s76, v3')
    for e in range(2):
        a('ds_read_b64_tr_b16 %s, v3 offset:%d' % (vr(112 + 4 * e, 2), 2048 + 32 * e))
        a('ds_read_b64_tr_b16 %s, v3 offset:%d' % (vr(114 + 4 * e, 2), 2048 + 32 * e + 256))
    a('s_lshl_b32 s53, s50, 8'); a('s_lshl_b32 s54, s49, 3'); a('s_add_u32 s79, s53, s54'); a('s_add_u32 s53, s79, 0x%x' % F_H)
    a.wait0()
    a.stamp('h drained')
    signal(a, 's53', False, 8, 2048)
    srd(a, 36, 30, 8 * 86 * 2048, '0x%x' % W4P); srd(a, 40, 30, 86 * 16384, '0x%x' % W3P); srd(a, 44, 20, 512 * 1024)
    a('s_and_b32 s53, s63, 7'); a('s_mul_i32 s53, s53, %d' % (86 * 2048)); a('s_lshr_b32 s54, s63, 3'); a('s_lshl_b32 s54, s54, 11'); a('s_add_u32 s53, s53, s54')
    a('s_cmp_lt_u32 s63, 688'); a('s_cselect_b32 s53, s53, 0x400000')
    a('s_lshr_b32 s54, s74, 4'); a('s_lshl_b32 s54, s54, 15'); a('s_and_b32 s55, s74, 15'); a('s_lshl_b32 s55, s55, 10'); a('s_add_u32 s54, s54, s55')
    a('s_add_u32 s55, s54, 0x4000')
    a('s_waitcnt lgkmcnt(0)')
    a.vm('buffer_store_dwordx4 v[104:107], v14, s[36:39], s53 offen sc1')
    a.vm('buffer_store_dwordx4 v[108:111], v14, s[36:39], s53 offen offset:1024 sc1')
    a.vm('buffer_store_dwordx4 v[112:115], v14, s[40:43], s54 offen sc1')
    a.vm('buffer_store_dwordx4 v[116:119], v14, s[40:43], s55 offen sc1', 'pks')
    for it in wdma(44, 'w2'): emit_bg(it)
    a('v_mov_b32 v13, v14')
    for slot in range(3):
        th, ch = slot >> 1, slot & 1
        a('s_xor_b32 s53, s48, %d' % ((1 - th) + 2 * (1 - ch))); a('s_mul_i32 s53, s53, 12288'); a('s_add_u32 s53, s53, %d' % (4096 * slot))
        a('v_add_u32 v%d, s53, v14' % (10 + slot))
    a('s_mul_i32 s53, s48, 12288'); a('v_add_u32 v13, s53, v14')
    ONES = 160; CSUM = 144
    for i in range(4): a('v_mov_b32 v%d, 0x3f803f80' % (ONES + i))
    for s in range(8):
        for ch in range(2):
            d = acc(0, 0) if ch == 0 else acc(1, 1)
            a('v_mfma_f32_32x32x16_bf16 %s, %s, %s, %s' % (vr(d, 16), ur(256 + 8 * s + 4 * ch, 4), vr(ONES, 4), vr(d, 16) if s else '0'))
    for q in range(4): a('ds_write_b128 v10, %s offset:%d' % (vr(acc(0, 0) + 4 * q, 4), 1024 * q))
    for q in range(4): a('ds_write_b128 v12, %s offset:%d' % (vr(acc(0, 0) + 4 * q, 4), 1024 * q))
    for q in range(4): a('ds_write_b128 v11, %s offset:%d' % (vr(acc(1, 1) + 4 * q, 4), 1024 * q))
    a.wait('pks', 'lgkmcnt(0)')
    a('s_lshl_b32 s53, s2, 3'); a('s_add_u32 s53, s53, 0x%x' % F_P)
    signal(a, 's53', False, 8, 2048)
    red_read_add(a, 80, 0, CSUM)
    for i in range(4): a('v_add_u32 v%d, %d, v%d' % (10 + i, G_RED, 10 + i))
    a('v_lshlrev_b32 v189, 6, v6'); a('v_and_b32 v189, 64, v189'); a('v_xor_b32 v189, v189, v14')
    a('s_lshl_b32 s56, s48, 14')
    a('s_lshl_b32 s53, s51, 6'); a('s_add_u32 s54, s53, s56'); a('v_xor_b32 v191, s54, v187'); a('v_xor_b32 v190, 64, v191')
    a('s_lshl_b32 s54, s69, 13'); a('s_add_u32 s53, s53, s54'); a('s_lshl_b32 s54, s52, 12'); a('s_add_u32 s53, s53, s54'); a('v_xor_b32 v187, s53, v187')
    a('s_and_b32 s53, s2, 7'); a('s_lshl_b32 s57, s53, 11')
    a('s_lshl_b32 s53, s48, 9'); a('s_add_u32 s53, s53, s57'); a('s_add_u32 s58, s53, 0x%x' % F_H)
    a('s_add_u32 s59, s57, 0x%x' % F_P)
    a('v_lshlrev_b32 v4, 3, v1')
    a('s_lshl_b32 s57, s68, 16'); a('s_add_u32 s57, s57, s56'); a('s_add_u32 s57, s57, 0x%x' % HT)
    a('s_barrier')
    a.stamp('X1 poll')
    poll(a, 4, 's58', False, sleep=2)
    a.stamp('X1 seen')
    for i in range(16):
        if i % 4 == 0:
            a('s_add_u32 s53, s56, %d' % (1024 * i)); a('s_mov_b32 m0, s53'); a('s_add_u32 s54, s57, %d' % (1024 * i))
        a.vm('buffer_load_dwordx4 v189, s[32:35], s54 offen offset:%d sc1 lds' % (1024 * (i & 3)), 'h%d' % (i >> 1))
    a.vm('buffer_load_dwordx4 v[164:167], v14, s[32:35], s59 offen sc1')
    a.vm('buffer_load_dwordx4 v[168:171], v14, s[32:35], s59 offen offset:1024 sc1', 'P')
    wtr(256 + 64)
    BF = 80; ST = 172
    for i in range(4): a('v_mov_b32 v%d, 0' % (ST + i))
    def btr(s):
        for th in range(2):
            a('ds_read_b64_tr_b16 %s, v%d offset:%d' % (vr(BF + 32 * th + 4 * s, 2), 190 + th, 2048 * s))
            a('ds_read_b64_tr_b16 %s, v%d offset:%d' % (vr(BF + 32 * th + 4 * s + 2, 2), 190 + th, 2048 * s + 512))
    a.wait('h0'); btr(0)
    a.stamp('h0 landed')
    for s in range(8):
        if s < 7:
            a.wait('h%d' % (s + 1)); btr(s + 1)
        a('s_waitcnt lgkmcnt(%d)' % (4 if s < 7 else 0))
        for th in range(2):
            for i in range(4):
                b = BF + 32 * th + 4 * s + i
                a('v_dot2c_f32_bf16 v%d, v%d, v%d' % (ST + th, b, ONES)); a('v_dot2c_f32_bf16 v%d, v%d, v%d' % (ST + 2 + th, b, b))
        for ch in range(2):
            a('v_mfma_f32_32x32x16_bf16 %s, %s, %s, %s' % (vr(acc(0, ch), 16), ur(256 + 8 * s + 4 * ch, 4), vr(BF + 4 * s, 4), vr(acc(0, ch), 16) if s else '0'))
    a('v_permlane32_swap_b32 v%d, v%d' % (ST, ST + 1)); a('v_permlane32_swap_b32 v%d, v%d' % (ST + 2, ST + 3))
    a('v_add_f32 v%d, v%d, v%d' % (ST, ST, ST + 1)); a('v_add_f32 v%d, v%d, v%d' % (ST + 1, ST + 2, ST + 3))
    a('s_xor_b32 s53, s51, 1'); a('s_lshl_b32 s53, s53, 8'); a('v_xor_b32 v2, s53, v4')
    a('s_lshl_b32 s53, s48, 9'); a('s_add_u32 s53, s53, %d' % (L_PK)); a('v_add_u32 v2, s53, v2')
    a('ds_write_b64 v2, %s' % vr(ST, 2))
    a('s_mov_b32 s82, 0')
    a('LP:')
    a.wait0()
    a('v_cmp_ne_u64 vcc, %s, v[164:165]' % TAG); a('v_cmp_ne_u64 s[54:55], %s, v[166:167]' % TAG); a('s_or_b64 vcc, vcc, s[54:55]')
    a('v_cmp_ne_u64 s[54:55], %s, v[168:169]' % TAG); a('s_or_b64 vcc, vcc, s[54:55]')
    a('v_cmp_ne_u64 s[54:55], %s, v[170:171]' % TAG); a('s_or_b64 vcc, vcc, s[54:55]')
    a('s_cbranch_vccz LPok')
    a('buffer_load_dwordx4 v[164:167], v14, s[32:35], s59 offen sc1')
    a('buffer_load_dwordx4 v[168:171], v14, s[32:35], s59 offen offset:1024 sc1')
    a('s_add_u32 s82, s82, 1'); a('s_cmp_gt_u32 s82, 0x20000'); a('s_cbranch_scc1 Lend')
    a('s_branch LP')
    a('LPok:')
    a('s_waitcnt lgkmcnt(0)'); a('s_barrier')
    a.stamp('g1 half')
    WR3 = [192, 256 + 128, 256 + 192]
    a('s_mul_i32 s73, s69, 11'); a('s_mul_i32 s53, s48, 3'); a('s_add_u32 s73, s73, s53')
    a('s_lshl_b32 s74, s73, 14'); a('s_add_u32 s75, s74, 0x8000'); a('s_cmp_eq_u32 s48, 3'); a('s_cselect_b32 s75, 0x400000, s75')
    w3l = []
    for j in (1, 2, 0):
        for s in range(16):
            it = []
            if s % 4 == 0: it.append('s_add_u32 s87, s%d, %d' % (75 if j == 2 else 74, (16384 if j == 1 else 0) + 1024 * s))
            it.append(('buffer_load_dwordx4 %s, v14, s[40:43], s87 offen offset:%d' % (ur(WR3[j] + 4 * s, 4), 1024 * (s & 3)), 'w3'))
            w3l.append(it)
    a('v_and_b32 v2, 31, v1'); a('s_lshl_b32 s53, s51, 5'); a('v_add_u32 v3, s53, v2'); a('v_lshlrev_b32 v2, 3, v3'); a('v_add_u32 v2, %d, v2' % L_PK)
    for w in range(4): a('ds_read_b64 %s, v2 offset:%d' % (vr(164 + 2 * w, 2), 512 * w))
    HO = 176
    for s in range(2):
        a('ds_read_b64_tr_b16 %s, v187 offset:%d' % (vr(HO + 4 * s, 2), 2048 * s))
        a('ds_read_b64_tr_b16 %s, v187 offset:%d' % (vr(HO + 4 * s + 2, 2), 2048 * s + 512))
    M1 = 164; R1 = 166; RI = 168; CAa = 169; CBb = 170
    sh = ['s_waitcnt lgkmcnt(4)']
    for w in range(1, 4):
        sh.append('v_add_f32 v164, v164, v%d' % (164 + 2 * w)); sh.append('v_add_f32 v165, v165, v%d' % (165 + 2 * w))
    sh += ['v_mul_f32 v164, s60, v164', 'v_mul_f32 v166, v164, v164', 'v_fma_f32 v165, v165, s60, -v166', 'v_max_f32 v165, 0, v165',
           'v_add_f32 v166, 0x%x, v165' % f2u(EPS), 'v_rsq_f32 v166, v166', 's_nop 0',
           'v_mul_f32 v167, v166, v166', 'v_mul_f32 v167, v167, v165', 'v_add_f32 v167, 0x%x, v167' % f2u(EPS), 'v_rsq_f32 v167, v167', 's_nop 0',
           'v_mul_f32 v167, v167, v166', 'v_rcp_f32 v168, v167', 'v_mul_f32 v169, 0x%x, v167' % f2u(C0),
           'v_mul_f32 v170, v167, v167', 'v_mul_f32 v170, v170, v167', 'v_mul_f32 v170, 0x%x, v170' % f2u(C1)]
    sh += ['s_lshr_b32 s53, s69, 1', 's_lshl_b32 s53, s53, 3', 's_lshr_b32 s53, 0xfe02ff01, s53', 's_sext_i32_i8 s53, s53',
           's_lshl_b32 s54, s68, 6', 's_add_u32 s53, s53, s54', 'v_add_u32 v3, s53, v3',
           'v_cmp_gt_u32 s[88:89], s62, v3'.replace('s62', 's86'), 'v_and_b32 v3, 0x7ff, v3',
           'v_lshrrev_b32 v7, 5, v3', 'v_lshlrev_b32 v7, 15, v7', 'v_and_b32 v3, 31, v3', 'v_lshl_add_u32 v7, v3, 4, v7',
           'v_lshrrev_b32 v3, 5, v1', 'v_lshl_add_u32 v7, v3, 9, v7',
           's_lshl_b32 s53, s69, 12', 's_lshl_b32 s54, s52, 11', 's_add_u32 s70, s53, s54', 's_add_u32 s71, s70, 0x%x' % ZB]
    a('s_movk_i32 s86, 0x800')
    wr = red_write(0) + red_write(1)
    NW3_G1 = 20
    for s in range(8):
        for ch in range(2):
            a('v_mfma_f32_32x32x16_bf16 %s, %s, %s, %s' % (vr(acc(1, ch), 16), ur(256 + 8 * s + 4 * ch, 4), vr(BF + 32 + 4 * s, 4), vr(acc(1, ch), 16) if s else '0'))
            for _ in range(3):
                if sh: a(sh.pop(0))
            if len(w3l) > 48 - 16: emit_bg(w3l.pop(0))
            if s >= 2 and wr and not (s == 2 and ch == 0) : a(wr.pop(0))
    assert not sh and not wr
    while len(w3l) > 48 - NW3_G1: emit_bg(w3l.pop(0))
    for w in red_write(2): a(w)
    a('s_waitcnt lgkmcnt(0)'); a('s_barrier')
    a.stamp('g1 mfma')
    red_read_add(a, 80)
    o = acc(1, 1)
    for i in range(0, 16, 2): a(pk('v_pk_fma_f32', o + i, [bc(M1), CSUM + i, o + i], neg=[1, 0, 0]))
    for l in gelu_pk(o, CAa, CBb, RI, 80, 16): a(l)
    for i in range(8): a('v_cvt_pk_bf16_f32 v%d, v%d, v%d' % (96 + i, o + 2 * i, o + 2 * i + 1))
    for i in range(8): a('v_cndmask_b32 v%d, 0, v%d, s[88:89]' % (96 + i, 96 + i))
    a.vm('buffer_store_dwordx4 v[96:99], v7, s[32:35], s71 offen sc1')
    a.vm('buffer_store_dwordx4 v[100:103], v7, s[32:35], s71 offen offset:1024 sc1', 'z')
    a.stamp('z stored')
    for _ in range(8): emit_bg(w3l.pop(0))
    HF = 144; HN = 160
    for i in range(8):
        a('v_lshlrev_b32 v%d, 16, v%d' % (HF + 2 * i, HO + i)); a('v_and_b32 v%d, s61, v%d' % (HF + 2 * i + 1, HO + i))
    HN = 176
    for i in range(0, 16, 2): a(pk('v_pk_add_f32', HN + i, [HF + i, bc(M1)], neg=[0, 1]))
    for i in range(0, 16, 2): a(pk('v_pk_mul_f32', HN + i, [HN + i, bc(R1)]))
    a('s_lshl_b32 s72, s68, 7'); a('s_lshl_b32 s53, s69, 3'); a('s_add_u32 s79, s72, s53')
    a('s_add_u32 s53, s79, 0x%x' % F_Z)
    a('v_and_b32 v4, 1, v1'); a('v_lshlrev_b32 v4, 3, v4'); a('s_lshl_b32 s54, s48, 4'); a('v_add_u32 v4, s54, v4')
    a('s_add_u32 s58, s72, 0x%x' % F_Z)
    a('s_lshl_b32 s54, s51, 1'); a('s_add_u32 s54, s54, s68'); a('s_add_u32 s54, s54, 31'); a('s_and_b32 s54, s54, 31')
    a('s_lshl_b32 s59, s54, 7'); a('s_add_u32 s59, s59, 0x%x' % F_Z)
    a('s_xor_b32 s54, s54, s68'); a('s_cmp_gt_u32 s54, 3'); a('s_cselect_b32 s67, 32, 0')
    a('s_lshl_b32 s66, s68, 1'); a('s_add_u32 s66, s66, s51')
    a('s_lshl_b32 s56, s66, 15'); a('s_lshl_b32 s54, s48, 13'); a('s_add_u32 s56, s56, s54'); a('s_add_u32 s56, s56, 0x%x' % ZB); a('s_xor_b32 s57, s56, 0x8000')
    a.wait('z')
    a.stamp('z drained')
    signal(a, 's53', True)
    poll(a, 4, 's58', True)
    a.stamp('X2 seen')
    def bload(sreg, th, nks, dst, lab):
        for s in range(nks):
            if s and s % 4 == 0: a('s_add_u32 s%d, s%d, 4096' % (sreg, sreg))
            a.vm('buffer_load_dwordx4 %s, v14, s[32:35], s%d offen offset:%d sc1' % (ur(dst(nks * th + s), 4), sreg, 1024 * (s & 3)), '%s%d' % (lab, nks * th + s))
    bload(57, 0, 8, lambda k: 80 + 4 * k, 'b')
    poll(a, 4, 's59', True, start='s67')
    bload(56, 1, 8, lambda k: 80 + 4 * k, 'b')
    def ksplit(nks, wreg, breg, lab, bgl, nbg, waited=0):
        for th in range(2):
            wr = (red_write(0) + red_write(1)) if th else []
            for s in range(nks):
                k = nks * th + s
                if k >= waited: a.wait('%s%d' % (lab, k))
                for ch in range(2):
                    a('v_mfma_f32_32x32x16_bf16 %s, %s, %s, %s' % (vr(acc(th, ch), 16), ur(wreg(s, ch), 4), ur(breg(k), 4), vr(acc(th, ch), 16) if s else '0'))
                    if bgl and nbg > 0 and (th or waited): emit_bg(bgl.pop(0)); nbg -= 1
                if wr and s >= 1: a(wr.pop(0))
                if wr and s >= nks - 1: a(wr.pop(0))
        for w in red_write(2): a(w)
        a('s_waitcnt lgkmcnt(0)'); a('s_barrier')
    ksplit(8, lambda s, ch: 256 + 64 + 8 * s + 4 * ch, lambda k: 80 + 4 * k, 'b', w3l, 12, 8)
    a.stamp('g2 mfma')
    red_read_add(a, 80)
    for i in range(0, 16, 2): a(pk('v_pk_add_f32', o + i, [o + i, HN + i]))
    for i in range(8): a('v_cvt_pk_bf16_f32 v%d, v%d, v%d' % (96 + i, o + 2 * i, o + 2 * i + 1))
    a('s_lshl_b32 s54, s66, 15'); a('s_add_u32 s54, s54, s70'); a('s_add_u32 s54, s54, 0x%x' % X1B)
    a.vm('buffer_store_dwordx4 v[96:99], v14, s[32:35], s54 offen sc1')
    a.vm('buffer_store_dwordx4 v[100:103], v14, s[32:35], s54 offen offset:1024 sc1')
    a('v_mov_b32 v104, 0'); a('v_mov_b32 v105, 0')
    for i in range(8):
        a('v_dot2c_f32_bf16 v104, v%d, v%d' % (96 + i, ONES)); a('v_dot2c_f32_bf16 v105, v%d, v%d' % (96 + i, 96 + i))
    a('v_mov_b32 v106, v104'); a('v_mov_b32 v107, v105')
    a('v_permlane32_swap_b32 v104, v106'); a('v_permlane32_swap_b32 v105, v107')
    a(pk('v_pk_add_f32', 104, [104, 106]))
    a('s_lshl_b32 s54, s68, 13'); a('s_lshr_b32 s55, s70, 2'); a('s_add_u32 s54, s54, s55'); a('s_lshl_b32 s55, s51, 8'); a('s_add_u32 s54, s54, s55')
    a('s_add_u32 s54, s54, 0x%x' % ST1); a('v_lshlrev_b32 v2, 3, v1')
    a('s_mov_b32 exec_hi, 0')
    a.vm('buffer_store_dwordx2 v[104:105], v2, s[32:35], s54 offen sc1', 'x1')
    a('s_mov_b32 exec_hi, -1')
    a.stamp('x1 stored')
    while w3l: emit_bg(w3l.pop(0))
    RES = 128
    for i in range(8):
        a('v_lshlrev_b32 v%d, 16, v%d' % (80 + 2 * i, 96 + i)); a('v_and_b32 v%d, s61, v%d' % (81 + 2 * i, 96 + i))
    for i in range(0, 16, 2): a(pk('v_pk_add_f32', RES + i, [HF + i, 80 + i]))
    a('s_add_u32 s53, s79, 0x%x' % F_X); a('s_add_u32 s58, s72, 0x%x' % F_X)
    a('v_and_b32 v7, 7, v1'); a('v_lshlrev_b32 v7, 3, v7')
    a('s_lshl_b32 s56, s48, 13'); a('s_lshl_b32 s57, s68, 16'); a('s_add_u32 s57, s57, s56'); a('s_add_u32 s57, s57, 0x%x' % X1B)
    a('s_lshl_b32 s59, s68, 13'); a('s_lshl_b32 s54, s48, 11'); a('s_add_u32 s59, s59, s54'); a('s_add_u32 s59, s59, 0x%x' % ST1)
    a('v_lshlrev_b32 v8, 9, v6'); a('v_lshl_add_u32 v8, v5, 4, v8'); a('v_add_u32 v9, 0x8000, v8')
    a.wait('x1')
    a.stamp('x1 drained')
    signal(a, 's53', True, tmp=16)
    CS3 = 116
    a.wait0()
    for s in range(16):
        for j in range(3):
            a('v_mfma_f32_16x16x32_bf16 %s, %s, %s, %s' % (vr(CS3 + 4 * j, 4), ur(WR3[j] + 4 * s, 4), vr(ONES, 4), vr(CS3 + 4 * j, 4) if s else '0'))
    poll(a, 7, 's58', True, tmp=16)
    a.stamp('X3 seen')
    for p in range(4): a.vm('buffer_load_dwordx2 %s, v2, s[32:35], s59 offen offset:%d sc1' % (vr(80 + 2 * p, 2), 512 * p), 'sp')
    for i in range(16):
        if i % 4 == 0:
            oo = 32768 * (i >> 3) + 1024 * (i & 7)
            a('s_add_u32 s53, s56, %d' % oo); a('s_mov_b32 m0, s53'); a('s_add_u32 s54, s57, %d' % oo)
        a.vm('buffer_load_dwordx4 v14, s[32:35], s54 offen offset:%d sc1 lds' % (1024 * (i & 3)), 'x%d' % (i >> 3))
    def w4reg(s, ch): return (256 + 8 * s + 4 * ch) if s < 16 else (144 + 8 * (s - 16) + 4 * ch)
    a('s_mul_i32 s74, s69, %d' % (86 * 2048)); a('s_mul_i32 s53, s48, %d' % (22 * 2048)); a('s_add_u32 s74, s74, s53')
    a('s_add_u32 s75, s74, %d' % (20 * 2048)); a('s_cmp_eq_u32 s48, 3'); a('s_cselect_b32 s75, 0x400000, s75')
    a('s_lshl_b32 s53, s52, 10'); a('v_add_u32 v3, s53, v14'); a('v_xor_b32 v0, 0x400, v3')
    w4l = []
    for s in range(22):
        for ch in range(2):
            it = []
            if s % 2 == 0 and ch == 0: it.append('s_add_u32 s87, s74, %d' % (2048 * s) if s < 20 else 's_mov_b32 s87, s75')
            it.append(('buffer_load_dwordx4 %s, v%d, s[36:39], s87 offen offset:%d' % (ur(w4reg(s, ch), 4), 3 if ch else 0, 2048 * (s & 1)), 'w4'))
            w4l.append(it)
    srd(a, 44, 30, 64 * HTH, '0x%x' % HB)
    a('s_lshl_b32 s53, s68, 1'); a('s_mul_i32 s53, s53, %d' % HTH); a('s_lshl_b32 s54, s73, 10'); a('s_add_u32 s56, s53, s54')
    a('s_add_u32 s57, s56, %d' % HTH)
    a('s_cmp_eq_u32 s48, 3'); a('s_cselect_b32 s58, 0x%x, s56' % (64 * HTH)); a('s_cselect_b32 s59, 0x%x, s57' % (64 * HTH))
    a('s_lshl_b32 s53, s48, 3'); a('s_add_u32 s53, s53, %d' % G_ST); a('v_lshlrev_b32 v7, 5, v1'); a('v_add_u32 v7, s53, v7')
    a.wait('sp')
    a(pk('v_pk_add_f32', 80, [80, 82])); a(pk('v_pk_add_f32', 84, [84, 86])); a(pk('v_pk_add_f32', 80, [80, 84]))
    a('ds_write_b64 v7, v[80:81]')
    a('v_lshlrev_b32 v7, 5, v1'); a('v_add_u32 v7, %d, v7' % G_ST)
    a.wait('x0', 'lgkmcnt(0)')
    a('s_barrier')
    a.stamp('x0 landed')
    A3 = 16; BR = 40; TMP = 72; PK = 84; STT = 96
    a('ds_read_b128 v[72:75], v7'); a('ds_read_b128 v[76:79], v7 offset:16')
    def rd(k):
        tt, s = k >> 4, k & 15
        return 'ds_read_b128 %s, v%d offset:%d' % (vr(BR + 4 * (k & 7), 4), 8 + (tt >> 1), 2048 * s + 256 * (tt & 1))
    for k in range(6): a(rd(k))
    a('s_lshl_b32 s53, s48, 10'); a('s_add_u32 s53, s53, %d' % G_ST2); a('v_add_u32 v7, s53, v14'); a('v_lshl_add_u32 v2, v5, 4, s53')
    a('s_waitcnt lgkmcnt(6)')
    st = ['v_add_f32 v72, v72, v74', 'v_add_f32 v73, v73, v75', 'v_add_f32 v76, v76, v78', 'v_add_f32 v77, v77, v79',
          'v_add_f32 v72, v72, v76', 'v_add_f32 v73, v73, v77',
          'v_mul_f32 v72, s60, v72', 'v_mul_f32 v74, v72, v72', 'v_fma_f32 v73, v73, s60, -v74', 'v_max_f32 v73, 0, v73',
          'v_add_f32 v73, 0x%x, v73' % f2u(EPS), 'v_rsq_f32 v76, v73', 'v_sqrt_f32 v75, v73', 'v_mul_f32 v73, 0x%x, v76' % f2u(C0),
          'v_mul_f32 v74, v76, v76', 'v_mul_f32 v74, v74, v76', 'v_mul_f32 v74, 0x%x, v74' % f2u(C1),
          ('ds', 'ds_write_b128 v7, v[72:75]'), ('dswait', 0)] + [('ds', 'ds_read_b128 %s, v2 offset:%d' % (vr(STT + 4 * tt, 4), 256 * tt)) for tt in range(4)]
    def epi(tt, packed):
        o3 = A3 + 12 * (tt & 1); m = STT + 4 * tt
        if packed:
            l = [pk('v_pk_fma_f32', o3 + i, [bc(m), CS3 + i, o3 + i], neg=[1, 0, 0]) for i in range(0, 12, 2)]
            l += gelu_pk(o3, m + 1, m + 2, m + 3, TMP, 12)
        else:
            l = ['v_fma_f32 v%d, -v%d, v%d, v%d' % (o3 + i, m, CS3 + i, o3 + i) for i in range(12)]
            l += gelu_plain(o3, m + 1, m + 2, m + 3, TMP, 12)
        for j in range(3):
            for i in range(2): l.append('v_cvt_pk_bf16_f32 v%d, v%d, v%d' % (PK + 4 * j + 2 * (tt & 1) + i, o3 + 4 * j + 2 * i, o3 + 4 * j + 2 * i + 1))
        if tt & 1:
            for j in range(3):
                l.append('v_permlane16_swap_b32 v%d, v%d' % (PK + 4 * j, PK + 4 * j + 2)); l.append('v_permlane16_swap_b32 v%d, v%d' % (PK + 4 * j + 1, PK + 4 * j + 3))
            for j in range(3):
                l.append(('vm', 'buffer_store_dwordx4 %s, v14, s[44:47], s%d offen offset:%d sc1' % (vr(PK + 4 * j, 4), (58 if j == 2 else 56) + (tt >> 1), 1024 * j)))
        return l
    pend = st
    lg = [('r', k) for k in range(6)]
    def emit_p(x):
        if isinstance(x, str): a(x)
        elif x[0] == 'vm': a.vm(x[1], 'H')
        elif x[0] == 'ds': a(x[1]); lg.append(('o', 0))
        elif x[0] == 'dswait': a('s_waitcnt lgkmcnt(0)'); del lg[:]
    for k in range(64):
        tt, s = k >> 4, k & 15
        if k == 26:
            a.wait('x1'); a('s_barrier')
        if k + 6 < 64: a(rd(k + 6)); lg.append(('r', k + 6))
        if ('r', k) in lg:
            idx = lg.index(('r', k)); a('s_waitcnt lgkmcnt(%d)' % (len(lg) - 1 - idx)); del lg[:idx + 1]
        for j in range(3):
            o3 = A3 + 12 * (tt & 1) + 4 * j
            a('v_mfma_f32_16x16x32_bf16 %s, %s, %s, %s' % (vr(o3, 4), ur(WR3[j] + 4 * s, 4), vr(BR + 4 * (k & 7), 4), vr(o3, 4) if s else '0'))
            if s >= 1 or tt == 0:
                for _ in range(3 if j < 2 else 2):
                    if pend: emit_p(pend.pop(0))
            if j == 2 and w4l and (k < 16 or k >= 26): emit_bg(w4l.pop(0))
            if j == 1 and w4l and k < 16 and k >= 8: emit_bg(w4l.pop(0))
        if s == 15:
            while pend: emit_p(pend.pop(0))
            pend = epi(tt, tt == 3)
    assert not w4l
    a.stamp('g3 mfma')
    while pend: emit_p(pend.pop(0))
    a.stamp('H stored')
    a('s_add_u32 s53, s79, 0x%x' % F_F); a('s_add_u32 s58, s72, 0x%x' % F_F)
    a('s_mul_i32 s56, s66, %d' % HTH); a('s_xor_b32 s54, s66, 1'); a('s_mul_i32 s57, s54, %d' % HTH)
    a('s_mul_i32 s54, s48, %d' % (22 * 1024)); a('s_add_u32 s54, s54, 0x%x' % HB); a('s_add_u32 s56, s56, s54'); a('s_add_u32 s57, s57, s54')
    srd(a, 40, 26, 2 * MB)
    a('v_and_b32 v7, 31, v1'); a('v_lshlrev_b32 v7, 10, v7'); a('v_lshrrev_b32 v8, 5, v1'); a('v_lshl_add_u32 v7, v8, 4, v7')
    a('s_lshl_b32 s59, s66, 15'); a('s_lshr_b32 s54, s70, 5'); a('s_add_u32 s59, s59, s54')
    a.wait0()
    a.stamp('H drained')
    signal(a, 's53', True, tmp=16)
    poll(a, 4, 's58', True, tmp=16)
    a.stamp('X4 seen')
    def b4(k): return (256 + 128 + 4 * k) if k < 32 else (192 + 4 * (k - 32))
    bload(57, 0, 22, b4, 'f'); bload(56, 1, 22, b4, 'f')
    ksplit(22, w4reg, b4, 'f', None, 0)
    a.stamp('g4 mfma')
    red_read_add(a, 80)
    for i in range(0, 16, 2): a(pk('v_pk_add_f32', o + i, [o + i, RES + i]))
    for i in range(8): a('v_cvt_pk_bf16_f32 v%d, v%d, v%d' % (96 + i, o + 2 * i, o + 2 * i + 1))
    a.vm('buffer_store_dwordx4 v[96:99], v7, s[40:43], s59 offen')
    a.vm('buffer_store_dwordx4 v[100:103], v7, s[40:43], s59 offen offset:32')
    if stamp:
        a.stamp('out stored'); a.wait0(); a.stamp('end')
        a('s_lshl_b32 s53, s63, 8'); a('s_add_u32 s53, s53, 0x%x' % STAMPS); a('v_lshlrev_b32 v2, 2, v1')
        a('buffer_store_dword v15, v2, s[32:35], s53 offen')
    a('Lend:')
    a('s_endpgm')
    body = a.a.finish()
    print('instrs', len(a.a.L), 'nops', a.a.nops, file=sys.stderr)
    hdr = open('sequential_preLN__ssm_conv_h3__mixer_s_mlp__prompt.s.ref').read().split('; Override')[0]
    out = hdr + '; @launch grid=(256,1,1) block=(256,1,1) lds=%d\n' % LDS_BYTES
    if stamp: out += '; stamps: ' + '|'.join(a.names) + '\n'
    out += '.amdgcn_target "amdgcn-amd-amdhsa--gfx950"\n.text\n.globl %s\n.p2align 8\n.type %s,@function\n%s:\n' % (NAME, NAME, NAME)
    out += body
    out += '.fill 4096, 4, 0xbf800000\n'
    out += '''.section .rodata,"a"
.p2align 6
.amdhsa_kernel %s
  .amdhsa_next_free_vgpr 512
  .amdhsa_next_free_sgpr 96
  .amdhsa_accum_offset 256
  .amdhsa_group_segment_fixed_size 0
  .amdhsa_kernarg_size 112
  .amdhsa_user_sgpr_count 2
  .amdhsa_user_sgpr_kernarg_segment_ptr 1
  .amdhsa_system_sgpr_workgroup_id_x 1
  .amdhsa_float_denorm_mode_32 3
.end_amdhsa_kernel
''' % NAME
    return out

if __name__ == '__main__':
    open(sys.argv[1], 'w').write(build(len(sys.argv) > 2))
```

```python
import sys, struct
from asmlib import *

MB = 1 << 20
KVR = 0; XT = 2 * MB; HT = 4 * MB; ZB = 6 * MB; X1B = 8 * MB; HB = 10 * MB
W3P = 16 * MB; W4P = W3P + 1408 * 1024
ST0 = 20 * MB
ST1 = ST0 + 65536
FL = ST1 + 262144
FGL = 0x8000
F_A = FL; F_Z = FL + 0x1000; F_X = FL + 0x2000; F_F = FL + 0x3000
F_H = FL + 0x10000; F_P = FL + 0x14000
STAMPS = 64 * MB
DUMP = 0x10000000
HTH = 176 * 512
EPS = 1e-5
def f2u(f): return struct.unpack('<I', struct.pack('<f', f))[0]
C0 = -2.0 * 0.7978845608028654 * 1.4426950408889634
C1 = C0 * 0.044715
NAME = 'sequential_preLN__ssm_conv_h3__mixer_s_mlp__prompt_kernel'

CS = 4160
L_E4 = 0; L_KV = 33280; L_CRED = L_KV + 2 * 4608
L_S = 65536
L_PK = 131072
G_RED = 65536; G_ST = G_RED + 49152; G_ST2 = G_ST + 2048
LDS_BYTES = 147456

TAG = 's[80:81]'
import os
NT = os.environ.get('NT', 'nt')
PACE = int(os.environ.get('PACE', '6'))
W4TAIL = int(os.environ.get('W4TAIL', '4'))
W4END = int(os.environ.get('W4END', '60'))
EXP = os.environ.get('EXP', '').split(',')
SLEEP = int(os.environ.get('SLEEP', '4'))
PRE0 = int(os.environ.get('PRE0', '2'))
NST = int(os.environ.get('NST', '16'))
class G:
    def __init__(self, stamp=False):
        self.a = Asm(); self.stamp_on = stamp; self.q = []; self.nst = 0; self.names = []
    def __call__(self, t): self.a(t)
    def vm(self, text, label=None):
        self.a(text); self.q.append(label)
    def wait(self, label, extra=''):
        if label not in self.q:
            if extra: self.a('s_waitcnt ' + extra)
            return
        idx = max(i for i, l in enumerate(self.q) if l == label)
        n = len(self.q) - 1 - idx
        assert n < 64
        self.a('s_waitcnt vmcnt(%d) %s' % (n, extra)); self.q = self.q[idx + 1:]
    def wait0(self, extra=''):
        self.a('s_waitcnt vmcnt(0) %s' % extra); self.q = []
    def count(self, lane):
        if self.stamp_on: self.a('v_writelane_b32 v15, s82, %d' % lane)
    def stamp(self, name):
        if self.stamp_on:
            self.a('s_memrealtime s[90:91]'); self.a('s_memtime s[94:95]'); self.a('s_waitcnt lgkmcnt(0)'); self.a('v_writelane_b32 v15, s90, %d' % self.nst)
            self.a('v_writelane_b32 v15, s94, %d' % (32 + self.nst)); assert self.nst < 30
            self.names.append(name); self.nst += 1

def srd(a, d, p, size, off=None):
    if off is None:
        a('s_mov_b32 s%d, s%d' % (d, p)); a('s_mov_b32 s%d, s%d' % (d + 1, p + 1))
    else:
        a('s_add_u32 s%d, s%d, %s' % (d, p, off)); a('s_addc_u32 s%d, s%d, 0' % (d + 1, p + 1))
    a('s_mov_b32 s%d, 0x%x' % (d + 2, size)); a('s_mov_b32 s%d, 0x20000' % (d + 3))

def allreduce(a, regs, tmps):
    for m in ('quad_perm:[1,0,3,2]', 'quad_perm:[2,3,0,1]', 'row_half_mirror', 'row_mirror'):
        for r in regs: a('v_add_f32_dpp v%d, v%d, v%d %s row_mask:0xf bank_mask:0xf' % (r, r, r, m))
    for sw in ('v_permlane16_swap_b32', 'v_permlane32_swap_b32'):
        for r, t in zip(regs, tmps): a('v_mov_b32 v%d, v%d' % (t, r))
        for r, t in zip(regs, tmps): a('%s v%d, v%d' % (sw, r, t))
        for r, t in zip(regs, tmps): a('v_add_f32 v%d, v%d, v%d' % (r, r, t))

npoll = [0]
def poll(a, vaddr, soff, dual, start='0', sleep=0, tmp=16):
    n = npoll[0]; npoll[0] += 1
    a('s_mov_b32 s82, %s' % start)
    a('Lpoll%d:' % n)
    if dual:
        a('s_cmp_lt_u32 s82, 32'); a('s_cselect_b32 s83, 0, 0x%x' % FGL); a('s_add_u32 s83, s83, %s' % soff)
        so = 's83'
    else: so = soff
    a('buffer_load_dwordx2 %s, v%d, s[32:35], %s offen sc1' % (vr(tmp, 2), vaddr, so))
    a('s_add_u32 s82, s82, 1'); a('s_cmp_gt_u32 s82, 0x20000'); a('s_cbranch_scc1 Lend')
    a.wait0()
    a('v_cmp_ne_u64 vcc, %s, %s' % (TAG, vr(tmp, 2)))
    if sleep:
        a('s_cbranch_vccz Lpolld%d' % n); a('s_sleep %d' % sleep); a('s_branch Lpoll%d' % n); a('Lpolld%d:' % n)
    else: a('s_cbranch_vccnz Lpoll%d' % n)

nsig = [0]
def signal(a, soff, dual, nrep=1, repstride=0, tmp=16):
    n = nsig[0]; nsig[0] += 1
    a('s_barrier')
    a('s_cmp_lg_u32 s48, 0'); a('s_cbranch_scc1 Lsig%d' % n)
    a('v_mov_b32 v%d, s80' % tmp); a('v_mov_b32 v%d, s81' % (tmp + 1))
    a('v_mul_u32_u24 v%d, %d, v1' % (tmp + 2, repstride))
    a('s_mov_b64 exec, %d' % ((1 << nrep) - 1))
    if dual:
        a('buffer_store_dwordx2 %s, v%d, s[32:35], %s offen' % (vr(tmp, 2), tmp + 2, soff))
        a('s_add_u32 s83, %s, 0x%x' % (soff, FGL))
        a('buffer_store_dwordx2 %s, v%d, s[32:35], s83 offen sc1' % (vr(tmp, 2), tmp + 2))
    else:
        a('buffer_store_dwordx2 %s, v%d, s[32:35], %s offen sc1' % (vr(tmp, 2), tmp + 2, soff))
    a('s_mov_b64 exec, -1')
    a('Lsig%d:' % n)

ACC = 16
def acc(th, ch): return ACC + 32 * th + 16 * ch
def red_write(slot, off=0):
    th, ch = slot >> 1, slot & 1
    return ['ds_write_b128 v%d, %s offset:%d' % (10 + slot, vr(acc(th, ch) + 4 * q, 4), off + 1024 * q) for q in range(4)]
def red_read_add(a, tmp, off=0, dst=None):
    for i in range(12): a('ds_read_b128 %s, v13 offset:%d' % (vr(tmp + 4 * i, 4), off + 1024 * i))
    o = acc(1, 1)
    for i in range(12):
        a('s_waitcnt lgkmcnt(%d)' % (11 - i))
        d = dst if (dst is not None and i >= 8) else o
        for r in (0, 2): a('v_pk_add_f32 %s, %s, %s' % (vr(d + 4 * (i & 3) + r, 2), vr(o + 4 * (i & 3) + r, 2), vr(tmp + 4 * i + r, 2)))

def gelu_plain(t, ca, cb, ri, tmp, n):
    l = []
    for i in range(n): l.append('v_mul_f32 v%d, v%d, v%d' % (tmp + i, t + i, t + i))
    for i in range(n): l.append('v_fma_f32 v%d, v%d, v%d, v%d' % (tmp + i, tmp + i, cb, ca))
    for i in range(n): l.append('v_mul_f32 v%d, v%d, v%d' % (tmp + i, tmp + i, t + i))
    for i in range(n): l.append('v_exp_f32 v%d, v%d' % (tmp + i, tmp + i))
    for i in range(n): l.append('v_fma_f32 v%d, v%d, v%d, v%d' % (tmp + i, tmp + i, ri, ri))
    for i in range(n): l.append('v_rcp_f32 v%d, v%d' % (tmp + i, tmp + i))
    for i in range(n): l.append('v_mul_f32 v%d, v%d, v%d' % (t + i, t + i, tmp + i))
    return l
def bc(r):
    return vr(r & ~1, 2), r & 1
def pk(op, d, srcs, neg=None):
    names = []; lo = []; hi = []
    for s in srcs:
        if isinstance(s, tuple): names.append(s[0]); lo.append(s[1]); hi.append(s[1])
        else: names.append(vr(s, 2)); lo.append(0); hi.append(1)
    t = '%s %s, %s' % (op, vr(d, 2), ', '.join(names))
    if lo != [0] * len(lo) or hi != [1] * len(hi):
        t += ' op_sel:[%s] op_sel_hi:[%s]' % (','.join(map(str, lo)), ','.join(map(str, hi)))
    if neg: t += ' neg_lo:[%s] neg_hi:[%s]' % (','.join(map(str, neg)), ','.join(map(str, neg)))
    return t
def gelu_pk(t, ca, cb, ri, tmp, n):
    l = []
    for i in range(0, n, 2): l.append(pk('v_pk_mul_f32', tmp + i, [t + i, t + i]))
    for i in range(0, n, 2): l.append(pk('v_pk_fma_f32', tmp + i, [tmp + i, bc(cb), bc(ca)]))
    for i in range(0, n, 2): l.append(pk('v_pk_mul_f32', tmp + i, [tmp + i, t + i]))
    for i in range(n): l.append('v_exp_f32 v%d, v%d' % (tmp + i, tmp + i))
    for i in range(0, n, 2): l.append(pk('v_pk_fma_f32', tmp + i, [tmp + i, bc(ri), bc(ri)]))
    for i in range(n): l.append('v_rcp_f32 v%d, v%d' % (tmp + i, tmp + i))
    for i in range(0, n, 2): l.append(pk('v_pk_mul_f32', t + i, [t + i, tmp + i]))
    return l

def build(stamp=False):
    npoll[0] = 0; nsig[0] = 0
    a = G(stamp)
    a('s_cmp_ge_u32 s2, 256'); a('s_cbranch_scc1 Lend')
    a('s_load_dwordx16 s[4:19], s[0:1], 0')
    a('s_load_dwordx8 s[20:27], s[0:1], 64')
    a('s_load_dwordx4 s[28:31], s[0:1], 96')
    a('s_memrealtime s[80:81]')
    a('s_getpc_b64 s[84:85]')
    a('v_lshrrev_b32 v1, 6, v0'); a('v_readfirstlane_b32 s48, v1'); a('v_and_b32 v1, 63, v0')
    if stamp: a('v_mov_b32 v15, 0')
    a('s_lshr_b32 s49, s2, 3'); a('s_and_b32 s50, s2, 7')
    a('s_and_b32 s51, s48, 1'); a('s_lshr_b32 s52, s48, 1')
    a('s_lshl_b32 s53, s49, 6'); a('s_lshl_b32 s54, s51, 5'); a('s_add_u32 s53, s53, s54')
    a('v_and_b32 v5, 15, v1'); a('v_lshrrev_b32 v6, 4, v1')
    a('v_lshl_add_u32 v2, v6, 3, s53')
    a('s_lshl_b32 s53, s50, 5'); a('s_lshl_b32 s54, s52, 4'); a('s_add_u32 s53, s53, s54'); a('v_add_u32 v3, s53, v5')
    a('v_lshlrev_b32 v4, 10, v2'); a('v_lshl_add_u32 v4, v3, 2, v4')
    a('v_add_u32 v7, 0xfffff400, v4'); a('v_lshlrev_b32 v8, 4, v3')
    a('s_movk_i32 s62, 0x1000'); a('s_mov_b32 s60, 0x%x' % f2u(1.0 / 512)); a('s_mov_b32 s61, 0xffff0000')
    a('s_waitcnt lgkmcnt(0)')
    a.stamp('start')
    srd(a, 36, 6, 2 * MB)
    a('s_or_b32 s53, s2, s48'); a('s_cmp_lg_u32 s53, 0'); a('s_cbranch_scc1 Lnotag')
    a('v_mov_b32 v10, s80'); a('v_mov_b32 v11, s81'); a('v_mov_b32 v12, 0'); a('s_mov_b64 exec, 1')
    a('global_store_dwordx2 v12, v[10:11], s[28:29] sc1'); a('s_mov_b64 exec, -1')
    a('Lnotag:')
    for i in range(3): a.vm('buffer_load_dword v%d, v7, s[36:39], 0 offen offset:%d %s' % (16 + i, 1024 * i, NT))
    for i in range(8): a.vm('buffer_load_dword v%d, v4, s[36:39], %s offen offset:%d %s' % (19 + i, 's62' if i >= 4 else '0', 1024 * (i & 3), NT))
    a.vm('global_load_dwordx4 v[44:47], v8, s[10:11]', 'k')
    srd(a, 40, 8, 2 * MB)
    for i in range(8): a.vm('buffer_load_dword v%d, v4, s[40:43], %s offen offset:%d %s' % (28 + i, 's62' if i >= 4 else '0', 1024 * (i & 3), NT), 'v')
    srd(a, 44, 4, 2 * MB)
    for i in range(8): a.vm('buffer_load_dword v%d, v4, s[44:47], %s offen offset:%d %s' % (36 + i, 's62' if i >= 4 else '0', 1024 * (i & 3), NT), 'x')
    srd(a, 32, 30, 0x10000000)
    a('v_lshlrev_b32 v14, 4, v1')
    a('s_lshl_b32 s63, s2, 2'); a('s_add_u32 s63, s63, s48')
    a('s_lshl_b32 s53, s63, 11'); a('v_add_u32 v11, s53, v14')
    a.vm('global_load_dwordx4 v[128:131], v11, s[4:5] ' + NT); a.vm('global_load_dwordx4 v[132:135], v11, s[4:5] offset:1024 ' + NT, 'xr')
    a('s_lshl_b32 s53, s49, 10'); a('s_lshl_b32 s54, s48, 8'); a('s_add_u32 s53, s53, s54')
    a('v_and_b32 v11, 1, v1'); a('v_lshlrev_b32 v11, 7, v11'); a('v_add_u32 v11, s53, v11')
    a.vm('global_load_dword v148, v11, s[84:85]')
    a('v_and_b32 v11, 3, v1'); a('v_lshlrev_b32 v11, 12, v11'); a('v_bfe_u32 v12, v1, 2, 2'); a('v_lshl_add_u32 v11, v12, 7, v11')
    a('s_lshl_b32 s53, s50, 9'); a('s_add_u32 s72, s53, 0x%x' % F_A)
    a.vm('buffer_load_dword v149, v11, s[32:35], s72 offen sc1')
    a('s_lshl_b32 s64, s50, 6'); a('s_lshl_b32 s53, s49, 1'); a('s_add_u32 s64, s64, s53')
    a('s_lshl_b32 s53, s64, 1'); a('s_load_dword s65, s[14:15], s53')
    a('s_add_u32 s64, s64, s52'); a('s_lshl_b32 s66, s64, 12')
    a('s_lshl_b32 s68, s50, 2'); a('s_and_b32 s53, s49, 3'); a('s_add_u32 s68, s68, s53')
    a('s_lshr_b32 s69, s2, 5')
    a('s_lshl_b32 s67, s51, 11')
    a('v_lshlrev_b32 v7, 13, v3'); a('v_lshlrev_b32 v8, 1, v2')
    a('v_add_u32 v9, v7, v8'); a('v_add_u32 v9, 0x%x, v9' % XT)
    a('v_sub_u32 v7, v7, v8'); a('v_add_u32 v7, %d, v7' % (4080 + KVR))
    a('s_mov_b32 s55, 0x05040100'); a('s_mov_b32 s56, 0x07060302')
    for i in range(4): a('v_mov_b32 v%d, 0' % (152 + i))
    a('s_mul_i32 s70, s52, 4608'); a('s_add_u32 s70, s70, %d' % L_KV)
    a('s_mul_i32 s71, s52, %d' % (4 * CS))
    a('v_and_b32 v11, 31, v1'); a('v_lshl_add_u32 v11, v11, 4, s70')
    a('ds_write_b128 v11, v[152:155] offset:4096')
    a('v_and_b32 v11, 1, v1'); a('v_lshlrev_b32 v11, 4, v11'); a('v_bfe_u32 v12, v1, 1, 2'); a('v_mul_u32_u24 v12, %d, v12' % CS)
    a('v_add3_u32 v11, v11, v12, s71')
    a('ds_write_b128 v11, v[152:155] offset:%d' % L_E4)
    for i in range(4): a('v_mov_b32 v%d, -1' % (156 + i))
    a('s_bfe_u32 s53, s69, 0x10001')
    a('v_bfe_u32 v11, v1, 3, 1'); a('s_mul_i32 s54, s53, 31'); a('v_xor_b32 v11, s54, v11'); a('v_lshlrev_b32 v11, 4, v11')
    a('v_and_b32 v12, 7, v1'); a('v_lshl_add_u32 v191, v12, 9, v11')
    a('s_lshl_b32 s54, s68, 1'); a('s_add_u32 s53, s53, s54'); a('s_lshl_b32 s53, s53, 15'); a('s_lshl_b32 s54, s69, 12'); a('s_add_u32 s53, s53, s54')
    a('s_add_u32 s79, s53, 0x%x' % ZB)
    srd(a, 36, 12, 4096, 's66')
    a('v_add_u32 v10, s67, v14'); a('v_add_u32 v2, -8, v10'); a('v_add_u32 v4, 1016, v10')
    a('v_mov_b32 v12, 0')
    a.wait('k')
    a.vm('global_load_dwordx2 v[150:151], v12, s[28:29] sc1', 'tag')
    a.stamp('k landed')
    for i in range(11):
        a('v_lshlrev_b32 v%d, 16, v%d' % (48 + 2 * i, 16 + i)); a('v_and_b32 v%d, s61, v%d' % (49 + 2 * i, 16 + i))
    for j in range(4):
        for c in range(2):
            a(('v_and_b32 v%d, s61, v%d' if j & 1 else 'v_lshlrev_b32 v%d, 16, v%d') % (70 + 2 * j + c, 44 + 2 * c + (j >> 1)))
    for i in range(8): a(pk('v_pk_mul_f32', 94 + 2 * i, [48 + 2 * i, 76]))
    for t in (1, 2, 3):
        for i in range(8): a(pk('v_pk_fma_f32', 94 + 2 * i, [48 + 2 * (i + t), 76 - 2 * t, 94 + 2 * i]))
    a.wait('v')
    for i in range(8):
        a('v_lshlrev_b32 v%d, 16, v%d' % (78 + 2 * i, 28 + i)); a('v_and_b32 v%d, s61, v%d' % (79 + 2 * i, 28 + i))
    for i in range(8): a(pk('v_pk_mul_f32', 94 + 2 * i, [94 + 2 * i, 78 + 2 * i]))
    for c in range(2):
        for i in range(4): a('v_cvt_pk_bf16_f32 v%d, v%d, v%d' % (112 + 4 * c + i, 94 + 2 * (7 - 2 * i) + c, 94 + 2 * (6 - 2 * i) + c))
    a.vm('buffer_store_dwordx4 v[112:115], v7, s[32:35], 0 offen sc1')
    a.vm('buffer_store_dwordx4 v[116:119], v7, s[32:35], s62 offen sc1')
    a.wait('x')
    for c in range(2):
        for i in range(4): a('v_perm_b32 v%d, v%d, v%d, s%d' % (120 + 4 * c + i, 37 + 2 * i, 36 + 2 * i, 55 + c))
    a.vm('buffer_store_dwordx4 v[120:123], v9, s[32:35], 0 offen sc1')
    a.vm('buffer_store_dwordx4 v[124:127], v9, s[32:35], s62 offen sc1', 'st')
    a.stamp('kv stored')
    a.vm('buffer_load_dwordx2 v[136:137], v2, s[36:39], 0 offen ' + NT)
    a.vm('buffer_load_dwordx4 v[138:141], v10, s[36:39], 0 offen ' + NT)
    a.vm('buffer_load_dwordx2 v[142:143], v4, s[36:39], 0 offen ' + NT)
    a.vm('buffer_load_dwordx4 v[144:147], v10, s[36:39], 0 offen offset:1024 ' + NT, 'K')
    a.wait('xr')
    for r in range(2):
        for i in range(4):
            a('v_lshlrev_b32 v%d, 16, v%d' % (48 + 8 * r + 2 * i, 128 + 4 * r + i)); a('v_and_b32 v%d, s61, v%d' % (49 + 8 * r + 2 * i, 128 + 4 * r + i))
    for r in range(2):
        b = 48 + 8 * r
        a(pk('v_pk_add_f32', 70 + 2 * r, [b, b + 2])); a(pk('v_pk_add_f32', 74 + 2 * r, [b + 4, b + 6]))
    for r in range(2): a(pk('v_pk_add_f32', 70 + 2 * r, [70 + 2 * r, 74 + 2 * r]))
    for r in range(2): a('v_add_f32 v%d, v%d, v%d' % (64 + r, 70 + 2 * r, 71 + 2 * r))
    allreduce(a, [64, 65], [66, 67])
    for r in range(2): a('v_mul_f32 v%d, s60, v%d' % (64 + r, 64 + r))
    for r in range(2):
        for i in range(0, 8, 2): a(pk('v_pk_add_f32', 48 + 8 * r + i, [48 + 8 * r + i, bc(64 + r)], neg=[0, 1]))
    for r in range(2):
        b = 48 + 8 * r
        a(pk('v_pk_mul_f32', 70 + 2 * r, [b, b]))
        for i in (2, 4, 6): a(pk('v_pk_fma_f32', 70 + 2 * r, [b + i, b + i, 70 + 2 * r]))
    for r in range(2): a('v_add_f32 v%d, v%d, v%d' % (68 + r, 70 + 2 * r, 71 + 2 * r))
    allreduce(a, [68, 69], [66, 67])
    for r in range(2): a('v_mul_f32 v%d, s60, v%d' % (68 + r, 68 + r))
    a('v_cvt_pk_bf16_f32 v68, v68, v69'); a('v_and_b32 v69, s61, v68'); a('v_lshlrev_b32 v68, 16, v68')
    for r in range(2): a('v_add_f32 v%d, 0x%x, v%d' % (68 + r, f2u(EPS), 68 + r))
    a('v_cvt_pk_bf16_f32 v68, v68, v69'); a('v_and_b32 v69, s61, v68'); a('v_lshlrev_b32 v68, 16, v68')
    for r in range(2): a('v_sqrt_f32 v%d, v%d' % (68 + r, 68 + r))
    a('v_cvt_pk_bf16_f32 v72, v68, v64'); a('v_cvt_pk_bf16_f32 v73, v69, v65')
    a('s_lshl_b32 s53, s48, 3'); a('s_add_u32 s53, s53, %d' % L_CRED); a('v_mov_b32 v2, s53')
    a('ds_write_b64 v2, v[72:73]')
    a('s_mov_b32 s82, 0')
    a.wait('st', 'lgkmcnt(0)')
    a('Ltag:')
    a('v_readfirstlane_b32 s80, v150'); a('v_readfirstlane_b32 s81, v151')
    a('s_or_b32 s53, s80, s81'); a('s_cbranch_scc1 Ltagok')
    a('global_load_dwordx2 v[150:151], v12, s[28:29] sc1')
    a('s_add_u32 s82, s82, 1'); a('s_cmp_gt_u32 s82, 0x20000'); a('s_cbranch_scc1 Lend')
    a('s_waitcnt vmcnt(0)')
    a('s_branch Ltag')
    a('Ltagok:')
    a.stamp('drained')
    a('s_lshl_b32 s53, s49, 3'); a('s_add_u32 s53, s53, s72')
    signal(a, 's53', True)
    a('s_cmp_lg_u32 s48, 1'); a('s_cbranch_scc1 Lnost')
    a('v_lshlrev_b32 v2, 3, v1'); a('ds_read_b64 v[72:73], v2 offset:%d' % L_CRED)
    a('s_lshl_b32 s53, s2, 6'); a('s_add_u32 s53, s53, 0x%x' % ST0); a('v_mov_b32 v75, s80')
    a('s_mov_b64 exec, 15'); a('s_waitcnt lgkmcnt(0)')
    a('v_mov_b32 v74, v73'); a('v_mov_b32 v73, s80')
    a('buffer_store_dwordx4 v[72:75], v14, s[32:35], s53 offen sc1'); a('s_mov_b64 exec, -1')
    a('Lnost:')
    a('v_and_b32 v11, 3, v5'); a('v_mul_u32_u24 v11, %d, v11' % CS); a('v_and_b32 v12, 12, v5'); a('v_lshl_add_u32 v11, v12, 1, v11')
    a('v_lshl_add_u32 v11, v6, 4, v11'); a('s_lshl_b32 s56, s51, 8'); a('s_add_u32 s57, s56, s71'); a('s_add_u32 s57, s57, %d' % (L_E4 + 8))
    a('v_add_u32 v11, s57, v11')
    a('v_lshlrev_b32 v12, 4, v6'); a('v_lshlrev_b32 v13, 5, v5'); a('v_sub_u32 v12, v12, v13')
    a('s_add_u32 s57, s56, s70'); a('s_add_u32 s57, s57, 480'); a('v_add_u32 v12, s57, v12')
    a('v_lshlrev_b32 v7, 4, v5'); a('v_lshl_add_u32 v7, v6, 2, v7'); a('s_lshl_b32 s56, s51, 10'); a('v_add_u32 v7, s56, v7')
    a('v_lshlrev_b32 v8, 1, v7'); a('v_lshlrev_b32 v9, 3, v7')
    a('s_add_u32 s57, s70, %d' % (2 * (2044 - 768))); a('v_sub_u32 v13, s57, v8')
    a('v_add_u32 v10, s67, v14')
    a('v_lshrrev_b32 v184, 3, v1'); a('v_lshlrev_b32 v184, 10, v184'); a('v_and_b32 v185, 7, v1'); a('v_bfe_u32 v186, v1, 4, 1')
    a('v_lshlrev_b32 v186, 2, v186'); a('v_xor_b32 v185, v185, v186'); a('v_lshl_add_u32 v184, v185, 4, v184')
    a('v_lshrrev_b32 v185, 2, v1'); a('v_mul_u32_u24 v185, 2752, v185'); a('v_and_b32 v186, 3, v1'); a('v_lshl_add_u32 v185, v186, 4, v185')
    a('v_and_b32 v4, 31, v1'); a('v_lshlrev_b32 v4, 3, v4')
    srd(a, 36, 24, 1376 * 1024); srd(a, 40, 22, 512 * 2752); srd(a, 44, 18, 512 * 1024)
    a('s_and_b32 s53, s63, 7'); a('s_lshl_b32 s53, s53, 7'); a('s_lshr_b32 s54, s63, 3'); a('s_lshl_b32 s54, s54, 14'); a('s_add_u32 s73, s53, s54')
    a('s_sub_u32 s74, 1023, s63'); a('s_and_b32 s53, s74, 15'); a('s_mul_i32 s53, s53, %d' % (32 * 2752)); a('s_lshr_b32 s54, s74, 4'); a('s_lshl_b32 s54, s54, 6')
    a('s_add_u32 s75, s53, s54'); a('s_cmp_lt_u32 s74, 688'); a('s_cselect_b32 s75, s75, 0x400000')
    a('s_lshl_b32 s76, s48, 12'); a('s_add_u32 s76, s76, %d' % L_PK)
    a('s_lshl_b32 s77, s48, 14'); a('s_add_u32 s77, s77, %d' % L_S)
    a('s_lshl_b32 s78, s48, 17'); a('s_lshl_b32 s53, s69, 7'); a('s_add_u32 s78, s78, s53')
    a('s_and_b32 s92, s68, 3'); a('s_lshl_b32 s92, s92, 12')
    for i in range(1, 4): a('v_add_u32 v%d, %d, v184' % (248 + i, 7168 * i))
    a('v_lshrrev_b32 v3, 5, v1'); a('v_bfe_u32 v16, v1, 2, 2')
    a('v_lshl_add_u32 v2, v3, 3, v16'); a('v_lshlrev_b32 v2, 7, v2'); a('v_lshrrev_b32 v16, 1, v16'); a('v_lshl_add_u32 v2, v16, 6, v2')
    a('v_bfe_u32 v16, v1, 4, 1'); a('v_lshl_add_u32 v2, v16, 5, v2')
    a('v_and_b32 v16, 3, v1'); a('v_lshl_add_u32 v187, v16, 3, v2')
    a('v_and_b32 v16, 1, v1'); a('v_lshl_add_u32 v2, v16, 4, v2'); a('v_bfe_u32 v16, v1, 1, 1'); a('v_lshl_add_u32 v188, v16, 3, v2')
    a('v_add_u32 v189, s76, v188'); a('v_xor_b32 v190, 64, v189')
    a('v_lshlrev_b32 v186, 3, v6'); a('v_bfe_u32 v2, v1, 2, 2'); a('v_add_u32 v186, v186, v2'); a('v_lshlrev_b32 v186, 6, v186'); a('v_and_b32 v2, 3, v1')
    a('v_lshl_add_u32 v186, v2, 3, v186'); a('v_add_u32 v186, s76, v186')
    a('s_and_b32 s53, s63, 7'); a('s_mul_i32 s53, s53, %d' % (86 * 2048)); a('s_lshr_b32 s54, s63, 3'); a('s_lshl_b32 s54, s54, 11'); a('s_add_u32 s53, s53, s54')
    a('s_add_u32 s53, s53, 0x%x' % W4P); a('s_cmp_lt_u32 s63, 688'); a('s_cselect_b32 s88, s53, 0x%x' % DUMP)
    a('s_lshr_b32 s54, s74, 4'); a('s_lshl_b32 s54, s54, 15'); a('s_and_b32 s55, s74, 15'); a('s_lshl_b32 s55, s55, 10'); a('s_add_u32 s54, s54, s55')
    a('s_add_u32 s54, s54, 0x%x' % W3P); a('s_cmp_lt_u32 s74, 688'); a('s_cselect_b32 s89, s54, 0x%x' % DUMP)
    poll(a, 4, 's72', True)
    a.stamp('X0 seen')
    a('s_add_u32 s56, s70, s67'); a('s_mov_b32 m0, s56'); a('s_add_u32 s57, s66, %d' % KVR)
    a.vm('buffer_load_dwordx4 v10, s[32:35], s57 offen sc1 lds')
    a.vm('buffer_load_dwordx4 v10, s[32:35], s57 offen offset:1024 sc1 lds', 'kv')
    a('s_add_u32 s57, s66, 0x%x' % XT)
    for i in range(4): a.vm('buffer_load_dwordx2 %s, v8, s[32:35], s57 offen offset:%d sc1' % (vr(208 + 2 * i, 2), 512 * i), 'xT')
    bg = []
    bg.append(['s_mov_b32 m0, s76', ('buffer_load_dwordx4 v184, s[36:39], s73 offen ' + NT + ' lds', None)])
    bg.append(['s_add_u32 s53, s76, 1024', 's_mov_b32 m0, s53', 's_add_u32 s54, s73, 8192', ('buffer_load_dwordx4 v184, s[36:39], s54 offen ' + NT + ' lds', None)])
    bg.append(['s_add_u32 s53, s76, 2048', 's_mov_b32 m0, s53', ('buffer_load_dwordx4 v185, s[40:43], s75 offen ' + NT + ' lds', None)])
    bg.append(['s_add_u32 s53, s76, 3072', 's_mov_b32 m0, s53', 's_add_u32 s54, s75, %d' % (16 * 2752), ('buffer_load_dwordx4 v185, s[40:43], s54 offen ' + NT + ' lds', 'pk')])
    def wdma(srdn, label):
        l = []
        for i in range(16):
            it = []
            if i % 4 == 0:
                it += ['s_add_u32 s55, s92, %d' % (1024 * i), 's_and_b32 s55, s55, 0x3fff', 's_add_u32 s53, s77, s55', 's_mov_b32 m0, s53',
                       's_lshl_b32 s55, s55, 3', 's_add_u32 s93, s78, s55']
            it.append(('buffer_load_dwordx4 v%d, s[%d:%d], s93 offen offset:%d lds' % (248 + (i & 3) if i & 3 else 184, srdn, srdn + 3, 1024 * (i & 3)), label))
            l.append(it)
        return l
    w1l = wdma(44, 'w1')
    def stloads(fl=''):
        return [['s_mov_b32 s54, 0x%x' % (ST0 + 4096 * (i >> 2)),
                 ('buffer_load_dwordx4 %s, v9, s[32:35], s54 offen offset:%d %s' % (vr(216 + 4 * i, 4), 2048 * ((i >> 1) & 1) + 16 * (i & 1), fl), 'st0')] for i in range(8)]
    if 'nopack' in EXP: bg = [[x for x in it if not isinstance(x, tuple)] + [('s_nop 0', None)] for it in bg]
    if 'now1' in EXP: w1l = [[x for x in it if not isinstance(x, tuple)] + [('buffer_load_dword v252, v14, s[32:35], 0 offen', 'w1')] for it in w1l]
    bg += w1l[:NST] + stloads() + w1l[NST:]
    def emit_bg(item):
        for x in item:
            if isinstance(x, tuple): a.vm(x[0], x[1])
            else: a(x)
    for _ in range(4): emit_bg(bg.pop(0))
    a('s_mov_b64 exec, 0xffff')
    a.vm('buffer_store_dwordx4 v[156:159], v191, s[32:35], s79 offen sc1')
    a('s_mov_b64 exec, -1')
    a('v_add_u32 v2, s71, v10')
    for i in range(2):
        W = 136 + 6 * i; b = 16 + 12 * i
        for x in range(4): a('v_alignbit_b32 v%d, v%d, v%d, 16' % (b + x, W + x + 1, W + x))
        for x in range(4): a('v_mov_b32 v%d, v%d' % (b + 4 + x, W + x + 1))
        for x in range(4): a('v_alignbit_b32 v%d, v%d, v%d, 16' % (b + 8 + x, W + x + 2, W + x + 1))
        o = L_E4 + 32 + 1024 * i
        a('ds_write_b128 v2, %s offset:%d' % (vr(W + 2, 4), o + 3 * CS))
        a('ds_write_b128 v2, %s offset:%d' % (vr(b, 4), o))
        a('ds_write_b128 v2, %s offset:%d' % (vr(b + 4, 4), o + CS))
        a('ds_write_b128 v2, %s offset:%d' % (vr(b + 8, 4), o + 2 * CS))
    for _ in range(PRE0): emit_bg(bg.pop(0))
    a.wait('kv', 'lgkmcnt(0)')
    a('s_barrier')
    a.stamp('conv go')
    CA = 16; FR = 48
    def A(st, x): return FR + 64 * st + 4 * x
    def B(st, x): return FR + 64 * st + 32 + 4 * x
    def reads(rho):
        st = rho & 1; l = []
        for x in range(8):
            l.append('ds_read_b64 %s, v11 offset:%d' % (vr(A(st, x), 2), 512 * x + 64 * rho))
            l.append('ds_read_b64 %s, v11 offset:%d' % (vr(A(st, x) + 2, 2), 512 * x + 64 * rho + 8))
            l.append('ds_read_b128 %s, v12 offset:%d' % (vr(B(st, x), 4), 512 * (7 - x) + 64 * rho))
        return l
    for r in reads(0): a(r)
    started = set()
    for rho in range(4):
        st = rho & 1
        nxt = reads(rho + 1) if rho < 3 else ['ds_read_b64 %s, v13 offset:%d' % (vr(176 + 2 * i, 2), 512 * (3 - i)) for i in range(4)]
        if rho == 3:
            a.wait('pk')
            nxt = ['ds_read_b64_tr_b16 v[192:193], v189', 'ds_read_b64_tr_b16 v[194:195], v189 offset:512',
                   'ds_read_b64_tr_b16 v[196:197], v190', 'ds_read_b64_tr_b16 v[198:199], v190 offset:512'] + [
                   'ds_read_b64_tr_b16 %s, v186 offset:%d' % (vr(200 + 4 * e + 2 * z, 2), 2048 + 32 * e + 256 * z) for e in range(2) for z in range(2)] + nxt
        issued = 0; cnt = 0
        for x in range(8):
            pairs = [(x, b) for b in range(x + 1) if x + b <= 7] + [(aa, x) for aa in range(x) if aa + x <= 7]
            if rho == 0: a('s_waitcnt lgkmcnt(%d)' % min(15, 3 * (7 - x) + issued))
            elif x == 0: a('s_waitcnt lgkmcnt(0)')
            for (aa, bb) in pairs:
                t = aa + bb
                c = vr(CA + 4 * t, 4) if t in started else '0'
                started.add(t)
                a('v_mfma_f32_16x16x32_bf16 %s, %s, %s, %s' % (vr(CA + 4 * t, 4), vr(A(st, aa), 4), vr(B(st, bb), 4), c))
                cnt += 1
                if (rho > 0 or x >= 3) and issued < len(nxt) and cnt <= 30:
                    a(nxt[issued]); issued += 1
                if (cnt + 36 * rho) % PACE == 0 and bg: emit_bg(bg.pop(0))
                if rho == 3 and cnt == 16: a('s_waitcnt lgkmcnt(4)'); a('s_add_u32 s59, s89, 0x4000')
                if rho == 3 and cnt in (17, 19, 21, 23):
                    z = (cnt - 17) // 2
                    a.vm('buffer_store_dwordx4 %s, v14, s[32:35], %s offen offset:%d sc1' % (vr(192 + 4 * z, 4), ('s88', 's88', 's89', 's59')[z], 1024 if z == 1 else 0))
        while issued < len(nxt): a(nxt[issued]); issued += 1
    a.stamp('conv mfma')
    while bg: emit_bg(bg.pop(0))
    a('s_lshl_b32 s53, s48, 12'); a('s_xor_b32 s54, s53, 0x1000'); a('v_add_u32 v3, s53, v14'); a('v_add_u32 v2, s54, v14')
    a('s_lshl_b32 s56, s65, 16'); a('s_and_b32 s57, s65, 0xffff0000'); a('s_cmp_eq_u32 s52, 0'); a('s_cselect_b32 s65, s56, s57')
    a('s_cmp_eq_u32 s51, 0'); a('s_cbranch_scc1 Lck0')
    for v, lab in ((1, None), (0, 'Lck0')):
        if lab: a(lab + ':')
        snd = 0 if v else 4; keep = 4 - snd
        for i in range(4): a('ds_write_b128 v2, %s offset:%d' % (vr(CA + 4 * (snd + i), 4), L_CRED + 1024 * i))
        for i in range(16): a('v_mov_b32 v%d, v%d' % (48 + i, CA + 4 * keep + i))
        if v: a('s_branch Lck1')
    a('Lck1:')
    a('s_waitcnt lgkmcnt(4)')
    for i in range(4):
        a('v_and_b32 v64, s61, v%d' % (177 + 2 * i)); a('v_lshlrev_b32 v65, 16, v%d' % (177 + 2 * i))
        a('v_and_b32 v66, s61, v%d' % (176 + 2 * i)); a('v_lshlrev_b32 v67, 16, v%d' % (176 + 2 * i))
        for r in range(4): a('v_fmac_f32 v%d, s65, v%d' % (48 + 4 * i + r, 64 + r))
    a('s_waitcnt lgkmcnt(0)'); a('s_barrier')
    for i in range(4): a('ds_read_b128 %s, v3 offset:%d' % (vr(64 + 4 * i, 4), L_CRED + 1024 * i))
    a('s_mov_b32 s82, 0')
    a.wait('st0')
    a('Lst0:')
    a('v_min3_u32 v2, v217, v219, v221'); a('v_max3_u32 v3, v217, v219, v221')
    for i in range(3, 15, 2):
        a('v_min3_u32 v2, v2, v%d, v%d' % (217 + 2 * i, 219 + 2 * i)); a('v_max3_u32 v3, v3, v%d, v%d' % (217 + 2 * i, 219 + 2 * i))
    a('v_min_u32 v2, v2, v247'); a('v_max_u32 v3, v3, v247')
    a('v_cmp_ne_u32 vcc, s80, v2'); a('v_cmp_ne_u32 s[54:55], s80, v3'); a('s_or_b64 vcc, vcc, s[54:55]')
    a('s_cbranch_vccz Lst0ok')
    for it in stloads('sc1'):
        for x in it: a(x[0] if isinstance(x, tuple) else x)
    a('s_add_u32 s82, s82, 1'); a('s_cmp_gt_u32 s82, 0x20000'); a('s_cbranch_scc1 Lend')
    a('s_waitcnt vmcnt(0)')
    a('s_branch Lst0')
    a('Lst0ok:'); a.count(30)
    a.stamp('stats ok')
    a('v_and_b32 v2, 1, v6'); a('v_lshlrev_b32 v2, 18, v2'); a('v_lshrrev_b32 v3, 2, v5'); a('v_lshl_add_u32 v2, v3, 16, v2')
    a('v_and_b32 v3, 3, v5'); a('v_lshl_add_u32 v2, v3, 5, v2'); a('v_lshrrev_b32 v3, 1, v6'); a('v_lshl_add_u32 v2, v3, 4, v2')
    a('s_lshl_b32 s57, s51, 20'); a('s_lshl_b32 s58, s64, 7'); a('s_add_u32 s57, s57, s58'); a('s_add_u32 s57, s57, 0x%x' % HT)
    a('s_add_u32 s58, s57, 0x80000')
    a('s_waitcnt lgkmcnt(0)')
    for i in range(0, 16, 2): a(pk('v_pk_add_f32', 48 + i, [48 + i, 64 + i]))
    for i in range(4):
        xx = 80; mm = 84; rs = 88
        a('v_lshlrev_b32 v%d, 16, v%d' % (xx + 0, 208 + 2 * i)); a('v_and_b32 v%d, s61, v%d' % (xx + 1, 208 + 2 * i))
        a('v_lshlrev_b32 v%d, 16, v%d' % (xx + 2, 209 + 2 * i)); a('v_and_b32 v%d, s61, v%d' % (xx + 3, 209 + 2 * i))
        for r in range(4): a('v_lshlrev_b32 v%d, 16, v%d' % (rs + r, 216 + 8 * i + 2 * r))
        for r in range(4): a('v_and_b32 v%d, s61, v%d' % (mm + r, 216 + 8 * i + 2 * r))
        for r in range(4): a('v_rcp_f32 v%d, v%d' % (rs + r, rs + r))
        for r in (0, 2): a(pk('v_pk_add_f32', mm + r, [xx + r, mm + r], neg=[0, 1]))
        for r in (0, 2): a(pk('v_pk_mul_f32', mm + r, [mm + r, rs + r]))
        for r in (0, 2): a(pk('v_pk_fma_f32', xx + r, [mm + r, 48 + 4 * i + r, xx + r]))
        o = 96 + 2 * i
        a('v_cvt_pk_bf16_f32 v%d, v%d, v%d' % (o, xx, xx + 1)); a('v_cvt_pk_bf16_f32 v%d, v%d, v%d' % (o + 1, xx + 2, xx + 3))
        if i & 1:
            a('v_permlane16_swap_b32 v%d, v%d' % (o - 2, o)); a('v_permlane16_swap_b32 v%d, v%d' % (o - 1, o + 1))
            a.vm('buffer_store_dwordx4 %s, v2, s[32:35], s%d offen sc1' % (vr(o - 2, 4), 57 + (i >> 1)), 'h')
    a.stamp('h stored')
    a('s_lshl_b32 s53, s52, 6'); a('s_add_u32 s53, s53, s77'); a('v_xor_b32 v9, s53, v188'); a('v_xor_b32 v8, 64, v9')
    def wtr(dst):
        for s in range(8):
            for ch in range(2):
                a('ds_read_b64_tr_b16 %s, v%d offset:%d' % (ur(dst + 8 * s + 4 * ch, 2), 8 + ch, 2048 * s))
                a('ds_read_b64_tr_b16 %s, v%d offset:%d' % (ur(dst + 8 * s + 4 * ch + 2, 2), 8 + ch, 2048 * s + 512))
    a.wait('w1')
    wtr(256)
    a('s_lshl_b32 s53, s50, 8'); a('s_lshl_b32 s54, s49, 3'); a('s_add_u32 s79, s53, s54'); a('s_add_u32 s53, s79, 0x%x' % F_H)
    a.wait0()
    a.stamp('h drained')
    signal(a, 's53', False, 8, 2048)
    srd(a, 44, 20, 512 * 1024)
    a('s_waitcnt lgkmcnt(0)')
    w2l = wdma(44, 'w2')
    if 'now2' in EXP: w2l = [[x for x in it if not isinstance(x, tuple)] + [('buffer_load_dword v252, v14, s[32:35], 0 offen', 'w2')] for it in w2l]
    for _ in range(6): emit_bg(w2l.pop(0))
    a('v_mov_b32 v13, v14')
    for slot in range(3):
        th, ch = slot >> 1, slot & 1
        a('s_xor_b32 s53, s48, %d' % ((1 - th) + 2 * (1 - ch))); a('s_mul_i32 s53, s53, 12288'); a('s_add_u32 s53, s53, %d' % (4096 * slot))
        a('v_add_u32 v%d, s53, v14' % (10 + slot))
    a('s_mul_i32 s53, s48, 12288'); a('v_add_u32 v13, s53, v14')
    ONES = 160; CSUM = 144
    for i in range(4): a('v_mov_b32 v%d, 0x3f803f80' % (ONES + i))
    for s in range(8):
        for ch in range(2):
            d = acc(0, 0) if ch == 0 else acc(1, 1)
            a('v_mfma_f32_32x32x16_bf16 %s, %s, %s, %s' % (vr(d, 16), ur(256 + 8 * s + 4 * ch, 4), vr(ONES, 4), vr(d, 16) if s else '0'))
            if ch and s & 1: emit_bg(w2l.pop(0))
    for q in range(4): a('ds_write_b128 v10, %s offset:%d' % (vr(acc(0, 0) + 4 * q, 4), 1024 * q))
    for q in range(4): a('ds_write_b128 v12, %s offset:%d' % (vr(acc(0, 0) + 4 * q, 4), 1024 * q))
    for q in range(4): a('ds_write_b128 v11, %s offset:%d' % (vr(acc(1, 1) + 4 * q, 4), 1024 * q))
    srd(a, 36, 30, 8 * 86 * 2048, '0x%x' % W4P); srd(a, 40, 30, 86 * 16384, '0x%x' % W3P)
    a('s_waitcnt lgkmcnt(0)'); a('s_barrier')
    for _ in range(3): emit_bg(w2l.pop(0))
    red_read_add(a, 80, 0, CSUM)
    while w2l: emit_bg(w2l.pop(0))
    for i in range(4): a('v_add_u32 v%d, %d, v%d' % (10 + i, G_RED, 10 + i))
    a('v_lshlrev_b32 v189, 6, v6'); a('v_and_b32 v189, 64, v189'); a('v_xor_b32 v189, v189, v14')
    a('s_lshl_b32 s56, s48, 14')
    a('s_lshl_b32 s53, s51, 6'); a('s_add_u32 s54, s53, s56'); a('v_xor_b32 v191, s54, v187'); a('v_xor_b32 v190, 64, v191')
    a('s_lshl_b32 s54, s69, 13'); a('s_add_u32 s53, s53, s54'); a('s_lshl_b32 s54, s52, 12'); a('s_add_u32 s53, s53, s54'); a('v_xor_b32 v187, s53, v187')
    a('s_and_b32 s53, s2, 7'); a('s_lshl_b32 s57, s53, 11')
    a('s_lshl_b32 s53, s48, 9'); a('s_add_u32 s53, s53, s57'); a('s_add_u32 s58, s53, 0x%x' % F_H)
    a('v_lshlrev_b32 v4, 3, v1')
    a('s_lshl_b32 s57, s68, 16'); a('s_add_u32 s57, s57, s56'); a('s_add_u32 s57, s57, 0x%x' % HT)
    a('s_barrier')
    a.stamp('X1 poll')
    poll(a, 4, 's58', False, sleep=SLEEP)
    a.count(63); a.stamp('X1 seen')
    hl = []
    for i in range(16):
        it = []
        if i % 4 == 0: it += ['s_add_u32 s53, s56, %d' % (1024 * i), 's_mov_b32 m0, s53', 's_add_u32 s54, s57, %d' % (1024 * i)]
        it.append(('buffer_load_dwordx4 v189, s[32:35], s54 offen offset:%d sc1 lds' % (1024 * (i & 3)), 'h%d' % (i >> 1)))
        hl.append(it)
    for _ in range(8): emit_bg(hl.pop(0))
    wtr(256 + 64)
    BF = 80; ST = 172
    for i in range(4): a('v_mov_b32 v%d, 0' % (ST + i))
    def btr(s):
        for th in range(2):
            a('ds_read_b64_tr_b16 %s, v%d offset:%d' % (vr(BF + 32 * th + 4 * s, 2), 190 + th, 2048 * s))
            a('ds_read_b64_tr_b16 %s, v%d offset:%d' % (vr(BF + 32 * th + 4 * s + 2, 2), 190 + th, 2048 * s + 512))
    a.wait('h0'); btr(0)
    a.stamp('h0 landed')
    for s in range(8):
        for _ in range(2):
            if hl: emit_bg(hl.pop(0))
        if s < 7:
            a.wait('h%d' % (s + 1)); btr(s + 1)
        a('s_waitcnt lgkmcnt(%d)' % (4 if s < 7 else 0))
        for th in range(2):
            for i in range(4):
                b = BF + 32 * th + 4 * s + i
                a('v_dot2c_f32_bf16 v%d, v%d, v%d' % (ST + th, b, ONES)); a('v_dot2c_f32_bf16 v%d, v%d, v%d' % (ST + 2 + th, b, b))
        for ch in range(2):
            a('v_mfma_f32_32x32x16_bf16 %s, %s, %s, %s' % (vr(acc(0, ch), 16), ur(256 + 8 * s + 4 * ch, 4), vr(BF + 4 * s, 4), vr(acc(0, ch), 16) if s else '0'))
    a('v_permlane32_swap_b32 v%d, v%d' % (ST, ST + 1)); a('v_permlane32_swap_b32 v%d, v%d' % (ST + 2, ST + 3))
    a('v_add_f32 v%d, v%d, v%d' % (ST, ST, ST + 1)); a('v_add_f32 v%d, v%d, v%d' % (ST + 1, ST + 2, ST + 3))
    a('s_xor_b32 s53, s51, 1'); a('s_lshl_b32 s53, s53, 8'); a('v_xor_b32 v2, s53, v4')
    a('s_lshl_b32 s53, s48, 9'); a('s_add_u32 s53, s53, %d' % (L_PK)); a('v_add_u32 v2, s53, v2')
    a('ds_write_b64 v2, %s' % vr(ST, 2))
    a('s_waitcnt lgkmcnt(0)'); a('s_barrier')
    a.stamp('g1 half')
    WR3 = [192, 256 + 128, 256 + 192]
    a('s_mul_i32 s73, s69, 11'); a('s_mul_i32 s53, s48, 3'); a('s_add_u32 s73, s73, s53')
    a('s_lshl_b32 s74, s73, 14'); a('s_add_u32 s75, s74, 0x8000'); a('s_cmp_eq_u32 s48, 3'); a('s_cselect_b32 s75, 0x400000, s75')
    w3l = []
    for j in (1, 2, 0):
        for s in range(16):
            it = []
            it.append('s_add_u32 s87, s%d, %d' % (75 if j == 2 else 74, (16384 if j == 1 else 0) + 1024 * s))
            it.append(('buffer_load_dwordx4 %s, v14, s[40:43], s87 offen' % ur(WR3[j] + 4 * s, 4), 'w3'))
            w3l.append(it)
    if 'now3' in EXP: w3l = [['s_nop 0'] for it in w3l]
    a('v_and_b32 v2, 31, v1'); a('s_lshl_b32 s53, s51, 5'); a('v_add_u32 v3, s53, v2'); a('v_lshlrev_b32 v2, 3, v3'); a('v_add_u32 v2, %d, v2' % L_PK)
    for w in range(4): a('ds_read_b64 %s, v2 offset:%d' % (vr(164 + 2 * w, 2), 512 * w))
    HO = 176
    for s in range(2):
        a('ds_read_b64_tr_b16 %s, v187 offset:%d' % (vr(HO + 4 * s, 2), 2048 * s))
        a('ds_read_b64_tr_b16 %s, v187 offset:%d' % (vr(HO + 4 * s + 2, 2), 2048 * s + 512))
    M1 = 164; R1 = 166; RI = 168; CAa = 169; CBb = 170
    sh = ['s_waitcnt lgkmcnt(4)']
    for w in range(1, 4):
        sh.append('v_add_f32 v164, v164, v%d' % (164 + 2 * w)); sh.append('v_add_f32 v165, v165, v%d' % (165 + 2 * w))
    sh += ['v_mul_f32 v164, s60, v164', 'v_mul_f32 v166, v164, v164', 'v_fma_f32 v165, v165, s60, -v166', 'v_max_f32 v165, 0, v165',
           'v_add_f32 v166, 0x%x, v165' % f2u(EPS), 'v_rsq_f32 v166, v166', 's_nop 0',
           'v_mul_f32 v167, v166, v166', 'v_mul_f32 v167, v167, v165', 'v_add_f32 v167, 0x%x, v167' % f2u(EPS), 'v_rsq_f32 v167, v167', 's_nop 0',
           'v_mul_f32 v167, v167, v166', 'v_rcp_f32 v168, v167', 'v_mul_f32 v169, 0x%x, v167' % f2u(C0),
           'v_mul_f32 v170, v167, v167', 'v_mul_f32 v170, v170, v167', 'v_mul_f32 v170, 0x%x, v170' % f2u(C1)]
    sh += ['s_lshr_b32 s53, s69, 1', 's_lshl_b32 s53, s53, 3', 's_lshr_b32 s53, 0xfe02ff01, s53', 's_sext_i32_i8 s53, s53',
           's_lshl_b32 s54, s68, 6', 's_add_u32 s53, s53, s54', 'v_add_u32 v3, s53, v3',
           'v_cmp_gt_u32 vcc, s86, v3', 'v_and_b32 v3, 0x7ff, v3', 'v_cndmask_b32 v171, 0, -2, vcc',
           'v_lshrrev_b32 v7, 5, v3', 'v_lshlrev_b32 v7, 15, v7', 'v_and_b32 v3, 31, v3', 'v_lshl_add_u32 v7, v3, 4, v7',
           'v_lshrrev_b32 v3, 5, v1', 'v_lshl_add_u32 v7, v3, 9, v7',
           's_lshl_b32 s53, s69, 12', 's_lshl_b32 s54, s52, 11', 's_add_u32 s70, s53, s54', 's_add_u32 s71, s70, 0x%x' % ZB]
    a('s_movk_i32 s86, 0x800')
    wr = red_write(0) + red_write(1)
    NW3_G1 = 20
    for s in range(8):
        for ch in range(2):
            a('v_mfma_f32_32x32x16_bf16 %s, %s, %s, %s' % (vr(acc(1, ch), 16), ur(256 + 8 * s + 4 * ch, 4), vr(BF + 32 + 4 * s, 4), vr(acc(1, ch), 16) if s else '0'))
            for _ in range(3):
                if sh: a(sh.pop(0))
            if len(w3l) > 48 - 16: emit_bg(w3l.pop(0))
            if s >= 2 and wr and not (s == 2 and ch == 0) : a(wr.pop(0))
    assert not sh and not wr
    while len(w3l) > 48 - NW3_G1: emit_bg(w3l.pop(0))
    for w in red_write(2): a(w)
    a('s_waitcnt lgkmcnt(0)'); a('s_barrier')
    a.stamp('g1 mfma')
    red_read_add(a, 80)
    o = acc(1, 1)
    for i in range(0, 16, 2): a(pk('v_pk_fma_f32', o + i, [bc(M1), CSUM + i, o + i], neg=[1, 0, 0]))
    for l in gelu_pk(o, CAa, CBb, RI, 80, 16): a(l)
    for i in range(8): a('v_cvt_pk_bf16_f32 v%d, v%d, v%d' % (96 + i, o + 2 * i, o + 2 * i + 1))
    for i in range(8): a('v_min_u32 v%d, v%d, v171' % (96 + i, 96 + i))
    a.vm('buffer_store_dwordx4 v[96:99], v7, s[32:35], s71 offen sc1')
    a.vm('buffer_store_dwordx4 v[100:103], v7, s[32:35], s71 offen offset:1024 sc1', 'z')
    a.stamp('z stored')
    for _ in range(8): emit_bg(w3l.pop(0))
    HF = 144; HN = 160
    for i in range(8):
        a('v_lshlrev_b32 v%d, 16, v%d' % (HF + 2 * i, HO + i)); a('v_and_b32 v%d, s61, v%d' % (HF + 2 * i + 1, HO + i))
    HN = 176
    for i in range(0, 16, 2): a(pk('v_pk_add_f32', HN + i, [HF + i, bc(M1)], neg=[0, 1]))
    for i in range(0, 16, 2): a(pk('v_pk_mul_f32', HN + i, [HN + i, bc(R1)]))
    a('s_lshl_b32 s72, s68, 7'); a('s_lshl_b32 s53, s69, 3'); a('s_add_u32 s79, s72, s53')
    a('s_add_u32 s53, s79, 0x%x' % F_Z)
    a('v_and_b32 v4, 1, v1'); a('v_lshlrev_b32 v4, 3, v4'); a('s_lshl_b32 s54, s48, 4'); a('v_add_u32 v4, s54, v4')
    a('s_add_u32 s58, s72, 0x%x' % F_Z)
    a('s_lshl_b32 s66, s68, 1'); a('s_add_u32 s66, s66, s51')
    a('s_lshl_b32 s56, s66, 15'); a('s_lshl_b32 s54, s48, 13'); a('s_add_u32 s56, s56, s54'); a('s_add_u32 s56, s56, 0x%x' % ZB); a('s_xor_b32 s57, s56, 0x8000')
    a.wait('z')
    a.stamp('z drained')
    signal(a, 's53', True)
    poll(a, 4, 's58', True)
    a.stamp('X2 seen')
    def bitems(nks, dst, lab):
        l = []
        for th in range(2):
            for s in range(nks):
                it = []
                if s % 4 == 0: it.append('s_add_u32 s93, s%d, %d' % (57 - th, 1024 * s))
                it.append(('buffer_load_dwordx4 %s, v14, s[32:35], s93 offen offset:%d sc1' % (ur(dst(nks * th + s), 4), 1024 * (s & 3)), '%s%d' % (lab, nks * th + s)))
                l.append(it)
        return l
    def ksplit(nks, wreg, breg, lab, bgl, nbg, check):
        bl = bitems(nks, breg, lab)
        for _ in range(8): emit_bg(bl.pop(0))
        for th in range(2):
            wr = (red_write(0) + red_write(1)) if th else []
            if th and check:
                assert not bl
                a('s_mov_b32 s82, 0'); a('Lhalo:'); a('v_mov_b32 v2, 0')
            for s in range(nks):
                k = nks * th + s
                a.wait('%s%d' % (lab, k))
                for ch in range(2):
                    a('v_mfma_f32_32x32x16_bf16 %s, %s, %s, %s' % (vr(acc(th, ch), 16), ur(wreg(s, ch), 4), ur(breg(k), 4), vr(acc(th, ch), 16) if s else '0'))
                    if th and check: a('v_max3_u32 v2, v2, v%d, v%d' % (breg(k) + 2 * ch, breg(k) + 2 * ch + 1))
                    if ch == 0 and bl: emit_bg(bl.pop(0))
                    elif not bl and nbg > 0 and (ch or nbg > nks - s): emit_bg(bgl.pop(0)); nbg -= 1
                if wr and s >= 1: a(wr.pop(0))
                if wr and s >= nks - 1: a(wr.pop(0))
        if check:
            a('v_cmp_eq_u32 vcc, -1, v2'); a('s_cbranch_vccz Lhalook')
            for it in bitems(nks, breg, lab)[nks:]:
                for x in it: a(x[0] if isinstance(x, tuple) else x)
            a('s_add_u32 s82, s82, 1'); a('s_cmp_gt_u32 s82, 0x8000'); a('s_cbranch_scc1 Lend')
            a('s_waitcnt vmcnt(0)'); a('s_branch Lhalo')
            a('Lhalook:'); a.count(62)
        for w in red_write(2): a(w)
        a('s_waitcnt lgkmcnt(0)'); a('s_barrier')
    ksplit(8, lambda s, ch: 256 + 64 + 8 * s + 4 * ch, lambda k: 80 + 4 * k, 'b', w3l, 12, True)
    a.stamp('g2 mfma')
    red_read_add(a, 80)
    for i in range(0, 16, 2): a(pk('v_pk_add_f32', o + i, [o + i, HN + i]))
    for i in range(8): a('v_cvt_pk_bf16_f32 v%d, v%d, v%d' % (96 + i, o + 2 * i, o + 2 * i + 1))
    a('s_lshl_b32 s54, s66, 15'); a('s_add_u32 s54, s54, s70'); a('s_add_u32 s54, s54, 0x%x' % X1B)
    a.vm('buffer_store_dwordx4 v[96:99], v14, s[32:35], s54 offen sc1')
    a.vm('buffer_store_dwordx4 v[100:103], v14, s[32:35], s54 offen offset:1024 sc1')
    a('v_mov_b32 v104, 0'); a('v_mov_b32 v105, 0')
    for i in range(8):
        a('v_dot2c_f32_bf16 v104, v%d, v%d' % (96 + i, ONES)); a('v_dot2c_f32_bf16 v105, v%d, v%d' % (96 + i, 96 + i))
    a('v_mov_b32 v106, v104'); a('v_mov_b32 v107, v105')
    a('v_permlane32_swap_b32 v104, v106'); a('v_permlane32_swap_b32 v105, v107')
    a(pk('v_pk_add_f32', 104, [104, 106]))
    a('s_lshl_b32 s54, s68, 13'); a('s_lshr_b32 s55, s70, 2'); a('s_add_u32 s54, s54, s55'); a('s_lshl_b32 s55, s51, 8'); a('s_add_u32 s54, s54, s55')
    a('s_add_u32 s54, s54, 0x%x' % ST1); a('v_lshlrev_b32 v2, 3, v1')
    a('s_mov_b32 exec_hi, 0')
    a.vm('buffer_store_dwordx2 v[104:105], v2, s[32:35], s54 offen sc1', 'x1')
    a('s_mov_b32 exec_hi, -1')
    a.stamp('x1 stored')
    while w3l: emit_bg(w3l.pop(0))
    RES = 128
    for i in range(8):
        a('v_lshlrev_b32 v%d, 16, v%d' % (80 + 2 * i, 96 + i)); a('v_and_b32 v%d, s61, v%d' % (81 + 2 * i, 96 + i))
    for i in range(0, 16, 2): a(pk('v_pk_add_f32', RES + i, [HF + i, 80 + i]))
    a('s_add_u32 s53, s79, 0x%x' % F_X); a('s_add_u32 s58, s72, 0x%x' % F_X)
    a('v_and_b32 v7, 7, v1'); a('v_lshlrev_b32 v7, 3, v7')
    a('s_lshl_b32 s56, s48, 13'); a('s_lshl_b32 s57, s68, 16'); a('s_add_u32 s57, s57, s56'); a('s_add_u32 s57, s57, 0x%x' % X1B)
    a('s_lshl_b32 s59, s68, 13'); a('s_lshl_b32 s54, s48, 11'); a('s_add_u32 s59, s59, s54'); a('s_add_u32 s59, s59, 0x%x' % ST1)
    a('v_lshlrev_b32 v8, 9, v6'); a('v_lshl_add_u32 v8, v5, 4, v8'); a('v_add_u32 v9, 0x8000, v8')
    a.wait('x1')
    a.stamp('x1 drained')
    signal(a, 's53', True, tmp=16)
    poll(a, 7, 's58', True, tmp=16)
    a.stamp('X3 seen')
    for p in range(4): a.vm('buffer_load_dwordx2 %s, v2, s[32:35], s59 offen offset:%d sc1' % (vr(80 + 2 * p, 2), 512 * p), 'sp')
    xl = []
    a('s_mov_b32 s64, s56'); a('s_mov_b32 s65, s57')
    for i in range(16):
        it = []
        if i % 4 == 0:
            oo = 32768 * (i >> 3) + 1024 * (i & 7)
            it += ['s_add_u32 s53, s64, %d' % oo, 's_mov_b32 m0, s53', 's_add_u32 s93, s65, %d' % oo]
        it.append(('buffer_load_dwordx4 v14, s[32:35], s93 offen offset:%d sc1 lds' % (1024 * (i & 3)), 'x%d' % (i >> 3)))
        xl.append(it)
    for _ in range(8): emit_bg(xl.pop(0))
    CS3 = 116
    for s in range(16):
        for j in range(3):
            a('v_mfma_f32_16x16x32_bf16 %s, %s, %s, %s' % (vr(CS3 + 4 * j, 4), ur(WR3[j] + 4 * s, 4), vr(ONES, 4), vr(CS3 + 4 * j, 4) if s else '0'))
    def w4reg(s, ch): return (256 + 8 * s + 4 * ch) if s < 16 else (144 + 8 * (s - 16) + 4 * ch)
    a('s_mul_i32 s74, s69, %d' % (86 * 2048)); a('s_mul_i32 s53, s48, %d' % (22 * 2048)); a('s_add_u32 s74, s74, s53')
    a('s_add_u32 s75, s74, %d' % (20 * 2048)); a('s_cmp_eq_u32 s48, 3'); a('s_cselect_b32 s75, 0x400000, s75')
    a('s_lshl_b32 s53, s52, 10'); a('v_add_u32 v3, s53, v14'); a('v_xor_b32 v0, 0x400, v3')
    w4l = []
    for s in range(22):
        for ch in range(2):
            it = []
            if s % 2 == 0 and ch == 0: it.append('s_add_u32 s87, s74, %d' % (2048 * s) if s < 20 else 's_mov_b32 s87, s75')
            it.append(('buffer_load_dwordx4 %s, v%d, s[36:39], s87 offen offset:%d' % (ur(w4reg(s, ch), 4), 3 if ch else 0, 2048 * (s & 1)), 'w4'))
            w4l.append(it)
    if 'now4' in EXP: w4l = []
    srd(a, 44, 30, 64 * HTH, '0x%x' % HB)
    a('s_lshl_b32 s53, s68, 1'); a('s_mul_i32 s53, s53, %d' % HTH); a('s_lshl_b32 s54, s73, 10'); a('s_add_u32 s56, s53, s54')
    a('s_add_u32 s57, s56, %d' % HTH)
    a('s_cmp_eq_u32 s48, 3'); a('s_cselect_b32 s58, 0x%x, s56' % (64 * HTH)); a('s_cselect_b32 s59, 0x%x, s57' % (64 * HTH))
    a('s_lshl_b32 s53, s48, 3'); a('s_add_u32 s53, s53, %d' % G_ST); a('v_lshlrev_b32 v7, 5, v1'); a('v_add_u32 v7, s53, v7')
    a.wait('sp')
    a(pk('v_pk_add_f32', 80, [80, 82])); a(pk('v_pk_add_f32', 84, [84, 86])); a(pk('v_pk_add_f32', 80, [80, 84]))
    a('ds_write_b64 v7, v[80:81]')
    a('v_lshlrev_b32 v7, 5, v1'); a('v_add_u32 v7, %d, v7' % G_ST)
    a.wait('x0', 'lgkmcnt(0)')
    a('s_barrier')
    a.stamp('x0 landed')
    A3 = 16; BR = 40; TMP = 72; PK = 84; STT = 96
    a('ds_read_b128 v[72:75], v7'); a('ds_read_b128 v[76:79], v7 offset:16')
    def rd(k):
        tt, s = k >> 4, k & 15
        return 'ds_read_b128 %s, v%d offset:%d' % (vr(BR + 4 * (k & 7), 4), 8 + (tt >> 1), 2048 * s + 256 * (tt & 1))
    for k in range(6): a(rd(k))
    a('s_lshl_b32 s53, s48, 10'); a('s_add_u32 s53, s53, %d' % G_ST2); a('v_add_u32 v7, s53, v14'); a('v_lshl_add_u32 v2, v5, 4, s53')
    a('s_waitcnt lgkmcnt(6)')
    st = ['v_add_f32 v72, v72, v74', 'v_add_f32 v73, v73, v75', 'v_add_f32 v76, v76, v78', 'v_add_f32 v77, v77, v79',
          'v_add_f32 v72, v72, v76', 'v_add_f32 v73, v73, v77',
          'v_mul_f32 v72, s60, v72', 'v_mul_f32 v74, v72, v72', 'v_fma_f32 v73, v73, s60, -v74', 'v_max_f32 v73, 0, v73',
          'v_add_f32 v73, 0x%x, v73' % f2u(EPS), 'v_rsq_f32 v76, v73', 'v_sqrt_f32 v75, v73', 'v_mul_f32 v73, 0x%x, v76' % f2u(C0),
          'v_mul_f32 v74, v76, v76', 'v_mul_f32 v74, v74, v76', 'v_mul_f32 v74, 0x%x, v74' % f2u(C1),
          ('ds', 'ds_write_b128 v7, v[72:75]'), ('dswait', 0)] + [('ds', 'ds_read_b128 %s, v2 offset:%d' % (vr(STT + 4 * tt, 4), 256 * tt)) for tt in range(4)]
    def epi(tt, packed):
        o3 = A3 + 12 * (tt & 1); m = STT + 4 * tt
        if packed:
            l = [pk('v_pk_fma_f32', o3 + i, [bc(m), CS3 + i, o3 + i], neg=[1, 0, 0]) for i in range(0, 12, 2)]
            l += gelu_pk(o3, m + 1, m + 2, m + 3, TMP, 12)
        else:
            l = ['v_fma_f32 v%d, -v%d, v%d, v%d' % (o3 + i, m, CS3 + i, o3 + i) for i in range(12)]
            l += gelu_plain(o3, m + 1, m + 2, m + 3, TMP, 12)
        for j in range(3):
            for i in range(2): l.append('v_cvt_pk_bf16_f32 v%d, v%d, v%d' % (PK + 4 * j + 2 * (tt & 1) + i, o3 + 4 * j + 2 * i, o3 + 4 * j + 2 * i + 1))
        if tt & 1:
            for j in range(3):
                l.append('v_permlane16_swap_b32 v%d, v%d' % (PK + 4 * j, PK + 4 * j + 2)); l.append('v_permlane16_swap_b32 v%d, v%d' % (PK + 4 * j + 1, PK + 4 * j + 3))
            for j in range(3):
                l.append(('vm', 'buffer_store_dwordx4 %s, v14, s[44:47], s%d offen offset:%d sc1' % (vr(PK + 4 * j, 4), (58 if j == 2 else 56) + (tt >> 1), 1024 * j)))
        return l
    pend = st
    lg = [('r', k) for k in range(6)]
    def emit_p(x):
        if isinstance(x, str): a(x)
        elif x[0] == 'vm': a.vm(x[1], 'H')
        elif x[0] == 'ds': a(x[1]); lg.append(('o', 0))
        elif x[0] == 'dswait': a('s_waitcnt lgkmcnt(0)'); del lg[:]
    for k in range(64):
        tt, s = k >> 4, k & 15
        if k == 26:
            a.wait('x1'); a('s_barrier')
        if k + 6 < 64: a(rd(k + 6)); lg.append(('r', k + 6))
        if ('r', k) in lg:
            idx = lg.index(('r', k)); a('s_waitcnt lgkmcnt(%d)' % (len(lg) - 1 - idx)); del lg[:idx + 1]
        for j in range(3):
            o3 = A3 + 12 * (tt & 1) + 4 * j
            a('v_mfma_f32_16x16x32_bf16 %s, %s, %s, %s' % (vr(o3, 4), ur(WR3[j] + 4 * s, 4), vr(BR + 4 * (k & 7), 4), vr(o3, 4) if s else '0'))
            if s >= 1 or tt == 0:
                for _ in range(3 if j < 2 else 2):
                    if pend: emit_p(pend.pop(0))
            if j == 2 and xl: emit_bg(xl.pop(0))
            elif j == 2 and len(w4l) > W4TAIL and (k - 8) * (44 - W4TAIL) >= (44 - len(w4l)) * (W4END - 8): emit_bg(w4l.pop(0))
        if s == 15:
            while pend: emit_p(pend.pop(0))
            pend = epi(tt, tt == 3)
            if 'nogelu' in EXP and tt < 3: pend = [x for x in pend if not isinstance(x, str)]
    a.stamp('g3 mfma')
    while pend: emit_p(pend.pop(0))
    a.stamp('H stored')
    while w4l: emit_bg(w4l.pop(0))
    a('s_add_u32 s53, s79, 0x%x' % F_F); a('s_add_u32 s58, s72, 0x%x' % F_F)
    a('s_mul_i32 s56, s66, %d' % HTH); a('s_xor_b32 s54, s66, 1'); a('s_mul_i32 s57, s54, %d' % HTH)
    a('s_mul_i32 s54, s48, %d' % (22 * 1024)); a('s_add_u32 s54, s54, 0x%x' % HB); a('s_add_u32 s56, s56, s54'); a('s_add_u32 s57, s57, s54')
    srd(a, 40, 26, 2 * MB)
    a('v_and_b32 v7, 31, v1'); a('v_lshlrev_b32 v7, 10, v7'); a('v_lshrrev_b32 v8, 5, v1'); a('v_lshl_add_u32 v7, v8, 4, v7')
    a('s_lshl_b32 s59, s66, 15'); a('s_lshr_b32 s54, s70, 5'); a('s_add_u32 s59, s59, s54')
    a.wait('H')
    a.stamp('H drained')
    signal(a, 's53', True, tmp=16)
    poll(a, 4, 's58', True, tmp=16)
    a.stamp('X4 seen')
    def b4(k): return (256 + 128 + 4 * k) if k < 32 else (192 + 4 * (k - 32))
    ksplit(22, w4reg, b4, 'f', None, 0, False)
    a.stamp('g4 mfma')
    red_read_add(a, 80)
    for i in range(0, 16, 2): a(pk('v_pk_add_f32', o + i, [o + i, RES + i]))
    for i in range(8): a('v_cvt_pk_bf16_f32 v%d, v%d, v%d' % (96 + i, o + 2 * i, o + 2 * i + 1))
    a.vm('buffer_store_dwordx4 v[96:99], v7, s[40:43], s59 offen')
    a.vm('buffer_store_dwordx4 v[100:103], v7, s[40:43], s59 offen offset:32')
    if stamp:
        a.stamp('out stored'); a.wait0(); a.stamp('end')
        a('s_lshl_b32 s53, s63, 8'); a('s_add_u32 s53, s53, 0x%x' % STAMPS); a('v_lshlrev_b32 v2, 2, v1')
        a('buffer_store_dword v15, v2, s[32:35], s53 offen')
    a('Lend:')
    a('s_endpgm')
    body = a.a.finish()
    print('instrs', len(a.a.L), 'nops', a.a.nops, file=sys.stderr)
    hdr = open('sequential_preLN__ssm_conv_h3__mixer_s_mlp__prompt.s.ref').read().split('; Override')[0]
    out = hdr + '; @launch grid=(256,1,1) block=(256,1,1) lds=%d\n' % LDS_BYTES
    if stamp: out += '; stamps: ' + '|'.join(a.names) + '\n'
    out += '.amdgcn_target "amdgcn-amd-amdhsa--gfx950"\n.text\n.globl %s\n.p2align 8\n.type %s,@function\n%s:\n' % (NAME, NAME, NAME)
    out += body
    out += '.fill 4096, 4, 0xbf800000\n'
    out += '''.section .rodata,"a"
.p2align 6
.amdhsa_kernel %s
  .amdhsa_next_free_vgpr 512
  .amdhsa_next_free_sgpr 96
  .amdhsa_accum_offset 256
  .amdhsa_group_segment_fixed_size 0
  .amdhsa_kernarg_size 112
  .amdhsa_user_sgpr_count 2
  .amdhsa_user_sgpr_kernarg_segment_ptr 1
  .amdhsa_system_sgpr_workgroup_id_x 1
  .amdhsa_float_denorm_mode_32 3
.end_amdhsa_kernel
''' % NAME
    return out

if __name__ == '__main__':
    open(sys.argv[1], 'w').write(build(len(sys.argv) > 2))
```

```python
import sys, struct
from asmlib import *

MB = 1 << 20
KVR = 0; XT = 2 * MB; HT = 4 * MB; ZB = 6 * MB; X1B = 8 * MB; HB = 10 * MB
W3P = 16 * MB; W4P = W3P + 1408 * 1024
ST0 = 20 * MB
ST1 = ST0 + 65536
FL = ST1 + 262144
FGL = 0x8000
F_A = FL; F_Z = FL + 0x1000; F_X = FL + 0x2000; F_F = FL + 0x3000
F_H = FL + 0x10000; F_P = FL + 0x14000
STAMPS = 64 * MB
DUMP = 0x10000000
HTH = 176 * 512
EPS = 1e-5
def f2u(f): return struct.unpack('<I', struct.pack('<f', f))[0]
C0 = -2.0 * 0.7978845608028654 * 1.4426950408889634
C1 = C0 * 0.044715
NAME = 'sequential_preLN__ssm_conv_h3__mixer_s_mlp__prompt_kernel'

CS = 4160
L_E4 = 0; L_KV = 33280; L_CRED = L_KV + 2 * 4608
L_S = 65536
L_PK = 131072
G_RED = 65536; G_ST = G_RED + 49152; G_ST2 = G_ST + 2048
LDS_BYTES = 147456

TAG = 's[80:81]'
import os
NT = os.environ.get('NT', 'nt')
PACE = int(os.environ.get('PACE', '6'))
W4TAIL = int(os.environ.get('W4TAIL', '4'))
W4END = int(os.environ.get('W4END', '60'))
EXP = os.environ.get('EXP', '').split(',')
SLEEP = int(os.environ.get('SLEEP', '4'))
SPIN = os.environ.get('SPIN', '').split(',') if os.environ.get('SPIN') else None
PRE0 = int(os.environ.get('PRE0', '2'))
NST = int(os.environ.get('NST', '16'))
class G:
    def __init__(self, stamp=False):
        self.a = Asm(); self.stamp_on = stamp; self.q = []; self.nst = 0; self.names = []
    def __call__(self, t): self.a(t)
    def vm(self, text, label=None):
        self.a(text); self.q.append(label)
    def wait(self, label, extra=''):
        if label not in self.q:
            if extra: self.a('s_waitcnt ' + extra)
            return
        idx = max(i for i, l in enumerate(self.q) if l == label)
        n = len(self.q) - 1 - idx
        assert n < 64
        self.a('s_waitcnt vmcnt(%d) %s' % (n, extra)); self.q = self.q[idx + 1:]
    def wait0(self, extra=''):
        self.a('s_waitcnt vmcnt(0) %s' % extra); self.q = []
    def count(self, lane):
        if self.stamp_on: self.a('v_writelane_b32 v15, s82, %d' % lane)
    def stamp(self, name):
        if SPIN and name in SPIN:
            self.a('s_memrealtime s[90:91]'); self.a('s_waitcnt lgkmcnt(0)'); self.a('s_mov_b32 s%d, s90' % (96 + SPIN.index(name)))
        if self.stamp_on:
            self.a('s_memrealtime s[90:91]'); self.a('s_memtime s[94:95]'); self.a('s_waitcnt lgkmcnt(0)'); self.a('v_writelane_b32 v15, s90, %d' % self.nst)
            self.a('v_writelane_b32 v15, s94, %d' % (32 + self.nst)); assert self.nst < 30
            self.names.append(name); self.nst += 1

def srd(a, d, p, size, off=None):
    if off is None:
        a('s_mov_b32 s%d, s%d' % (d, p)); a('s_mov_b32 s%d, s%d' % (d + 1, p + 1))
    else:
        a('s_add_u32 s%d, s%d, %s' % (d, p, off)); a('s_addc_u32 s%d, s%d, 0' % (d + 1, p + 1))
    a('s_mov_b32 s%d, 0x%x' % (d + 2, size)); a('s_mov_b32 s%d, 0x20000' % (d + 3))

def allreduce(a, regs, tmps):
    for m in ('quad_perm:[1,0,3,2]', 'quad_perm:[2,3,0,1]', 'row_half_mirror', 'row_mirror'):
        for r in regs: a('v_add_f32_dpp v%d, v%d, v%d %s row_mask:0xf bank_mask:0xf' % (r, r, r, m))
    for sw in ('v_permlane16_swap_b32', 'v_permlane32_swap_b32'):
        for r, t in zip(regs, tmps): a('v_mov_b32 v%d, v%d' % (t, r))
        for r, t in zip(regs, tmps): a('%s v%d, v%d' % (sw, r, t))
        for r, t in zip(regs, tmps): a('v_add_f32 v%d, v%d, v%d' % (r, r, t))

npoll = [0]
def poll(a, vaddr, soff, dual, start='0', sleep=0, tmp=16):
    n = npoll[0]; npoll[0] += 1
    a('s_mov_b32 s82, %s' % start)
    a('Lpoll%d:' % n)
    if dual:
        a('s_cmp_lt_u32 s82, 32'); a('s_cselect_b32 s83, 0, 0x%x' % FGL); a('s_add_u32 s83, s83, %s' % soff)
        so = 's83'
    else: so = soff
    a('buffer_load_dwordx2 %s, v%d, s[32:35], %s offen sc1' % (vr(tmp, 2), vaddr, so))
    a('s_add_u32 s82, s82, 1'); a('s_cmp_gt_u32 s82, 0x20000'); a('s_cbranch_scc1 Lend')
    a.wait0()
    a('v_cmp_ne_u64 vcc, %s, %s' % (TAG, vr(tmp, 2)))
    if sleep:
        a('s_cbranch_vccz Lpolld%d' % n); a('s_sleep %d' % sleep); a('s_branch Lpoll%d' % n); a('Lpolld%d:' % n)
    else: a('s_cbranch_vccnz Lpoll%d' % n)

nsig = [0]
def signal(a, soff, dual, nrep=1, repstride=0, tmp=16):
    n = nsig[0]; nsig[0] += 1
    a('s_barrier')
    a('s_cmp_lg_u32 s48, 0'); a('s_cbranch_scc1 Lsig%d' % n)
    a('v_mov_b32 v%d, s80' % tmp); a('v_mov_b32 v%d, s81' % (tmp + 1))
    a('v_mul_u32_u24 v%d, %d, v1' % (tmp + 2, repstride))
    a('s_mov_b64 exec, %d' % ((1 << nrep) - 1))
    if dual:
        a('buffer_store_dwordx2 %s, v%d, s[32:35], %s offen' % (vr(tmp, 2), tmp + 2, soff))
        a('s_add_u32 s83, %s, 0x%x' % (soff, FGL))
        a('buffer_store_dwordx2 %s, v%d, s[32:35], s83 offen sc1' % (vr(tmp, 2), tmp + 2))
    else:
        a('buffer_store_dwordx2 %s, v%d, s[32:35], %s offen sc1' % (vr(tmp, 2), tmp + 2, soff))
    a('s_mov_b64 exec, -1')
    a('Lsig%d:' % n)

ACC = 16
def acc(th, ch): return ACC + 32 * th + 16 * ch
def red_write(slot, off=0):
    th, ch = slot >> 1, slot & 1
    return ['ds_write_b128 v%d, %s offset:%d' % (10 + slot, vr(acc(th, ch) + 4 * q, 4), off + 1024 * q) for q in range(4)]
def red_read_add(a, tmp, off=0, dst=None):
    for i in range(12): a('ds_read_b128 %s, v13 offset:%d' % (vr(tmp + 4 * i, 4), off + 1024 * i))
    o = acc(1, 1)
    for i in range(12):
        a('s_waitcnt lgkmcnt(%d)' % (11 - i))
        d = dst if (dst is not None and i >= 8) else o
        for r in (0, 2): a('v_pk_add_f32 %s, %s, %s' % (vr(d + 4 * (i & 3) + r, 2), vr(o + 4 * (i & 3) + r, 2), vr(tmp + 4 * i + r, 2)))

def gelu_plain(t, ca, cb, ri, tmp, n):
    l = []
    for i in range(n): l.append('v_mul_f32 v%d, v%d, v%d' % (tmp + i, t + i, t + i))
    for i in range(n): l.append('v_fma_f32 v%d, v%d, v%d, v%d' % (tmp + i, tmp + i, cb, ca))
    for i in range(n): l.append('v_mul_f32 v%d, v%d, v%d' % (tmp + i, tmp + i, t + i))
    for i in range(n): l.append('v_exp_f32 v%d, v%d' % (tmp + i, tmp + i))
    for i in range(n): l.append('v_fma_f32 v%d, v%d, v%d, v%d' % (tmp + i, tmp + i, ri, ri))
    for i in range(n): l.append('v_rcp_f32 v%d, v%d' % (tmp + i, tmp + i))
    for i in range(n): l.append('v_mul_f32 v%d, v%d, v%d' % (t + i, t + i, tmp + i))
    return l
def bc(r):
    return vr(r & ~1, 2), r & 1
def pk(op, d, srcs, neg=None):
    names = []; lo = []; hi = []
    for s in srcs:
        if isinstance(s, tuple): names.append(s[0]); lo.append(s[1]); hi.append(s[1])
        else: names.append(vr(s, 2)); lo.append(0); hi.append(1)
    t = '%s %s, %s' % (op, vr(d, 2), ', '.join(names))
    if lo != [0] * len(lo) or hi != [1] * len(hi):
        t += ' op_sel:[%s] op_sel_hi:[%s]' % (','.join(map(str, lo)), ','.join(map(str, hi)))
    if neg: t += ' neg_lo:[%s] neg_hi:[%s]' % (','.join(map(str, neg)), ','.join(map(str, neg)))
    return t
def gelu_pk(t, ca, cb, ri, tmp, n):
    l = []
    for i in range(0, n, 2): l.append(pk('v_pk_mul_f32', tmp + i, [t + i, t + i]))
    for i in range(0, n, 2): l.append(pk('v_pk_fma_f32', tmp + i, [tmp + i, bc(cb), bc(ca)]))
    for i in range(0, n, 2): l.append(pk('v_pk_mul_f32', tmp + i, [tmp + i, t + i]))
    for i in range(n): l.append('v_exp_f32 v%d, v%d' % (tmp + i, tmp + i))
    for i in range(0, n, 2): l.append(pk('v_pk_fma_f32', tmp + i, [tmp + i, bc(ri), bc(ri)]))
    for i in range(n): l.append('v_rcp_f32 v%d, v%d' % (tmp + i, tmp + i))
    for i in range(0, n, 2): l.append(pk('v_pk_mul_f32', t + i, [t + i, tmp + i]))
    return l

def build(stamp=False):
    npoll[0] = 0; nsig[0] = 0
    a = G(stamp)
    a('s_cmp_ge_u32 s2, 256'); a('s_cbranch_scc1 Lend')
    a('s_load_dwordx16 s[4:19], s[0:1], 0')
    a('s_load_dwordx8 s[20:27], s[0:1], 64')
    a('s_load_dwordx4 s[28:31], s[0:1], 96')
    a('s_memrealtime s[80:81]')
    a('s_getpc_b64 s[84:85]')
    a('v_lshrrev_b32 v1, 6, v0'); a('v_readfirstlane_b32 s48, v1'); a('v_and_b32 v1, 63, v0')
    if stamp: a('v_mov_b32 v15, 0')
    a('s_lshr_b32 s49, s2, 3'); a('s_and_b32 s50, s2, 7')
    a('s_and_b32 s51, s48, 1'); a('s_lshr_b32 s52, s48, 1')
    a('s_lshl_b32 s53, s49, 6'); a('s_lshl_b32 s54, s51, 5'); a('s_add_u32 s53, s53, s54')
    a('v_and_b32 v5, 15, v1'); a('v_lshrrev_b32 v6, 4, v1')
    a('v_lshl_add_u32 v2, v6, 3, s53')
    a('s_lshl_b32 s53, s50, 5'); a('s_lshl_b32 s54, s52, 4'); a('s_add_u32 s53, s53, s54'); a('v_add_u32 v3, s53, v5')
    a('v_lshlrev_b32 v4, 10, v2'); a('v_lshl_add_u32 v4, v3, 2, v4')
    a('v_add_u32 v7, 0xfffff400, v4'); a('v_lshlrev_b32 v8, 4, v3')
    a('s_movk_i32 s62, 0x1000'); a('s_mov_b32 s60, 0x%x' % f2u(1.0 / 512)); a('s_mov_b32 s61, 0xffff0000')
    a('s_waitcnt lgkmcnt(0)')
    a.stamp('start')
    srd(a, 36, 6, 2 * MB)
    a('s_or_b32 s53, s2, s48'); a('s_cmp_lg_u32 s53, 0'); a('s_cbranch_scc1 Lnotag')
    a('v_mov_b32 v10, s80'); a('v_mov_b32 v11, s81'); a('v_mov_b32 v12, 0'); a('s_mov_b64 exec, 1')
    a('global_store_dwordx2 v12, v[10:11], s[28:29] sc1'); a('s_mov_b64 exec, -1')
    a('Lnotag:')
    for i in range(3): a.vm('buffer_load_dword v%d, v7, s[36:39], 0 offen offset:%d %s' % (16 + i, 1024 * i, NT))
    for i in range(8): a.vm('buffer_load_dword v%d, v4, s[36:39], %s offen offset:%d %s' % (19 + i, 's62' if i >= 4 else '0', 1024 * (i & 3), NT))
    a.vm('global_load_dwordx4 v[44:47], v8, s[10:11]', 'k')
    srd(a, 40, 8, 2 * MB)
    for i in range(8): a.vm('buffer_load_dword v%d, v4, s[40:43], %s offen offset:%d %s' % (28 + i, 's62' if i >= 4 else '0', 1024 * (i & 3), NT), 'v')
    srd(a, 44, 4, 2 * MB)
    for i in range(8): a.vm('buffer_load_dword v%d, v4, s[44:47], %s offen offset:%d %s' % (36 + i, 's62' if i >= 4 else '0', 1024 * (i & 3), NT), 'x')
    srd(a, 32, 30, 0x10000000)
    a('v_lshlrev_b32 v14, 4, v1')
    a('s_lshl_b32 s63, s2, 2'); a('s_add_u32 s63, s63, s48')
    a('s_lshl_b32 s53, s63, 11'); a('v_add_u32 v11, s53, v14')
    a.vm('global_load_dwordx4 v[128:131], v11, s[4:5] ' + NT); a.vm('global_load_dwordx4 v[132:135], v11, s[4:5] offset:1024 ' + NT, 'xr')
    a('s_lshl_b32 s53, s49, 10'); a('s_lshl_b32 s54, s48, 8'); a('s_add_u32 s53, s53, s54')
    a('v_and_b32 v11, 1, v1'); a('v_lshlrev_b32 v11, 7, v11'); a('v_add_u32 v11, s53, v11')
    a.vm('global_load_dword v148, v11, s[84:85]')
    a('v_and_b32 v11, 3, v1'); a('v_lshlrev_b32 v11, 12, v11'); a('v_bfe_u32 v12, v1, 2, 2'); a('v_lshl_add_u32 v11, v12, 7, v11')
    a('s_lshl_b32 s53, s50, 9'); a('s_add_u32 s72, s53, 0x%x' % F_A)
    a.vm('buffer_load_dword v149, v11, s[32:35], s72 offen sc1')
    a('s_lshl_b32 s64, s50, 6'); a('s_lshl_b32 s53, s49, 1'); a('s_add_u32 s64, s64, s53')
    a('s_lshl_b32 s53, s64, 1'); a('s_load_dword s65, s[14:15], s53')
    a('s_add_u32 s64, s64, s52'); a('s_lshl_b32 s66, s64, 12')
    a('s_lshl_b32 s68, s50, 2'); a('s_and_b32 s53, s49, 3'); a('s_add_u32 s68, s68, s53')
    a('s_lshr_b32 s69, s2, 5')
    a('s_lshl_b32 s67, s51, 11')
    a('v_lshlrev_b32 v7, 13, v3'); a('v_lshlrev_b32 v8, 1, v2')
    a('v_add_u32 v9, v7, v8'); a('v_add_u32 v9, 0x%x, v9' % XT)
    a('v_sub_u32 v7, v7, v8'); a('v_add_u32 v7, %d, v7' % (4080 + KVR))
    a('s_mov_b32 s55, 0x05040100'); a('s_mov_b32 s56, 0x07060302')
    for i in range(4): a('v_mov_b32 v%d, 0' % (152 + i))
    a('s_mul_i32 s70, s52, 4608'); a('s_add_u32 s70, s70, %d' % L_KV)
    a('s_mul_i32 s71, s52, %d' % (4 * CS))
    a('v_and_b32 v11, 31, v1'); a('v_lshl_add_u32 v11, v11, 4, s70')
    a('ds_write_b128 v11, v[152:155] offset:4096')
    a('v_and_b32 v11, 1, v1'); a('v_lshlrev_b32 v11, 4, v11'); a('v_bfe_u32 v12, v1, 1, 2'); a('v_mul_u32_u24 v12, %d, v12' % CS)
    a('v_add3_u32 v11, v11, v12, s71')
    a('ds_write_b128 v11, v[152:155] offset:%d' % L_E4)
    for i in range(4): a('v_mov_b32 v%d, -1' % (156 + i))
    a('s_bfe_u32 s53, s69, 0x10001')
    a('v_bfe_u32 v11, v1, 3, 1'); a('s_mul_i32 s54, s53, 31'); a('v_xor_b32 v11, s54, v11'); a('v_lshlrev_b32 v11, 4, v11')
    a('v_and_b32 v12, 7, v1'); a('v_lshl_add_u32 v191, v12, 9, v11')
    a('s_lshl_b32 s54, s68, 1'); a('s_add_u32 s53, s53, s54'); a('s_lshl_b32 s53, s53, 15'); a('s_lshl_b32 s54, s69, 12'); a('s_add_u32 s53, s53, s54')
    a('s_add_u32 s79, s53, 0x%x' % ZB)
    srd(a, 36, 12, 4096, 's66')
    a('v_add_u32 v10, s67, v14'); a('v_add_u32 v2, -8, v10'); a('v_add_u32 v4, 1016, v10')
    a('v_mov_b32 v12, 0')
    a.wait('k')
    a.vm('global_load_dwordx2 v[150:151], v12, s[28:29] sc1', 'tag')
    a.stamp('k landed')
    for i in range(11):
        a('v_lshlrev_b32 v%d, 16, v%d' % (48 + 2 * i, 16 + i)); a('v_and_b32 v%d, s61, v%d' % (49 + 2 * i, 16 + i))
    for j in range(4):
        for c in range(2):
            a(('v_and_b32 v%d, s61, v%d' if j & 1 else 'v_lshlrev_b32 v%d, 16, v%d') % (70 + 2 * j + c, 44 + 2 * c + (j >> 1)))
    for i in range(8): a(pk('v_pk_mul_f32', 94 + 2 * i, [48 + 2 * i, 76]))
    for t in (1, 2, 3):
        for i in range(8): a(pk('v_pk_fma_f32', 94 + 2 * i, [48 + 2 * (i + t), 76 - 2 * t, 94 + 2 * i]))
    a.wait('v')
    for i in range(8):
        a('v_lshlrev_b32 v%d, 16, v%d' % (78 + 2 * i, 28 + i)); a('v_and_b32 v%d, s61, v%d' % (79 + 2 * i, 28 + i))
    for i in range(8): a(pk('v_pk_mul_f32', 94 + 2 * i, [94 + 2 * i, 78 + 2 * i]))
    for c in range(2):
        for i in range(4): a('v_cvt_pk_bf16_f32 v%d, v%d, v%d' % (112 + 4 * c + i, 94 + 2 * (7 - 2 * i) + c, 94 + 2 * (6 - 2 * i) + c))
    a.vm('buffer_store_dwordx4 v[112:115], v7, s[32:35], 0 offen sc1')
    a.vm('buffer_store_dwordx4 v[116:119], v7, s[32:35], s62 offen sc1')
    a.wait('x')
    for c in range(2):
        for i in range(4): a('v_perm_b32 v%d, v%d, v%d, s%d' % (120 + 4 * c + i, 37 + 2 * i, 36 + 2 * i, 55 + c))
    a.vm('buffer_store_dwordx4 v[120:123], v9, s[32:35], 0 offen sc1')
    a.vm('buffer_store_dwordx4 v[124:127], v9, s[32:35], s62 offen sc1', 'st')
    a.stamp('kv stored')
    a.vm('buffer_load_dwordx2 v[136:137], v2, s[36:39], 0 offen ' + NT)
    a.vm('buffer_load_dwordx4 v[138:141], v10, s[36:39], 0 offen ' + NT)
    a.vm('buffer_load_dwordx2 v[142:143], v4, s[36:39], 0 offen ' + NT)
    a.vm('buffer_load_dwordx4 v[144:147], v10, s[36:39], 0 offen offset:1024 ' + NT, 'K')
    a.wait('xr')
    for r in range(2):
        for i in range(4):
            a('v_lshlrev_b32 v%d, 16, v%d' % (48 + 8 * r + 2 * i, 128 + 4 * r + i)); a('v_and_b32 v%d, s61, v%d' % (49 + 8 * r + 2 * i, 128 + 4 * r + i))
    for r in range(2):
        b = 48 + 8 * r
        a(pk('v_pk_add_f32', 70 + 2 * r, [b, b + 2])); a(pk('v_pk_add_f32', 74 + 2 * r, [b + 4, b + 6]))
    for r in range(2): a(pk('v_pk_add_f32', 70 + 2 * r, [70 + 2 * r, 74 + 2 * r]))
    for r in range(2): a('v_add_f32 v%d, v%d, v%d' % (64 + r, 70 + 2 * r, 71 + 2 * r))
    allreduce(a, [64, 65], [66, 67])
    for r in range(2): a('v_mul_f32 v%d, s60, v%d' % (64 + r, 64 + r))
    for r in range(2):
        for i in range(0, 8, 2): a(pk('v_pk_add_f32', 48 + 8 * r + i, [48 + 8 * r + i, bc(64 + r)], neg=[0, 1]))
    for r in range(2):
        b = 48 + 8 * r
        a(pk('v_pk_mul_f32', 70 + 2 * r, [b, b]))
        for i in (2, 4, 6): a(pk('v_pk_fma_f32', 70 + 2 * r, [b + i, b + i, 70 + 2 * r]))
    for r in range(2): a('v_add_f32 v%d, v%d, v%d' % (68 + r, 70 + 2 * r, 71 + 2 * r))
    allreduce(a, [68, 69], [66, 67])
    for r in range(2): a('v_mul_f32 v%d, s60, v%d' % (68 + r, 68 + r))
    a('v_cvt_pk_bf16_f32 v68, v68, v69'); a('v_and_b32 v69, s61, v68'); a('v_lshlrev_b32 v68, 16, v68')
    for r in range(2): a('v_add_f32 v%d, 0x%x, v%d' % (68 + r, f2u(EPS), 68 + r))
    a('v_cvt_pk_bf16_f32 v68, v68, v69'); a('v_and_b32 v69, s61, v68'); a('v_lshlrev_b32 v68, 16, v68')
    for r in range(2): a('v_sqrt_f32 v%d, v%d' % (68 + r, 68 + r))
    a('v_cvt_pk_bf16_f32 v72, v68, v64'); a('v_cvt_pk_bf16_f32 v73, v69, v65')
    a('s_lshl_b32 s53, s48, 3'); a('s_add_u32 s53, s53, %d' % L_CRED); a('v_mov_b32 v2, s53')
    a('ds_write_b64 v2, v[72:73]')
    a('s_mov_b32 s82, 0')
    a.wait('st', 'lgkmcnt(0)')
    a('Ltag:')
    a('v_readfirstlane_b32 s80, v150'); a('v_readfirstlane_b32 s81, v151')
    a('s_or_b32 s53, s80, s81'); a('s_cbranch_scc1 Ltagok')
    a('global_load_dwordx2 v[150:151], v12, s[28:29] sc1')
    a('s_add_u32 s82, s82, 1'); a('s_cmp_gt_u32 s82, 0x20000'); a('s_cbranch_scc1 Lend')
    a('s_waitcnt vmcnt(0)')
    a('s_branch Ltag')
    a('Ltagok:')
    a.stamp('drained')
    a('s_lshl_b32 s53, s49, 3'); a('s_add_u32 s53, s53, s72')
    signal(a, 's53', True)
    a('s_cmp_lg_u32 s48, 1'); a('s_cbranch_scc1 Lnost')
    a('v_lshlrev_b32 v2, 3, v1'); a('ds_read_b64 v[72:73], v2 offset:%d' % L_CRED)
    a('s_lshl_b32 s53, s2, 6'); a('s_add_u32 s53, s53, 0x%x' % ST0); a('v_mov_b32 v75, s80')
    a('s_mov_b64 exec, 15'); a('s_waitcnt lgkmcnt(0)')
    a('v_mov_b32 v74, v73'); a('v_mov_b32 v73, s80')
    a('buffer_store_dwordx4 v[72:75], v14, s[32:35], s53 offen sc1'); a('s_mov_b64 exec, -1')
    a('Lnost:')
    a('v_and_b32 v11, 3, v5'); a('v_mul_u32_u24 v11, %d, v11' % CS); a('v_and_b32 v12, 12, v5'); a('v_lshl_add_u32 v11, v12, 1, v11')
    a('v_lshl_add_u32 v11, v6, 4, v11'); a('s_lshl_b32 s56, s51, 8'); a('s_add_u32 s57, s56, s71'); a('s_add_u32 s57, s57, %d' % (L_E4 + 8))
    a('v_add_u32 v11, s57, v11')
    a('v_lshlrev_b32 v12, 4, v6'); a('v_lshlrev_b32 v13, 5, v5'); a('v_sub_u32 v12, v12, v13')
    a('s_add_u32 s57, s56, s70'); a('s_add_u32 s57, s57, 480'); a('v_add_u32 v12, s57, v12')
    a('v_lshlrev_b32 v7, 4, v5'); a('v_lshl_add_u32 v7, v6, 2, v7'); a('s_lshl_b32 s56, s51, 10'); a('v_add_u32 v7, s56, v7')
    a('v_lshlrev_b32 v8, 1, v7'); a('v_lshlrev_b32 v9, 3, v7')
    a('s_add_u32 s57, s70, %d' % (2 * (2044 - 768))); a('v_sub_u32 v13, s57, v8')
    a('v_add_u32 v10, s67, v14')
    a('v_lshrrev_b32 v184, 3, v1'); a('v_lshlrev_b32 v184, 10, v184'); a('v_and_b32 v185, 7, v1'); a('v_bfe_u32 v186, v1, 4, 1')
    a('v_lshlrev_b32 v186, 2, v186'); a('v_xor_b32 v185, v185, v186'); a('v_lshl_add_u32 v184, v185, 4, v184')
    a('v_lshrrev_b32 v185, 2, v1'); a('v_mul_u32_u24 v185, 2752, v185'); a('v_and_b32 v186, 3, v1'); a('v_lshl_add_u32 v185, v186, 4, v185')
    a('v_and_b32 v4, 31, v1'); a('v_lshlrev_b32 v4, 3, v4')
    srd(a, 36, 24, 1376 * 1024); srd(a, 40, 22, 512 * 2752); srd(a, 44, 18, 512 * 1024)
    a('s_and_b32 s53, s63, 7'); a('s_lshl_b32 s53, s53, 7'); a('s_lshr_b32 s54, s63, 3'); a('s_lshl_b32 s54, s54, 14'); a('s_add_u32 s73, s53, s54')
    a('s_sub_u32 s74, 1023, s63'); a('s_and_b32 s53, s74, 15'); a('s_mul_i32 s53, s53, %d' % (32 * 2752)); a('s_lshr_b32 s54, s74, 4'); a('s_lshl_b32 s54, s54, 6')
    a('s_add_u32 s75, s53, s54'); a('s_cmp_lt_u32 s74, 688'); a('s_cselect_b32 s75, s75, 0x400000')
    a('s_lshl_b32 s76, s48, 12'); a('s_add_u32 s76, s76, %d' % L_PK)
    a('s_lshl_b32 s77, s48, 14'); a('s_add_u32 s77, s77, %d' % L_S)
    a('s_lshl_b32 s78, s48, 17'); a('s_lshl_b32 s53, s69, 7'); a('s_add_u32 s78, s78, s53')
    a('s_and_b32 s92, s68, 3'); a('s_lshl_b32 s92, s92, 12')
    for i in range(1, 4): a('v_add_u32 v%d, %d, v184' % (248 + i, 7168 * i))
    a('v_lshrrev_b32 v3, 5, v1'); a('v_bfe_u32 v16, v1, 2, 2')
    a('v_lshl_add_u32 v2, v3, 3, v16'); a('v_lshlrev_b32 v2, 7, v2'); a('v_lshrrev_b32 v16, 1, v16'); a('v_lshl_add_u32 v2, v16, 6, v2')
    a('v_bfe_u32 v16, v1, 4, 1'); a('v_lshl_add_u32 v2, v16, 5, v2')
    a('v_and_b32 v16, 3, v1'); a('v_lshl_add_u32 v187, v16, 3, v2')
    a('v_and_b32 v16, 1, v1'); a('v_lshl_add_u32 v2, v16, 4, v2'); a('v_bfe_u32 v16, v1, 1, 1'); a('v_lshl_add_u32 v188, v16, 3, v2')
    a('v_add_u32 v189, s76, v188'); a('v_xor_b32 v190, 64, v189')
    a('v_lshlrev_b32 v186, 3, v6'); a('v_bfe_u32 v2, v1, 2, 2'); a('v_add_u32 v186, v186, v2'); a('v_lshlrev_b32 v186, 6, v186'); a('v_and_b32 v2, 3, v1')
    a('v_lshl_add_u32 v186, v2, 3, v186'); a('v_add_u32 v186, s76, v186')
    a('s_and_b32 s53, s63, 7'); a('s_mul_i32 s53, s53, %d' % (86 * 2048)); a('s_lshr_b32 s54, s63, 3'); a('s_lshl_b32 s54, s54, 11'); a('s_add_u32 s53, s53, s54')
    a('s_add_u32 s53, s53, 0x%x' % W4P); a('s_cmp_lt_u32 s63, 688'); a('s_cselect_b32 s88, s53, 0x%x' % DUMP)
    a('s_lshr_b32 s54, s74, 4'); a('s_lshl_b32 s54, s54, 15'); a('s_and_b32 s55, s74, 15'); a('s_lshl_b32 s55, s55, 10'); a('s_add_u32 s54, s54, s55')
    a('s_add_u32 s54, s54, 0x%x' % W3P); a('s_cmp_lt_u32 s74, 688'); a('s_cselect_b32 s89, s54, 0x%x' % DUMP)
    poll(a, 4, 's72', True)
    a.stamp('X0 seen')
    a('s_add_u32 s56, s70, s67'); a('s_mov_b32 m0, s56'); a('s_add_u32 s57, s66, %d' % KVR)
    a.vm('buffer_load_dwordx4 v10, s[32:35], s57 offen sc1 lds')
    a.vm('buffer_load_dwordx4 v10, s[32:35], s57 offen offset:1024 sc1 lds', 'kv')
    a('s_add_u32 s57, s66, 0x%x' % XT)
    for i in range(4): a.vm('buffer_load_dwordx2 %s, v8, s[32:35], s57 offen offset:%d sc1' % (vr(208 + 2 * i, 2), 512 * i), 'xT')
    bg = []
    bg.append(['s_mov_b32 m0, s76', ('buffer_load_dwordx4 v184, s[36:39], s73 offen ' + NT + ' lds', None)])
    bg.append(['s_add_u32 s53, s76, 1024', 's_mov_b32 m0, s53', 's_add_u32 s54, s73, 8192', ('buffer_load_dwordx4 v184, s[36:39], s54 offen ' + NT + ' lds', None)])
    bg.append(['s_add_u32 s53, s76, 2048', 's_mov_b32 m0, s53', ('buffer_load_dwordx4 v185, s[40:43], s75 offen ' + NT + ' lds', None)])
    bg.append(['s_add_u32 s53, s76, 3072', 's_mov_b32 m0, s53', 's_add_u32 s54, s75, %d' % (16 * 2752), ('buffer_load_dwordx4 v185, s[40:43], s54 offen ' + NT + ' lds', 'pk')])
    def wdma(srdn, label):
        l = []
        for i in range(16):
            it = []
            if i % 4 == 0:
                it += ['s_add_u32 s55, s92, %d' % (1024 * i), 's_and_b32 s55, s55, 0x3fff', 's_add_u32 s53, s77, s55', 's_mov_b32 m0, s53',
                       's_lshl_b32 s55, s55, 3', 's_add_u32 s93, s78, s55']
            it.append(('buffer_load_dwordx4 v%d, s[%d:%d], s93 offen offset:%d lds' % (248 + (i & 3) if i & 3 else 184, srdn, srdn + 3, 1024 * (i & 3)), label))
            l.append(it)
        return l
    w1l = wdma(44, 'w1')
    def stloads(fl=''):
        return [['s_mov_b32 s54, 0x%x' % (ST0 + 4096 * (i >> 2)),
                 ('buffer_load_dwordx4 %s, v9, s[32:35], s54 offen offset:%d %s' % (vr(216 + 4 * i, 4), 2048 * ((i >> 1) & 1) + 16 * (i & 1), fl), 'st0')] for i in range(8)]
    if 'nopack' in EXP: bg = [[x for x in it if not isinstance(x, tuple)] + [('s_nop 0', None)] for it in bg]
    if 'now1' in EXP: w1l = [[x for x in it if not isinstance(x, tuple)] + [('buffer_load_dword v252, v14, s[32:35], 0 offen', 'w1')] for it in w1l]
    bg += w1l[:NST] + stloads() + w1l[NST:]
    def emit_bg(item):
        for x in item:
            if isinstance(x, tuple): a.vm(x[0], x[1])
            else: a(x)
    for _ in range(4): emit_bg(bg.pop(0))
    a('s_mov_b64 exec, 0xffff')
    a.vm('buffer_store_dwordx4 v[156:159], v191, s[32:35], s79 offen sc1')
    a('s_mov_b64 exec, -1')
    a('v_add_u32 v2, s71, v10')
    for i in range(2):
        W = 136 + 6 * i; b = 16 + 12 * i
        for x in range(4): a('v_alignbit_b32 v%d, v%d, v%d, 16' % (b + x, W + x + 1, W + x))
        for x in range(4): a('v_mov_b32 v%d, v%d' % (b + 4 + x, W + x + 1))
        for x in range(4): a('v_alignbit_b32 v%d, v%d, v%d, 16' % (b + 8 + x, W + x + 2, W + x + 1))
        o = L_E4 + 32 + 1024 * i
        a('ds_write_b128 v2, %s offset:%d' % (vr(W + 2, 4), o + 3 * CS))
        a('ds_write_b128 v2, %s offset:%d' % (vr(b, 4), o))
        a('ds_write_b128 v2, %s offset:%d' % (vr(b + 4, 4), o + CS))
        a('ds_write_b128 v2, %s offset:%d' % (vr(b + 8, 4), o + 2 * CS))
    for _ in range(PRE0): emit_bg(bg.pop(0))
    a.wait('kv', 'lgkmcnt(0)')
    a('s_barrier')
    a.stamp('conv go')
    CA = 16; FR = 48
    def A(st, x): return FR + 64 * st + 4 * x
    def B(st, x): return FR + 64 * st + 32 + 4 * x
    def reads(rho):
        st = rho & 1; l = []
        for x in range(8):
            l.append('ds_read_b64 %s, v11 offset:%d' % (vr(A(st, x), 2), 512 * x + 64 * rho))
            l.append('ds_read_b64 %s, v11 offset:%d' % (vr(A(st, x) + 2, 2), 512 * x + 64 * rho + 8))
            l.append('ds_read_b128 %s, v12 offset:%d' % (vr(B(st, x), 4), 512 * (7 - x) + 64 * rho))
        return l
    for r in reads(0): a(r)
    started = set()
    for rho in range(4):
        st = rho & 1
        nxt = reads(rho + 1) if rho < 3 else ['ds_read_b64 %s, v13 offset:%d' % (vr(176 + 2 * i, 2), 512 * (3 - i)) for i in range(4)]
        if rho == 3:
            a.wait('pk')
            nxt = ['ds_read_b64_tr_b16 v[192:193], v189', 'ds_read_b64_tr_b16 v[194:195], v189 offset:512',
                   'ds_read_b64_tr_b16 v[196:197], v190', 'ds_read_b64_tr_b16 v[198:199], v190 offset:512'] + [
                   'ds_read_b64_tr_b16 %s, v186 offset:%d' % (vr(200 + 4 * e + 2 * z, 2), 2048 + 32 * e + 256 * z) for e in range(2) for z in range(2)] + nxt
        issued = 0; cnt = 0
        for x in range(8):
            pairs = [(x, b) for b in range(x + 1) if x + b <= 7] + [(aa, x) for aa in range(x) if aa + x <= 7]
            if rho == 0: a('s_waitcnt lgkmcnt(%d)' % min(15, 3 * (7 - x) + issued))
            elif x == 0: a('s_waitcnt lgkmcnt(0)')
            for (aa, bb) in pairs:
                t = aa + bb
                c = vr(CA + 4 * t, 4) if t in started else '0'
                started.add(t)
                a('v_mfma_f32_16x16x32_bf16 %s, %s, %s, %s' % (vr(CA + 4 * t, 4), vr(A(st, aa), 4), vr(B(st, bb), 4), c))
                cnt += 1
                if (rho > 0 or x >= 3) and issued < len(nxt) and cnt <= 30:
                    a(nxt[issued]); issued += 1
                if (cnt + 36 * rho) % PACE == 0 and bg: emit_bg(bg.pop(0))
                if rho == 3 and cnt == 16: a('s_waitcnt lgkmcnt(4)'); a('s_add_u32 s59, s89, 0x4000')
                if rho == 3 and cnt in (17, 19, 21, 23):
                    z = (cnt - 17) // 2
                    a.vm('buffer_store_dwordx4 %s, v14, s[32:35], %s offen offset:%d sc1' % (vr(192 + 4 * z, 4), ('s88', 's88', 's89', 's59')[z], 1024 if z == 1 else 0))
        while issued < len(nxt): a(nxt[issued]); issued += 1
    a.stamp('conv mfma')
    while bg: emit_bg(bg.pop(0))
    a('s_lshl_b32 s53, s48, 12'); a('s_xor_b32 s54, s53, 0x1000'); a('v_add_u32 v3, s53, v14'); a('v_add_u32 v2, s54, v14')
    a('s_lshl_b32 s56, s65, 16'); a('s_and_b32 s57, s65, 0xffff0000'); a('s_cmp_eq_u32 s52, 0'); a('s_cselect_b32 s65, s56, s57')
    a('s_cmp_eq_u32 s51, 0'); a('s_cbranch_scc1 Lck0')
    for v, lab in ((1, None), (0, 'Lck0')):
        if lab: a(lab + ':')
        snd = 0 if v else 4; keep = 4 - snd
        for i in range(4): a('ds_write_b128 v2, %s offset:%d' % (vr(CA + 4 * (snd + i), 4), L_CRED + 1024 * i))
        for i in range(16): a('v_mov_b32 v%d, v%d' % (48 + i, CA + 4 * keep + i))
        if v: a('s_branch Lck1')
    a('Lck1:')
    a('s_waitcnt lgkmcnt(4)')
    for i in range(4):
        a('v_and_b32 v64, s61, v%d' % (177 + 2 * i)); a('v_lshlrev_b32 v65, 16, v%d' % (177 + 2 * i))
        a('v_and_b32 v66, s61, v%d' % (176 + 2 * i)); a('v_lshlrev_b32 v67, 16, v%d' % (176 + 2 * i))
        for r in range(4): a('v_fmac_f32 v%d, s65, v%d' % (48 + 4 * i + r, 64 + r))
    a('s_waitcnt lgkmcnt(0)'); a('s_barrier')
    for i in range(4): a('ds_read_b128 %s, v3 offset:%d' % (vr(64 + 4 * i, 4), L_CRED + 1024 * i))
    a('s_mov_b32 s82, 0')
    a.wait('st0')
    a('Lst0:')
    a('v_min3_u32 v2, v217, v219, v221'); a('v_max3_u32 v3, v217, v219, v221')
    for i in range(3, 15, 2):
        a('v_min3_u32 v2, v2, v%d, v%d' % (217 + 2 * i, 219 + 2 * i)); a('v_max3_u32 v3, v3, v%d, v%d' % (217 + 2 * i, 219 + 2 * i))
    a('v_min_u32 v2, v2, v247'); a('v_max_u32 v3, v3, v247')
    a('v_cmp_ne_u32 vcc, s80, v2'); a('v_cmp_ne_u32 s[54:55], s80, v3'); a('s_or_b64 vcc, vcc, s[54:55]')
    a('s_cbranch_vccz Lst0ok')
    for it in stloads('sc1'):
        for x in it: a(x[0] if isinstance(x, tuple) else x)
    a('s_add_u32 s82, s82, 1'); a('s_cmp_gt_u32 s82, 0x20000'); a('s_cbranch_scc1 Lend')
    a('s_waitcnt vmcnt(0)')
    a('s_branch Lst0')
    a('Lst0ok:'); a.count(30)
    a.stamp('stats ok')
    a('v_and_b32 v2, 1, v6'); a('v_lshlrev_b32 v2, 18, v2'); a('v_lshrrev_b32 v3, 2, v5'); a('v_lshl_add_u32 v2, v3, 16, v2')
    a('v_and_b32 v3, 3, v5'); a('v_lshl_add_u32 v2, v3, 5, v2'); a('v_lshrrev_b32 v3, 1, v6'); a('v_lshl_add_u32 v2, v3, 4, v2')
    a('s_lshl_b32 s57, s51, 20'); a('s_lshl_b32 s58, s64, 7'); a('s_add_u32 s57, s57, s58'); a('s_add_u32 s57, s57, 0x%x' % HT)
    a('s_add_u32 s58, s57, 0x80000')
    a('s_waitcnt lgkmcnt(0)')
    for i in range(0, 16, 2): a(pk('v_pk_add_f32', 48 + i, [48 + i, 64 + i]))
    for i in range(4):
        xx = 80; mm = 84; rs = 88
        a('v_lshlrev_b32 v%d, 16, v%d' % (xx + 0, 208 + 2 * i)); a('v_and_b32 v%d, s61, v%d' % (xx + 1, 208 + 2 * i))
        a('v_lshlrev_b32 v%d, 16, v%d' % (xx + 2, 209 + 2 * i)); a('v_and_b32 v%d, s61, v%d' % (xx + 3, 209 + 2 * i))
        for r in range(4): a('v_lshlrev_b32 v%d, 16, v%d' % (rs + r, 216 + 8 * i + 2 * r))
        for r in range(4): a('v_and_b32 v%d, s61, v%d' % (mm + r, 216 + 8 * i + 2 * r))
        for r in range(4): a('v_rcp_f32 v%d, v%d' % (rs + r, rs + r))
        for r in (0, 2): a(pk('v_pk_add_f32', mm + r, [xx + r, mm + r], neg=[0, 1]))
        for r in (0, 2): a(pk('v_pk_mul_f32', mm + r, [mm + r, rs + r]))
        for r in (0, 2): a(pk('v_pk_fma_f32', xx + r, [mm + r, 48 + 4 * i + r, xx + r]))
        o = 96 + 2 * i
        a('v_cvt_pk_bf16_f32 v%d, v%d, v%d' % (o, xx, xx + 1)); a('v_cvt_pk_bf16_f32 v%d, v%d, v%d' % (o + 1, xx + 2, xx + 3))
        if i & 1:
            a('v_permlane16_swap_b32 v%d, v%d' % (o - 2, o)); a('v_permlane16_swap_b32 v%d, v%d' % (o - 1, o + 1))
            a.vm('buffer_store_dwordx4 %s, v2, s[32:35], s%d offen sc1' % (vr(o - 2, 4), 57 + (i >> 1)), 'h')
    a.stamp('h stored')
    a('s_lshl_b32 s53, s52, 6'); a('s_add_u32 s53, s53, s77'); a('v_xor_b32 v9, s53, v188'); a('v_xor_b32 v8, 64, v9')
    def wtr(dst):
        for s in range(8):
            for ch in range(2):
                a('ds_read_b64_tr_b16 %s, v%d offset:%d' % (ur(dst + 8 * s + 4 * ch, 2), 8 + ch, 2048 * s))
                a('ds_read_b64_tr_b16 %s, v%d offset:%d' % (ur(dst + 8 * s + 4 * ch + 2, 2), 8 + ch, 2048 * s + 512))
    a.wait('w1')
    wtr(256)
    a('s_lshl_b32 s53, s50, 8'); a('s_lshl_b32 s54, s49, 3'); a('s_add_u32 s79, s53, s54'); a('s_add_u32 s53, s79, 0x%x' % F_H)
    a.wait0()
    a.stamp('h drained')
    signal(a, 's53', False, 8, 2048)
    srd(a, 44, 20, 512 * 1024)
    a('s_waitcnt lgkmcnt(0)')
    w2l = wdma(44, 'w2')
    if 'now2' in EXP: w2l = [[x for x in it if not isinstance(x, tuple)] + [('buffer_load_dword v252, v14, s[32:35], 0 offen', 'w2')] for it in w2l]
    for _ in range(6): emit_bg(w2l.pop(0))
    a('v_mov_b32 v13, v14')
    for slot in range(3):
        th, ch = slot >> 1, slot & 1
        a('s_xor_b32 s53, s48, %d' % ((1 - th) + 2 * (1 - ch))); a('s_mul_i32 s53, s53, 12288'); a('s_add_u32 s53, s53, %d' % (4096 * slot))
        a('v_add_u32 v%d, s53, v14' % (10 + slot))
    a('s_mul_i32 s53, s48, 12288'); a('v_add_u32 v13, s53, v14')
    ONES = 160; CSUM = 144
    for i in range(4): a('v_mov_b32 v%d, 0x3f803f80' % (ONES + i))
    for s in range(8):
        for ch in range(2):
            d = acc(0, 0) if ch == 0 else acc(1, 1)
            a('v_mfma_f32_32x32x16_bf16 %s, %s, %s, %s' % (vr(d, 16), ur(256 + 8 * s + 4 * ch, 4), vr(ONES, 4), vr(d, 16) if s else '0'))
            if ch and s & 1: emit_bg(w2l.pop(0))
    for q in range(4): a('ds_write_b128 v10, %s offset:%d' % (vr(acc(0, 0) + 4 * q, 4), 1024 * q))
    for q in range(4): a('ds_write_b128 v12, %s offset:%d' % (vr(acc(0, 0) + 4 * q, 4), 1024 * q))
    for q in range(4): a('ds_write_b128 v11, %s offset:%d' % (vr(acc(1, 1) + 4 * q, 4), 1024 * q))
    srd(a, 36, 30, 8 * 86 * 2048, '0x%x' % W4P); srd(a, 40, 30, 86 * 16384, '0x%x' % W3P)
    a('s_waitcnt lgkmcnt(0)'); a('s_barrier')
    for _ in range(3): emit_bg(w2l.pop(0))
    red_read_add(a, 80, 0, CSUM)
    while w2l: emit_bg(w2l.pop(0))
    for i in range(4): a('v_add_u32 v%d, %d, v%d' % (10 + i, G_RED, 10 + i))
    a('v_lshlrev_b32 v189, 6, v6'); a('v_and_b32 v189, 64, v189'); a('v_xor_b32 v189, v189, v14')
    a('s_lshl_b32 s56, s48, 14')
    a('s_lshl_b32 s53, s51, 6'); a('s_add_u32 s54, s53, s56'); a('v_xor_b32 v191, s54, v187'); a('v_xor_b32 v190, 64, v191')
    a('s_lshl_b32 s54, s69, 13'); a('s_add_u32 s53, s53, s54'); a('s_lshl_b32 s54, s52, 12'); a('s_add_u32 s53, s53, s54'); a('v_xor_b32 v187, s53, v187')
    a('s_and_b32 s53, s2, 7'); a('s_lshl_b32 s57, s53, 11')
    a('s_lshl_b32 s53, s48, 9'); a('s_add_u32 s53, s53, s57'); a('s_add_u32 s58, s53, 0x%x' % F_H)
    a('v_lshlrev_b32 v4, 3, v1')
    a('s_lshl_b32 s57, s68, 16'); a('s_add_u32 s57, s57, s56'); a('s_add_u32 s57, s57, 0x%x' % HT)
    a('s_barrier')
    a.stamp('X1 poll')
    poll(a, 4, 's58', False, sleep=SLEEP)
    a.count(63); a.stamp('X1 seen')
    hl = []
    for i in range(16):
        it = []
        if i % 4 == 0: it += ['s_add_u32 s53, s56, %d' % (1024 * i), 's_mov_b32 m0, s53', 's_add_u32 s54, s57, %d' % (1024 * i)]
        it.append(('buffer_load_dwordx4 v189, s[32:35], s54 offen offset:%d sc1 lds' % (1024 * (i & 3)), 'h%d' % (i >> 1)))
        hl.append(it)
    for _ in range(8): emit_bg(hl.pop(0))
    wtr(256 + 64)
    BF = 80; ST = 172
    for i in range(4): a('v_mov_b32 v%d, 0' % (ST + i))
    def btr(s):
        for th in range(2):
            a('ds_read_b64_tr_b16 %s, v%d offset:%d' % (vr(BF + 32 * th + 4 * s, 2), 190 + th, 2048 * s))
            a('ds_read_b64_tr_b16 %s, v%d offset:%d' % (vr(BF + 32 * th + 4 * s + 2, 2), 190 + th, 2048 * s + 512))
    a.wait('h0'); btr(0)
    a.stamp('h0 landed')
    for s in range(8):
        for _ in range(2):
            if hl: emit_bg(hl.pop(0))
        if s < 7:
            a.wait('h%d' % (s + 1)); btr(s + 1)
        a('s_waitcnt lgkmcnt(%d)' % (4 if s < 7 else 0))
        for th in range(2):
            for i in range(4):
                b = BF + 32 * th + 4 * s + i
                a('v_dot2c_f32_bf16 v%d, v%d, v%d' % (ST + th, b, ONES)); a('v_dot2c_f32_bf16 v%d, v%d, v%d' % (ST + 2 + th, b, b))
        for ch in range(2):
            a('v_mfma_f32_32x32x16_bf16 %s, %s, %s, %s' % (vr(acc(0, ch), 16), ur(256 + 8 * s + 4 * ch, 4), vr(BF + 4 * s, 4), vr(acc(0, ch), 16) if s else '0'))
    a('v_permlane32_swap_b32 v%d, v%d' % (ST, ST + 1)); a('v_permlane32_swap_b32 v%d, v%d' % (ST + 2, ST + 3))
    a('v_add_f32 v%d, v%d, v%d' % (ST, ST, ST + 1)); a('v_add_f32 v%d, v%d, v%d' % (ST + 1, ST + 2, ST + 3))
    a('s_xor_b32 s53, s51, 1'); a('s_lshl_b32 s53, s53, 8'); a('v_xor_b32 v2, s53, v4')
    a('s_lshl_b32 s53, s48, 9'); a('s_add_u32 s53, s53, %d' % (L_PK)); a('v_add_u32 v2, s53, v2')
    a('ds_write_b64 v2, %s' % vr(ST, 2))
    a('s_waitcnt lgkmcnt(0)'); a('s_barrier')
    a.stamp('g1 half')
    WR3 = [192, 256 + 128, 256 + 192]
    a('s_mul_i32 s73, s69, 11'); a('s_mul_i32 s53, s48, 3'); a('s_add_u32 s73, s73, s53')
    a('s_lshl_b32 s74, s73, 14'); a('s_add_u32 s75, s74, 0x8000'); a('s_cmp_eq_u32 s48, 3'); a('s_cselect_b32 s75, 0x400000, s75')
    w3l = []
    for j in (1, 2, 0):
        for s in range(16):
            it = []
            it.append('s_add_u32 s87, s%d, %d' % (75 if j == 2 else 74, (16384 if j == 1 else 0) + 1024 * s))
            it.append(('buffer_load_dwordx4 %s, v14, s[40:43], s87 offen' % ur(WR3[j] + 4 * s, 4), 'w3'))
            w3l.append(it)
    if 'now3' in EXP: w3l = [['s_nop 0'] for it in w3l]
    a('v_and_b32 v2, 31, v1'); a('s_lshl_b32 s53, s51, 5'); a('v_add_u32 v3, s53, v2'); a('v_lshlrev_b32 v2, 3, v3'); a('v_add_u32 v2, %d, v2' % L_PK)
    for w in range(4): a('ds_read_b64 %s, v2 offset:%d' % (vr(164 + 2 * w, 2), 512 * w))
    HO = 176
    for s in range(2):
        a('ds_read_b64_tr_b16 %s, v187 offset:%d' % (vr(HO + 4 * s, 2), 2048 * s))
        a('ds_read_b64_tr_b16 %s, v187 offset:%d' % (vr(HO + 4 * s + 2, 2), 2048 * s + 512))
    M1 = 164; R1 = 166; RI = 168; CAa = 169; CBb = 170
    sh = ['s_waitcnt lgkmcnt(4)']
    for w in range(1, 4):
        sh.append('v_add_f32 v164, v164, v%d' % (164 + 2 * w)); sh.append('v_add_f32 v165, v165, v%d' % (165 + 2 * w))
    sh += ['v_mul_f32 v164, s60, v164', 'v_mul_f32 v166, v164, v164', 'v_fma_f32 v165, v165, s60, -v166', 'v_max_f32 v165, 0, v165',
           'v_add_f32 v166, 0x%x, v165' % f2u(EPS), 'v_rsq_f32 v166, v166', 's_nop 0',
           'v_mul_f32 v167, v166, v166', 'v_mul_f32 v167, v167, v165', 'v_add_f32 v167, 0x%x, v167' % f2u(EPS), 'v_rsq_f32 v167, v167', 's_nop 0',
           'v_mul_f32 v167, v167, v166', 'v_rcp_f32 v168, v167', 'v_mul_f32 v169, 0x%x, v167' % f2u(C0),
           'v_mul_f32 v170, v167, v167', 'v_mul_f32 v170, v170, v167', 'v_mul_f32 v170, 0x%x, v170' % f2u(C1)]
    sh += ['s_lshr_b32 s53, s69, 1', 's_lshl_b32 s53, s53, 3', 's_lshr_b32 s53, 0xfe02ff01, s53', 's_sext_i32_i8 s53, s53',
           's_lshl_b32 s54, s68, 6', 's_add_u32 s53, s53, s54', 'v_add_u32 v3, s53, v3',
           'v_cmp_gt_u32 vcc, s86, v3', 'v_and_b32 v3, 0x7ff, v3', 'v_cndmask_b32 v171, 0, -2, vcc',
           'v_lshrrev_b32 v7, 5, v3', 'v_lshlrev_b32 v7, 15, v7', 'v_and_b32 v3, 31, v3', 'v_lshl_add_u32 v7, v3, 4, v7',
           'v_lshrrev_b32 v3, 5, v1', 'v_lshl_add_u32 v7, v3, 9, v7',
           's_lshl_b32 s53, s69, 12', 's_lshl_b32 s54, s52, 11', 's_add_u32 s70, s53, s54', 's_add_u32 s71, s70, 0x%x' % ZB]
    a('s_movk_i32 s86, 0x800')
    wr = red_write(0) + red_write(1)
    NW3_G1 = 20
    for s in range(8):
        for ch in range(2):
            a('v_mfma_f32_32x32x16_bf16 %s, %s, %s, %s' % (vr(acc(1, ch), 16), ur(256 + 8 * s + 4 * ch, 4), vr(BF + 32 + 4 * s, 4), vr(acc(1, ch), 16) if s else '0'))
            for _ in range(3):
                if sh: a(sh.pop(0))
            if len(w3l) > 48 - 16: emit_bg(w3l.pop(0))
            if s >= 2 and wr and not (s == 2 and ch == 0) : a(wr.pop(0))
    assert not sh and not wr
    while len(w3l) > 48 - NW3_G1: emit_bg(w3l.pop(0))
    for w in red_write(2): a(w)
    a('s_waitcnt lgkmcnt(0)'); a('s_barrier')
    a.stamp('g1 mfma')
    red_read_add(a, 80)
    o = acc(1, 1)
    for i in range(0, 16, 2): a(pk('v_pk_fma_f32', o + i, [bc(M1), CSUM + i, o + i], neg=[1, 0, 0]))
    for l in gelu_pk(o, CAa, CBb, RI, 80, 16): a(l)
    for i in range(8): a('v_cvt_pk_bf16_f32 v%d, v%d, v%d' % (96 + i, o + 2 * i, o + 2 * i + 1))
    for i in range(8): a('v_min_u32 v%d, v%d, v171' % (96 + i, 96 + i))
    a.vm('buffer_store_dwordx4 v[96:99], v7, s[32:35], s71 offen sc1')
    a.vm('buffer_store_dwordx4 v[100:103], v7, s[32:35], s71 offen offset:1024 sc1', 'z')
    a.stamp('z stored')
    for _ in range(8): emit_bg(w3l.pop(0))
    HF = 144; HN = 160
    for i in range(8):
        a('v_lshlrev_b32 v%d, 16, v%d' % (HF + 2 * i, HO + i)); a('v_and_b32 v%d, s61, v%d' % (HF + 2 * i + 1, HO + i))
    HN = 176
    for i in range(0, 16, 2): a(pk('v_pk_add_f32', HN + i, [HF + i, bc(M1)], neg=[0, 1]))
    for i in range(0, 16, 2): a(pk('v_pk_mul_f32', HN + i, [HN + i, bc(R1)]))
    a('s_lshl_b32 s72, s68, 7'); a('s_lshl_b32 s53, s69, 3'); a('s_add_u32 s79, s72, s53')
    a('s_add_u32 s53, s79, 0x%x' % F_Z)
    a('v_and_b32 v4, 1, v1'); a('v_lshlrev_b32 v4, 3, v4'); a('s_lshl_b32 s54, s48, 4'); a('v_add_u32 v4, s54, v4')
    a('s_add_u32 s58, s72, 0x%x' % F_Z)
    a('s_lshl_b32 s66, s68, 1'); a('s_add_u32 s66, s66, s51')
    a('s_lshl_b32 s56, s66, 15'); a('s_lshl_b32 s54, s48, 13'); a('s_add_u32 s56, s56, s54'); a('s_add_u32 s56, s56, 0x%x' % ZB); a('s_xor_b32 s57, s56, 0x8000')
    a.wait('z')
    a.stamp('z drained')
    signal(a, 's53', True)
    poll(a, 4, 's58', True)
    a.stamp('X2 seen')
    def bitems(nks, dst, lab):
        l = []
        for th in range(2):
            for s in range(nks):
                it = []
                if s % 4 == 0: it.append('s_add_u32 s93, s%d, %d' % (57 - th, 1024 * s))
                it.append(('buffer_load_dwordx4 %s, v14, s[32:35], s93 offen offset:%d sc1' % (ur(dst(nks * th + s), 4), 1024 * (s & 3)), '%s%d' % (lab, nks * th + s)))
                l.append(it)
        return l
    def ksplit(nks, wreg, breg, lab, bgl, nbg, check):
        bl = bitems(nks, breg, lab)
        for _ in range(8): emit_bg(bl.pop(0))
        for th in range(2):
            wr = (red_write(0) + red_write(1)) if th else []
            if th and check:
                assert not bl
                a('s_mov_b32 s82, 0'); a('Lhalo:'); a('v_mov_b32 v2, 0')
            for s in range(nks):
                k = nks * th + s
                a.wait('%s%d' % (lab, k))
                for ch in range(2):
                    a('v_mfma_f32_32x32x16_bf16 %s, %s, %s, %s' % (vr(acc(th, ch), 16), ur(wreg(s, ch), 4), ur(breg(k), 4), vr(acc(th, ch), 16) if s else '0'))
                    if th and check: a('v_max3_u32 v2, v2, v%d, v%d' % (breg(k) + 2 * ch, breg(k) + 2 * ch + 1))
                    if ch == 0 and bl: emit_bg(bl.pop(0))
                    elif not bl and nbg > 0 and (ch or nbg > nks - s): emit_bg(bgl.pop(0)); nbg -= 1
                if wr and s >= 1: a(wr.pop(0))
                if wr and s >= nks - 1: a(wr.pop(0))
        if check:
            a('v_cmp_eq_u32 vcc, -1, v2'); a('s_cbranch_vccz Lhalook')
            for it in bitems(nks, breg, lab)[nks:]:
                for x in it: a(x[0] if isinstance(x, tuple) else x)
            a('s_add_u32 s82, s82, 1'); a('s_cmp_gt_u32 s82, 0x8000'); a('s_cbranch_scc1 Lend')
            a('s_waitcnt vmcnt(0)'); a('s_branch Lhalo')
            a('Lhalook:'); a.count(62)
        for w in red_write(2): a(w)
        a('s_waitcnt lgkmcnt(0)'); a('s_barrier')
    ksplit(8, lambda s, ch: 256 + 64 + 8 * s + 4 * ch, lambda k: 80 + 4 * k, 'b', w3l, 12, True)
    a.stamp('g2 mfma')
    red_read_add(a, 80)
    for i in range(0, 16, 2): a(pk('v_pk_add_f32', o + i, [o + i, HN + i]))
    for i in range(8): a('v_cvt_pk_bf16_f32 v%d, v%d, v%d' % (96 + i, o + 2 * i, o + 2 * i + 1))
    a('s_lshl_b32 s54, s66, 15'); a('s_add_u32 s54, s54, s70'); a('s_add_u32 s54, s54, 0x%x' % X1B)
    a.vm('buffer_store_dwordx4 v[96:99], v14, s[32:35], s54 offen sc1')
    a.vm('buffer_store_dwordx4 v[100:103], v14, s[32:35], s54 offen offset:1024 sc1')
    a('v_mov_b32 v104, 0'); a('v_mov_b32 v105, 0')
    for i in range(8):
        a('v_dot2c_f32_bf16 v104, v%d, v%d' % (96 + i, ONES)); a('v_dot2c_f32_bf16 v105, v%d, v%d' % (96 + i, 96 + i))
    a('v_mov_b32 v106, v104'); a('v_mov_b32 v107, v105')
    a('v_permlane32_swap_b32 v104, v106'); a('v_permlane32_swap_b32 v105, v107')
    a(pk('v_pk_add_f32', 104, [104, 106]))
    a('s_lshl_b32 s54, s68, 13'); a('s_lshr_b32 s55, s70, 2'); a('s_add_u32 s54, s54, s55'); a('s_lshl_b32 s55, s51, 8'); a('s_add_u32 s54, s54, s55')
    a('s_add_u32 s54, s54, 0x%x' % ST1); a('v_lshlrev_b32 v2, 3, v1')
    a('s_mov_b32 exec_hi, 0')
    a.vm('buffer_store_dwordx2 v[104:105], v2, s[32:35], s54 offen sc1', 'x1')
    a('s_mov_b32 exec_hi, -1')
    a.stamp('x1 stored')
    while w3l: emit_bg(w3l.pop(0))
    RES = 128
    for i in range(8):
        a('v_lshlrev_b32 v%d, 16, v%d' % (80 + 2 * i, 96 + i)); a('v_and_b32 v%d, s61, v%d' % (81 + 2 * i, 96 + i))
    for i in range(0, 16, 2): a(pk('v_pk_add_f32', RES + i, [HF + i, 80 + i]))
    a('s_add_u32 s53, s79, 0x%x' % F_X); a('s_add_u32 s58, s72, 0x%x' % F_X)
    a('v_and_b32 v7, 7, v1'); a('v_lshlrev_b32 v7, 3, v7')
    a('s_lshl_b32 s56, s48, 13'); a('s_lshl_b32 s57, s68, 16'); a('s_add_u32 s57, s57, s56'); a('s_add_u32 s57, s57, 0x%x' % X1B)
    a('s_lshl_b32 s59, s68, 13'); a('s_lshl_b32 s54, s48, 11'); a('s_add_u32 s59, s59, s54'); a('s_add_u32 s59, s59, 0x%x' % ST1)
    a('v_lshlrev_b32 v8, 9, v6'); a('v_lshl_add_u32 v8, v5, 4, v8'); a('v_add_u32 v9, 0x8000, v8')
    a.wait('x1')
    a.stamp('x1 drained')
    signal(a, 's53', True, tmp=16)
    poll(a, 7, 's58', True, tmp=16)
    a.stamp('X3 seen')
    for p in range(4): a.vm('buffer_load_dwordx2 %s, v2, s[32:35], s59 offen offset:%d sc1' % (vr(80 + 2 * p, 2), 512 * p), 'sp')
    xl = []
    a('s_mov_b32 s64, s56'); a('s_mov_b32 s65, s57')
    for i in range(16):
        it = []
        if i % 4 == 0:
            oo = 32768 * (i >> 3) + 1024 * (i & 7)
            it += ['s_add_u32 s53, s64, %d' % oo, 's_mov_b32 m0, s53', 's_add_u32 s93, s65, %d' % oo]
        it.append(('buffer_load_dwordx4 v14, s[32:35], s93 offen offset:%d sc1 lds' % (1024 * (i & 3)), 'x%d' % (i >> 3)))
        xl.append(it)
    for _ in range(8): emit_bg(xl.pop(0))
    CS3 = 116
    for s in range(16):
        for j in range(3):
            a('v_mfma_f32_16x16x32_bf16 %s, %s, %s, %s' % (vr(CS3 + 4 * j, 4), ur(WR3[j] + 4 * s, 4), vr(ONES, 4), vr(CS3 + 4 * j, 4) if s else '0'))
    def w4reg(s, ch): return (256 + 8 * s + 4 * ch) if s < 16 else (144 + 8 * (s - 16) + 4 * ch)
    a('s_mul_i32 s74, s69, %d' % (86 * 2048)); a('s_mul_i32 s53, s48, %d' % (22 * 2048)); a('s_add_u32 s74, s74, s53')
    a('s_add_u32 s75, s74, %d' % (20 * 2048)); a('s_cmp_eq_u32 s48, 3'); a('s_cselect_b32 s75, 0x400000, s75')
    a('s_lshl_b32 s53, s52, 10'); a('v_add_u32 v3, s53, v14'); a('v_xor_b32 v0, 0x400, v3')
    w4l = []
    for s in range(22):
        for ch in range(2):
            it = []
            if s % 2 == 0 and ch == 0: it.append('s_add_u32 s87, s74, %d' % (2048 * s) if s < 20 else 's_mov_b32 s87, s75')
            it.append(('buffer_load_dwordx4 %s, v%d, s[36:39], s87 offen offset:%d' % (ur(w4reg(s, ch), 4), 3 if ch else 0, 2048 * (s & 1)), 'w4'))
            w4l.append(it)
    if 'now4' in EXP: w4l = []
    srd(a, 44, 30, 64 * HTH, '0x%x' % HB)
    a('s_lshl_b32 s53, s68, 1'); a('s_mul_i32 s53, s53, %d' % HTH); a('s_lshl_b32 s54, s73, 10'); a('s_add_u32 s56, s53, s54')
    a('s_add_u32 s57, s56, %d' % HTH)
    a('s_cmp_eq_u32 s48, 3'); a('s_cselect_b32 s58, 0x%x, s56' % (64 * HTH)); a('s_cselect_b32 s59, 0x%x, s57' % (64 * HTH))
    a('s_lshl_b32 s53, s48, 3'); a('s_add_u32 s53, s53, %d' % G_ST); a('v_lshlrev_b32 v7, 5, v1'); a('v_add_u32 v7, s53, v7')
    a.wait('sp')
    a(pk('v_pk_add_f32', 80, [80, 82])); a(pk('v_pk_add_f32', 84, [84, 86])); a(pk('v_pk_add_f32', 80, [80, 84]))
    a('ds_write_b64 v7, v[80:81]')
    a('v_lshlrev_b32 v7, 5, v1'); a('v_add_u32 v7, %d, v7' % G_ST)
    a.wait('x0', 'lgkmcnt(0)')
    a('s_barrier')
    a.stamp('x0 landed')
    A3 = 16; BR = 40; TMP = 72; PK = 84; STT = 96
    a('ds_read_b128 v[72:75], v7'); a('ds_read_b128 v[76:79], v7 offset:16')
    def rd(k):
        tt, s = k >> 4, k & 15
        return 'ds_read_b128 %s, v%d offset:%d' % (vr(BR + 4 * (k & 7), 4), 8 + (tt >> 1), 2048 * s + 256 * (tt & 1))
    for k in range(6): a(rd(k))
    a('s_lshl_b32 s53, s48, 10'); a('s_add_u32 s53, s53, %d' % G_ST2); a('v_add_u32 v7, s53, v14'); a('v_lshl_add_u32 v2, v5, 4, s53')
    a('s_waitcnt lgkmcnt(6)')
    st = ['v_add_f32 v72, v72, v74', 'v_add_f32 v73, v73, v75', 'v_add_f32 v76, v76, v78', 'v_add_f32 v77, v77, v79',
          'v_add_f32 v72, v72, v76', 'v_add_f32 v73, v73, v77',
          'v_mul_f32 v72, s60, v72', 'v_mul_f32 v74, v72, v72', 'v_fma_f32 v73, v73, s60, -v74', 'v_max_f32 v73, 0, v73',
          'v_add_f32 v73, 0x%x, v73' % f2u(EPS), 'v_rsq_f32 v76, v73', 'v_sqrt_f32 v75, v73', 'v_mul_f32 v73, 0x%x, v76' % f2u(C0),
          'v_mul_f32 v74, v76, v76', 'v_mul_f32 v74, v74, v76', 'v_mul_f32 v74, 0x%x, v74' % f2u(C1),
          ('ds', 'ds_write_b128 v7, v[72:75]'), ('dswait', 0)] + [('ds', 'ds_read_b128 %s, v2 offset:%d' % (vr(STT + 4 * tt, 4), 256 * tt)) for tt in range(4)]
    def epi(tt, packed):
        o3 = A3 + 12 * (tt & 1); m = STT + 4 * tt
        if packed:
            l = [pk('v_pk_fma_f32', o3 + i, [bc(m), CS3 + i, o3 + i], neg=[1, 0, 0]) for i in range(0, 12, 2)]
            l += gelu_pk(o3, m + 1, m + 2, m + 3, TMP, 12)
        else:
            l = ['v_fma_f32 v%d, -v%d, v%d, v%d' % (o3 + i, m, CS3 + i, o3 + i) for i in range(12)]
            l += gelu_plain(o3, m + 1, m + 2, m + 3, TMP, 12)
        for j in range(3):
            for i in range(2): l.append('v_cvt_pk_bf16_f32 v%d, v%d, v%d' % (PK + 4 * j + 2 * (tt & 1) + i, o3 + 4 * j + 2 * i, o3 + 4 * j + 2 * i + 1))
        if tt & 1:
            for j in range(3):
                l.append('v_permlane16_swap_b32 v%d, v%d' % (PK + 4 * j, PK + 4 * j + 2)); l.append('v_permlane16_swap_b32 v%d, v%d' % (PK + 4 * j + 1, PK + 4 * j + 3))
            for j in range(3):
                l.append(('vm', 'buffer_store_dwordx4 %s, v14, s[44:47], s%d offen offset:%d sc1' % (vr(PK + 4 * j, 4), (58 if j == 2 else 56) + (tt >> 1), 1024 * j)))
        return l
    pend = st
    lg = [('r', k) for k in range(6)]
    def emit_p(x):
        if isinstance(x, str): a(x)
        elif x[0] == 'vm': a.vm(x[1], 'H')
        elif x[0] == 'ds': a(x[1]); lg.append(('o', 0))
        elif x[0] == 'dswait': a('s_waitcnt lgkmcnt(0)'); del lg[:]
    for k in range(64):
        tt, s = k >> 4, k & 15
        if k == 26:
            a.wait('x1'); a('s_barrier')
        if k + 6 < 64: a(rd(k + 6)); lg.append(('r', k + 6))
        if ('r', k) in lg:
            idx = lg.index(('r', k)); a('s_waitcnt lgkmcnt(%d)' % (len(lg) - 1 - idx)); del lg[:idx + 1]
        for j in range(3):
            o3 = A3 + 12 * (tt & 1) + 4 * j
            a('v_mfma_f32_16x16x32_bf16 %s, %s, %s, %s' % (vr(o3, 4), ur(WR3[j] + 4 * s, 4), vr(BR + 4 * (k & 7), 4), vr(o3, 4) if s else '0'))
            if s >= 1 or tt == 0:
                for _ in range(3 if j < 2 else 2):
                    if pend: emit_p(pend.pop(0))
            if j == 2 and xl: emit_bg(xl.pop(0))
            elif j == 2 and len(w4l) > W4TAIL and (k - 8) * (44 - W4TAIL) >= (44 - len(w4l)) * (W4END - 8): emit_bg(w4l.pop(0))
        if s == 15:
            while pend: emit_p(pend.pop(0))
            pend = epi(tt, tt == 3)
            if 'nogelu' in EXP and tt < 3: pend = [x for x in pend if not isinstance(x, str)]
    a.stamp('g3 mfma')
    while pend: emit_p(pend.pop(0))
    a.stamp('H stored')
    while w4l: emit_bg(w4l.pop(0))
    a('s_add_u32 s53, s79, 0x%x' % F_F); a('s_add_u32 s58, s72, 0x%x' % F_F)
    a('s_mul_i32 s56, s66, %d' % HTH); a('s_xor_b32 s54, s66, 1'); a('s_mul_i32 s57, s54, %d' % HTH)
    a('s_mul_i32 s54, s48, %d' % (22 * 1024)); a('s_add_u32 s54, s54, 0x%x' % HB); a('s_add_u32 s56, s56, s54'); a('s_add_u32 s57, s57, s54')
    srd(a, 40, 26, 2 * MB)
    a('v_and_b32 v7, 31, v1'); a('v_lshlrev_b32 v7, 10, v7'); a('v_lshrrev_b32 v8, 5, v1'); a('v_lshl_add_u32 v7, v8, 4, v7')
    a('s_lshl_b32 s59, s66, 15'); a('s_lshr_b32 s54, s70, 5'); a('s_add_u32 s59, s59, s54')
    a.wait('H')
    a.stamp('H drained')
    signal(a, 's53', True, tmp=16)
    poll(a, 4, 's58', True, tmp=16)
    a.stamp('X4 seen')
    def b4(k): return (256 + 128 + 4 * k) if k < 32 else (192 + 4 * (k - 32))
    ksplit(22, w4reg, b4, 'f', None, 0, False)
    a.stamp('g4 mfma')
    red_read_add(a, 80)
    for i in range(0, 16, 2): a(pk('v_pk_add_f32', o + i, [o + i, RES + i]))
    for i in range(8): a('v_cvt_pk_bf16_f32 v%d, v%d, v%d' % (96 + i, o + 2 * i, o + 2 * i + 1))
    a.vm('buffer_store_dwordx4 v[96:99], v7, s[40:43], s59 offen')
    a.vm('buffer_store_dwordx4 v[100:103], v7, s[40:43], s59 offen offset:32')
    if stamp:
        a.stamp('out stored'); a.wait0(); a.stamp('end')
        a('s_lshl_b32 s53, s63, 8'); a('s_add_u32 s53, s53, 0x%x' % STAMPS); a('v_lshlrev_b32 v2, 2, v1')
        a('buffer_store_dword v15, v2, s[32:35], s53 offen')
    if SPIN:
        a.stamp('out stored'); a.wait0(); a.stamp('end')
        a('s_sub_u32 s96, s97, s96'); a('s_mul_i32 s96, s96, %s' % SPIN[2])
        a('s_memrealtime s[90:91]'); a('s_waitcnt lgkmcnt(0)'); a('s_mov_b32 s97, s90')
        a('Lspin:'); a('s_memrealtime s[90:91]'); a('s_waitcnt lgkmcnt(0)'); a('s_sub_u32 s90, s90, s97'); a('s_cmp_lt_u32 s90, s96'); a('s_cbranch_scc1 Lspin')
    a('Lend:')
    a('s_endpgm')
    body = a.a.finish()
    print('instrs', len(a.a.L), 'nops', a.a.nops, file=sys.stderr)
    hdr = open('sequential_preLN__ssm_conv_h3__mixer_s_mlp__prompt.s.ref').read().split('; Override')[0]
    out = hdr + '; @launch grid=(256,1,1) block=(256,1,1) lds=%d\n' % LDS_BYTES
    if stamp: out += '; stamps: ' + '|'.join(a.names) + '\n'
    out += '.amdgcn_target "amdgcn-amd-amdhsa--gfx950"\n.text\n.globl %s\n.p2align 8\n.type %s,@function\n%s:\n' % (NAME, NAME, NAME)
    out += body
    out += '.fill 4096, 4, 0xbf800000\n'
    out += '''.section .rodata,"a"
.p2align 6
.amdhsa_kernel %s
  .amdhsa_next_free_vgpr 512
  .amdhsa_next_free_sgpr 100
  .amdhsa_accum_offset 256
  .amdhsa_group_segment_fixed_size 0
  .amdhsa_kernarg_size 112
  .amdhsa_user_sgpr_count 2
  .amdhsa_user_sgpr_kernarg_segment_ptr 1
  .amdhsa_system_sgpr_workgroup_id_x 1
  .amdhsa_float_denorm_mode_32 3
.end_amdhsa_kernel
''' % NAME
    return out

if __name__ == '__main__':
    open(sys.argv[1], 'w').write(build(len(sys.argv) > 2))
```

```python
import sys, struct
from asmlib import *

MB = 1 << 20
KVR = 0; XT = 2 * MB; HT = 4 * MB; ZB = 6 * MB; X1B = 8 * MB; HB = 10 * MB
W3P = 16 * MB; W4P = W3P + 1408 * 1024
ST0 = 20 * MB
ST1 = ST0 + 65536
FL = ST1 + 262144
FGL = 0x8000
F_A = FL; F_Z = FL + 0x1000; F_X = FL + 0x2000; F_F = FL + 0x3000
F_H = FL + 0x10000; F_P = FL + 0x14000
STAMPS = 64 * MB
DUMP = 0x10000000
HTH = 176 * 512
EPS = 1e-5
def f2u(f): return struct.unpack('<I', struct.pack('<f', f))[0]
C0 = -2.0 * 0.7978845608028654 * 1.4426950408889634
C1 = C0 * 0.044715
NAME = 'sequential_preLN__ssm_conv_h3__mixer_s_mlp__prompt_kernel'

CS = 4160
L_E4 = 0; L_KV = 33280; L_CRED = L_KV + 2 * 4608
L_S = 65536
L_PK = 131072
G_RED = 65536; G_ST = G_RED + 49152; G_ST2 = G_ST + 2048
LDS_BYTES = 147456

TAG = 's[80:81]'
import os
NT = os.environ.get('NT', 'nt')
PACE = int(os.environ.get('PACE', '6'))
W4TAIL = int(os.environ.get('W4TAIL', '4'))
W4END = int(os.environ.get('W4END', '60'))
EXP = os.environ.get('EXP', '').split(',')
SLEEP = int(os.environ.get('SLEEP', '4'))
SPIN = os.environ.get('SPIN', '').split(',') if os.environ.get('SPIN') else None
OUTF = os.environ.get('OUTF', '')
PRE0 = int(os.environ.get('PRE0', '2'))
NST = int(os.environ.get('NST', '16'))
class G:
    def __init__(self, stamp=False):
        self.a = Asm(); self.stamp_on = stamp; self.q = []; self.nst = 0; self.names = []
    def __call__(self, t): self.a(t)
    def vm(self, text, label=None):
        self.a(text); self.q.append(label)
    def wait(self, label, extra=''):
        if label not in self.q:
            if extra: self.a('s_waitcnt ' + extra)
            return
        idx = max(i for i, l in enumerate(self.q) if l == label)
        n = len(self.q) - 1 - idx
        assert n < 64
        self.a('s_waitcnt vmcnt(%d) %s' % (n, extra)); self.q = self.q[idx + 1:]
    def wait0(self, extra=''):
        self.a('s_waitcnt vmcnt(0) %s' % extra); self.q = []
    def count(self, lane):
        if self.stamp_on: self.a('v_writelane_b32 v15, s82, %d' % lane)
    def stamp(self, name):
        if SPIN and name in SPIN:
            self.a('s_memrealtime s[90:91]'); self.a('s_waitcnt lgkmcnt(0)'); self.a('s_mov_b32 s%d, s90' % (96 + SPIN.index(name)))
        if self.stamp_on:
            self.a('s_memrealtime s[90:91]'); self.a('s_memtime s[94:95]'); self.a('s_waitcnt lgkmcnt(0)'); self.a('v_writelane_b32 v15, s90, %d' % self.nst)
            self.a('v_writelane_b32 v15, s94, %d' % (32 + self.nst)); assert self.nst < 30
            self.names.append(name); self.nst += 1

def srd(a, d, p, size, off=None):
    if off is None:
        a('s_mov_b32 s%d, s%d' % (d, p)); a('s_mov_b32 s%d, s%d' % (d + 1, p + 1))
    else:
        a('s_add_u32 s%d, s%d, %s' % (d, p, off)); a('s_addc_u32 s%d, s%d, 0' % (d + 1, p + 1))
    a('s_mov_b32 s%d, 0x%x' % (d + 2, size)); a('s_mov_b32 s%d, 0x20000' % (d + 3))

def allreduce(a, regs, tmps):
    for m in ('quad_perm:[1,0,3,2]', 'quad_perm:[2,3,0,1]', 'row_half_mirror', 'row_mirror'):
        for r in regs: a('v_add_f32_dpp v%d, v%d, v%d %s row_mask:0xf bank_mask:0xf' % (r, r, r, m))
    for sw in ('v_permlane16_swap_b32', 'v_permlane32_swap_b32'):
        for r, t in zip(regs, tmps): a('v_mov_b32 v%d, v%d' % (t, r))
        for r, t in zip(regs, tmps): a('%s v%d, v%d' % (sw, r, t))
        for r, t in zip(regs, tmps): a('v_add_f32 v%d, v%d, v%d' % (r, r, t))

npoll = [0]
def poll(a, vaddr, soff, dual, start='0', sleep=0, tmp=16):
    n = npoll[0]; npoll[0] += 1
    a('s_mov_b32 s82, %s' % start)
    a('Lpoll%d:' % n)
    if dual:
        a('s_cmp_lt_u32 s82, 32'); a('s_cselect_b32 s83, 0, 0x%x' % FGL); a('s_add_u32 s83, s83, %s' % soff)
        so = 's83'
    else: so = soff
    a('buffer_load_dwordx2 %s, v%d, s[32:35], %s offen sc1' % (vr(tmp, 2), vaddr, so))
    a('s_add_u32 s82, s82, 1'); a('s_cmp_gt_u32 s82, 0x20000'); a('s_cbranch_scc1 Lend')
    a.wait0()
    a('v_cmp_ne_u64 vcc, %s, %s' % (TAG, vr(tmp, 2)))
    if sleep:
        a('s_cbranch_vccz Lpolld%d' % n); a('s_sleep %d' % sleep); a('s_branch Lpoll%d' % n); a('Lpolld%d:' % n)
    else: a('s_cbranch_vccnz Lpoll%d' % n)

nsig = [0]
def signal(a, soff, dual, nrep=1, repstride=0, tmp=16):
    n = nsig[0]; nsig[0] += 1
    a('s_barrier')
    a('s_cmp_lg_u32 s48, 0'); a('s_cbranch_scc1 Lsig%d' % n)
    a('v_mov_b32 v%d, s80' % tmp); a('v_mov_b32 v%d, s81' % (tmp + 1))
    a('v_mul_u32_u24 v%d, %d, v1' % (tmp + 2, repstride))
    a('s_mov_b64 exec, %d' % ((1 << nrep) - 1))
    if dual:
        a('buffer_store_dwordx2 %s, v%d, s[32:35], %s offen' % (vr(tmp, 2), tmp + 2, soff))
        a('s_add_u32 s83, %s, 0x%x' % (soff, FGL))
        a('buffer_store_dwordx2 %s, v%d, s[32:35], s83 offen sc1' % (vr(tmp, 2), tmp + 2))
    else:
        a('buffer_store_dwordx2 %s, v%d, s[32:35], %s offen sc1' % (vr(tmp, 2), tmp + 2, soff))
    a('s_mov_b64 exec, -1')
    a('Lsig%d:' % n)

ACC = 16
def acc(th, ch): return ACC + 32 * th + 16 * ch
def red_write(slot, off=0):
    th, ch = slot >> 1, slot & 1
    return ['ds_write_b128 v%d, %s offset:%d' % (10 + slot, vr(acc(th, ch) + 4 * q, 4), off + 1024 * q) for q in range(4)]
def red_read_add(a, tmp, off=0, dst=None):
    for i in range(12): a('ds_read_b128 %s, v13 offset:%d' % (vr(tmp + 4 * i, 4), off + 1024 * i))
    o = acc(1, 1)
    for i in range(12):
        a('s_waitcnt lgkmcnt(%d)' % (11 - i))
        d = dst if (dst is not None and i >= 8) else o
        for r in (0, 2): a('v_pk_add_f32 %s, %s, %s' % (vr(d + 4 * (i & 3) + r, 2), vr(o + 4 * (i & 3) + r, 2), vr(tmp + 4 * i + r, 2)))

def gelu_plain(t, ca, cb, ri, tmp, n):
    l = []
    for i in range(n): l.append('v_mul_f32 v%d, v%d, v%d' % (tmp + i, t + i, t + i))
    for i in range(n): l.append('v_fma_f32 v%d, v%d, v%d, v%d' % (tmp + i, tmp + i, cb, ca))
    for i in range(n): l.append('v_mul_f32 v%d, v%d, v%d' % (tmp + i, tmp + i, t + i))
    for i in range(n): l.append('v_exp_f32 v%d, v%d' % (tmp + i, tmp + i))
    for i in range(n): l.append('v_fma_f32 v%d, v%d, v%d, v%d' % (tmp + i, tmp + i, ri, ri))
    for i in range(n): l.append('v_rcp_f32 v%d, v%d' % (tmp + i, tmp + i))
    for i in range(n): l.append('v_mul_f32 v%d, v%d, v%d' % (t + i, t + i, tmp + i))
    return l
def bc(r):
    return vr(r & ~1, 2), r & 1
def pk(op, d, srcs, neg=None):
    names = []; lo = []; hi = []
    for s in srcs:
        if isinstance(s, tuple): names.append(s[0]); lo.append(s[1]); hi.append(s[1])
        else: names.append(vr(s, 2)); lo.append(0); hi.append(1)
    t = '%s %s, %s' % (op, vr(d, 2), ', '.join(names))
    if lo != [0] * len(lo) or hi != [1] * len(hi):
        t += ' op_sel:[%s] op_sel_hi:[%s]' % (','.join(map(str, lo)), ','.join(map(str, hi)))
    if neg: t += ' neg_lo:[%s] neg_hi:[%s]' % (','.join(map(str, neg)), ','.join(map(str, neg)))
    return t
def gelu_pk(t, ca, cb, ri, tmp, n):
    l = []
    for i in range(0, n, 2): l.append(pk('v_pk_mul_f32', tmp + i, [t + i, t + i]))
    for i in range(0, n, 2): l.append(pk('v_pk_fma_f32', tmp + i, [tmp + i, bc(cb), bc(ca)]))
    for i in range(0, n, 2): l.append(pk('v_pk_mul_f32', tmp + i, [tmp + i, t + i]))
    for i in range(n): l.append('v_exp_f32 v%d, v%d' % (tmp + i, tmp + i))
    for i in range(0, n, 2): l.append(pk('v_pk_fma_f32', tmp + i, [tmp + i, bc(ri), bc(ri)]))
    for i in range(n): l.append('v_rcp_f32 v%d, v%d' % (tmp + i, tmp + i))
    for i in range(0, n, 2): l.append(pk('v_pk_mul_f32', t + i, [t + i, tmp + i]))
    return l

def build(stamp=False):
    npoll[0] = 0; nsig[0] = 0
    a = G(stamp)
    a('s_cmp_ge_u32 s2, 256'); a('s_cbranch_scc1 Lend')
    if SPIN and SPIN[0] == 'entry': a.stamp('entry')
    a('s_load_dwordx16 s[4:19], s[0:1], 0')
    a('s_load_dwordx8 s[20:27], s[0:1], 64')
    a('s_load_dwordx4 s[28:31], s[0:1], 96')
    a('s_memrealtime s[80:81]')
    a('s_getpc_b64 s[84:85]')
    a('v_lshrrev_b32 v1, 6, v0'); a('v_readfirstlane_b32 s48, v1'); a('v_and_b32 v1, 63, v0')
    if stamp: a('v_mov_b32 v15, 0')
    a('s_lshr_b32 s49, s2, 3'); a('s_and_b32 s50, s2, 7')
    a('s_and_b32 s51, s48, 1'); a('s_lshr_b32 s52, s48, 1')
    a('s_lshl_b32 s53, s49, 6'); a('s_lshl_b32 s54, s51, 5'); a('s_add_u32 s53, s53, s54')
    a('v_and_b32 v5, 15, v1'); a('v_lshrrev_b32 v6, 4, v1')
    a('v_lshl_add_u32 v2, v6, 3, s53')
    a('s_lshl_b32 s53, s50, 5'); a('s_lshl_b32 s54, s52, 4'); a('s_add_u32 s53, s53, s54'); a('v_add_u32 v3, s53, v5')
    a('v_lshlrev_b32 v4, 10, v2'); a('v_lshl_add_u32 v4, v3, 2, v4')
    a('v_add_u32 v7, 0xfffff400, v4'); a('v_lshlrev_b32 v8, 4, v3')
    a('s_movk_i32 s62, 0x1000'); a('s_mov_b32 s60, 0x%x' % f2u(1.0 / 512)); a('s_mov_b32 s61, 0xffff0000')
    a('s_waitcnt lgkmcnt(0)')
    a.stamp('start')
    srd(a, 36, 6, 2 * MB)
    a('s_or_b32 s53, s2, s48'); a('s_cmp_lg_u32 s53, 0'); a('s_cbranch_scc1 Lnotag')
    a('v_mov_b32 v10, s80'); a('v_mov_b32 v11, s81'); a('v_mov_b32 v12, 0'); a('s_mov_b64 exec, 1')
    a('global_store_dwordx2 v12, v[10:11], s[28:29] sc1'); a('s_mov_b64 exec, -1')
    a('Lnotag:')
    for i in range(3): a.vm('buffer_load_dword v%d, v7, s[36:39], 0 offen offset:%d %s' % (16 + i, 1024 * i, NT))
    for i in range(8): a.vm('buffer_load_dword v%d, v4, s[36:39], %s offen offset:%d %s' % (19 + i, 's62' if i >= 4 else '0', 1024 * (i & 3), NT))
    a.vm('global_load_dwordx4 v[44:47], v8, s[10:11]', 'k')
    srd(a, 40, 8, 2 * MB)
    for i in range(8): a.vm('buffer_load_dword v%d, v4, s[40:43], %s offen offset:%d %s' % (28 + i, 's62' if i >= 4 else '0', 1024 * (i & 3), NT), 'v')
    srd(a, 44, 4, 2 * MB)
    for i in range(8): a.vm('buffer_load_dword v%d, v4, s[44:47], %s offen offset:%d %s' % (36 + i, 's62' if i >= 4 else '0', 1024 * (i & 3), NT), 'x')
    srd(a, 32, 30, 0x10000000)
    a('v_lshlrev_b32 v14, 4, v1')
    a('s_lshl_b32 s63, s2, 2'); a('s_add_u32 s63, s63, s48')
    a('s_lshl_b32 s53, s63, 11'); a('v_add_u32 v11, s53, v14')
    a.vm('global_load_dwordx4 v[128:131], v11, s[4:5] ' + NT); a.vm('global_load_dwordx4 v[132:135], v11, s[4:5] offset:1024 ' + NT, 'xr')
    a('s_lshl_b32 s53, s49, 10'); a('s_lshl_b32 s54, s48, 8'); a('s_add_u32 s53, s53, s54')
    a('v_and_b32 v11, 1, v1'); a('v_lshlrev_b32 v11, 7, v11'); a('v_add_u32 v11, s53, v11')
    a.vm('global_load_dword v148, v11, s[84:85]')
    a('v_and_b32 v11, 3, v1'); a('v_lshlrev_b32 v11, 12, v11'); a('v_bfe_u32 v12, v1, 2, 2'); a('v_lshl_add_u32 v11, v12, 7, v11')
    a('s_lshl_b32 s53, s50, 9'); a('s_add_u32 s72, s53, 0x%x' % F_A)
    a.vm('buffer_load_dword v149, v11, s[32:35], s72 offen sc1')
    a('s_lshl_b32 s64, s50, 6'); a('s_lshl_b32 s53, s49, 1'); a('s_add_u32 s64, s64, s53')
    a('s_lshl_b32 s53, s64, 1'); a('s_load_dword s65, s[14:15], s53')
    a('s_add_u32 s64, s64, s52'); a('s_lshl_b32 s66, s64, 12')
    a('s_lshl_b32 s68, s50, 2'); a('s_and_b32 s53, s49, 3'); a('s_add_u32 s68, s68, s53')
    a('s_lshr_b32 s69, s2, 5')
    a('s_lshl_b32 s67, s51, 11')
    a('v_lshlrev_b32 v7, 13, v3'); a('v_lshlrev_b32 v8, 1, v2')
    a('v_add_u32 v9, v7, v8'); a('v_add_u32 v9, 0x%x, v9' % XT)
    a('v_sub_u32 v7, v7, v8'); a('v_add_u32 v7, %d, v7' % (4080 + KVR))
    a('s_mov_b32 s55, 0x05040100'); a('s_mov_b32 s56, 0x07060302')
    for i in range(4): a('v_mov_b32 v%d, 0' % (152 + i))
    a('s_mul_i32 s70, s52, 4608'); a('s_add_u32 s70, s70, %d' % L_KV)
    a('s_mul_i32 s71, s52, %d' % (4 * CS))
    a('v_and_b32 v11, 31, v1'); a('v_lshl_add_u32 v11, v11, 4, s70')
    a('ds_write_b128 v11, v[152:155] offset:4096')
    a('v_and_b32 v11, 1, v1'); a('v_lshlrev_b32 v11, 4, v11'); a('v_bfe_u32 v12, v1, 1, 2'); a('v_mul_u32_u24 v12, %d, v12' % CS)
    a('v_add3_u32 v11, v11, v12, s71')
    a('ds_write_b128 v11, v[152:155] offset:%d' % L_E4)
    for i in range(4): a('v_mov_b32 v%d, -1' % (156 + i))
    a('s_bfe_u32 s53, s69, 0x10001')
    a('v_bfe_u32 v11, v1, 3, 1'); a('s_mul_i32 s54, s53, 31'); a('v_xor_b32 v11, s54, v11'); a('v_lshlrev_b32 v11, 4, v11')
    a('v_and_b32 v12, 7, v1'); a('v_lshl_add_u32 v191, v12, 9, v11')
    a('s_lshl_b32 s54, s68, 1'); a('s_add_u32 s53, s53, s54'); a('s_lshl_b32 s53, s53, 15'); a('s_lshl_b32 s54, s69, 12'); a('s_add_u32 s53, s53, s54')
    a('s_add_u32 s79, s53, 0x%x' % ZB)
    srd(a, 36, 12, 4096, 's66')
    a('v_add_u32 v10, s67, v14'); a('v_add_u32 v2, -8, v10'); a('v_add_u32 v4, 1016, v10')
    a('v_mov_b32 v12, 0')
    a.wait('k')
    a.vm('global_load_dwordx2 v[150:151], v12, s[28:29] sc1', 'tag')
    a.stamp('k landed')
    for i in range(11):
        a('v_lshlrev_b32 v%d, 16, v%d' % (48 + 2 * i, 16 + i)); a('v_and_b32 v%d, s61, v%d' % (49 + 2 * i, 16 + i))
    for j in range(4):
        for c in range(2):
            a(('v_and_b32 v%d, s61, v%d' if j & 1 else 'v_lshlrev_b32 v%d, 16, v%d') % (70 + 2 * j + c, 44 + 2 * c + (j >> 1)))
    for i in range(8): a(pk('v_pk_mul_f32', 94 + 2 * i, [48 + 2 * i, 76]))
    for t in (1, 2, 3):
        for i in range(8): a(pk('v_pk_fma_f32', 94 + 2 * i, [48 + 2 * (i + t), 76 - 2 * t, 94 + 2 * i]))
    a.wait('v')
    for i in range(8):
        a('v_lshlrev_b32 v%d, 16, v%d' % (78 + 2 * i, 28 + i)); a('v_and_b32 v%d, s61, v%d' % (79 + 2 * i, 28 + i))
    for i in range(8): a(pk('v_pk_mul_f32', 94 + 2 * i, [94 + 2 * i, 78 + 2 * i]))
    for c in range(2):
        for i in range(4): a('v_cvt_pk_bf16_f32 v%d, v%d, v%d' % (112 + 4 * c + i, 94 + 2 * (7 - 2 * i) + c, 94 + 2 * (6 - 2 * i) + c))
    a.vm('buffer_store_dwordx4 v[112:115], v7, s[32:35], 0 offen sc1')
    a.vm('buffer_store_dwordx4 v[116:119], v7, s[32:35], s62 offen sc1')
    a.wait('x')
    for c in range(2):
        for i in range(4): a('v_perm_b32 v%d, v%d, v%d, s%d' % (120 + 4 * c + i, 37 + 2 * i, 36 + 2 * i, 55 + c))
    a.vm('buffer_store_dwordx4 v[120:123], v9, s[32:35], 0 offen sc1')
    a.vm('buffer_store_dwordx4 v[124:127], v9, s[32:35], s62 offen sc1', 'st')
    a.stamp('kv stored')
    a.vm('buffer_load_dwordx2 v[136:137], v2, s[36:39], 0 offen ' + NT)
    a.vm('buffer_load_dwordx4 v[138:141], v10, s[36:39], 0 offen ' + NT)
    a.vm('buffer_load_dwordx2 v[142:143], v4, s[36:39], 0 offen ' + NT)
    a.vm('buffer_load_dwordx4 v[144:147], v10, s[36:39], 0 offen offset:1024 ' + NT, 'K')
    a.wait('xr')
    for r in range(2):
        for i in range(4):
            a('v_lshlrev_b32 v%d, 16, v%d' % (48 + 8 * r + 2 * i, 128 + 4 * r + i)); a('v_and_b32 v%d, s61, v%d' % (49 + 8 * r + 2 * i, 128 + 4 * r + i))
    for r in range(2):
        b = 48 + 8 * r
        a(pk('v_pk_add_f32', 70 + 2 * r, [b, b + 2])); a(pk('v_pk_add_f32', 74 + 2 * r, [b + 4, b + 6]))
    for r in range(2): a(pk('v_pk_add_f32', 70 + 2 * r, [70 + 2 * r, 74 + 2 * r]))
    for r in range(2): a('v_add_f32 v%d, v%d, v%d' % (64 + r, 70 + 2 * r, 71 + 2 * r))
    allreduce(a, [64, 65], [66, 67])
    for r in range(2): a('v_mul_f32 v%d, s60, v%d' % (64 + r, 64 + r))
    for r in range(2):
        for i in range(0, 8, 2): a(pk('v_pk_add_f32', 48 + 8 * r + i, [48 + 8 * r + i, bc(64 + r)], neg=[0, 1]))
    for r in range(2):
        b = 48 + 8 * r
        a(pk('v_pk_mul_f32', 70 + 2 * r, [b, b]))
        for i in (2, 4, 6): a(pk('v_pk_fma_f32', 70 + 2 * r, [b + i, b + i, 70 + 2 * r]))
    for r in range(2): a('v_add_f32 v%d, v%d, v%d' % (68 + r, 70 + 2 * r, 71 + 2 * r))
    allreduce(a, [68, 69], [66, 67])
    for r in range(2): a('v_mul_f32 v%d, s60, v%d' % (68 + r, 68 + r))
    a('v_cvt_pk_bf16_f32 v68, v68, v69'); a('v_and_b32 v69, s61, v68'); a('v_lshlrev_b32 v68, 16, v68')
    for r in range(2): a('v_add_f32 v%d, 0x%x, v%d' % (68 + r, f2u(EPS), 68 + r))
    a('v_cvt_pk_bf16_f32 v68, v68, v69'); a('v_and_b32 v69, s61, v68'); a('v_lshlrev_b32 v68, 16, v68')
    for r in range(2): a('v_sqrt_f32 v%d, v%d' % (68 + r, 68 + r))
    a('v_cvt_pk_bf16_f32 v72, v68, v64'); a('v_cvt_pk_bf16_f32 v73, v69, v65')
    a('s_lshl_b32 s53, s48, 3'); a('s_add_u32 s53, s53, %d' % L_CRED); a('v_mov_b32 v2, s53')
    a('ds_write_b64 v2, v[72:73]')
    a('s_mov_b32 s82, 0')
    a.wait('st', 'lgkmcnt(0)')
    a('Ltag:')
    a('v_readfirstlane_b32 s80, v150'); a('v_readfirstlane_b32 s81, v151')
    a('s_or_b32 s53, s80, s81'); a('s_cbranch_scc1 Ltagok')
    a('global_load_dwordx2 v[150:151], v12, s[28:29] sc1')
    a('s_add_u32 s82, s82, 1'); a('s_cmp_gt_u32 s82, 0x20000'); a('s_cbranch_scc1 Lend')
    a('s_waitcnt vmcnt(0)')
    a('s_branch Ltag')
    a('Ltagok:')
    a.stamp('drained')
    a('s_lshl_b32 s53, s49, 3'); a('s_add_u32 s53, s53, s72')
    signal(a, 's53', True)
    a('s_cmp_lg_u32 s48, 1'); a('s_cbranch_scc1 Lnost')
    a('v_lshlrev_b32 v2, 3, v1'); a('ds_read_b64 v[72:73], v2 offset:%d' % L_CRED)
    a('s_lshl_b32 s53, s2, 6'); a('s_add_u32 s53, s53, 0x%x' % ST0); a('v_mov_b32 v75, s80')
    a('s_mov_b64 exec, 15'); a('s_waitcnt lgkmcnt(0)')
    a('v_mov_b32 v74, v73'); a('v_mov_b32 v73, s80')
    a('buffer_store_dwordx4 v[72:75], v14, s[32:35], s53 offen sc1'); a('s_mov_b64 exec, -1')
    a('Lnost:')
    a('v_and_b32 v11, 3, v5'); a('v_mul_u32_u24 v11, %d, v11' % CS); a('v_and_b32 v12, 12, v5'); a('v_lshl_add_u32 v11, v12, 1, v11')
    a('v_lshl_add_u32 v11, v6, 4, v11'); a('s_lshl_b32 s56, s51, 8'); a('s_add_u32 s57, s56, s71'); a('s_add_u32 s57, s57, %d' % (L_E4 + 8))
    a('v_add_u32 v11, s57, v11')
    a('v_lshlrev_b32 v12, 4, v6'); a('v_lshlrev_b32 v13, 5, v5'); a('v_sub_u32 v12, v12, v13')
    a('s_add_u32 s57, s56, s70'); a('s_add_u32 s57, s57, 480'); a('v_add_u32 v12, s57, v12')
    a('v_lshlrev_b32 v7, 4, v5'); a('v_lshl_add_u32 v7, v6, 2, v7'); a('s_lshl_b32 s56, s51, 10'); a('v_add_u32 v7, s56, v7')
    a('v_lshlrev_b32 v8, 1, v7'); a('v_lshlrev_b32 v9, 3, v7')
    a('s_add_u32 s57, s70, %d' % (2 * (2044 - 768))); a('v_sub_u32 v13, s57, v8')
    a('v_add_u32 v10, s67, v14')
    a('v_lshrrev_b32 v184, 3, v1'); a('v_lshlrev_b32 v184, 10, v184'); a('v_and_b32 v185, 7, v1'); a('v_bfe_u32 v186, v1, 4, 1')
    a('v_lshlrev_b32 v186, 2, v186'); a('v_xor_b32 v185, v185, v186'); a('v_lshl_add_u32 v184, v185, 4, v184')
    a('v_lshrrev_b32 v185, 2, v1'); a('v_mul_u32_u24 v185, 2752, v185'); a('v_and_b32 v186, 3, v1'); a('v_lshl_add_u32 v185, v186, 4, v185')
    a('v_and_b32 v4, 31, v1'); a('v_lshlrev_b32 v4, 3, v4')
    srd(a, 36, 24, 1376 * 1024); srd(a, 40, 22, 512 * 2752); srd(a, 44, 18, 512 * 1024)
    a('s_and_b32 s53, s63, 7'); a('s_lshl_b32 s53, s53, 7'); a('s_lshr_b32 s54, s63, 3'); a('s_lshl_b32 s54, s54, 14'); a('s_add_u32 s73, s53, s54')
    a('s_sub_u32 s74, 1023, s63'); a('s_and_b32 s53, s74, 15'); a('s_mul_i32 s53, s53, %d' % (32 * 2752)); a('s_lshr_b32 s54, s74, 4'); a('s_lshl_b32 s54, s54, 6')
    a('s_add_u32 s75, s53, s54'); a('s_cmp_lt_u32 s74, 688'); a('s_cselect_b32 s75, s75, 0x400000')
    a('s_lshl_b32 s76, s48, 12'); a('s_add_u32 s76, s76, %d' % L_PK)
    a('s_lshl_b32 s77, s48, 14'); a('s_add_u32 s77, s77, %d' % L_S)
    a('s_lshl_b32 s78, s48, 17'); a('s_lshl_b32 s53, s69, 7'); a('s_add_u32 s78, s78, s53')
    a('s_and_b32 s92, s68, 3'); a('s_lshl_b32 s92, s92, 12')
    for i in range(1, 4): a('v_add_u32 v%d, %d, v184' % (248 + i, 7168 * i))
    a('v_lshrrev_b32 v3, 5, v1'); a('v_bfe_u32 v16, v1, 2, 2')
    a('v_lshl_add_u32 v2, v3, 3, v16'); a('v_lshlrev_b32 v2, 7, v2'); a('v_lshrrev_b32 v16, 1, v16'); a('v_lshl_add_u32 v2, v16, 6, v2')
    a('v_bfe_u32 v16, v1, 4, 1'); a('v_lshl_add_u32 v2, v16, 5, v2')
    a('v_and_b32 v16, 3, v1'); a('v_lshl_add_u32 v187, v16, 3, v2')
    a('v_and_b32 v16, 1, v1'); a('v_lshl_add_u32 v2, v16, 4, v2'); a('v_bfe_u32 v16, v1, 1, 1'); a('v_lshl_add_u32 v188, v16, 3, v2')
    a('v_add_u32 v189, s76, v188'); a('v_xor_b32 v190, 64, v189')
    a('v_lshlrev_b32 v186, 3, v6'); a('v_bfe_u32 v2, v1, 2, 2'); a('v_add_u32 v186, v186, v2'); a('v_lshlrev_b32 v186, 6, v186'); a('v_and_b32 v2, 3, v1')
    a('v_lshl_add_u32 v186, v2, 3, v186'); a('v_add_u32 v186, s76, v186')
    a('s_and_b32 s53, s63, 7'); a('s_mul_i32 s53, s53, %d' % (86 * 2048)); a('s_lshr_b32 s54, s63, 3'); a('s_lshl_b32 s54, s54, 11'); a('s_add_u32 s53, s53, s54')
    a('s_add_u32 s53, s53, 0x%x' % W4P); a('s_cmp_lt_u32 s63, 688'); a('s_cselect_b32 s88, s53, 0x%x' % DUMP)
    a('s_lshr_b32 s54, s74, 4'); a('s_lshl_b32 s54, s54, 15'); a('s_and_b32 s55, s74, 15'); a('s_lshl_b32 s55, s55, 10'); a('s_add_u32 s54, s54, s55')
    a('s_add_u32 s54, s54, 0x%x' % W3P); a('s_cmp_lt_u32 s74, 688'); a('s_cselect_b32 s89, s54, 0x%x' % DUMP)
    poll(a, 4, 's72', True)
    a.stamp('X0 seen')
    a('s_add_u32 s56, s70, s67'); a('s_mov_b32 m0, s56'); a('s_add_u32 s57, s66, %d' % KVR)
    a.vm('buffer_load_dwordx4 v10, s[32:35], s57 offen sc1 lds')
    a.vm('buffer_load_dwordx4 v10, s[32:35], s57 offen offset:1024 sc1 lds', 'kv')
    a('s_add_u32 s57, s66, 0x%x' % XT)
    for i in range(4): a.vm('buffer_load_dwordx2 %s, v8, s[32:35], s57 offen offset:%d sc1' % (vr(208 + 2 * i, 2), 512 * i), 'xT')
    bg = []
    bg.append(['s_mov_b32 m0, s76', ('buffer_load_dwordx4 v184, s[36:39], s73 offen ' + NT + ' lds', None)])
    bg.append(['s_add_u32 s53, s76, 1024', 's_mov_b32 m0, s53', 's_add_u32 s54, s73, 8192', ('buffer_load_dwordx4 v184, s[36:39], s54 offen ' + NT + ' lds', None)])
    bg.append(['s_add_u32 s53, s76, 2048', 's_mov_b32 m0, s53', ('buffer_load_dwordx4 v185, s[40:43], s75 offen ' + NT + ' lds', None)])
    bg.append(['s_add_u32 s53, s76, 3072', 's_mov_b32 m0, s53', 's_add_u32 s54, s75, %d' % (16 * 2752), ('buffer_load_dwordx4 v185, s[40:43], s54 offen ' + NT + ' lds', 'pk')])
    def wdma(srdn, label):
        l = []
        for i in range(16):
            it = []
            if i % 4 == 0:
                it += ['s_add_u32 s55, s92, %d' % (1024 * i), 's_and_b32 s55, s55, 0x3fff', 's_add_u32 s53, s77, s55', 's_mov_b32 m0, s53',
                       's_lshl_b32 s55, s55, 3', 's_add_u32 s93, s78, s55']
            it.append(('buffer_load_dwordx4 v%d, s[%d:%d], s93 offen offset:%d lds' % (248 + (i & 3) if i & 3 else 184, srdn, srdn + 3, 1024 * (i & 3)), label))
            l.append(it)
        return l
    w1l = wdma(44, 'w1')
    def stloads(fl=''):
        return [['s_mov_b32 s54, 0x%x' % (ST0 + 4096 * (i >> 2)),
                 ('buffer_load_dwordx4 %s, v9, s[32:35], s54 offen offset:%d %s' % (vr(216 + 4 * i, 4), 2048 * ((i >> 1) & 1) + 16 * (i & 1), fl), 'st0')] for i in range(8)]
    if 'nopack' in EXP: bg = [[x for x in it if not isinstance(x, tuple)] + [('s_nop 0', None)] for it in bg]
    if 'now1' in EXP: w1l = [[x for x in it if not isinstance(x, tuple)] + [('buffer_load_dword v252, v14, s[32:35], 0 offen', 'w1')] for it in w1l]
    bg += w1l[:NST] + stloads() + w1l[NST:]
    def emit_bg(item):
        for x in item:
            if isinstance(x, tuple): a.vm(x[0], x[1])
            else: a(x)
    for _ in range(4): emit_bg(bg.pop(0))
    a('s_mov_b64 exec, 0xffff')
    a.vm('buffer_store_dwordx4 v[156:159], v191, s[32:35], s79 offen sc1')
    a('s_mov_b64 exec, -1')
    a('v_add_u32 v2, s71, v10')
    for i in range(2):
        W = 136 + 6 * i; b = 16 + 12 * i
        for x in range(4): a('v_alignbit_b32 v%d, v%d, v%d, 16' % (b + x, W + x + 1, W + x))
        for x in range(4): a('v_mov_b32 v%d, v%d' % (b + 4 + x, W + x + 1))
        for x in range(4): a('v_alignbit_b32 v%d, v%d, v%d, 16' % (b + 8 + x, W + x + 2, W + x + 1))
        o = L_E4 + 32 + 1024 * i
        a('ds_write_b128 v2, %s offset:%d' % (vr(W + 2, 4), o + 3 * CS))
        a('ds_write_b128 v2, %s offset:%d' % (vr(b, 4), o))
        a('ds_write_b128 v2, %s offset:%d' % (vr(b + 4, 4), o + CS))
        a('ds_write_b128 v2, %s offset:%d' % (vr(b + 8, 4), o + 2 * CS))
    for _ in range(PRE0): emit_bg(bg.pop(0))
    a.wait('kv', 'lgkmcnt(0)')
    a('s_barrier')
    a.stamp('conv go')
    CA = 16; FR = 48
    def A(st, x): return FR + 64 * st + 4 * x
    def B(st, x): return FR + 64 * st + 32 + 4 * x
    def reads(rho):
        st = rho & 1; l = []
        for x in range(8):
            l.append('ds_read_b64 %s, v11 offset:%d' % (vr(A(st, x), 2), 512 * x + 64 * rho))
            l.append('ds_read_b64 %s, v11 offset:%d' % (vr(A(st, x) + 2, 2), 512 * x + 64 * rho + 8))
            l.append('ds_read_b128 %s, v12 offset:%d' % (vr(B(st, x), 4), 512 * (7 - x) + 64 * rho))
        return l
    for r in reads(0): a(r)
    started = set()
    for rho in range(4):
        st = rho & 1
        nxt = reads(rho + 1) if rho < 3 else ['ds_read_b64 %s, v13 offset:%d' % (vr(176 + 2 * i, 2), 512 * (3 - i)) for i in range(4)]
        if rho == 3:
            a.wait('pk')
            nxt = ['ds_read_b64_tr_b16 v[192:193], v189', 'ds_read_b64_tr_b16 v[194:195], v189 offset:512',
                   'ds_read_b64_tr_b16 v[196:197], v190', 'ds_read_b64_tr_b16 v[198:199], v190 offset:512'] + [
                   'ds_read_b64_tr_b16 %s, v186 offset:%d' % (vr(200 + 4 * e + 2 * z, 2), 2048 + 32 * e + 256 * z) for e in range(2) for z in range(2)] + nxt
        issued = 0; cnt = 0
        for x in range(8):
            pairs = [(x, b) for b in range(x + 1) if x + b <= 7] + [(aa, x) for aa in range(x) if aa + x <= 7]
            if rho == 0: a('s_waitcnt lgkmcnt(%d)' % min(15, 3 * (7 - x) + issued))
            elif x == 0: a('s_waitcnt lgkmcnt(0)')
            for (aa, bb) in pairs:
                t = aa + bb
                c = vr(CA + 4 * t, 4) if t in started else '0'
                started.add(t)
                a('v_mfma_f32_16x16x32_bf16 %s, %s, %s, %s' % (vr(CA + 4 * t, 4), vr(A(st, aa), 4), vr(B(st, bb), 4), c))
                cnt += 1
                if (rho > 0 or x >= 3) and issued < len(nxt) and cnt <= 30:
                    a(nxt[issued]); issued += 1
                if (cnt + 36 * rho) % PACE == 0 and bg: emit_bg(bg.pop(0))
                if rho == 3 and cnt == 16: a('s_waitcnt lgkmcnt(4)'); a('s_add_u32 s59, s89, 0x4000')
                if rho == 3 and cnt in (17, 19, 21, 23):
                    z = (cnt - 17) // 2
                    a.vm('buffer_store_dwordx4 %s, v14, s[32:35], %s offen offset:%d sc1' % (vr(192 + 4 * z, 4), ('s88', 's88', 's89', 's59')[z], 1024 if z == 1 else 0))
        while issued < len(nxt): a(nxt[issued]); issued += 1
    a.stamp('conv mfma')
    while bg: emit_bg(bg.pop(0))
    a('s_lshl_b32 s53, s48, 12'); a('s_xor_b32 s54, s53, 0x1000'); a('v_add_u32 v3, s53, v14'); a('v_add_u32 v2, s54, v14')
    a('s_lshl_b32 s56, s65, 16'); a('s_and_b32 s57, s65, 0xffff0000'); a('s_cmp_eq_u32 s52, 0'); a('s_cselect_b32 s65, s56, s57')
    a('s_cmp_eq_u32 s51, 0'); a('s_cbranch_scc1 Lck0')
    for v, lab in ((1, None), (0, 'Lck0')):
        if lab: a(lab + ':')
        snd = 0 if v else 4; keep = 4 - snd
        for i in range(4): a('ds_write_b128 v2, %s offset:%d' % (vr(CA + 4 * (snd + i), 4), L_CRED + 1024 * i))
        for i in range(16): a('v_mov_b32 v%d, v%d' % (48 + i, CA + 4 * keep + i))
        if v: a('s_branch Lck1')
    a('Lck1:')
    a('s_waitcnt lgkmcnt(4)')
    for i in range(4):
        a('v_and_b32 v64, s61, v%d' % (177 + 2 * i)); a('v_lshlrev_b32 v65, 16, v%d' % (177 + 2 * i))
        a('v_and_b32 v66, s61, v%d' % (176 + 2 * i)); a('v_lshlrev_b32 v67, 16, v%d' % (176 + 2 * i))
        for r in range(4): a('v_fmac_f32 v%d, s65, v%d' % (48 + 4 * i + r, 64 + r))
    a('s_waitcnt lgkmcnt(0)'); a('s_barrier')
    for i in range(4): a('ds_read_b128 %s, v3 offset:%d' % (vr(64 + 4 * i, 4), L_CRED + 1024 * i))
    a('s_mov_b32 s82, 0')
    a.wait('st0')
    a('Lst0:')
    a('v_min3_u32 v2, v217, v219, v221'); a('v_max3_u32 v3, v217, v219, v221')
    for i in range(3, 15, 2):
        a('v_min3_u32 v2, v2, v%d, v%d' % (217 + 2 * i, 219 + 2 * i)); a('v_max3_u32 v3, v3, v%d, v%d' % (217 + 2 * i, 219 + 2 * i))
    a('v_min_u32 v2, v2, v247'); a('v_max_u32 v3, v3, v247')
    a('v_cmp_ne_u32 vcc, s80, v2'); a('v_cmp_ne_u32 s[54:55], s80, v3'); a('s_or_b64 vcc, vcc, s[54:55]')
    a('s_cbranch_vccz Lst0ok')
    for it in stloads('sc1'):
        for x in it: a(x[0] if isinstance(x, tuple) else x)
    a('s_add_u32 s82, s82, 1'); a('s_cmp_gt_u32 s82, 0x20000'); a('s_cbranch_scc1 Lend')
    a('s_waitcnt vmcnt(0)')
    a('s_branch Lst0')
    a('Lst0ok:'); a.count(30)
    a.stamp('stats ok')
    a('v_and_b32 v2, 1, v6'); a('v_lshlrev_b32 v2, 18, v2'); a('v_lshrrev_b32 v3, 2, v5'); a('v_lshl_add_u32 v2, v3, 16, v2')
    a('v_and_b32 v3, 3, v5'); a('v_lshl_add_u32 v2, v3, 5, v2'); a('v_lshrrev_b32 v3, 1, v6'); a('v_lshl_add_u32 v2, v3, 4, v2')
    a('s_lshl_b32 s57, s51, 20'); a('s_lshl_b32 s58, s64, 7'); a('s_add_u32 s57, s57, s58'); a('s_add_u32 s57, s57, 0x%x' % HT)
    a('s_add_u32 s58, s57, 0x80000')
    a('s_waitcnt lgkmcnt(0)')
    for i in range(0, 16, 2): a(pk('v_pk_add_f32', 48 + i, [48 + i, 64 + i]))
    for i in range(4):
        xx = 80; mm = 84; rs = 88
        a('v_lshlrev_b32 v%d, 16, v%d' % (xx + 0, 208 + 2 * i)); a('v_and_b32 v%d, s61, v%d' % (xx + 1, 208 + 2 * i))
        a('v_lshlrev_b32 v%d, 16, v%d' % (xx + 2, 209 + 2 * i)); a('v_and_b32 v%d, s61, v%d' % (xx + 3, 209 + 2 * i))
        for r in range(4): a('v_lshlrev_b32 v%d, 16, v%d' % (rs + r, 216 + 8 * i + 2 * r))
        for r in range(4): a('v_and_b32 v%d, s61, v%d' % (mm + r, 216 + 8 * i + 2 * r))
        for r in range(4): a('v_rcp_f32 v%d, v%d' % (rs + r, rs + r))
        for r in (0, 2): a(pk('v_pk_add_f32', mm + r, [xx + r, mm + r], neg=[0, 1]))
        for r in (0, 2): a(pk('v_pk_mul_f32', mm + r, [mm + r, rs + r]))
        for r in (0, 2): a(pk('v_pk_fma_f32', xx + r, [mm + r, 48 + 4 * i + r, xx + r]))
        o = 96 + 2 * i
        a('v_cvt_pk_bf16_f32 v%d, v%d, v%d' % (o, xx, xx + 1)); a('v_cvt_pk_bf16_f32 v%d, v%d, v%d' % (o + 1, xx + 2, xx + 3))
        if i & 1:
            a('v_permlane16_swap_b32 v%d, v%d' % (o - 2, o)); a('v_permlane16_swap_b32 v%d, v%d' % (o - 1, o + 1))
            a.vm('buffer_store_dwordx4 %s, v2, s[32:35], s%d offen sc1' % (vr(o - 2, 4), 57 + (i >> 1)), 'h')
    a.stamp('h stored')
    a('s_lshl_b32 s53, s52, 6'); a('s_add_u32 s53, s53, s77'); a('v_xor_b32 v9, s53, v188'); a('v_xor_b32 v8, 64, v9')
    def wtr(dst):
        for s in range(8):
            for ch in range(2):
                a('ds_read_b64_tr_b16 %s, v%d offset:%d' % (ur(dst + 8 * s + 4 * ch, 2), 8 + ch, 2048 * s))
                a('ds_read_b64_tr_b16 %s, v%d offset:%d' % (ur(dst + 8 * s + 4 * ch + 2, 2), 8 + ch, 2048 * s + 512))
    a.wait('w1')
    wtr(256)
    a('s_lshl_b32 s53, s50, 8'); a('s_lshl_b32 s54, s49, 3'); a('s_add_u32 s79, s53, s54'); a('s_add_u32 s53, s79, 0x%x' % F_H)
    a.wait0()
    a.stamp('h drained')
    signal(a, 's53', False, 8, 2048)
    srd(a, 44, 20, 512 * 1024)
    a('s_waitcnt lgkmcnt(0)')
    w2l = wdma(44, 'w2')
    if 'now2' in EXP: w2l = [[x for x in it if not isinstance(x, tuple)] + [('buffer_load_dword v252, v14, s[32:35], 0 offen', 'w2')] for it in w2l]
    for _ in range(6): emit_bg(w2l.pop(0))
    a('v_mov_b32 v13, v14')
    for slot in range(3):
        th, ch = slot >> 1, slot & 1
        a('s_xor_b32 s53, s48, %d' % ((1 - th) + 2 * (1 - ch))); a('s_mul_i32 s53, s53, 12288'); a('s_add_u32 s53, s53, %d' % (4096 * slot))
        a('v_add_u32 v%d, s53, v14' % (10 + slot))
    a('s_mul_i32 s53, s48, 12288'); a('v_add_u32 v13, s53, v14')
    ONES = 160; CSUM = 144
    for i in range(4): a('v_mov_b32 v%d, 0x3f803f80' % (ONES + i))
    for s in range(8):
        for ch in range(2):
            d = acc(0, 0) if ch == 0 else acc(1, 1)
            a('v_mfma_f32_32x32x16_bf16 %s, %s, %s, %s' % (vr(d, 16), ur(256 + 8 * s + 4 * ch, 4), vr(ONES, 4), vr(d, 16) if s else '0'))
            if ch and s & 1: emit_bg(w2l.pop(0))
    for q in range(4): a('ds_write_b128 v10, %s offset:%d' % (vr(acc(0, 0) + 4 * q, 4), 1024 * q))
    for q in range(4): a('ds_write_b128 v12, %s offset:%d' % (vr(acc(0, 0) + 4 * q, 4), 1024 * q))
    for q in range(4): a('ds_write_b128 v11, %s offset:%d' % (vr(acc(1, 1) + 4 * q, 4), 1024 * q))
    srd(a, 36, 30, 8 * 86 * 2048, '0x%x' % W4P); srd(a, 40, 30, 86 * 16384, '0x%x' % W3P)
    a('s_waitcnt lgkmcnt(0)'); a('s_barrier')
    for _ in range(3): emit_bg(w2l.pop(0))
    red_read_add(a, 80, 0, CSUM)
    while w2l: emit_bg(w2l.pop(0))
    for i in range(4): a('v_add_u32 v%d, %d, v%d' % (10 + i, G_RED, 10 + i))
    a('v_lshlrev_b32 v189, 6, v6'); a('v_and_b32 v189, 64, v189'); a('v_xor_b32 v189, v189, v14')
    a('s_lshl_b32 s56, s48, 14')
    a('s_lshl_b32 s53, s51, 6'); a('s_add_u32 s54, s53, s56'); a('v_xor_b32 v191, s54, v187'); a('v_xor_b32 v190, 64, v191')
    a('s_lshl_b32 s54, s69, 13'); a('s_add_u32 s53, s53, s54'); a('s_lshl_b32 s54, s52, 12'); a('s_add_u32 s53, s53, s54'); a('v_xor_b32 v187, s53, v187')
    a('s_and_b32 s53, s2, 7'); a('s_lshl_b32 s57, s53, 11')
    a('s_lshl_b32 s53, s48, 9'); a('s_add_u32 s53, s53, s57'); a('s_add_u32 s58, s53, 0x%x' % F_H)
    a('v_lshlrev_b32 v4, 3, v1')
    a('s_lshl_b32 s57, s68, 16'); a('s_add_u32 s57, s57, s56'); a('s_add_u32 s57, s57, 0x%x' % HT)
    a('s_barrier')
    a.stamp('X1 poll')
    poll(a, 4, 's58', False, sleep=SLEEP)
    a.count(63); a.stamp('X1 seen')
    hl = []
    for i in range(16):
        it = []
        if i % 4 == 0: it += ['s_add_u32 s53, s56, %d' % (1024 * i), 's_mov_b32 m0, s53', 's_add_u32 s54, s57, %d' % (1024 * i)]
        it.append(('buffer_load_dwordx4 v189, s[32:35], s54 offen offset:%d sc1 lds' % (1024 * (i & 3)), 'h%d' % (i >> 1)))
        hl.append(it)
    for _ in range(8): emit_bg(hl.pop(0))
    wtr(256 + 64)
    BF = 80; ST = 172
    for i in range(4): a('v_mov_b32 v%d, 0' % (ST + i))
    def btr(s):
        for th in range(2):
            a('ds_read_b64_tr_b16 %s, v%d offset:%d' % (vr(BF + 32 * th + 4 * s, 2), 190 + th, 2048 * s))
            a('ds_read_b64_tr_b16 %s, v%d offset:%d' % (vr(BF + 32 * th + 4 * s + 2, 2), 190 + th, 2048 * s + 512))
    a.wait('h0'); btr(0)
    a.stamp('h0 landed')
    for s in range(8):
        for _ in range(2):
            if hl: emit_bg(hl.pop(0))
        if s < 7:
            a.wait('h%d' % (s + 1)); btr(s + 1)
        a('s_waitcnt lgkmcnt(%d)' % (4 if s < 7 else 0))
        for th in range(2):
            for i in range(4):
                b = BF + 32 * th + 4 * s + i
                a('v_dot2c_f32_bf16 v%d, v%d, v%d' % (ST + th, b, ONES)); a('v_dot2c_f32_bf16 v%d, v%d, v%d' % (ST + 2 + th, b, b))
        for ch in range(2):
            a('v_mfma_f32_32x32x16_bf16 %s, %s, %s, %s' % (vr(acc(0, ch), 16), ur(256 + 8 * s + 4 * ch, 4), vr(BF + 4 * s, 4), vr(acc(0, ch), 16) if s else '0'))
    a('v_permlane32_swap_b32 v%d, v%d' % (ST, ST + 1)); a('v_permlane32_swap_b32 v%d, v%d' % (ST + 2, ST + 3))
    a('v_add_f32 v%d, v%d, v%d' % (ST, ST, ST + 1)); a('v_add_f32 v%d, v%d, v%d' % (ST + 1, ST + 2, ST + 3))
    a('s_xor_b32 s53, s51, 1'); a('s_lshl_b32 s53, s53, 8'); a('v_xor_b32 v2, s53, v4')
    a('s_lshl_b32 s53, s48, 9'); a('s_add_u32 s53, s53, %d' % (L_PK)); a('v_add_u32 v2, s53, v2')
    a('ds_write_b64 v2, %s' % vr(ST, 2))
    a('s_waitcnt lgkmcnt(0)'); a('s_barrier')
    a.stamp('g1 half')
    WR3 = [192, 256 + 128, 256 + 192]
    a('s_mul_i32 s73, s69, 11'); a('s_mul_i32 s53, s48, 3'); a('s_add_u32 s73, s73, s53')
    a('s_lshl_b32 s74, s73, 14'); a('s_add_u32 s75, s74, 0x8000'); a('s_cmp_eq_u32 s48, 3'); a('s_cselect_b32 s75, 0x400000, s75')
    w3l = []
    for j in (1, 2, 0):
        for s in range(16):
            it = []
            it.append('s_add_u32 s87, s%d, %d' % (75 if j == 2 else 74, (16384 if j == 1 else 0) + 1024 * s))
            it.append(('buffer_load_dwordx4 %s, v14, s[40:43], s87 offen' % ur(WR3[j] + 4 * s, 4), 'w3'))
            w3l.append(it)
    if 'now3' in EXP: w3l = [['s_nop 0'] for it in w3l]
    a('v_and_b32 v2, 31, v1'); a('s_lshl_b32 s53, s51, 5'); a('v_add_u32 v3, s53, v2'); a('v_lshlrev_b32 v2, 3, v3'); a('v_add_u32 v2, %d, v2' % L_PK)
    for w in range(4): a('ds_read_b64 %s, v2 offset:%d' % (vr(164 + 2 * w, 2), 512 * w))
    HO = 176
    for s in range(2):
        a('ds_read_b64_tr_b16 %s, v187 offset:%d' % (vr(HO + 4 * s, 2), 2048 * s))
        a('ds_read_b64_tr_b16 %s, v187 offset:%d' % (vr(HO + 4 * s + 2, 2), 2048 * s + 512))
    M1 = 164; R1 = 166; RI = 168; CAa = 169; CBb = 170
    sh = ['s_waitcnt lgkmcnt(4)']
    for w in range(1, 4):
        sh.append('v_add_f32 v164, v164, v%d' % (164 + 2 * w)); sh.append('v_add_f32 v165, v165, v%d' % (165 + 2 * w))
    sh += ['v_mul_f32 v164, s60, v164', 'v_mul_f32 v166, v164, v164', 'v_fma_f32 v165, v165, s60, -v166', 'v_max_f32 v165, 0, v165',
           'v_add_f32 v166, 0x%x, v165' % f2u(EPS), 'v_rsq_f32 v166, v166', 's_nop 0',
           'v_mul_f32 v167, v166, v166', 'v_mul_f32 v167, v167, v165', 'v_add_f32 v167, 0x%x, v167' % f2u(EPS), 'v_rsq_f32 v167, v167', 's_nop 0',
           'v_mul_f32 v167, v167, v166', 'v_rcp_f32 v168, v167', 'v_mul_f32 v169, 0x%x, v167' % f2u(C0),
           'v_mul_f32 v170, v167, v167', 'v_mul_f32 v170, v170, v167', 'v_mul_f32 v170, 0x%x, v170' % f2u(C1)]
    sh += ['s_lshr_b32 s53, s69, 1', 's_lshl_b32 s53, s53, 3', 's_lshr_b32 s53, 0xfe02ff01, s53', 's_sext_i32_i8 s53, s53',
           's_lshl_b32 s54, s68, 6', 's_add_u32 s53, s53, s54', 'v_add_u32 v3, s53, v3',
           'v_cmp_gt_u32 vcc, s86, v3', 'v_and_b32 v3, 0x7ff, v3', 'v_cndmask_b32 v171, 0, -2, vcc',
           'v_lshrrev_b32 v7, 5, v3', 'v_lshlrev_b32 v7, 15, v7', 'v_and_b32 v3, 31, v3', 'v_lshl_add_u32 v7, v3, 4, v7',
           'v_lshrrev_b32 v3, 5, v1', 'v_lshl_add_u32 v7, v3, 9, v7',
           's_lshl_b32 s53, s69, 12', 's_lshl_b32 s54, s52, 11', 's_add_u32 s70, s53, s54', 's_add_u32 s71, s70, 0x%x' % ZB]
    a('s_movk_i32 s86, 0x800')
    wr = red_write(0) + red_write(1)
    NW3_G1 = 20
    for s in range(8):
        for ch in range(2):
            a('v_mfma_f32_32x32x16_bf16 %s, %s, %s, %s' % (vr(acc(1, ch), 16), ur(256 + 8 * s + 4 * ch, 4), vr(BF + 32 + 4 * s, 4), vr(acc(1, ch), 16) if s else '0'))
            for _ in range(3):
                if sh: a(sh.pop(0))
            if len(w3l) > 48 - 16: emit_bg(w3l.pop(0))
            if s >= 2 and wr and not (s == 2 and ch == 0) : a(wr.pop(0))
    assert not sh and not wr
    while len(w3l) > 48 - NW3_G1: emit_bg(w3l.pop(0))
    for w in red_write(2): a(w)
    a('s_waitcnt lgkmcnt(0)'); a('s_barrier')
    a.stamp('g1 mfma')
    red_read_add(a, 80)
    o = acc(1, 1)
    for i in range(0, 16, 2): a(pk('v_pk_fma_f32', o + i, [bc(M1), CSUM + i, o + i], neg=[1, 0, 0]))
    for l in gelu_pk(o, CAa, CBb, RI, 80, 16): a(l)
    for i in range(8): a('v_cvt_pk_bf16_f32 v%d, v%d, v%d' % (96 + i, o + 2 * i, o + 2 * i + 1))
    for i in range(8): a('v_min_u32 v%d, v%d, v171' % (96 + i, 96 + i))
    a.vm('buffer_store_dwordx4 v[96:99], v7, s[32:35], s71 offen sc1')
    a.vm('buffer_store_dwordx4 v[100:103], v7, s[32:35], s71 offen offset:1024 sc1', 'z')
    a.stamp('z stored')
    for _ in range(8): emit_bg(w3l.pop(0))
    HF = 144; HN = 160
    for i in range(8):
        a('v_lshlrev_b32 v%d, 16, v%d' % (HF + 2 * i, HO + i)); a('v_and_b32 v%d, s61, v%d' % (HF + 2 * i + 1, HO + i))
    HN = 176
    for i in range(0, 16, 2): a(pk('v_pk_add_f32', HN + i, [HF + i, bc(M1)], neg=[0, 1]))
    for i in range(0, 16, 2): a(pk('v_pk_mul_f32', HN + i, [HN + i, bc(R1)]))
    a('s_lshl_b32 s72, s68, 7'); a('s_lshl_b32 s53, s69, 3'); a('s_add_u32 s79, s72, s53')
    a('s_add_u32 s53, s79, 0x%x' % F_Z)
    a('v_and_b32 v4, 1, v1'); a('v_lshlrev_b32 v4, 3, v4'); a('s_lshl_b32 s54, s48, 4'); a('v_add_u32 v4, s54, v4')
    a('s_add_u32 s58, s72, 0x%x' % F_Z)
    a('s_lshl_b32 s66, s68, 1'); a('s_add_u32 s66, s66, s51')
    a('s_lshl_b32 s56, s66, 15'); a('s_lshl_b32 s54, s48, 13'); a('s_add_u32 s56, s56, s54'); a('s_add_u32 s56, s56, 0x%x' % ZB); a('s_xor_b32 s57, s56, 0x8000')
    a.wait('z')
    a.stamp('z drained')
    signal(a, 's53', True)
    poll(a, 4, 's58', True)
    a.stamp('X2 seen')
    def bitems(nks, dst, lab):
        l = []
        for th in range(2):
            for s in range(nks):
                it = []
                if s % 4 == 0: it.append('s_add_u32 s93, s%d, %d' % (57 - th, 1024 * s))
                it.append(('buffer_load_dwordx4 %s, v14, s[32:35], s93 offen offset:%d sc1' % (ur(dst(nks * th + s), 4), 1024 * (s & 3)), '%s%d' % (lab, nks * th + s)))
                l.append(it)
        return l
    def ksplit(nks, wreg, breg, lab, bgl, nbg, check):
        bl = bitems(nks, breg, lab)
        for _ in range(8): emit_bg(bl.pop(0))
        for th in range(2):
            wr = (red_write(0) + red_write(1)) if th else []
            if th and check:
                assert not bl
                a('s_mov_b32 s82, 0'); a('Lhalo:'); a('v_mov_b32 v2, 0')
            for s in range(nks):
                k = nks * th + s
                a.wait('%s%d' % (lab, k))
                for ch in range(2):
                    a('v_mfma_f32_32x32x16_bf16 %s, %s, %s, %s' % (vr(acc(th, ch), 16), ur(wreg(s, ch), 4), ur(breg(k), 4), vr(acc(th, ch), 16) if s else '0'))
                    if th and check: a('v_max3_u32 v2, v2, v%d, v%d' % (breg(k) + 2 * ch, breg(k) + 2 * ch + 1))
                    if ch == 0 and bl: emit_bg(bl.pop(0))
                    elif not bl and nbg > 0 and (ch or nbg > nks - s): emit_bg(bgl.pop(0)); nbg -= 1
                if wr and s >= 1: a(wr.pop(0))
                if wr and s >= nks - 1: a(wr.pop(0))
        if check:
            a('v_cmp_eq_u32 vcc, -1, v2'); a('s_cbranch_vccz Lhalook')
            for it in bitems(nks, breg, lab)[nks:]:
                for x in it: a(x[0] if isinstance(x, tuple) else x)
            a('s_add_u32 s82, s82, 1'); a('s_cmp_gt_u32 s82, 0x8000'); a('s_cbranch_scc1 Lend')
            a('s_waitcnt vmcnt(0)'); a('s_branch Lhalo')
            a('Lhalook:'); a.count(62)
        for w in red_write(2): a(w)
        a('s_waitcnt lgkmcnt(0)'); a('s_barrier')
    ksplit(8, lambda s, ch: 256 + 64 + 8 * s + 4 * ch, lambda k: 80 + 4 * k, 'b', w3l, 12, True)
    a.stamp('g2 mfma')
    red_read_add(a, 80)
    for i in range(0, 16, 2): a(pk('v_pk_add_f32', o + i, [o + i, HN + i]))
    for i in range(8): a('v_cvt_pk_bf16_f32 v%d, v%d, v%d' % (96 + i, o + 2 * i, o + 2 * i + 1))
    a('s_lshl_b32 s54, s66, 15'); a('s_add_u32 s54, s54, s70'); a('s_add_u32 s54, s54, 0x%x' % X1B)
    a.vm('buffer_store_dwordx4 v[96:99], v14, s[32:35], s54 offen sc1')
    a.vm('buffer_store_dwordx4 v[100:103], v14, s[32:35], s54 offen offset:1024 sc1')
    a('v_mov_b32 v104, 0'); a('v_mov_b32 v105, 0')
    for i in range(8):
        a('v_dot2c_f32_bf16 v104, v%d, v%d' % (96 + i, ONES)); a('v_dot2c_f32_bf16 v105, v%d, v%d' % (96 + i, 96 + i))
    a('v_mov_b32 v106, v104'); a('v_mov_b32 v107, v105')
    a('v_permlane32_swap_b32 v104, v106'); a('v_permlane32_swap_b32 v105, v107')
    a(pk('v_pk_add_f32', 104, [104, 106]))
    a('s_lshl_b32 s54, s68, 13'); a('s_lshr_b32 s55, s70, 2'); a('s_add_u32 s54, s54, s55'); a('s_lshl_b32 s55, s51, 8'); a('s_add_u32 s54, s54, s55')
    a('s_add_u32 s54, s54, 0x%x' % ST1); a('v_lshlrev_b32 v2, 3, v1')
    a('s_mov_b32 exec_hi, 0')
    a.vm('buffer_store_dwordx2 v[104:105], v2, s[32:35], s54 offen sc1', 'x1')
    a('s_mov_b32 exec_hi, -1')
    a.stamp('x1 stored')
    while w3l: emit_bg(w3l.pop(0))
    RES = 128
    for i in range(8):
        a('v_lshlrev_b32 v%d, 16, v%d' % (80 + 2 * i, 96 + i)); a('v_and_b32 v%d, s61, v%d' % (81 + 2 * i, 96 + i))
    for i in range(0, 16, 2): a(pk('v_pk_add_f32', RES + i, [HF + i, 80 + i]))
    a('s_add_u32 s53, s79, 0x%x' % F_X); a('s_add_u32 s58, s72, 0x%x' % F_X)
    a('v_and_b32 v7, 7, v1'); a('v_lshlrev_b32 v7, 3, v7')
    a('s_lshl_b32 s56, s48, 13'); a('s_lshl_b32 s57, s68, 16'); a('s_add_u32 s57, s57, s56'); a('s_add_u32 s57, s57, 0x%x' % X1B)
    a('s_lshl_b32 s59, s68, 13'); a('s_lshl_b32 s54, s48, 11'); a('s_add_u32 s59, s59, s54'); a('s_add_u32 s59, s59, 0x%x' % ST1)
    a('v_lshlrev_b32 v8, 9, v6'); a('v_lshl_add_u32 v8, v5, 4, v8'); a('v_add_u32 v9, 0x8000, v8')
    a.wait('x1')
    a.stamp('x1 drained')
    signal(a, 's53', True, tmp=16)
    poll(a, 7, 's58', True, tmp=16)
    a.stamp('X3 seen')
    for p in range(4): a.vm('buffer_load_dwordx2 %s, v2, s[32:35], s59 offen offset:%d sc1' % (vr(80 + 2 * p, 2), 512 * p), 'sp')
    xl = []
    a('s_mov_b32 s64, s56'); a('s_mov_b32 s65, s57')
    for i in range(16):
        it = []
        if i % 4 == 0:
            oo = 32768 * (i >> 3) + 1024 * (i & 7)
            it += ['s_add_u32 s53, s64, %d' % oo, 's_mov_b32 m0, s53', 's_add_u32 s93, s65, %d' % oo]
        it.append(('buffer_load_dwordx4 v14, s[32:35], s93 offen offset:%d sc1 lds' % (1024 * (i & 3)), 'x%d' % (i >> 3)))
        xl.append(it)
    for _ in range(8): emit_bg(xl.pop(0))
    CS3 = 116
    for s in range(16):
        for j in range(3):
            a('v_mfma_f32_16x16x32_bf16 %s, %s, %s, %s' % (vr(CS3 + 4 * j, 4), ur(WR3[j] + 4 * s, 4), vr(ONES, 4), vr(CS3 + 4 * j, 4) if s else '0'))
    def w4reg(s, ch): return (256 + 8 * s + 4 * ch) if s < 16 else (144 + 8 * (s - 16) + 4 * ch)
    a('s_mul_i32 s74, s69, %d' % (86 * 2048)); a('s_mul_i32 s53, s48, %d' % (22 * 2048)); a('s_add_u32 s74, s74, s53')
    a('s_add_u32 s75, s74, %d' % (20 * 2048)); a('s_cmp_eq_u32 s48, 3'); a('s_cselect_b32 s75, 0x400000, s75')
    a('s_lshl_b32 s53, s52, 10'); a('v_add_u32 v3, s53, v14'); a('v_xor_b32 v0, 0x400, v3')
    w4l = []
    for s in range(22):
        for ch in range(2):
            it = []
            if s % 2 == 0 and ch == 0: it.append('s_add_u32 s87, s74, %d' % (2048 * s) if s < 20 else 's_mov_b32 s87, s75')
            it.append(('buffer_load_dwordx4 %s, v%d, s[36:39], s87 offen offset:%d' % (ur(w4reg(s, ch), 4), 3 if ch else 0, 2048 * (s & 1)), 'w4'))
            w4l.append(it)
    if 'now4' in EXP: w4l = []
    srd(a, 44, 30, 64 * HTH, '0x%x' % HB)
    a('s_lshl_b32 s53, s68, 1'); a('s_mul_i32 s53, s53, %d' % HTH); a('s_lshl_b32 s54, s73, 10'); a('s_add_u32 s56, s53, s54')
    a('s_add_u32 s57, s56, %d' % HTH)
    a('s_cmp_eq_u32 s48, 3'); a('s_cselect_b32 s58, 0x%x, s56' % (64 * HTH)); a('s_cselect_b32 s59, 0x%x, s57' % (64 * HTH))
    a('s_lshl_b32 s53, s48, 3'); a('s_add_u32 s53, s53, %d' % G_ST); a('v_lshlrev_b32 v7, 5, v1'); a('v_add_u32 v7, s53, v7')
    a.wait('sp')
    a(pk('v_pk_add_f32', 80, [80, 82])); a(pk('v_pk_add_f32', 84, [84, 86])); a(pk('v_pk_add_f32', 80, [80, 84]))
    a('ds_write_b64 v7, v[80:81]')
    a('v_lshlrev_b32 v7, 5, v1'); a('v_add_u32 v7, %d, v7' % G_ST)
    a.wait('x0', 'lgkmcnt(0)')
    a('s_barrier')
    a.stamp('x0 landed')
    A3 = 16; BR = 40; TMP = 72; PK = 84; STT = 96
    a('ds_read_b128 v[72:75], v7'); a('ds_read_b128 v[76:79], v7 offset:16')
    def rd(k):
        tt, s = k >> 4, k & 15
        return 'ds_read_b128 %s, v%d offset:%d' % (vr(BR + 4 * (k & 7), 4), 8 + (tt >> 1), 2048 * s + 256 * (tt & 1))
    for k in range(6): a(rd(k))
    a('s_lshl_b32 s53, s48, 10'); a('s_add_u32 s53, s53, %d' % G_ST2); a('v_add_u32 v7, s53, v14'); a('v_lshl_add_u32 v2, v5, 4, s53')
    a('s_waitcnt lgkmcnt(6)')
    st = ['v_add_f32 v72, v72, v74', 'v_add_f32 v73, v73, v75', 'v_add_f32 v76, v76, v78', 'v_add_f32 v77, v77, v79',
          'v_add_f32 v72, v72, v76', 'v_add_f32 v73, v73, v77',
          'v_mul_f32 v72, s60, v72', 'v_mul_f32 v74, v72, v72', 'v_fma_f32 v73, v73, s60, -v74', 'v_max_f32 v73, 0, v73',
          'v_add_f32 v73, 0x%x, v73' % f2u(EPS), 'v_rsq_f32 v76, v73', 'v_sqrt_f32 v75, v73', 'v_mul_f32 v73, 0x%x, v76' % f2u(C0),
          'v_mul_f32 v74, v76, v76', 'v_mul_f32 v74, v74, v76', 'v_mul_f32 v74, 0x%x, v74' % f2u(C1),
          ('ds', 'ds_write_b128 v7, v[72:75]'), ('dswait', 0)] + [('ds', 'ds_read_b128 %s, v2 offset:%d' % (vr(STT + 4 * tt, 4), 256 * tt)) for tt in range(4)]
    def epi(tt, packed):
        o3 = A3 + 12 * (tt & 1); m = STT + 4 * tt
        if packed:
            l = [pk('v_pk_fma_f32', o3 + i, [bc(m), CS3 + i, o3 + i], neg=[1, 0, 0]) for i in range(0, 12, 2)]
            l += gelu_pk(o3, m + 1, m + 2, m + 3, TMP, 12)
        else:
            l = ['v_fma_f32 v%d, -v%d, v%d, v%d' % (o3 + i, m, CS3 + i, o3 + i) for i in range(12)]
            l += gelu_plain(o3, m + 1, m + 2, m + 3, TMP, 12)
        for j in range(3):
            for i in range(2): l.append('v_cvt_pk_bf16_f32 v%d, v%d, v%d' % (PK + 4 * j + 2 * (tt & 1) + i, o3 + 4 * j + 2 * i, o3 + 4 * j + 2 * i + 1))
        if tt & 1:
            for j in range(3):
                l.append('v_permlane16_swap_b32 v%d, v%d' % (PK + 4 * j, PK + 4 * j + 2)); l.append('v_permlane16_swap_b32 v%d, v%d' % (PK + 4 * j + 1, PK + 4 * j + 3))
            for j in range(3):
                l.append(('vm', 'buffer_store_dwordx4 %s, v14, s[44:47], s%d offen offset:%d sc1' % (vr(PK + 4 * j, 4), (58 if j == 2 else 56) + (tt >> 1), 1024 * j)))
        return l
    pend = st
    lg = [('r', k) for k in range(6)]
    def emit_p(x):
        if isinstance(x, str): a(x)
        elif x[0] == 'vm': a.vm(x[1], 'H')
        elif x[0] == 'ds': a(x[1]); lg.append(('o', 0))
        elif x[0] == 'dswait': a('s_waitcnt lgkmcnt(0)'); del lg[:]
    for k in range(64):
        tt, s = k >> 4, k & 15
        if k == 26:
            a.wait('x1'); a('s_barrier')
        if k + 6 < 64: a(rd(k + 6)); lg.append(('r', k + 6))
        if ('r', k) in lg:
            idx = lg.index(('r', k)); a('s_waitcnt lgkmcnt(%d)' % (len(lg) - 1 - idx)); del lg[:idx + 1]
        for j in range(3):
            o3 = A3 + 12 * (tt & 1) + 4 * j
            a('v_mfma_f32_16x16x32_bf16 %s, %s, %s, %s' % (vr(o3, 4), ur(WR3[j] + 4 * s, 4), vr(BR + 4 * (k & 7), 4), vr(o3, 4) if s else '0'))
            if s >= 1 or tt == 0:
                for _ in range(3 if j < 2 else 2):
                    if pend: emit_p(pend.pop(0))
            if j == 2 and xl: emit_bg(xl.pop(0))
            elif j == 2 and len(w4l) > W4TAIL and (k - 8) * (44 - W4TAIL) >= (44 - len(w4l)) * (W4END - 8): emit_bg(w4l.pop(0))
        if s == 15:
            while pend: emit_p(pend.pop(0))
            pend = epi(tt, tt == 3)
            if 'nogelu' in EXP and tt < 3: pend = [x for x in pend if not isinstance(x, str)]
    a.stamp('g3 mfma')
    while pend: emit_p(pend.pop(0))
    a.stamp('H stored')
    while w4l: emit_bg(w4l.pop(0))
    a('s_add_u32 s53, s79, 0x%x' % F_F); a('s_add_u32 s58, s72, 0x%x' % F_F)
    a('s_mul_i32 s56, s66, %d' % HTH); a('s_xor_b32 s54, s66, 1'); a('s_mul_i32 s57, s54, %d' % HTH)
    a('s_mul_i32 s54, s48, %d' % (22 * 1024)); a('s_add_u32 s54, s54, 0x%x' % HB); a('s_add_u32 s56, s56, s54'); a('s_add_u32 s57, s57, s54')
    srd(a, 40, 26, 2 * MB)
    a('v_and_b32 v7, 31, v1'); a('v_lshlrev_b32 v7, 10, v7'); a('v_lshrrev_b32 v8, 5, v1'); a('v_lshl_add_u32 v7, v8, 4, v7')
    a('s_lshl_b32 s59, s66, 15'); a('s_lshr_b32 s54, s70, 5'); a('s_add_u32 s59, s59, s54')
    a.wait('H')
    a.stamp('H drained')
    signal(a, 's53', True, tmp=16)
    poll(a, 4, 's58', True, tmp=16)
    a.stamp('X4 seen')
    def b4(k): return (256 + 128 + 4 * k) if k < 32 else (192 + 4 * (k - 32))
    ksplit(22, w4reg, b4, 'f', None, 0, False)
    a.stamp('g4 mfma')
    red_read_add(a, 80)
    for i in range(0, 16, 2): a(pk('v_pk_add_f32', o + i, [o + i, RES + i]))
    for i in range(8): a('v_cvt_pk_bf16_f32 v%d, v%d, v%d' % (96 + i, o + 2 * i, o + 2 * i + 1))
    a.vm('buffer_store_dwordx4 v[96:99], v7, s[40:43], s59 offen ' + OUTF)
    a.vm('buffer_store_dwordx4 v[100:103], v7, s[40:43], s59 offen offset:32 ' + OUTF)
    if stamp:
        a.stamp('out stored'); a.wait0(); a.stamp('end')
        a('s_lshl_b32 s53, s63, 8'); a('s_add_u32 s53, s53, 0x%x' % STAMPS); a('v_lshlrev_b32 v2, 2, v1')
        a('buffer_store_dword v15, v2, s[32:35], s53 offen')
    if SPIN:
        a.stamp('out stored'); a.wait0(); a.stamp('end')
        a('s_sub_u32 s96, s97, s96'); a('s_mul_i32 s96, s96, %s' % SPIN[2])
        a('s_memrealtime s[90:91]'); a('s_waitcnt lgkmcnt(0)'); a('s_mov_b32 s97, s90')
        a('Lspin:'); a('s_memrealtime s[90:91]'); a('s_waitcnt lgkmcnt(0)'); a('s_sub_u32 s90, s90, s97'); a('s_cmp_lt_u32 s90, s96'); a('s_cbranch_scc1 Lspin')
    a('Lend:')
    a('s_endpgm')
    body = a.a.finish()
    print('instrs', len(a.a.L), 'nops', a.a.nops, file=sys.stderr)
    hdr = open('sequential_preLN__ssm_conv_h3__mixer_s_mlp__prompt.s.ref').read().split('; Override')[0]
    out = hdr + '; @launch grid=(256,1,1) block=(256,1,1) lds=%d\n' % LDS_BYTES
    if stamp: out += '; stamps: ' + '|'.join(a.names) + '\n'
    out += '.amdgcn_target "amdgcn-amd-amdhsa--gfx950"\n.text\n.globl %s\n.p2align 8\n.type %s,@function\n%s:\n' % (NAME, NAME, NAME)
    out += body
    out += '.fill 4096, 4, 0xbf800000\n'
    out += '''.section .rodata,"a"
.p2align 6
.amdhsa_kernel %s
  .amdhsa_next_free_vgpr 512
  .amdhsa_next_free_sgpr 100
  .amdhsa_accum_offset 256
  .amdhsa_group_segment_fixed_size 0
  .amdhsa_kernarg_size 112
  .amdhsa_user_sgpr_count 2
  .amdhsa_user_sgpr_kernarg_segment_ptr 1
  .amdhsa_system_sgpr_workgroup_id_x 1
  .amdhsa_float_denorm_mode_32 3
.end_amdhsa_kernel
''' % NAME
    return out

if __name__ == '__main__':
    open(sys.argv[1], 'w').write(build(len(sys.argv) > 2))
```

```python
import sys, struct, os
from asmlib import *

E = lambda n, d: type(d)(os.environ.get(n, d))
NT = E('NT', ''); NTX = E('NTX', ''); PACE = E('PACE', 7); PRE0 = E('PRE0', 0); NST = E('NST', 8); SLEEP = E('SLEEP', 4)
W4TAIL = E('W4TAIL', 4); W4END = E('W4END', 60); OUTF = E('OUTF', '')
TWHEN = E('TWHEN', 2); BG0 = E('BG0', 28); ST_AT = E('ST_AT', 3); PST_AT = E('PST_AT', 110); W2A = E('W2A', 0); ZT = E('ZT', 0); W2PRE = E('W2PRE', 0); RR = E('RR', ''); HFS = E('HFS', 8); HREP = E('HREP', 8)
KWHEN = E('KWHEN', 0); PWHEN = E('PWHEN', 1)
W3A = E('W3A', 20); W3B = E('W3B', 8); W3C = E('W3C', 12)
EXP = E('EXP', '').split(',')
SPIN = os.environ['SPIN'].split(',') if os.environ.get('SPIN') else None

MB = 1 << 20
KVR = 0; XT = 2 * MB; HT = 4 * MB; ZB = 6 * MB; X1B = 8 * MB; HB = 10 * MB
W3P = 16 * MB; W4P = W3P + 1408 * 1024
ST0 = 20 * MB
ST1 = ST0 + 65536
FL = ST1 + 262144
FGL = 0x8000
F_A = FL; F_Z = FL + 0x1000; F_X = FL + 0x2000; F_F = FL + 0x3000
F_H = FL + 0x10000
STAMPS = 64 * MB
DUMP = 0x10000000
HTH = 176 * 512
EPS = 1e-5
def f2u(f): return struct.unpack('<I', struct.pack('<f', f))[0]
C0 = -2.0 * 0.7978845608028654 * 1.4426950408889634
C1 = C0 * 0.044715
NAME = 'sequential_preLN__ssm_conv_h3__mixer_s_mlp__prompt_kernel'

CS = 4160
L_E4 = 0; L_KV = 33280; L_CRED = L_KV + 2 * 4608
L_S = 65536
L_S2 = 131072
L_K = L_S; L_V = L_K + 9216; L_X = L_V + 8192; L_PK = L_S + 32768
G_RED = 65536; G_ST = G_RED + 49152; G_ST2 = G_ST + 2048
LDS_BYTES = 163840

TAG = 's[80:81]'
class G:
    def __init__(self, stamp=False):
        self.a = Asm(); self.stamp_on = stamp; self.q = []; self.nst = 0; self.names = []; self.np = 0
    def __call__(self, t): self.a(t)
    def vm(self, text, label=None):
        self.a(text); self.q.append(label)
    def item(self, it):
        for x in it:
            if isinstance(x, tuple): self.vm(x[0], x[1])
            else: self.a(x)
    def take(self, lst, n=1):
        for _ in range(n):
            if lst: self.item(lst.pop(0))
    def wait(self, label, extra=''):
        if label not in self.q:
            if extra: self.a('s_waitcnt ' + extra)
            return
        idx = max(i for i, l in enumerate(self.q) if l == label)
        n = len(self.q) - 1 - idx
        assert n < 64
        self.a('s_waitcnt vmcnt(%d) %s' % (n, extra)); self.q = self.q[idx + 1:]
    def wait0(self, extra=''):
        self.a('s_waitcnt vmcnt(0) %s' % extra); self.q = []
    def count(self, lane):
        if self.stamp_on: self.a('v_writelane_b32 v15, s82, %d' % lane)
    def stamp(self, name):
        if SPIN and name in SPIN:
            self.a('s_memrealtime s[90:91]'); self.a('s_waitcnt lgkmcnt(0)'); self.a('s_mov_b32 s%d, s90' % (96 + SPIN.index(name)))
        if self.stamp_on:
            self.a('s_memrealtime s[90:91]'); self.a('s_memtime s[94:95]'); self.a('s_waitcnt lgkmcnt(0)'); self.a('v_writelane_b32 v15, s90, %d' % self.nst)
            self.a('v_writelane_b32 v15, s94, %d' % (32 + self.nst)); assert self.nst < 30
            self.names.append(name); self.nst += 1
    def guard(self, limit=0x20000):
        self.a('s_add_u32 s82, s82, 1'); self.a('s_cmp_gt_u32 s82, 0x%x' % limit); self.a('s_cbranch_scc1 Lend')
    def poll(self, vaddr, soff, dual, sleep=0, tmp=16):
        a = self; n = self.np; self.np += 1
        a('s_mov_b32 s82, 0')
        a('buffer_load_dwordx2 %s, v%d, s[32:35], %s offen sc1' % (vr(tmp, 2), vaddr, soff))
        a('Lpoll%d:' % n)
        a.wait0()
        a('v_cmp_ne_u64 vcc, %s, %s' % (TAG, vr(tmp, 2)))
        a('s_cbranch_vccz Lpolld%d' % n)
        if sleep: a('s_sleep %d' % sleep)
        so = soff
        if dual:
            a('s_cmp_lt_u32 s82, 32'); a('s_cselect_b32 s83, 0, 0x%x' % FGL); a('s_add_u32 s83, s83, %s' % soff); so = 's83'
        a('buffer_load_dwordx2 %s, v%d, s[32:35], %s offen sc1' % (vr(tmp, 2), vaddr, so))
        a.guard()
        a('s_branch Lpoll%d' % n)
        a('Lpolld%d:' % n)
    def signal(self, soff, rep=None):
        a = self; n = self.np; self.np += 1
        a('s_barrier')
        a('s_cmp_lg_u32 s48, 0'); a('s_cbranch_scc1 Lsig%d' % n)
        if rep is None:
            a('s_mov_b64 exec, 1')
            a('buffer_store_dwordx2 v[2:3], off, s[32:35], %s' % soff)
            a('s_add_u32 s83, %s, 0x%x' % (soff, FGL))
            a('buffer_store_dwordx2 v[2:3], off, s[32:35], s83 sc1')
        else:
            a('s_mov_b64 exec, %d' % ((1 << HREP) - 1))
            a('buffer_store_dwordx2 v[2:3], v%d, s[32:35], %s offen sc1' % (rep, soff))
        a('s_mov_b64 exec, -1')
        a('Lsig%d:' % n)

def srd(a, d, p, size, off=None):
    if off is None:
        a('s_mov_b32 s%d, s%d' % (d, p)); a('s_mov_b32 s%d, s%d' % (d + 1, p + 1))
    else:
        a('s_add_u32 s%d, s%d, %s' % (d, p, off)); a('s_addc_u32 s%d, s%d, 0' % (d + 1, p + 1))
    a('s_mov_b32 s%d, 0x%x' % (d + 2, size)); a('s_mov_b32 s%d, 0x20000' % (d + 3))

def allreduce(a, regs, tmps):
    for m in ('quad_perm:[1,0,3,2]', 'quad_perm:[2,3,0,1]', 'row_half_mirror', 'row_mirror'):
        for r in regs: a('v_add_f32_dpp v%d, v%d, v%d %s row_mask:0xf bank_mask:0xf' % (r, r, r, m))
    for sw in ('v_permlane16_swap_b32', 'v_permlane32_swap_b32'):
        for r, t in zip(regs, tmps): a('v_mov_b32 v%d, v%d' % (t, r))
        for r, t in zip(regs, tmps): a('%s v%d, v%d' % (sw, r, t))
        for r, t in zip(regs, tmps): a('v_add_f32 v%d, v%d, v%d' % (r, r, t))

ACC = 16
def acc(th, ch): return ACC + 32 * th + 16 * ch
def red_write(slot):
    th, ch = slot >> 1, slot & 1
    return ['ds_write_b128 v%d, %s offset:%d' % (10 + slot, vr(acc(th, ch) + 4 * q, 4), 1024 * q) for q in range(4)]
def red_reads(tmp): return ['ds_read_b128 %s, v13 offset:%d' % (vr(tmp + 4 * i, 4), 1024 * i) for i in range(12)]
def red_adds(a, tmp, dst=None):
    o = acc(1, 1)
    for i in range(12):
        if i % 2 == 0: a('s_waitcnt lgkmcnt(%d)' % (10 - i))
        d = dst if (dst is not None and i >= 8) else o
        for r in (0, 2): a('v_pk_add_f32 %s, %s, %s' % (vr(d + 4 * (i & 3) + r, 2), vr(o + 4 * (i & 3) + r, 2), vr(tmp + 4 * i + r, 2)))

def lo(d, s): return 'v_lshlrev_b32 v%d, 16, v%d' % (d, s)
def hi(d, s): return 'v_and_b32 v%d, s61, v%d' % (d, s)
def bc(r): return vr(r & ~1, 2), r & 1
def pk(op, d, srcs, neg=None):
    names = []; l = []; h = []
    for s in srcs:
        if isinstance(s, tuple): names.append(s[0]); l.append(s[1]); h.append(s[1])
        else: names.append(vr(s, 2)); l.append(0); h.append(1)
    t = '%s %s, %s' % (op, vr(d, 2), ', '.join(names))
    if l != [0] * len(l) or h != [1] * len(h):
        t += ' op_sel:[%s] op_sel_hi:[%s]' % (','.join(map(str, l)), ','.join(map(str, h)))
    if neg: t += ' neg_lo:[%s] neg_hi:[%s]' % (','.join(map(str, neg)), ','.join(map(str, neg)))
    return t
def gelu_plain(t, ca, cb, ri, tmp, n):
    l = []
    for i in range(n): l.append('v_mul_f32 v%d, v%d, v%d' % (tmp + i, t + i, t + i))
    for i in range(n): l.append('v_fma_f32 v%d, v%d, v%d, v%d' % (tmp + i, tmp + i, cb, ca))
    for i in range(n): l.append('v_mul_f32 v%d, v%d, v%d' % (tmp + i, tmp + i, t + i))
    for i in range(n): l.append('v_exp_f32 v%d, v%d' % (tmp + i, tmp + i))
    for i in range(n): l.append('v_fma_f32 v%d, v%d, v%d, v%d' % (tmp + i, tmp + i, ri, ri))
    for i in range(n): l.append('v_rcp_f32 v%d, v%d' % (tmp + i, tmp + i))
    for i in range(n): l.append('v_mul_f32 v%d, v%d, v%d' % (t + i, t + i, tmp + i))
    return l
def gelu_pk(t, ca, cb, ri, tmp, n):
    l = []
    for i in range(0, n, 2): l.append(pk('v_pk_mul_f32', tmp + i, [t + i, t + i]))
    for i in range(0, n, 2): l.append(pk('v_pk_fma_f32', tmp + i, [tmp + i, bc(cb), bc(ca)]))
    for i in range(0, n, 2): l.append(pk('v_pk_mul_f32', tmp + i, [tmp + i, t + i]))
    for i in range(n): l.append('v_exp_f32 v%d, v%d' % (tmp + i, tmp + i))
    for i in range(0, n, 2): l.append(pk('v_pk_fma_f32', tmp + i, [tmp + i, bc(ri), bc(ri)]))
    for i in range(n): l.append('v_rcp_f32 v%d, v%d' % (tmp + i, tmp + i))
    for i in range(0, n, 2): l.append(pk('v_pk_mul_f32', t + i, [t + i, tmp + i]))
    return l
M32 = 'v_mfma_f32_32x32x16_bf16 %s, %s, %s, %s'
M16 = 'v_mfma_f32_16x16x32_bf16 %s, %s, %s, %s'
TR = 'ds_read_b64_tr_b16 %s, v%d offset:%d'

def build(stamp=False):
    a = G(stamp)
    a('s_cmp_ge_u32 s2, 256'); a('s_cbranch_scc1 Lend')
    if SPIN and SPIN[0] == 'entry': a.stamp('entry')
    a('s_load_dwordx16 s[4:19], s[0:1], 0')
    a('s_getpc_b64 s[84:85]')
    a('s_lshr_b32 s49, s2, 3'); a('s_lshl_b32 s53, s49, 10'); a('v_lshlrev_b32 v7, 2, v0'); a('v_and_b32 v7, 0x380, v7'); a('v_add_u32 v7, s53, v7')
    a.vm('global_load_dword v148, v7, s[84:85]')
    a('s_load_dwordx8 s[20:27], s[0:1], 64')
    a('s_load_dwordx4 s[28:31], s[0:1], 96')
    a('s_memrealtime s[80:81]')
    a('v_lshrrev_b32 v1, 6, v0'); a('v_readfirstlane_b32 s48, v1'); a('v_and_b32 v1, 63, v0')
    if stamp: a('v_mov_b32 v15, 0')
    a('s_and_b32 s50, s2, 7')
    a('s_and_b32 s51, s48, 1'); a('s_lshr_b32 s52, s48, 1')
    a('v_and_b32 v5, 15, v1'); a('v_lshrrev_b32 v6, 4, v1'); a('v_lshlrev_b32 v14, 4, v1')
    a('v_lshrrev_b32 v7, 3, v1'); a('v_lshlrev_b32 v7, 10, v7'); a('v_and_b32 v8, 7, v1'); a('v_lshl_add_u32 v7, v8, 4, v7')
    a('v_and_b32 v8, 1, v6'); a('v_lshlrev_b32 v9, 6, v8'); a('v_xor_b32 v184, v9, v7')
    a('v_lshlrev_b32 v9, 5, v8'); a('v_xor_b32 v16, v9, v7'); a('v_xor_b32 v17, 64, v16'); a('v_add_u32 v18, 0x1c00, v17')
    a('s_lshl_b32 s53, s49, 16'); a('s_lshl_b32 s54, s48, 14'); a('s_add_u32 s53, s53, s54'); a('s_lshl_b32 s54, s50, 7'); a('s_add_u32 s55, s53, s54')
    a('s_lshl_b32 s56, s48, 11')
    a('v_add_u32 v19, 0x1c00, v16')
    a('s_movk_i32 s62, 0x1000'); a('s_mov_b32 s60, 0x%x' % f2u(1.0 / 512)); a('s_mov_b32 s61, 0xffff0000')
    a('s_lshl_b32 s63, s2, 2'); a('s_add_u32 s63, s63, s48')
    a('s_waitcnt lgkmcnt(0)')
    a.stamp('start')
    srd(a, 36, 6, 2 * MB)
    a('s_add_u32 s53, s56, %d' % (L_K + 1024)); a('s_mov_b32 m0, s53')
    a.vm('buffer_load_dwordx4 v17, s[36:39], s55 offen %s lds' % NT)
    a.vm('buffer_load_dwordx4 v19, s[36:39], s55 offen offset:1024 %s lds' % NT)
    srd(a, 40, 8, 2 * MB)
    a('s_add_u32 s53, s56, %d' % L_V); a('s_mov_b32 m0, s53')
    a.vm('buffer_load_dwordx4 v16, s[40:43], s55 offen %s lds' % NT)
    a.vm('buffer_load_dwordx4 v18, s[40:43], s55 offen offset:1024 %s lds' % NT)
    a('s_cmp_lg_u32 s48, 0'); a('s_cbranch_scc1 Lnoh')
    a('s_sub_u32 s53, s55, 0x2000'); a('s_cselect_b32 s53, 0x400000, s53'); a('s_mov_b32 m0, %d' % L_K)
    a('buffer_load_dwordx4 v16, s[36:39], s53 offen %s lds' % NT)
    a('s_cmp_lg_u32 s2, 0'); a('s_cbranch_scc1 Lnoh')
    a('v_mov_b32 v2, s80'); a('v_mov_b32 v3, s81'); a('v_mov_b32 v4, 0'); a('s_mov_b64 exec, 1')
    a('global_store_dwordx2 v4, v[2:3], s[28:29] sc1'); a('s_mov_b64 exec, -1')
    a('Lnoh:')
    srd(a, 44, 4, 2 * MB)
    a('s_add_u32 s53, s56, %d' % L_X); a('s_mov_b32 m0, s53')
    a.vm('buffer_load_dwordx4 v16, s[44:47], s55 offen %s lds' % NTX)
    a.vm('buffer_load_dwordx4 v18, s[44:47], s55 offen offset:1024 %s lds' % NTX)
    a('s_lshl_b32 s53, s50, 2'); a('s_add_u32 s53, s53, s48'); a('s_lshl_b32 s53, s53, 4'); a('v_add_u32 v20, s53, v5')
    a('v_lshlrev_b32 v7, 3, v20')
    a.vm('global_load_dwordx2 v[44:45], v7, s[10:11]', 'kvx')
    a('s_lshr_b32 s53, s2, 5'); a('s_lshl_b32 s53, s53, 18'); a('s_and_b32 s54, s63, 15'); a('s_lshl_b32 s54, s54, 14'); a('s_add_u32 s53, s53, s54')
    a('s_bfe_u32 s54, s2, 0x20002'); a('s_lshl_b32 s54, s54, 12'); a('s_add_u32 s53, s53, s54')
    a('s_bfe_u32 s54, s2, 0x10004'); a('s_lshl_b32 s54, s54, 11'); a('s_add_u32 s53, s53, s54'); a('v_add_u32 v7, s53, v14')
    a.vm('global_load_dwordx4 v[128:131], v7, s[4:5] ' + NTX); a.vm('global_load_dwordx4 v[132:135], v7, s[4:5] offset:1024 ' + NTX, 'xr')
    def kloads():
        a('s_lshl_b32 s64, s50, 6'); a('s_lshl_b32 s53, s49, 1'); a('s_add_u32 s64, s64, s53')
        a('s_lshl_b32 s53, s64, 1'); a('s_load_dword s65, s[14:15], s53')
        a('s_add_u32 s64, s64, s52'); a('s_lshl_b32 s66, s64, 12')
        srd(a, 36, 12, 4096, 's66')
        a('s_lshl_b32 s67, s51, 11'); a('v_add_u32 v10, s67, v14'); a('v_add_u32 v150, -8, v10'); a('v_add_u32 v151, 1016, v10')
        a.vm('buffer_load_dwordx2 v[136:137], v150, s[36:39], 0 offen ' + NT)
        a.vm('buffer_load_dwordx4 v[138:141], v10, s[36:39], 0 offen ' + NT)
        a.vm('buffer_load_dwordx2 v[142:143], v151, s[36:39], 0 offen ' + NT)
        a.vm('buffer_load_dwordx4 v[144:147], v10, s[36:39], 0 offen offset:1024 ' + NT, 'K')
    if KWHEN == 0: kloads()
    srd(a, 32, 30, 0x10000000)
    a('v_and_b32 v7, 3, v1'); a('v_lshlrev_b32 v7, 12, v7'); a('v_bfe_u32 v8, v1, 2, 2'); a('v_lshl_add_u32 v7, v8, 7, v7')
    a('s_lshl_b32 s53, s50, 9'); a('s_add_u32 s72, s53, 0x%x' % F_A)
    a.vm('buffer_load_dword v149, v7, s[32:35], s72 offen sc1')
    a('s_lshl_b32 s76, s48, 12'); a('s_add_u32 s76, s76, %d' % L_PK); a('s_sub_u32 s74, 1023, s63')
    for i in range(1, 4): a('v_add_u32 v%d, %d, v184' % (248 + i, 7168 * i))
    def ploads():
        srd(a, 36, 24, 1376 * 1024)
        a('s_and_b32 s53, s63, 7'); a('s_lshl_b32 s53, s53, 7'); a('s_lshr_b32 s54, s63, 3'); a('s_lshl_b32 s54, s54, 14'); a('s_add_u32 s73, s53, s54')
        a('s_mov_b32 m0, s76')
        a.vm('buffer_load_dwordx4 v184, s[36:39], s73 offen %s lds' % NT)
        a.vm('buffer_load_dwordx4 v249, s[36:39], s73 offen offset:1024 %s lds' % NT)
        srd(a, 36, 22, 512 * 2752)
        a('s_and_b32 s53, s74, 15'); a('s_mul_i32 s53, s53, %d' % (32 * 2752)); a('s_lshr_b32 s54, s74, 4'); a('s_lshl_b32 s54, s54, 6')
        a('s_add_u32 s75, s53, s54'); a('s_cmp_lt_u32 s74, 688'); a('s_cselect_b32 s75, s75, 0x400000')
        a('v_lshrrev_b32 v150, 2, v1'); a('v_mul_u32_u24 v150, 2752, v150'); a('v_and_b32 v151, 3, v1'); a('v_lshl_add_u32 v150, v151, 4, v150')
        a('s_add_u32 s53, s76, 2048'); a('s_mov_b32 m0, s53'); a('s_add_u32 s54, s75, %d' % (16 * 2752 - 1024))
        a.vm('buffer_load_dwordx4 v150, s[36:39], s75 offen %s lds' % NT)
        a.vm('buffer_load_dwordx4 v150, s[36:39], s54 offen offset:1024 %s lds' % NT, 'pk')
    if PWHEN == 0: ploads()
    if 'front' in EXP: a.stamp('issued')
    a('s_and_b32 s53, s63, 7'); a('s_mul_i32 s53, s53, %d' % (86 * 2048)); a('s_lshr_b32 s54, s63, 3'); a('s_lshl_b32 s54, s54, 11'); a('s_add_u32 s53, s53, s54')
    a('s_add_u32 s53, s53, 0x%x' % W4P); a('s_cmp_lt_u32 s63, 688'); a('s_cselect_b32 s88, s53, 0x%x' % DUMP)
    a('s_lshr_b32 s54, s74, 4'); a('s_lshl_b32 s54, s54, 15'); a('s_and_b32 s55, s74, 15'); a('s_lshl_b32 s55, s55, 10'); a('s_add_u32 s54, s54, s55')
    a('s_add_u32 s54, s54, 0x%x' % W3P); a('s_cmp_lt_u32 s74, 688'); a('s_cselect_b32 s89, s54, 0x%x' % DUMP); a('s_add_u32 s59, s89, 0x4000')
    a('s_lshl_b32 s68, s50, 2'); a('s_and_b32 s53, s49, 3'); a('s_add_u32 s68, s68, s53')
    a('s_lshr_b32 s69, s2, 5')
    a('s_lshl_b32 s92, s53, 12')
    a('s_lshl_b32 s77, s48, 14'); a('s_add_u32 s77, s77, %d' % L_S)
    a('s_lshl_b32 s78, s48, 17'); a('s_lshl_b32 s53, s69, 7'); a('s_add_u32 s78, s78, s53')
    srd(a, 40, 20, 512 * 1024); srd(a, 44, 18, 512 * 1024)
    for i in range(4): a('v_mov_b32 v%d, 0' % (152 + i))
    a('s_mul_i32 s70, s52, 4608'); a('s_add_u32 s70, s70, %d' % L_KV)
    a('s_mul_i32 s71, s52, %d' % (4 * CS))
    a('v_and_b32 v7, 31, v1'); a('v_lshl_add_u32 v7, v7, 4, s70')
    a('ds_write_b128 v7, v[152:155] offset:4096')
    a('v_and_b32 v7, 1, v1'); a('v_lshlrev_b32 v7, 4, v7'); a('v_bfe_u32 v8, v1, 1, 2'); a('v_mul_u32_u24 v8, %d, v8' % CS)
    a('v_add3_u32 v7, v7, v8, s71')
    a('ds_write_b128 v7, v[152:155] offset:%d' % L_E4)
    for i in range(4): a('v_mov_b32 v%d, -1' % (252 + i))
    a('s_bfe_u32 s53, s69, 0x10001')
    a('v_bfe_u32 v7, v1, 3, 1'); a('s_mul_i32 s54, s53, 31'); a('v_xor_b32 v7, s54, v7'); a('v_lshlrev_b32 v7, 4, v7')
    a('v_and_b32 v8, 7, v1'); a('v_lshl_add_u32 v191, v8, 9, v7')
    a('s_lshl_b32 s54, s68, 1'); a('s_add_u32 s53, s53, s54'); a('s_lshl_b32 s53, s53, 15'); a('s_lshl_b32 s54, s69, 12'); a('s_add_u32 s53, s53, s54')
    a('s_add_u32 s79, s53, 0x%x' % ZB)
    a('s_movk_i32 s83, 0x800')
    a('v_and_b32 v7, 31, v1'); a('s_lshl_b32 s53, s51, 5'); a('v_add_u32 v7, s53, v7')
    a('s_lshr_b32 s53, s69, 1'); a('s_lshl_b32 s53, s53, 3'); a('s_lshr_b32 s53, 0xfe02ff01, s53'); a('s_sext_i32_i8 s53, s53')
    a('s_lshl_b32 s54, s68, 6'); a('s_add_u32 s53, s53, s54'); a('v_add_u32 v7, s53, v7')
    a('v_cmp_gt_u32 s[98:99], s62, v7'.replace('s62', 's83')); a('v_and_b32 v7, 0x7ff, v7')
    a('v_lshrrev_b32 v248, 5, v7'); a('v_lshlrev_b32 v248, 15, v248'); a('v_and_b32 v7, 31, v7'); a('v_lshl_add_u32 v248, v7, 4, v248')
    a('v_lshrrev_b32 v7, 5, v1'); a('v_lshl_add_u32 v248, v7, 9, v248')
    a('s_lshl_b32 s53, s69, 12'); a('s_lshl_b32 s54, s52, 11'); a('s_add_u32 s86, s53, s54'); a('s_add_u32 s86, s86, 0x%x' % ZB)
    a('v_and_b32 v11, 3, v5'); a('v_mul_u32_u24 v11, %d, v11' % CS); a('v_and_b32 v12, 12, v5'); a('v_lshl_add_u32 v11, v12, 1, v11')
    a('v_lshl_add_u32 v11, v6, 4, v11'); a('s_lshl_b32 s56, s51, 8'); a('s_add_u32 s57, s56, s71'); a('s_add_u32 s57, s57, %d' % (L_E4 + 8))
    a('v_add_u32 v11, s57, v11')
    a('v_lshlrev_b32 v12, 4, v6'); a('v_lshlrev_b32 v13, 5, v5'); a('v_sub_u32 v12, v12, v13')
    a('s_add_u32 s57, s56, s70'); a('s_add_u32 s57, s57, 480'); a('v_add_u32 v12, s57, v12')
    a('v_lshlrev_b32 v7, 4, v5'); a('v_lshl_add_u32 v7, v6, 2, v7'); a('s_lshl_b32 s56, s51, 10'); a('v_add_u32 v7, s56, v7')
    a('v_lshlrev_b32 v8, 1, v7'); a('s_lshl_b32 s56, s51, 13'); a('v_add_u32 v9, s56, v14')
    a('s_add_u32 s57, s70, %d' % (2 * (2044 - 768))); a('v_sub_u32 v13, s57, v8')
    a('v_and_b32 v185, 1, v6'); a('v_lshlrev_b32 v185, 18, v185'); a('v_lshrrev_b32 v7, 2, v5'); a('v_lshl_add_u32 v185, v7, 16, v185')
    a('v_and_b32 v7, 3, v5'); a('v_lshl_add_u32 v185, v7, 5, v185'); a('v_lshrrev_b32 v7, 1, v6'); a('v_lshl_add_u32 v185, v7, 4, v185')
    a('v_lshrrev_b32 v21, 5, v1'); a('v_bfe_u32 v22, v1, 2, 2')
    a('v_lshl_add_u32 v7, v21, 3, v22'); a('v_lshlrev_b32 v7, 7, v7'); a('v_lshrrev_b32 v23, 1, v22'); a('v_lshl_add_u32 v7, v23, 6, v7')
    a('v_and_b32 v21, 1, v6'); a('v_lshl_add_u32 v7, v21, 5, v7')
    a('v_and_b32 v24, 3, v1'); a('v_lshl_add_u32 v187, v24, 3, v7')
    a('v_and_b32 v25, 1, v1'); a('v_lshl_add_u32 v7, v25, 4, v7'); a('v_bfe_u32 v25, v1, 1, 1'); a('v_lshl_add_u32 v188, v25, 3, v7')
    a('v_add_u32 v189, s76, v188'); a('v_xor_b32 v190, 64, v189')
    a('v_lshl_add_u32 v7, v6, 3, v22'); a('v_lshlrev_b32 v186, 6, v7'); a('v_lshl_add_u32 v186, v24, 3, v186'); a('v_add_u32 v186, s76, v186')
    a('v_lshlrev_b32 v7, 7, v7'); a('v_lshl_add_u32 v23, v21, 1, v23'); a('v_xor_b32 v23, s48, v23'); a('v_lshl_add_u32 v7, v23, 5, v7')
    a('v_lshl_add_u32 v7, v24, 3, v7'); a('v_add_u32 v26, %d, v7' % L_K); a('v_xor_b32 v27, 64, v26')
    a('v_lshlrev_b32 v20, 12, v20'); a('s_lshl_b32 s53, s49, 7'); a('v_lshl_add_u32 v7, v6, 4, s53')
    a('v_add_u32 v28, v20, v7'); a('v_add_u32 v28, 0x%x, v28' % XT)
    a('v_sub_u32 v29, v20, v7'); a('v_add_u32 v29, %d, v29' % (4080 - 64 + KVR))
    a('v_and_b32 v4, 31, v1'); a('v_lshlrev_b32 v4, 3, v4'); a('v_mov_b32 v0, 0')
    if 'front' in EXP: a.stamp('addr done')
    a.wait('kvx')
    if 'front' in EXP: a.stamp('own landed')
    a('s_barrier')
    a.vm('global_load_dwordx2 v[2:3], v0, s[28:29] sc1', 'tag')
    a.stamp('k landed')
    if KWHEN == 2: kloads()
    if PWHEN == 2: ploads()
    for o in range(2):
        a(TR % (vr(30 + 6 * o, 2), 26, 512 + 4096 * o))
        a(TR % (vr(32 + 6 * o, 2), 27, 1024 + 4096 * o)); a(TR % (vr(34 + 6 * o, 2), 27, 1536 + 4096 * o))
    for o in range(2):
        for z in range(2): a(TR % (vr(112 + 4 * o + 2 * z, 2), 26, L_V - L_K + 512 * z + 4096 * o))
    for o in range(2):
        for z in range(2): a(TR % (vr(120 + 4 * o + 2 * z, 2), 26, L_X - L_K + 512 * z + 4096 * o))
    a(lo(70, 44)); a(hi(71, 44)); a(lo(72, 45)); a(hi(73, 45))
    a('s_waitcnt lgkmcnt(8)')
    for t in range(1, 12):
        for o in range(2): a((hi if t & 1 else lo)(46 + 2 * t + o, 30 + 6 * o + (t >> 1)))
    a('s_waitcnt lgkmcnt(0)')
    a.vm('buffer_store_dwordx4 v[120:123], v28, s[32:35], 0 offen sc1')
    a.vm('buffer_store_dwordx4 v[124:127], v28, s[32:35], 0 offen offset:64 sc1')
    for i in range(8): a(pk('v_pk_mul_f32', 94 + 2 * i, [48 + 2 * i, bc(73)]))
    for t in (1, 2, 3):
        for i in range(8): a(pk('v_pk_fma_f32', 94 + 2 * i, [48 + 2 * (i + t), bc(73 - t), 94 + 2 * i]))
    for i in range(8):
        for o in range(2): a((hi if i & 1 else lo)(78 + 2 * i + o, 112 + 4 * o + (i >> 1)))
    for i in range(8): a(pk('v_pk_mul_f32', 94 + 2 * i, [94 + 2 * i, 78 + 2 * i]))
    for o in range(2):
        for i in range(4): a('v_cvt_pk_bf16_f32 v%d, v%d, v%d' % (112 + 4 * o + i, 94 + 2 * (7 - 2 * i) + o, 94 + 2 * (6 - 2 * i) + o))
    a.vm('buffer_store_dwordx4 v[112:115], v29, s[32:35], 0 offen offset:64 sc1')
    a.vm('buffer_store_dwordx4 v[116:119], v29, s[32:35], 0 offen sc1', 'st')
    a.stamp('kv stored')
    if KWHEN == 1: kloads()
    if PWHEN == 1: ploads()
    a.wait('xr')
    for r in range(2):
        for i in range(4): a(lo(48 + 8 * r + 2 * i, 128 + 4 * r + i)); a(hi(49 + 8 * r + 2 * i, 128 + 4 * r + i))
    for r in range(2):
        b = 48 + 8 * r
        a(pk('v_pk_add_f32', 70 + 2 * r, [b, b + 2])); a(pk('v_pk_add_f32', 74 + 2 * r, [b + 4, b + 6]))
    for r in range(2): a(pk('v_pk_add_f32', 70 + 2 * r, [70 + 2 * r, 74 + 2 * r]))
    for r in range(2): a('v_add_f32 v%d, v%d, v%d' % (64 + r, 70 + 2 * r, 71 + 2 * r))
    allreduce(a, [64, 65], [66, 67])
    for r in range(2): a('v_mul_f32 v%d, s60, v%d' % (64 + r, 64 + r))
    for r in range(2):
        for i in range(0, 8, 2): a(pk('v_pk_add_f32', 48 + 8 * r + i, [48 + 8 * r + i, bc(64 + r)], neg=[0, 1]))
    for r in range(2):
        b = 48 + 8 * r
        a(pk('v_pk_mul_f32', 70 + 2 * r, [b, b]))
        for i in (2, 4, 6): a(pk('v_pk_fma_f32', 70 + 2 * r, [b + i, b + i, 70 + 2 * r]))
    for r in range(2): a('v_add_f32 v%d, v%d, v%d' % (68 + r, 70 + 2 * r, 71 + 2 * r))
    allreduce(a, [68, 69], [66, 67])
    for r in range(2): a('v_mul_f32 v%d, s60, v%d' % (68 + r, 68 + r))
    a('v_cvt_pk_bf16_f32 v68, v68, v69'); a(hi(69, 68)); a(lo(68, 68))
    for r in range(2): a('v_add_f32 v%d, 0x%x, v%d' % (68 + r, f2u(EPS), 68 + r))
    a('v_cvt_pk_bf16_f32 v68, v68, v69'); a(hi(69, 68)); a(lo(68, 68))
    for r in range(2): a('v_sqrt_f32 v%d, v%d' % (68 + r, 68 + r))
    a('s_lshl_b32 s53, s48, 3'); a('s_add_u32 s53, s53, %d' % L_CRED); a('v_mov_b32 v7, s53')
    a('v_cvt_pk_bf16_f32 v72, v68, v64'); a('v_cvt_pk_bf16_f32 v73, v69, v65')
    a('ds_write_b64 v7, v[72:73]')
    a('s_lshl_b32 s53, s49, 3'); a('s_add_u32 s58, s53, s72')
    a('s_mov_b32 s82, 0')
    a.wait('st', 'lgkmcnt(0)')
    a('Ltag:')
    a('v_readfirstlane_b32 s80, v2'); a('v_readfirstlane_b32 s81, v3')
    a('s_or_b32 s53, s80, s81'); a('s_cbranch_scc1 Ltagok')
    a('global_load_dwordx2 v[2:3], v0, s[28:29] sc1')
    a.guard()
    a('s_waitcnt vmcnt(0)')
    a('s_branch Ltag')
    a('Ltagok:')
    a.stamp('drained')
    a.signal('s58')
    if 'a' in RR:
        a.vm('buffer_load_dword v18, v29, s[32:35], 0 offen sc1'); a.vm('buffer_load_dword v19, v28, s[32:35], 0 offen sc1')
    a('s_cmp_lg_u32 s48, 1'); a('s_cbranch_scc1 Lnost')
    a('v_lshlrev_b32 v7, 3, v1'); a('ds_read_b64 v[72:73], v7 offset:%d' % L_CRED)
    a('s_lshl_b32 s53, s2, 6'); a('s_add_u32 s53, s53, 0x%x' % ST0); a('v_mov_b32 v75, s80')
    a('s_mov_b64 exec, 15'); a('s_waitcnt lgkmcnt(0)')
    a('v_mov_b32 v74, v73'); a('v_mov_b32 v73, s80')
    a('buffer_store_dwordx4 v[72:75], v14, s[32:35], s53 offen sc1'); a('s_mov_b64 exec, -1')
    a('Lnost:')
    def late():
        a(TR % ('v[192:193]', 189, 0)); a(TR % ('v[194:195]', 189, 512)); a(TR % ('v[196:197]', 190, 0)); a(TR % ('v[198:199]', 190, 512))
        for e in range(2):
            for z in range(2): a(TR % (vr(200 + 4 * e + 2 * z, 2), 186, 2048 + 32 * e + 256 * z))
        a('v_add_u32 v7, s71, v10')
        for i in range(2):
            W = 136 + 6 * i; b = 20 + 12 * i
            for x in range(4): a('v_alignbit_b32 v%d, v%d, v%d, 16' % (b + x, W + x + 1, W + x))
            for x in range(4): a('v_mov_b32 v%d, v%d' % (b + 4 + x, W + x + 1))
            for x in range(4): a('v_alignbit_b32 v%d, v%d, v%d, 16' % (b + 8 + x, W + x + 2, W + x + 1))
            o = L_E4 + 32 + 1024 * i
            a('ds_write_b128 v7, %s offset:%d' % (vr(W + 2, 4), o + 3 * CS))
            a('ds_write_b128 v7, %s offset:%d' % (vr(b, 4), o))
            a('ds_write_b128 v7, %s offset:%d' % (vr(b + 4, 4), o + CS))
            a('ds_write_b128 v7, %s offset:%d' % (vr(b + 8, 4), o + 2 * CS))
    if KWHEN != 1 and PWHEN != 1: late()
    a('s_add_u32 s56, s70, s67'); a('s_mov_b32 m0, s56'); a('s_add_u32 s57, s66, %d' % KVR); a('s_add_u32 s58, s66, 0x%x' % XT)
    a.poll(4, 's72', True)
    a.stamp('X0 seen')
    a.vm('buffer_load_dwordx4 v10, s[32:35], s57 offen sc1 lds')
    a.vm('buffer_load_dwordx4 v10, s[32:35], s57 offen offset:1024 sc1 lds', 'kv')
    for i in range(4): a.vm('buffer_load_dwordx2 %s, v8, s[32:35], s58 offen offset:%d sc1' % (vr(208 + 2 * i, 2), 512 * i), 'xT')
    if KWHEN == 1 or PWHEN == 1: late()
    pst = [[('buffer_store_dwordx4 %s, v14, s[32:35], %s offen offset:%d sc1' % (vr(192 + 4 * z, 4), ('s88', 's88', 's89', 's59')[z], 1024 if z == 1 else 0), None)] for z in range(4)]
    pst.append(['s_mov_b64 exec, 0xffff', ('buffer_store_dwordx4 v[252:255], v191, s[32:35], s79 offen sc1', None), 's_mov_b64 exec, -1'])
    if ZT: pst = [[('buffer_load_dword v192, v248, s[32:35], s86 offen', None)], [('buffer_load_dword v193, v248, s[32:35], s86 offen offset:1024', None)]][:0] + pst + [[('buffer_load_dword v4, v248, s[32:35], s86 offen', None)], [('buffer_load_dword v4, v248, s[32:35], s86 offen offset:1024', None)]]
    def wdma(srdn, label, ngrp, mask, ldsbase, srcoff):
        l = []
        for i in range(4 * ngrp):
            it = []
            if i % 4 == 0:
                it += ['s_add_u32 s55, s92, %d' % (1024 * i), 's_and_b32 s55, s55, 0x%x' % mask, 's_add_u32 s53, %s, s55' % ldsbase, 's_mov_b32 m0, s53',
                       's_lshl_b32 s55, s55, 3', 's_add_u32 s93, s78, s55']
                if srcoff: it.append('s_add_u32 s93, s93, %d' % srcoff)
            it.append(('buffer_load_dwordx4 v%d, s[%d:%d], s93 offen offset:%d lds' % (248 + (i & 3) if i & 3 else 184, srdn, srdn + 3, 1024 * (i & 3)), label))
            l.append(it)
        return l
    def stloads(fl=''):
        return [['s_mov_b32 s54, 0x%x' % (ST0 + 4096 * (i >> 2)),
                 ('buffer_load_dwordx4 %s, v9, s[32:35], s54 offen offset:%d %s' % (vr(216 + 4 * i, 4), 1024 * (i & 3), fl), 'st0')] for i in range(8)]
    w1l = wdma(44, 'w1', 4, 0x3fff, 's77', 0)
    bg = w1l; stl = stloads()
    if W2A: a('s_lshl_b32 s87, s48, 13'); a('s_add_u32 s87, s87, %d' % L_S2); bg += wdma(40, 'w1', 2, 0x1fff, 's87', 0)
    a('s_waitcnt lgkmcnt(0)')
    a('s_barrier')
    a.take(bg, PRE0)
    a('s_lshl_b32 s56, s65, 16'); a('s_and_b32 s57, s65, 0xffff0000'); a('s_cmp_eq_u32 s52, 0'); a('s_cselect_b32 s65, s56, s57')
    a('s_lshl_b32 s57, s51, 20'); a('s_lshl_b32 s58, s64, 7'); a('s_add_u32 s57, s57, s58'); a('s_add_u32 s57, s57, 0x%x' % HT)
    a('s_add_u32 s58, s57, 0x80000')
    a('s_lshl_b32 s53, s48, 12'); a('s_add_u32 s53, s53, %d' % L_CRED); a('v_add_u32 v190, s53, v14'); a('v_xor_b32 v189, 0x1000, v14')
    a('s_lshl_b32 s53, s48, 12'); a('v_xor_b32 v189, s53, v189'); a('v_add_u32 v189, %d, v189' % L_CRED)
    CA = 16; FR = 48
    def A(st, x): return FR + 64 * st + 4 * x
    def B(st, x): return FR + 64 * st + 32 + 4 * x
    def reads(rho):
        st = rho & 1; l = []
        for x in range(8):
            l.append('ds_read_b64 %s, v11 offset:%d' % (vr(A(st, x), 2), 512 * x + 64 * rho))
            l.append('ds_read_b64 %s, v11 offset:%d' % (vr(A(st, x) + 2, 2), 512 * x + 64 * rho + 8))
            l.append('ds_read_b128 %s, v12 offset:%d' % (vr(B(st, x), 4), 512 * (7 - x) + 64 * rho))
        return l
    XF = 48; XN = 64; KD = 80; RS = 96
    def shadow():
        l = ['s_waitcnt lgkmcnt(0)']
        for i in range(4):
            l += [hi(KD + 4 * i, 177 + 2 * i), lo(KD + 4 * i + 1, 177 + 2 * i), hi(KD + 4 * i + 2, 176 + 2 * i), lo(KD + 4 * i + 3, 176 + 2 * i)]
        l += ['v_mul_f32 v%d, s65, v%d' % (KD + i, KD + i) for i in range(16)]
        l.append(('wait', 'st0'))
        l += [(hi if i & 1 else lo)(XF + i, 208 + (i >> 1)) for i in range(16)]
        l.append(('check',))
        l += [lo(RS + i, 216 + 2 * i) for i in range(16)]
        l += ['v_rcp_f32 v%d, v%d' % (RS + i, RS + i) for i in range(16)]
        l += [hi(XN + i, 216 + 2 * i) for i in range(16)]
        l += ['v_sub_f32 v%d, v%d, v%d' % (XN + i, XF + i, XN + i) for i in range(16)]
        l += ['v_mul_f32 v%d, v%d, v%d' % (XN + i, XN + i, RS + i) for i in range(16)]
        return l
    def check():
        a('s_mov_b32 s82, 0')
        a('Lst0:')
        a('v_min3_u32 v7, v217, v219, v221'); a('v_max3_u32 v0, v217, v219, v221')
        for i in range(3, 15, 2):
            a('v_min3_u32 v7, v7, v%d, v%d' % (217 + 2 * i, 219 + 2 * i)); a('v_max3_u32 v0, v0, v%d, v%d' % (217 + 2 * i, 219 + 2 * i))
        a('v_min_u32 v7, v7, v247'); a('v_max_u32 v0, v0, v247')
        a('v_cmp_ne_u32 vcc, s80, v7'); a('v_cmp_ne_u32 s[54:55], s80, v0'); a('s_or_b64 vcc, vcc, s[54:55]')
        a('s_cbranch_vccz Lst0ok')
        for it in stloads('sc1'):
            for x in it: a(x[0] if isinstance(x, tuple) else x)
        a.guard()
        a('s_waitcnt vmcnt(0)')
        a('s_branch Lst0')
        a('Lst0ok:'); a.count(30)
    def emit_sh(x):
        if isinstance(x, str): a(x)
        elif x[0] == 'wait': a.wait(x[1])
        else: check()
    r0 = reads(0)
    for r in r0:
        if 'b64' in r: a(r)
    a.wait('kv')
    a('s_barrier')
    a.stamp('conv go')
    for r in r0:
        if 'b64' not in r: a(r)
    started = set(); sh = shadow()
    for rho in range(4):
        st = rho & 1
        nxt = reads(rho + 1) if rho < 3 else ['ds_read_b64 %s, v13 offset:%d' % (vr(176 + 2 * i, 2), 512 * (3 - i)) for i in range(4)]
        issued = 0; cnt = 0
        for x in range(8):
            pairs = [(x, b) for b in range(x + 1) if x + b <= 7] + [(aa, x) for aa in range(x) if aa + x <= 7]
            if rho == 0: a('s_waitcnt lgkmcnt(%d)' % min(15, 7 - x + issued))
            elif x == 0: a('s_waitcnt lgkmcnt(0)')
            for (aa, bb) in pairs:
                t = aa + bb
                c = vr(CA + 4 * t, 4) if t in started else '0'
                started.add(t)
                a(M16 % (vr(CA + 4 * t, 4), vr(A(st, aa), 4), vr(B(st, bb), 4), c))
                cnt += 1
                if (rho > 0 or x >= 2) and issued < len(nxt) and cnt <= 30:
                    a(nxt[issued]); issued += 1
                g = cnt + 36 * rho
                if g >= ST_AT and g % 3 == 0: a.take(stl)
                if g >= PST_AT and g % 4 == 1: a.take(pst)
                if g >= BG0 and g % PACE == 0 and (g < ST_AT or not stl): a.take(bg)
                if rho == 3 and cnt >= 8 and 'nosh' not in EXP:
                    for _ in range(2): emit_sh(sh.pop(0))
        while issued < len(nxt): a(nxt[issued]); issued += 1
        if 'rho' in EXP and rho < 3: a.stamp('rho%d' % rho)
    a.stamp('conv mfma')
    a('s_cmp_eq_u32 s51, 0'); a('s_cbranch_scc1 Lck0')
    for v, lab in ((1, None), (0, 'Lck0')):
        if lab: a(lab + ':')
        snd = 0 if v else 4; keep = 4 - snd
        for i in range(4): a('ds_write_b128 v189, %s offset:%d' % (vr(CA + 4 * (snd + i), 4), 1024 * i))
        for i in range(0, 16, 2): a(pk('v_pk_add_f32', KD + i, [KD + i, CA + 4 * keep + i]))
        if v: a('s_branch Lck1')
    a('Lck1:')
    a.take(pst, 7)
    while sh:
        emit_sh(sh.pop(0))
        if len(sh) % 9 == 0: a.take(bg)
    a.take(bg, 24)
    a('s_waitcnt lgkmcnt(0)'); a('s_barrier')
    for i in range(4): a('ds_read_b128 %s, v190 offset:%d' % (vr(112 + 4 * i, 4), 1024 * i))
    a.stamp('conv red')
    for i in range(4):
        a('s_waitcnt lgkmcnt(%d)' % (3 - i))
        for r in (0, 2): a(pk('v_pk_add_f32', KD + 4 * i + r, [KD + 4 * i + r, 112 + 4 * i + r]))
        for r in (0, 2): a(pk('v_pk_fma_f32', XF + 4 * i + r, [XN + 4 * i + r, KD + 4 * i + r, XF + 4 * i + r]))
        o = 128 + 2 * i
        a('v_cvt_pk_bf16_f32 v%d, v%d, v%d' % (o, XF + 4 * i, XF + 4 * i + 1)); a('v_cvt_pk_bf16_f32 v%d, v%d, v%d' % (o + 1, XF + 4 * i + 2, XF + 4 * i + 3))
        if i & 1:
            a('v_permlane16_swap_b32 v%d, v%d' % (o - 2, o)); a('v_permlane16_swap_b32 v%d, v%d' % (o - 1, o + 1))
            a.vm('buffer_store_dwordx4 %s, v185, s[32:35], s%d offen sc1' % (vr(o - 2, 4), 57 + (i >> 1)), 'h')
    assert not bg
    a.stamp('h stored')
    a('s_lshl_b32 s53, s52, 6'); a('s_add_u32 s54, s53, s77'); a('v_xor_b32 v9, s54, v188'); a('v_xor_b32 v8, 64, v9')
    def wtr(dst, n, va):
        for s in range(n):
            for ch in range(2):
                a(TR % (ur(dst + 8 * s + 4 * ch, 2), va + ch, 2048 * s)); a(TR % (ur(dst + 8 * s + 4 * ch + 2, 2), va + ch, 2048 * s + 512))
    if W2A: a('s_add_u32 s54, s53, s87'); a('v_xor_b32 v186, s54, v188'); a('v_xor_b32 v185, 64, v186')
    a.wait('w1')
    wtr(256, 8, 8)
    if W2A: wtr(256 + 64, 4, 185)
    a('s_lshl_b32 s53, s50, 5'); a('s_add_u32 s53, s53, s49'); a('s_mul_i32 s53, s53, %d' % HFS); a('s_add_u32 s58, s53, 0x%x' % F_H)
    a('v_mul_u32_u24 v7, %d, v1' % (256 * HFS))
    for slot in range(3):
        th, ch = slot >> 1, slot & 1
        a('s_xor_b32 s53, s48, %d' % ((1 - th) + 2 * (1 - ch))); a('s_mul_i32 s53, s53, 12288'); a('s_add_u32 s53, s53, %d' % (G_RED + 4096 * slot))
        a('v_add_u32 v%d, s53, v14' % (10 + slot))
    a('s_mul_i32 s53, s48, 12288'); a('s_add_u32 s53, s53, %d' % G_RED); a('v_add_u32 v13, s53, v14')
    ONES = 160; CSUM = 144
    for i in range(4): a('v_mov_b32 v%d, 0x3f803f80' % (ONES + i))
    w2l = wdma(40, 'w2', 2, 0x1fff, 's77', 65536) if W2A else wdma(40, 'w2', 4, 0x3fff, 's77', 0)
    a('s_waitcnt lgkmcnt(0)')
    a.take(w2l, W2PRE)
    a.wait('h')
    a.stamp('h drained')
    a.signal('s58', 7)
    a.take(w2l, 4)
    a('v_and_b32 v164, 31, v1'); a('v_lshlrev_b32 v164, 2, v164'); a('s_lshl_b32 s53, s52, 7'); a('s_add_u32 s53, s53, %d' % L_S2); a('v_add_u32 v165, s53, v164')
    a('s_lshl_b32 s53, s48, 8'); a('v_add_u32 v166, s53, v165'); a('v_xor_b32 v167, 0x80, v166')
    a('s_lshl_b32 s53, s48, 7'); a('s_add_u32 s53, s53, %d' % (L_S2 + 1024)); a('v_add_u32 v168, s53, v164')
    a('v_lshrrev_b32 v169, 5, v1'); a('v_lshl_add_u32 v169, v169, 4, s53')
    for s in range(8):
        for ch in range(2):
            a(M32 % (vr(acc(0, ch), 16), vr(ONES, 4), ur(256 + 8 * s + 4 * ch, 4), vr(acc(0, ch), 16) if s else '0'))
            if ch: a.take(w2l)
    a.take(w2l, 4)
    srd(a, 36, 30, 8 * 86 * 2048, '0x%x' % W4P); srd(a, 40, 30, 86 * 16384, '0x%x' % W3P)
    a('ds_write_b32 v167, v%d' % acc(0, 0)); a('ds_write_b32 v166, v%d' % acc(0, 1))
    a('v_lshlrev_b32 v189, 6, v6'); a('v_and_b32 v189, 64, v189'); a('v_xor_b32 v189, v189, v14')
    a('s_lshl_b32 s56, s48, 14')
    a('s_lshl_b32 s53, s51, 6'); a('s_add_u32 s54, s53, s56'); a('v_xor_b32 v191, s54, v187'); a('v_xor_b32 v190, 64, v191')
    a('s_lshl_b32 s54, s69, 13'); a('s_add_u32 s53, s53, s54'); a('s_lshl_b32 s54, s52, 12'); a('s_add_u32 s53, s53, s54'); a('v_xor_b32 v187, s53, v187')
    a('s_and_b32 s57, s50, %d' % (HREP - 1)); a('s_lshl_b32 s57, s57, 2'); a('s_add_u32 s53, s57, s48'); a('s_mul_i32 s53, s53, %d' % (64 * HFS)); a('s_add_u32 s58, s53, 0x%x' % F_H)
    a('v_lshlrev_b32 v4, 3, v1'); a('v_mul_u32_u24 v0, %d, v1' % HFS)
    a('s_lshl_b32 s57, s68, 16'); a('s_add_u32 s57, s57, s56'); a('s_add_u32 s57, s57, 0x%x' % HT)
    a('s_waitcnt lgkmcnt(0)'); a('s_barrier')
    for w in range(4): a('ds_read_b32 v%d, v165 offset:%d' % (80 + w, 256 * w))
    a('s_xor_b32 s53, s51, 1'); a('s_lshl_b32 s53, s53, 8'); a('v_xor_b32 v184, s53, v4')
    a('s_lshl_b32 s53, s48, 9'); a('s_add_u32 s53, s53, %d' % G_ST); a('v_add_u32 v184, s53, v184')
    a('v_and_b32 v7, 31, v1'); a('s_lshl_b32 s53, s51, 5'); a('v_add_u32 v7, s53, v7'); a('v_lshlrev_b32 v185, 3, v7'); a('v_add_u32 v185, %d, v185' % G_ST)
    a('s_waitcnt lgkmcnt(0)')
    a('v_add_f32 v80, v80, v81'); a('v_add_f32 v82, v82, v83'); a('v_add_f32 v80, v80, v82')
    a('ds_write_b32 v168, v80')
    for q in range(4): a('ds_read_b128 %s, v169 offset:%d' % (vr(CSUM + 4 * q, 4), 32 * q))
    a('s_lshl_b32 s53, s69, 12'); a('s_lshl_b32 s54, s52, 11'); a('s_add_u32 s70, s53, s54'); a('s_add_u32 s71, s70, 0x%x' % ZB)
    a('v_mov_b32 v186, v248'); a('v_cndmask_b32 v188, 0, -2, s[98:99]')
    a('s_mul_i32 s73, s69, 11'); a('s_mul_i32 s53, s48, 3'); a('s_add_u32 s73, s73, s53')
    a('s_lshl_b32 s74, s73, 14'); a('s_add_u32 s75, s74, 0x8000'); a('s_cmp_eq_u32 s48, 3'); a('s_cselect_b32 s75, 0x400000, s75')
    a('s_lshl_b32 s72, s68, 7'); a('s_lshl_b32 s53, s69, 3'); a('s_add_u32 s79, s72, s53')
    a('s_lshl_b32 s66, s68, 1'); a('s_add_u32 s66, s66, s51')
    BF = 80; ST = 172
    for i in range(4): a('v_mov_b32 v%d, 0' % (ST + i))
    a('s_mov_b32 m0, s56')
    a.stamp('X1 poll')
    a.poll(0, 's58', False, sleep=SLEEP)
    a.count(63); a.stamp('X1 seen')
    hl = []
    for i in range(16):
        it = []
        if i and i % 4 == 0: it += ['s_add_u32 s53, s56, %d' % (1024 * i), 's_mov_b32 m0, s53', 's_add_u32 s57, s57, 4096']
        it.append(('buffer_load_dwordx4 v189, s[32:35], s57 offen offset:%d sc1 lds' % (1024 * (i & 3)), 'h%d' % (i >> 1)))
        hl.append(it)
    a.take(hl, 8)
    if W2A: wtr(256 + 96, 4, 8)
    else: wtr(256 + 64, 8, 8)
    WR3 = [192, 256 + 128, 256 + 192]
    w3l = []
    for j in (1, 2, 0):
        for s in range(16):
            w3l.append(['s_add_u32 s87, s%d, %d' % (75 if j == 2 else 74, (16384 if j == 1 else 0) + 1024 * s),
                        ('buffer_load_dwordx4 %s, v14, s[40:43], s87 offen' % ur(WR3[j] + 4 * s, 4), 'w3')])
    if 'now3' in EXP: w3l = [['s_nop 0'] for it in w3l]
    def btr(s):
        for th in range(2):
            a(TR % (vr(BF + 32 * th + 4 * s, 2), 190 + th, 2048 * s)); a(TR % (vr(BF + 32 * th + 4 * s + 2, 2), 190 + th, 2048 * s + 512))
    a.wait('h0'); btr(0)
    a.stamp('h0 landed')
    for s in range(8):
        if s < 7:
            a.wait('h%d' % (s + 1)); btr(s + 1)
        a('s_waitcnt lgkmcnt(%d)' % (4 if s < 7 else 0))
        if s == 4: a('s_barrier')
        for th in range(2):
            for ch in range(2):
                a(M32 % (vr(acc(th, ch), 16), ur(256 + 8 * s + 4 * ch, 4), vr(BF + 32 * th + 4 * s, 4), vr(acc(th, ch), 16) if s else '0'))
                if ch == 0:
                    if hl: a.take(hl)
                    elif s >= 6: a.take(w3l)
    a.stamp('g1 mfma')
    wr = red_write(0) + red_write(1) + red_write(2)
    n = 0
    for s in range(8):
        for th in range(2):
            for i in range(4):
                b = BF + 32 * th + 4 * s + i
                a('v_dot2c_f32_bf16 v%d, v%d, v%d' % (ST + th, b, ONES)); a('v_dot2c_f32_bf16 v%d, v%d, v%d' % (ST + 2 + th, b, b))
                n += 1
                if n >= 6 and n % 4 == 2 and wr: a(wr.pop(0))
                if n % 6 == 0 and len(w3l) > 48 - W3A: a.take(w3l)
    assert not wr
    a('v_permlane32_swap_b32 v%d, v%d' % (ST, ST + 1)); a('v_permlane32_swap_b32 v%d, v%d' % (ST + 2, ST + 3))
    a('v_add_f32 v%d, v%d, v%d' % (ST, ST, ST + 1)); a('v_add_f32 v%d, v%d, v%d' % (ST + 1, ST + 2, ST + 3))
    a('ds_write_b64 v184, %s' % vr(ST, 2))
    a('s_waitcnt lgkmcnt(0)'); a('s_barrier')
    a.stamp('g1 red')
    for w in range(4): a('ds_read_b64 %s, v185 offset:%d' % (vr(164 + 2 * w, 2), 512 * w))
    rr = red_reads(80)
    for r in rr[:10]: a(r)
    M1 = 164; R1 = 166; RI = 168; CAa = 169; CBb = 170
    a('s_waitcnt lgkmcnt(10)')
    a(pk('v_pk_add_f32', 164, [164, 166])); a(pk('v_pk_add_f32', 168, [168, 170])); a(pk('v_pk_add_f32', 164, [164, 168]))
    for r in rr[10:]: a(r)
    for l in ['v_mul_f32 v164, s60, v164', 'v_mul_f32 v166, v164, v164', 'v_fma_f32 v165, v165, s60, -v166', 'v_max_f32 v165, 0, v165',
              'v_add_f32 v166, 0x%x, v165' % f2u(EPS), 'v_rsq_f32 v166, v166',
              'v_mul_f32 v167, v166, v166', 'v_mul_f32 v167, v167, v165', 'v_add_f32 v167, 0x%x, v167' % f2u(EPS), 'v_rsq_f32 v167, v167',
              'v_mul_f32 v167, v167, v166', 'v_rcp_f32 v168, v167', 'v_mul_f32 v169, 0x%x, v167' % f2u(C0),
              'v_mul_f32 v170, v167, v167', 'v_mul_f32 v170, v170, v167', 'v_mul_f32 v170, 0x%x, v170' % f2u(C1)]: a(l)
    o = acc(1, 1)
    for i in range(0, 16, 2): a(pk('v_pk_fma_f32', o + i, [bc(M1), CSUM + i, o + i], neg=[1, 0, 0]))
    red_adds(a, 80)
    HO = 176
    for s in range(2):
        a(TR % (vr(HO + 4 * s, 2), 187, 2048 * s)); a(TR % (vr(HO + 4 * s + 2, 2), 187, 2048 * s + 512))
    g = gelu_pk(o, CAa, CBb, RI, 80, 16)
    for i, l in enumerate(g):
        a(l)
        if i % 10 == 9 and len(w3l) > 48 - W3A: a.take(w3l)
    for i in range(8): a('v_cvt_pk_bf16_f32 v%d, v%d, v%d' % (96 + i, o + 2 * i, o + 2 * i + 1))
    for i in range(8): a('v_min_u32 v%d, v%d, v188' % (96 + i, 96 + i))
    a.vm('buffer_store_dwordx4 v[96:99], v186, s[32:35], s71 offen sc1')
    a.vm('buffer_store_dwordx4 v[100:103], v186, s[32:35], s71 offen offset:1024 sc1', 'z')
    a.stamp('z stored')
    a.take(w3l, W3B)
    HF = 144; HN = 176
    a('s_waitcnt lgkmcnt(0)')
    for i in range(8): a(lo(HF + 2 * i, HO + i)); a(hi(HF + 2 * i + 1, HO + i))
    for i in range(0, 16, 2): a(pk('v_pk_add_f32', HN + i, [HF + i, bc(M1)], neg=[0, 1]))
    for i in range(0, 16, 2): a(pk('v_pk_mul_f32', HN + i, [HN + i, bc(R1)]))
    a('s_add_u32 s59, s79, 0x%x' % F_Z); a('s_add_u32 s58, s72, 0x%x' % F_Z)
    a('v_and_b32 v4, 1, v1'); a('v_lshlrev_b32 v4, 3, v4'); a('s_lshl_b32 s54, s48, 4'); a('v_add_u32 v4, s54, v4')
    a('s_lshl_b32 s56, s66, 15'); a('s_add_u32 s64, s56, s70'); a('s_add_u32 s64, s64, 0x%x' % X1B)
    a('s_lshl_b32 s54, s48, 13'); a('s_add_u32 s56, s56, s54'); a('s_add_u32 s56, s56, 0x%x' % ZB); a('s_xor_b32 s57, s56, 0x8000')
    a('s_lshl_b32 s54, s68, 13'); a('s_lshr_b32 s55, s70, 2'); a('s_add_u32 s54, s54, s55'); a('s_lshl_b32 s55, s51, 8'); a('s_add_u32 s54, s54, s55')
    a('s_add_u32 s65, s54, 0x%x' % ST1); a('v_lshlrev_b32 v0, 3, v1')
    a.wait('z')
    if 'z' in RR:
        a.vm('buffer_load_dword v18, v248, s[32:35], s71 offen sc1'); a.vm('buffer_load_dword v19, v248, s[32:35], s71 offen offset:1024 sc1')
    a.stamp('z drained')
    a.signal('s59')
    a.poll(4, 's58', True)
    a.stamp('X2 seen')
    def bitems(nks, dst, lab):
        l = []
        for th in range(2):
            for s in range(nks):
                it = []
                if s % 4 == 0: it.append('s_add_u32 s93, s%d, %d' % (57 - th, 1024 * s))
                it.append(('buffer_load_dwordx4 %s, v14, s[32:35], s93 offen offset:%d sc1' % (ur(dst(nks * th + s), 4), 1024 * (s & 3)), '%s%d' % (lab, nks * th + s)))
                l.append(it)
        return l
    def ksplit(nks, wreg, breg, lab, bgl, nbg, check):
        bl = bitems(nks, breg, lab)
        a.take(bl, 8)
        for th in range(2):
            wr = (red_write(0) + red_write(1)) if th else []
            if th and check:
                assert not bl
                a('s_mov_b32 s82, 0'); a('Lhalo:'); a('v_mov_b32 v7, 0')
            for s in range(nks):
                k = nks * th + s
                a.wait('%s%d' % (lab, k))
                for ch in range(2):
                    a(M32 % (vr(acc(th, ch), 16), ur(wreg(s, ch), 4), ur(breg(k), 4), vr(acc(th, ch), 16) if s else '0'))
                    if th and check: a('v_max3_u32 v7, v7, v%d, v%d' % (breg(k) + 2 * ch, breg(k) + 2 * ch + 1))
                    if ch == 0 and bl: a.take(bl)
                    elif not bl and nbg > 0 and (ch or nbg > nks - s): a.take(bgl); nbg -= 1
                if wr and s >= 1: a(wr.pop(0))
                if wr and s >= nks - 1: a(wr.pop(0))
        if check:
            a('v_cmp_eq_u32 vcc, -1, v7'); a('s_cbranch_vccz Lhalook')
            for it in bitems(nks, breg, lab)[nks:]:
                for x in it: a(x[0] if isinstance(x, tuple) else x)
            a.guard(0x8000)
            a('s_waitcnt vmcnt(0)'); a('s_branch Lhalo')
            a('Lhalook:'); a.count(62)
        for w in red_write(2): a(w)
        a('s_waitcnt lgkmcnt(0)'); a('s_barrier')
    ksplit(8, lambda s, ch: 256 + 64 + 8 * s + 4 * ch, lambda k: 80 + 4 * k, 'b', w3l, W3C, True)
    a.stamp('g2 mfma')
    for r in red_reads(80): a(r)
    for i in range(0, 16, 2): a(pk('v_pk_add_f32', o + i, [o + i, HN + i]))
    red_adds(a, 80)
    for i in range(8): a('v_cvt_pk_bf16_f32 v%d, v%d, v%d' % (96 + i, o + 2 * i, o + 2 * i + 1))
    a.vm('buffer_store_dwordx4 v[96:99], v14, s[32:35], s64 offen sc1')
    a.vm('buffer_store_dwordx4 v[100:103], v14, s[32:35], s64 offen offset:1024 sc1')
    a('v_mov_b32 v104, 0'); a('v_mov_b32 v105, 0')
    for i in range(8):
        a('v_dot2c_f32_bf16 v104, v%d, v%d' % (96 + i, ONES)); a('v_dot2c_f32_bf16 v105, v%d, v%d' % (96 + i, 96 + i))
    a('v_mov_b32 v106, v104'); a('v_mov_b32 v107, v105')
    a('v_permlane32_swap_b32 v104, v106'); a('v_permlane32_swap_b32 v105, v107')
    a(pk('v_pk_add_f32', 104, [104, 106]))
    a('s_mov_b32 exec_hi, 0')
    a.vm('buffer_store_dwordx2 v[104:105], v0, s[32:35], s65 offen sc1', 'x1')
    a('s_mov_b32 exec_hi, -1')
    if 'front' not in EXP and 'rho' not in EXP: a.stamp('x1 stored')
    a.take(w3l, 48)
    RES = 128
    for i in range(8): a(lo(80 + 2 * i, 96 + i)); a(hi(81 + 2 * i, 96 + i))
    for i in range(0, 16, 2): a(pk('v_pk_add_f32', RES + i, [HF + i, 80 + i]))
    a('s_add_u32 s59, s79, 0x%x' % F_X); a('s_add_u32 s58, s72, 0x%x' % F_X)
    a('v_and_b32 v7, 7, v1'); a('v_lshlrev_b32 v7, 3, v7')
    a('s_mov_b32 s88, s64'); a('s_mov_b32 s89, s65')
    a('s_lshl_b32 s64, s48, 13'); a('s_lshl_b32 s65, s68, 16'); a('s_add_u32 s65, s65, s64'); a('s_add_u32 s65, s65, 0x%x' % X1B)
    a('s_lshl_b32 s67, s68, 13'); a('s_lshl_b32 s54, s48, 11'); a('s_add_u32 s67, s67, s54'); a('s_add_u32 s67, s67, 0x%x' % ST1)
    a('v_lshlrev_b32 v8, 9, v6'); a('v_lshl_add_u32 v8, v5, 4, v8'); a('v_add_u32 v9, 0x8000, v8')
    a('s_mul_i32 s74, s69, %d' % (86 * 2048)); a('s_mul_i32 s53, s48, %d' % (22 * 2048)); a('s_add_u32 s74, s74, s53')
    a('s_add_u32 s75, s74, %d' % (20 * 2048)); a('s_cmp_eq_u32 s48, 3'); a('s_cselect_b32 s75, 0x400000, s75')
    a('s_lshl_b32 s53, s52, 10'); a('v_add_u32 v113, s53, v14'); a('v_xor_b32 v112, 0x400, v113')
    srd(a, 44, 30, 64 * HTH, '0x%x' % HB)
    a('s_lshl_b32 s53, s68, 1'); a('s_mul_i32 s53, s53, %d' % HTH); a('s_lshl_b32 s54, s73, 10'); a('s_add_u32 s56, s53, s54')
    a('s_add_u32 s57, s56, %d' % HTH)
    a('s_cmp_eq_u32 s48, 3'); a('s_cselect_b32 s76, 0x%x, s56' % (64 * HTH)); a('s_cselect_b32 s77, 0x%x, s57' % (64 * HTH))
    a('s_lshl_b32 s53, s48, 3'); a('s_add_u32 s53, s53, %d' % G_ST); a('v_lshlrev_b32 v115, 5, v1'); a('v_add_u32 v114, s53, v115'); a('v_add_u32 v115, %d, v115' % G_ST)
    a('s_mov_b32 m0, s64')
    a('v_lshlrev_b32 v20, 5, v1')
    a.wait('x1')
    if 'x' in RR:
        a.vm('buffer_load_dword v18, v20, s[32:35], s88 offen sc1')
        a.vm('buffer_load_dword v19, v1, s[32:35], s89 offen sc1'.replace('v1,', 'v0,'))
    a.stamp('x1 drained')
    a.signal('s59')
    a.poll(7, 's58', True)
    a.stamp('X3 seen')
    for p in range(4): a.vm('buffer_load_dwordx2 %s, v0, s[32:35], s67 offen offset:%d sc1' % (vr(80 + 2 * p, 2), 512 * p), 'sp')
    xl = []
    for i in range(16):
        it = []
        if i % 4 == 0:
            oo = 32768 * (i >> 3) + 1024 * (i & 7)
            if i: it += ['s_add_u32 s53, s64, %d' % oo, 's_mov_b32 m0, s53']
            it.append('s_add_u32 s93, s65, %d' % oo)
        it.append(('buffer_load_dwordx4 v14, s[32:35], s93 offen offset:%d sc1 lds' % (1024 * (i & 3)), 'x%d' % (i >> 3)))
        xl.append(it)
    a.take(xl, 8)
    CS3 = 116
    for s in range(16):
        for j in range(3): a(M16 % (vr(CS3 + 4 * j, 4), ur(WR3[j] + 4 * s, 4), vr(ONES, 4), vr(CS3 + 4 * j, 4) if s else '0'))
    def w4reg(s, ch): return (256 + 8 * s + 4 * ch) if s < 16 else (144 + 8 * (s - 16) + 4 * ch)
    w4l = []
    for s in range(22):
        for ch in range(2):
            it = []
            if s % 2 == 0 and ch == 0: it.append('s_add_u32 s87, s74, %d' % (2048 * s) if s < 20 else 's_mov_b32 s87, s75')
            it.append(('buffer_load_dwordx4 %s, v%d, s[36:39], s87 offen offset:%d' % (ur(w4reg(s, ch), 4), 112 + ch, 2048 * (s & 1)), 'w4'))
            w4l.append(it)
    if 'now4' in EXP: w4l = []
    a.wait('sp')
    a(pk('v_pk_add_f32', 80, [80, 82])); a(pk('v_pk_add_f32', 84, [84, 86])); a(pk('v_pk_add_f32', 80, [80, 84]))
    a('ds_write_b64 v114, v[80:81]')
    a('s_lshl_b32 s53, s48, 10'); a('s_add_u32 s53, s53, %d' % G_ST2); a('v_add_u32 v7, s53, v14'); a('v_lshl_add_u32 v0, v5, 4, s53')
    a.wait('x0', 'lgkmcnt(0)')
    a('s_barrier')
    a.stamp('x0 landed')
    A3 = 16; BR = 40; TMP = 72; PK = 84; STT = 96
    a('ds_read_b128 v[72:75], v115'); a('ds_read_b128 v[76:79], v115 offset:16')
    def rd(k):
        tt, s = k >> 4, k & 15
        return 'ds_read_b128 %s, v%d offset:%d' % (vr(BR + 4 * (k & 7), 4), 8 + (tt >> 1), 2048 * s + 256 * (tt & 1))
    for k in range(6): a(rd(k))
    st = ['v_add_f32 v72, v72, v74', 'v_add_f32 v73, v73, v75', 'v_add_f32 v76, v76, v78', 'v_add_f32 v77, v77, v79',
          'v_add_f32 v72, v72, v76', 'v_add_f32 v73, v73, v77',
          'v_mul_f32 v72, s60, v72', 'v_mul_f32 v74, v72, v72', 'v_fma_f32 v73, v73, s60, -v74', 'v_max_f32 v73, 0, v73',
          'v_add_f32 v73, 0x%x, v73' % f2u(EPS), 'v_rsq_f32 v76, v73', 'v_sqrt_f32 v75, v73', 'v_mul_f32 v73, 0x%x, v76' % f2u(C0),
          'v_mul_f32 v74, v76, v76', 'v_mul_f32 v74, v74, v76', 'v_mul_f32 v74, 0x%x, v74' % f2u(C1), 'v_sub_f32 v72, 0, v72',
          ('ds', 'ds_write_b128 v7, v[72:75]')] + [('ds', 'ds_read_b128 %s, v0 offset:%d' % (vr(STT + 4 * tt, 4), 256 * tt)) for tt in range(4)]
    def epi(tt, packed):
        o3 = A3 + 12 * (tt & 1); m = STT + 4 * tt
        if packed:
            l = [pk('v_pk_fma_f32', o3 + i, [bc(m), CS3 + i, o3 + i]) for i in range(0, 12, 2)]
            l += gelu_pk(o3, m + 1, m + 2, m + 3, TMP, 12)
        else:
            l = ['v_fmac_f32 v%d, v%d, v%d' % (o3 + i, m, CS3 + i) for i in range(12)]
            l += gelu_plain(o3, m + 1, m + 2, m + 3, TMP, 12)
        for j in range(3):
            for i in range(2): l.append('v_cvt_pk_bf16_f32 v%d, v%d, v%d' % (PK + 4 * j + 2 * (tt & 1) + i, o3 + 4 * j + 2 * i, o3 + 4 * j + 2 * i + 1))
        if tt & 1:
            for j in range(3):
                l.append('v_permlane16_swap_b32 v%d, v%d' % (PK + 4 * j, PK + 4 * j + 2)); l.append('v_permlane16_swap_b32 v%d, v%d' % (PK + 4 * j + 1, PK + 4 * j + 3))
            for j in range(3):
                l.append(('vm', 'buffer_store_dwordx4 %s, v14, s[44:47], s%d offen offset:%d sc1' % (vr(PK + 4 * j, 4), (76 if j == 2 else 56) + (tt >> 1), 1024 * j)))
        return l
    pend = st
    lg = [('r', k) for k in range(6)]
    def cost(x): return 2 if isinstance(x, str) and x.startswith(('v_exp', 'v_rcp', 'v_rsq', 'v_sqrt')) else 1
    def emit_p(x):
        if isinstance(x, str): a(x)
        elif x[0] == 'vm': a.vm(x[1], 'H')
        elif x[0] == 'ds': a(x[1]); lg.append(('o', 0))
    for k in range(64):
        tt, s = k >> 4, k & 15
        if k == 26:
            a.wait('x1'); a('s_barrier')
        if k % 2 == 0:
            for kk in (k + 6, k + 7):
                if kk < 64: a(rd(kk)); lg.append(('r', kk))
            idx = lg.index(('r', k + 1)); a('s_waitcnt lgkmcnt(%d)' % (len(lg) - 1 - idx)); del lg[:idx + 1]
        left = sum(cost(x) for x in pend); slots = 3 * (16 - s)
        for j in range(3):
            o3 = A3 + 12 * (tt & 1) + 4 * j
            a(M16 % (vr(o3, 4), ur(WR3[j] + 4 * s, 4), vr(BR + 4 * (k & 7), 4), vr(o3, 4) if s else '0'))
            if s >= 1 or (tt == 0 and j):
                budget = max(2, -(-left // slots)) if tt else 2
                while pend and budget >= cost(pend[0]):
                    budget -= cost(pend[0]); emit_p(pend.pop(0))
            if j == 2 and xl: a.take(xl)
            elif j == 2 and len(w4l) > W4TAIL and (k - 8) * (44 - W4TAIL) >= (44 - len(w4l)) * (W4END - 8): a.take(w4l)
        if s == 15:
            while pend: emit_p(pend.pop(0))
            pend = epi(tt, tt == 3)
    a.stamp('g3 mfma')
    while pend: emit_p(pend.pop(0))
    if 'front' not in EXP and 'rho' not in EXP: a.stamp('H stored')
    a.take(w4l, 44)
    a('s_add_u32 s59, s79, 0x%x' % F_F); a('s_add_u32 s58, s72, 0x%x' % F_F); a('s_mov_b32 s88, s56'); a('s_mov_b32 s89, s57')
    a('s_mul_i32 s56, s66, %d' % HTH); a('s_xor_b32 s54, s66, 1'); a('s_mul_i32 s57, s54, %d' % HTH)
    a('s_mul_i32 s54, s48, %d' % (22 * 1024)); a('s_add_u32 s54, s54, 0x%x' % HB); a('s_add_u32 s56, s56, s54'); a('s_add_u32 s57, s57, s54')
    srd(a, 40, 26, 2 * MB)
    a('v_and_b32 v7, 31, v1'); a('v_lshlrev_b32 v7, 10, v7'); a('v_lshrrev_b32 v8, 5, v1'); a('v_lshl_add_u32 v7, v8, 4, v7')
    a('s_lshl_b32 s64, s66, 15'); a('s_lshr_b32 s54, s70, 5'); a('s_add_u32 s64, s64, s54')
    a('s_cmp_eq_u32 s48, 3'); a('s_cselect_b32 s53, 32, 48'); a('v_mul_u32_u24 v20, s53, v1')
    a.wait('H')
    if 'h' in RR:
        a.vm('buffer_load_dword v18, v20, s[44:47], s88 offen sc1'); a.vm('buffer_load_dword v19, v20, s[44:47], s89 offen sc1')
    a.stamp('H drained')
    a.signal('s59')
    a.poll(4, 's58', True)
    a.stamp('X4 seen')
    def b4(k): return (256 + 128 + 4 * k) if k < 32 else (192 + 4 * (k - 32))
    ksplit(22, w4reg, b4, 'f', None, 0, False)
    a.stamp('g4 mfma')
    for r in red_reads(80): a(r)
    for i in range(0, 16, 2): a(pk('v_pk_add_f32', o + i, [o + i, RES + i]))
    red_adds(a, 80)
    for i in range(8): a('v_cvt_pk_bf16_f32 v%d, v%d, v%d' % (96 + i, o + 2 * i, o + 2 * i + 1))
    a.vm('buffer_store_dwordx4 v[96:99], v7, s[40:43], s64 offen ' + OUTF)
    a.vm('buffer_store_dwordx4 v[100:103], v7, s[40:43], s64 offen offset:32 ' + OUTF)
    if stamp or SPIN:
        a.wait0(); a.stamp('end')
    if stamp:
        a('s_lshl_b32 s53, s63, 8'); a('s_add_u32 s53, s53, 0x%x' % STAMPS); a('v_lshlrev_b32 v7, 2, v1')
        a('buffer_store_dword v15, v7, s[32:35], s53 offen')
    if SPIN:
        a('s_sub_u32 s96, s97, s96'); a('s_mul_i32 s96, s96, %s' % SPIN[2])
        a('s_memrealtime s[90:91]'); a('s_waitcnt lgkmcnt(0)'); a('s_mov_b32 s97, s90')
        a('Lspin:'); a('s_memrealtime s[90:91]'); a('s_waitcnt lgkmcnt(0)'); a('s_sub_u32 s90, s90, s97'); a('s_cmp_lt_u32 s90, s96'); a('s_cbranch_scc1 Lspin')
    a('Lend:')
    a('s_endpgm')
    body = a.a.finish()
    print('instrs', len(a.a.L), 'nops', a.a.nops, file=sys.stderr)
    hdr = open('sequential_preLN__ssm_conv_h3__mixer_s_mlp__prompt.s.ref').read().split('; Override')[0]
    out = hdr + '; @launch grid=(256,1,1) block=(256,1,1) lds=%d\n' % LDS_BYTES
    if stamp: out += '; stamps: ' + '|'.join(a.names) + '\n'
    out += '.amdgcn_target "amdgcn-amd-amdhsa--gfx950"\n.text\n.globl %s\n.p2align 8\n.type %s,@function\n%s:\n' % (NAME, NAME, NAME)
    out += body
    out += '.fill 4096, 4, 0xbf800000\n'
    out += '''.section .rodata,"a"
.p2align 6
.amdhsa_kernel %s
  .amdhsa_next_free_vgpr 512
  .amdhsa_next_free_sgpr 102
  .amdhsa_accum_offset 256
  .amdhsa_group_segment_fixed_size 0
  .amdhsa_kernarg_size 112
  .amdhsa_user_sgpr_count 2
  .amdhsa_user_sgpr_kernarg_segment_ptr 1
  .amdhsa_system_sgpr_workgroup_id_x 1
  .amdhsa_float_denorm_mode_32 3
.end_amdhsa_kernel
''' % NAME
    return out

if __name__ == '__main__':
    open(sys.argv[1], 'w').write(build(len(sys.argv) > 2))
```

```python
import sys, struct, os
from asmlib import *

E = lambda n, d: type(d)(os.environ.get(n, d))
NT = E('NT', ''); NTX = E('NTX', ''); PACE = E('PACE', 7); PRE0 = E('PRE0', 0); NST = E('NST', 8); SLEEP = E('SLEEP', 4)
W4TAIL = E('W4TAIL', 4); W4END = E('W4END', 60); OUTF = E('OUTF', '')
TWHEN = E('TWHEN', 2); BG0 = E('BG0', 28); ST_AT = E('ST_AT', 3); PST_AT = E('PST_AT', 110); W2A = E('W2A', 0); ZT = E('ZT', 0); W2PRE = E('W2PRE', 0); RR = E('RR', ''); HFS = E('HFS', 8); HREP = E('HREP', 8)
KWHEN = E('KWHEN', 0); PWHEN = E('PWHEN', 1)
W3A = E('W3A', 20); W3B = E('W3B', 8); W3C = E('W3C', 12)
EXP = E('EXP', '').split(',')
ONLY = [x for x in E('ONLY', '').split(',') if x]
SPIN = os.environ['SPIN'].split(',') if os.environ.get('SPIN') else None

MB = 1 << 20
KVR = 0; XT = 2 * MB; HT = 4 * MB; ZB = 6 * MB; X1B = 8 * MB; HB = 10 * MB
W3P = 16 * MB; W4P = W3P + 1408 * 1024
ST0 = 20 * MB
ST1 = ST0 + 65536
FL = ST1 + 262144
FGL = 0x8000
F_A = FL; F_Z = FL + 0x1000; F_X = FL + 0x2000; F_F = FL + 0x3000
F_H = FL + 0x10000
STAMPS = 64 * MB
DUMP = 0x10000000
HTH = 176 * 512
EPS = 1e-5
def f2u(f): return struct.unpack('<I', struct.pack('<f', f))[0]
C0 = -2.0 * 0.7978845608028654 * 1.4426950408889634
C1 = C0 * 0.044715
NAME = 'sequential_preLN__ssm_conv_h3__mixer_s_mlp__prompt_kernel'

CS = 4160
L_E4 = 0; L_KV = 33280; L_CRED = L_KV + 2 * 4608
L_S = 65536
L_S2 = 131072
L_K = L_S; L_V = L_K + 9216; L_X = L_V + 8192; L_PK = (L_S2 + 4096) if E('PWHEN', 1) == 3 else (L_S + 32768)
G_RED = 65536; G_ST = G_RED + 49152; G_ST2 = G_ST + 2048
LDS_BYTES = 163840

TAG = 's[80:81]'
class G:
    def __init__(self, stamp=False):
        self.a = Asm(); self.stamp_on = stamp; self.q = []; self.nst = 0; self.names = []; self.np = 0
    def __call__(self, t): self.a(t)
    def vm(self, text, label=None):
        self.a(text); self.q.append(label)
    def item(self, it):
        for x in it:
            if isinstance(x, tuple): self.vm(x[0], x[1])
            else: self.a(x)
    def take(self, lst, n=1):
        for _ in range(n):
            if lst: self.item(lst.pop(0))
    def wait(self, label, extra=''):
        if label not in self.q:
            if extra: self.a('s_waitcnt ' + extra)
            return
        idx = max(i for i, l in enumerate(self.q) if l == label)
        n = len(self.q) - 1 - idx
        assert n < 64
        self.a('s_waitcnt vmcnt(%d) %s' % (n, extra)); self.q = self.q[idx + 1:]
    def wait0(self, extra=''):
        self.a('s_waitcnt vmcnt(0) %s' % extra); self.q = []
    def count(self, lane):
        if self.stamp_on: self.a('v_writelane_b32 v15, s82, %d' % lane)
    def stamp(self, name):
        if SPIN and name in SPIN:
            self.a('s_memrealtime s[90:91]'); self.a('s_waitcnt lgkmcnt(0)'); self.a('s_mov_b32 s%d, s90' % (96 + SPIN.index(name)))
        if self.stamp_on and (not ONLY or name in ONLY):
            self.a('s_memrealtime s[90:91]'); self.a('s_memtime s[94:95]'); self.a('s_waitcnt lgkmcnt(0)'); self.a('v_writelane_b32 v15, s90, %d' % self.nst)
            self.a('v_writelane_b32 v15, s94, %d' % (32 + self.nst)); assert self.nst < 30
            self.names.append(name); self.nst += 1
    def guard(self, limit=0x20000):
        self.a('s_add_u32 s82, s82, 1'); self.a('s_cmp_gt_u32 s82, 0x%x' % limit); self.a('s_cbranch_scc1 Lend')
    def poll(self, vaddr, soff, dual, sleep=0, tmp=16):
        a = self; n = self.np; self.np += 1
        a('s_mov_b32 s82, 0')
        a('buffer_load_dwordx2 %s, v%d, s[32:35], %s offen sc1' % (vr(tmp, 2), vaddr, soff))
        a('Lpoll%d:' % n)
        a.wait0()
        a('v_cmp_ne_u64 vcc, %s, %s' % (TAG, vr(tmp, 2)))
        a('s_cbranch_vccz Lpolld%d' % n)
        if sleep: a('s_sleep %d' % sleep)
        so = soff
        if dual:
            a('s_cmp_lt_u32 s82, 32'); a('s_cselect_b32 s83, 0, 0x%x' % FGL); a('s_add_u32 s83, s83, %s' % soff); so = 's83'
        a('buffer_load_dwordx2 %s, v%d, s[32:35], %s offen sc1' % (vr(tmp, 2), vaddr, so))
        a.guard()
        a('s_branch Lpoll%d' % n)
        a('Lpolld%d:' % n)
    def signal(self, soff, rep=None):
        a = self; n = self.np; self.np += 1
        a('s_barrier')
        a('s_cmp_lg_u32 s48, 0'); a('s_cbranch_scc1 Lsig%d' % n)
        if rep is None:
            a('s_mov_b64 exec, 1')
            a('buffer_store_dwordx2 v[2:3], off, s[32:35], %s' % soff)
            a('s_add_u32 s83, %s, 0x%x' % (soff, FGL))
            a('buffer_store_dwordx2 v[2:3], off, s[32:35], s83 sc1')
        else:
            a('s_mov_b64 exec, %d' % ((1 << HREP) - 1))
            a('buffer_store_dwordx2 v[2:3], v%d, s[32:35], %s offen sc1' % (rep, soff))
        a('s_mov_b64 exec, -1')
        a('Lsig%d:' % n)

def srd(a, d, p, size, off=None):
    if off is None:
        a('s_mov_b32 s%d, s%d' % (d, p)); a('s_mov_b32 s%d, s%d' % (d + 1, p + 1))
    else:
        a('s_add_u32 s%d, s%d, %s' % (d, p, off)); a('s_addc_u32 s%d, s%d, 0' % (d + 1, p + 1))
    a('s_mov_b32 s%d, 0x%x' % (d + 2, size)); a('s_mov_b32 s%d, 0x20000' % (d + 3))

def allreduce(a, regs, tmps):
    for m in ('quad_perm:[1,0,3,2]', 'quad_perm:[2,3,0,1]', 'row_half_mirror', 'row_mirror'):
        for r in regs: a('v_add_f32_dpp v%d, v%d, v%d %s row_mask:0xf bank_mask:0xf' % (r, r, r, m))
    for sw in ('v_permlane16_swap_b32', 'v_permlane32_swap_b32'):
        for r, t in zip(regs, tmps): a('v_mov_b32 v%d, v%d' % (t, r))
        for r, t in zip(regs, tmps): a('%s v%d, v%d' % (sw, r, t))
        for r, t in zip(regs, tmps): a('v_add_f32 v%d, v%d, v%d' % (r, r, t))

ACC = 16
def acc(th, ch): return ACC + 32 * th + 16 * ch
def red_write(slot):
    th, ch = slot >> 1, slot & 1
    return ['ds_write_b128 v%d, %s offset:%d' % (10 + slot, vr(acc(th, ch) + 4 * q, 4), 1024 * q) for q in range(4)]
def red_reads(tmp): return ['ds_read_b128 %s, v13 offset:%d' % (vr(tmp + 4 * i, 4), 1024 * i) for i in range(12)]
def red_adds(a, tmp, dst=None):
    o = acc(1, 1)
    for i in range(12):
        if i % 2 == 0: a('s_waitcnt lgkmcnt(%d)' % (10 - i))
        d = dst if (dst is not None and i >= 8) else o
        for r in (0, 2): a('v_pk_add_f32 %s, %s, %s' % (vr(d + 4 * (i & 3) + r, 2), vr(o + 4 * (i & 3) + r, 2), vr(tmp + 4 * i + r, 2)))

def lo(d, s): return 'v_lshlrev_b32 v%d, 16, v%d' % (d, s)
def hi(d, s): return 'v_and_b32 v%d, s61, v%d' % (d, s)
def bc(r): return vr(r & ~1, 2), r & 1
def pk(op, d, srcs, neg=None):
    names = []; l = []; h = []
    for s in srcs:
        if isinstance(s, tuple): names.append(s[0]); l.append(s[1]); h.append(s[1])
        else: names.append(vr(s, 2)); l.append(0); h.append(1)
    t = '%s %s, %s' % (op, vr(d, 2), ', '.join(names))
    if l != [0] * len(l) or h != [1] * len(h):
        t += ' op_sel:[%s] op_sel_hi:[%s]' % (','.join(map(str, l)), ','.join(map(str, h)))
    if neg: t += ' neg_lo:[%s] neg_hi:[%s]' % (','.join(map(str, neg)), ','.join(map(str, neg)))
    return t
def gelu_plain(t, ca, cb, ri, tmp, n):
    l = []
    for i in range(n): l.append('v_mul_f32 v%d, v%d, v%d' % (tmp + i, t + i, t + i))
    for i in range(n): l.append('v_fma_f32 v%d, v%d, v%d, v%d' % (tmp + i, tmp + i, cb, ca))
    for i in range(n): l.append('v_mul_f32 v%d, v%d, v%d' % (tmp + i, tmp + i, t + i))
    for i in range(n): l.append('v_exp_f32 v%d, v%d' % (tmp + i, tmp + i))
    for i in range(n): l.append('v_fma_f32 v%d, v%d, v%d, v%d' % (tmp + i, tmp + i, ri, ri))
    for i in range(n): l.append('v_rcp_f32 v%d, v%d' % (tmp + i, tmp + i))
    for i in range(n): l.append('v_mul_f32 v%d, v%d, v%d' % (t + i, t + i, tmp + i))
    return l
def gelu_pk(t, ca, cb, ri, tmp, n):
    l = []
    for i in range(0, n, 2): l.append(pk('v_pk_mul_f32', tmp + i, [t + i, t + i]))
    for i in range(0, n, 2): l.append(pk('v_pk_fma_f32', tmp + i, [tmp + i, bc(cb), bc(ca)]))
    for i in range(0, n, 2): l.append(pk('v_pk_mul_f32', tmp + i, [tmp + i, t + i]))
    for i in range(n): l.append('v_exp_f32 v%d, v%d' % (tmp + i, tmp + i))
    for i in range(0, n, 2): l.append(pk('v_pk_fma_f32', tmp + i, [tmp + i, bc(ri), bc(ri)]))
    for i in range(n): l.append('v_rcp_f32 v%d, v%d' % (tmp + i, tmp + i))
    for i in range(0, n, 2): l.append(pk('v_pk_mul_f32', t + i, [t + i, tmp + i]))
    return l
M32 = 'v_mfma_f32_32x32x16_bf16 %s, %s, %s, %s'
M16 = 'v_mfma_f32_16x16x32_bf16 %s, %s, %s, %s'
TR = 'ds_read_b64_tr_b16 %s, v%d offset:%d'

def build(stamp=False):
    a = G(stamp)
    a('s_cmp_ge_u32 s2, 256'); a('s_cbranch_scc1 Lend')
    if SPIN and SPIN[0] == 'entry': a.stamp('entry')
    a('s_load_dwordx16 s[4:19], s[0:1], 0')
    a('s_getpc_b64 s[84:85]')
    a('s_lshr_b32 s49, s2, 3'); a('s_lshl_b32 s53, s49, 10'); a('v_lshlrev_b32 v7, 2, v0'); a('v_and_b32 v7, 0x380, v7'); a('v_add_u32 v7, s53, v7')
    a.vm('global_load_dword v148, v7, s[84:85]')
    a('s_load_dwordx8 s[20:27], s[0:1], 64')
    a('s_load_dwordx4 s[28:31], s[0:1], 96')
    a('s_memrealtime s[80:81]')
    a('v_lshrrev_b32 v1, 6, v0'); a('v_readfirstlane_b32 s48, v1'); a('v_and_b32 v1, 63, v0')
    if stamp: a('v_mov_b32 v15, 0')
    a('s_and_b32 s50, s2, 7')
    a('s_and_b32 s51, s48, 1'); a('s_lshr_b32 s52, s48, 1')
    a('v_and_b32 v5, 15, v1'); a('v_lshrrev_b32 v6, 4, v1'); a('v_lshlrev_b32 v14, 4, v1')
    a('v_lshrrev_b32 v7, 3, v1'); a('v_lshlrev_b32 v7, 10, v7'); a('v_and_b32 v8, 7, v1'); a('v_lshl_add_u32 v7, v8, 4, v7')
    a('v_and_b32 v8, 1, v6'); a('v_lshlrev_b32 v9, 6, v8'); a('v_xor_b32 v184, v9, v7')
    a('v_lshlrev_b32 v9, 5, v8'); a('v_xor_b32 v16, v9, v7'); a('v_xor_b32 v17, 64, v16'); a('v_add_u32 v18, 0x1c00, v17')
    a('s_lshl_b32 s53, s49, 16'); a('s_lshl_b32 s54, s48, 14'); a('s_add_u32 s53, s53, s54'); a('s_lshl_b32 s54, s50, 7'); a('s_add_u32 s55, s53, s54')
    a('s_lshl_b32 s56, s48, 11')
    a('v_add_u32 v19, 0x1c00, v16')
    a('s_movk_i32 s62, 0x1000'); a('s_mov_b32 s60, 0x%x' % f2u(1.0 / 512)); a('s_mov_b32 s61, 0xffff0000')
    a('s_lshl_b32 s63, s2, 2'); a('s_add_u32 s63, s63, s48')
    a('s_waitcnt lgkmcnt(0)')
    a.stamp('start')
    srd(a, 36, 6, 2 * MB)
    a('s_add_u32 s53, s56, %d' % (L_K + 1024)); a('s_mov_b32 m0, s53')
    a.vm('buffer_load_dwordx4 v17, s[36:39], s55 offen %s lds' % NT)
    a.vm('buffer_load_dwordx4 v19, s[36:39], s55 offen offset:1024 %s lds' % NT)
    srd(a, 40, 8, 2 * MB)
    a('s_add_u32 s53, s56, %d' % L_V); a('s_mov_b32 m0, s53')
    a.vm('buffer_load_dwordx4 v16, s[40:43], s55 offen %s lds' % NT)
    a.vm('buffer_load_dwordx4 v18, s[40:43], s55 offen offset:1024 %s lds' % NT)
    a('s_cmp_lg_u32 s48, 0'); a('s_cbranch_scc1 Lnoh')
    a('s_sub_u32 s53, s55, 0x2000'); a('s_cselect_b32 s53, 0x400000, s53'); a('s_mov_b32 m0, %d' % L_K)
    a('buffer_load_dwordx4 v16, s[36:39], s53 offen %s lds' % NT)
    a('s_cmp_lg_u32 s2, 0'); a('s_cbranch_scc1 Lnoh')
    a('v_mov_b32 v2, s80'); a('v_mov_b32 v3, s81'); a('v_mov_b32 v4, 0'); a('s_mov_b64 exec, 1')
    a('global_store_dwordx2 v4, v[2:3], s[28:29] sc1'); a('s_mov_b64 exec, -1')
    a('Lnoh:')
    srd(a, 44, 4, 2 * MB)
    a('s_add_u32 s53, s56, %d' % L_X); a('s_mov_b32 m0, s53')
    a.vm('buffer_load_dwordx4 v16, s[44:47], s55 offen %s lds' % NTX)
    a.vm('buffer_load_dwordx4 v18, s[44:47], s55 offen offset:1024 %s lds' % NTX)
    a('s_lshl_b32 s53, s50, 2'); a('s_add_u32 s53, s53, s48'); a('s_lshl_b32 s53, s53, 4'); a('v_add_u32 v20, s53, v5')
    a('v_lshlrev_b32 v7, 3, v20')
    a.vm('global_load_dwordx2 v[44:45], v7, s[10:11]', 'kvx')
    a('s_lshr_b32 s53, s2, 5'); a('s_lshl_b32 s53, s53, 18'); a('s_and_b32 s54, s63, 15'); a('s_lshl_b32 s54, s54, 14'); a('s_add_u32 s53, s53, s54')
    a('s_bfe_u32 s54, s2, 0x20002'); a('s_lshl_b32 s54, s54, 12'); a('s_add_u32 s53, s53, s54')
    a('s_bfe_u32 s54, s2, 0x10004'); a('s_lshl_b32 s54, s54, 11'); a('s_add_u32 s53, s53, s54'); a('v_add_u32 v7, s53, v14')
    a.vm('global_load_dwordx4 v[128:131], v7, s[4:5] ' + NTX); a.vm('global_load_dwordx4 v[132:135], v7, s[4:5] offset:1024 ' + NTX, 'xr')
    def kloads():
        a('s_lshl_b32 s64, s50, 6'); a('s_lshl_b32 s53, s49, 1'); a('s_add_u32 s64, s64, s53')
        a('s_lshl_b32 s53, s64, 1'); a('s_load_dword s65, s[14:15], s53')
        a('s_add_u32 s64, s64, s52'); a('s_lshl_b32 s66, s64, 12')
        srd(a, 36, 12, 4096, 's66')
        a('s_lshl_b32 s67, s51, 11'); a('v_add_u32 v10, s67, v14'); a('v_add_u32 v150, -8, v10'); a('v_add_u32 v151, 1016, v10')
        a.vm('buffer_load_dwordx2 v[136:137], v150, s[36:39], 0 offen ' + NT)
        a.vm('buffer_load_dwordx4 v[138:141], v10, s[36:39], 0 offen ' + NT)
        a.vm('buffer_load_dwordx2 v[142:143], v151, s[36:39], 0 offen ' + NT)
        a.vm('buffer_load_dwordx4 v[144:147], v10, s[36:39], 0 offen offset:1024 ' + NT, 'K')
    if KWHEN == 0: kloads()
    srd(a, 32, 30, 0x10000000)
    a('v_and_b32 v7, 3, v1'); a('v_lshlrev_b32 v7, 12, v7'); a('v_bfe_u32 v8, v1, 2, 2'); a('v_lshl_add_u32 v7, v8, 7, v7')
    a('s_lshl_b32 s53, s50, 9'); a('s_add_u32 s72, s53, 0x%x' % F_A)
    a.vm('buffer_load_dword v149, v7, s[32:35], s72 offen sc1')
    a('s_lshl_b32 s76, s48, 12'); a('s_add_u32 s76, s76, %d' % L_PK); a('s_sub_u32 s74, 1023, s63')
    for i in range(1, 4): a('v_add_u32 v%d, %d, v184' % (248 + i, 7168 * i))
    def ploads():
        srd(a, 36, 24, 1376 * 1024)
        a('s_and_b32 s53, s63, 7'); a('s_lshl_b32 s53, s53, 7'); a('s_lshr_b32 s54, s63, 3'); a('s_lshl_b32 s54, s54, 14'); a('s_add_u32 s73, s53, s54')
        a('s_mov_b32 m0, s76')
        a.vm('buffer_load_dwordx4 v184, s[36:39], s73 offen %s lds' % NT)
        a.vm('buffer_load_dwordx4 v249, s[36:39], s73 offen offset:1024 %s lds' % NT)
        srd(a, 36, 22, 512 * 2752)
        a('s_and_b32 s53, s74, 15'); a('s_mul_i32 s53, s53, %d' % (32 * 2752)); a('s_lshr_b32 s54, s74, 4'); a('s_lshl_b32 s54, s54, 6')
        a('s_add_u32 s75, s53, s54'); a('s_cmp_lt_u32 s74, 688'); a('s_cselect_b32 s75, s75, 0x400000')
        a('v_lshrrev_b32 v150, 2, v1'); a('v_mul_u32_u24 v150, 2752, v150'); a('v_and_b32 v151, 3, v1'); a('v_lshl_add_u32 v150, v151, 4, v150')
        a('s_add_u32 s53, s76, 2048'); a('s_mov_b32 m0, s53'); a('s_add_u32 s54, s75, %d' % (16 * 2752 - 1024))
        a.vm('buffer_load_dwordx4 v150, s[36:39], s75 offen %s lds' % NT)
        a.vm('buffer_load_dwordx4 v150, s[36:39], s54 offen offset:1024 %s lds' % NT, 'pk')
    if PWHEN == 0: ploads()
    if 'front' in EXP: a.stamp('issued')
    a('s_and_b32 s53, s63, 7'); a('s_mul_i32 s53, s53, %d' % (86 * 2048)); a('s_lshr_b32 s54, s63, 3'); a('s_lshl_b32 s54, s54, 11'); a('s_add_u32 s53, s53, s54')
    a('s_add_u32 s53, s53, 0x%x' % W4P); a('s_cmp_lt_u32 s63, 688'); a('s_cselect_b32 s88, s53, 0x%x' % DUMP)
    a('s_lshr_b32 s54, s74, 4'); a('s_lshl_b32 s54, s54, 15'); a('s_and_b32 s55, s74, 15'); a('s_lshl_b32 s55, s55, 10'); a('s_add_u32 s54, s54, s55')
    a('s_add_u32 s54, s54, 0x%x' % W3P); a('s_cmp_lt_u32 s74, 688'); a('s_cselect_b32 s89, s54, 0x%x' % DUMP); a('s_add_u32 s59, s89, 0x4000')
    a('s_lshl_b32 s68, s50, 2'); a('s_and_b32 s53, s49, 3'); a('s_add_u32 s68, s68, s53')
    a('s_lshr_b32 s69, s2, 5')
    a('s_lshl_b32 s92, s53, 12')
    a('s_lshl_b32 s77, s48, 14'); a('s_add_u32 s77, s77, %d' % L_S)
    a('s_lshl_b32 s78, s48, 17'); a('s_lshl_b32 s53, s69, 7'); a('s_add_u32 s78, s78, s53')
    srd(a, 40, 20, 512 * 1024); srd(a, 44, 18, 512 * 1024)
    for i in range(4): a('v_mov_b32 v%d, 0' % (152 + i))
    a('s_mul_i32 s70, s52, 4608'); a('s_add_u32 s70, s70, %d' % L_KV)
    a('s_mul_i32 s71, s52, %d' % (4 * CS))
    a('v_and_b32 v7, 31, v1'); a('v_lshl_add_u32 v7, v7, 4, s70')
    a('ds_write_b128 v7, v[152:155] offset:4096')
    a('v_and_b32 v7, 1, v1'); a('v_lshlrev_b32 v7, 4, v7'); a('v_bfe_u32 v8, v1, 1, 2'); a('v_mul_u32_u24 v8, %d, v8' % CS)
    a('v_add3_u32 v7, v7, v8, s71')
    a('ds_write_b128 v7, v[152:155] offset:%d' % L_E4)
    for i in range(4): a('v_mov_b32 v%d, -1' % (252 + i))
    a('s_bfe_u32 s53, s69, 0x10001')
    a('v_bfe_u32 v7, v1, 3, 1'); a('s_mul_i32 s54, s53, 31'); a('v_xor_b32 v7, s54, v7'); a('v_lshlrev_b32 v7, 4, v7')
    a('v_and_b32 v8, 7, v1'); a('v_lshl_add_u32 v191, v8, 9, v7')
    a('s_lshl_b32 s54, s68, 1'); a('s_add_u32 s53, s53, s54'); a('s_lshl_b32 s53, s53, 15'); a('s_lshl_b32 s54, s69, 12'); a('s_add_u32 s53, s53, s54')
    a('s_add_u32 s79, s53, 0x%x' % ZB)
    a('s_movk_i32 s83, 0x800')
    a('v_and_b32 v7, 31, v1'); a('s_lshl_b32 s53, s51, 5'); a('v_add_u32 v7, s53, v7')
    a('s_lshr_b32 s53, s69, 1'); a('s_lshl_b32 s53, s53, 3'); a('s_lshr_b32 s53, 0xfe02ff01, s53'); a('s_sext_i32_i8 s53, s53')
    a('s_lshl_b32 s54, s68, 6'); a('s_add_u32 s53, s53, s54'); a('v_add_u32 v7, s53, v7')
    a('v_cmp_gt_u32 s[98:99], s62, v7'.replace('s62', 's83')); a('v_and_b32 v7, 0x7ff, v7')
    a('v_lshrrev_b32 v248, 5, v7'); a('v_lshlrev_b32 v248, 15, v248'); a('v_and_b32 v7, 31, v7'); a('v_lshl_add_u32 v248, v7, 4, v248')
    a('v_lshrrev_b32 v7, 5, v1'); a('v_lshl_add_u32 v248, v7, 9, v248')
    a('s_lshl_b32 s53, s69, 12'); a('s_lshl_b32 s54, s52, 11'); a('s_add_u32 s86, s53, s54'); a('s_add_u32 s86, s86, 0x%x' % ZB)
    a('v_and_b32 v11, 3, v5'); a('v_mul_u32_u24 v11, %d, v11' % CS); a('v_and_b32 v12, 12, v5'); a('v_lshl_add_u32 v11, v12, 1, v11')
    a('v_lshl_add_u32 v11, v6, 4, v11'); a('s_lshl_b32 s56, s51, 8'); a('s_add_u32 s57, s56, s71'); a('s_add_u32 s57, s57, %d' % (L_E4 + 8))
    a('v_add_u32 v11, s57, v11')
    a('v_lshlrev_b32 v12, 4, v6'); a('v_lshlrev_b32 v13, 5, v5'); a('v_sub_u32 v12, v12, v13')
    a('s_add_u32 s57, s56, s70'); a('s_add_u32 s57, s57, 480'); a('v_add_u32 v12, s57, v12')
    a('v_lshlrev_b32 v7, 4, v5'); a('v_lshl_add_u32 v7, v6, 2, v7'); a('s_lshl_b32 s56, s51, 10'); a('v_add_u32 v7, s56, v7')
    a('v_lshlrev_b32 v8, 1, v7'); a('s_lshl_b32 s56, s51, 13'); a('v_add_u32 v9, s56, v14')
    a('s_add_u32 s57, s70, %d' % (2 * (2044 - 768))); a('v_sub_u32 v13, s57, v8')
    a('v_and_b32 v185, 1, v6'); a('v_lshlrev_b32 v185, 18, v185'); a('v_lshrrev_b32 v7, 2, v5'); a('v_lshl_add_u32 v185, v7, 16, v185')
    a('v_and_b32 v7, 3, v5'); a('v_lshl_add_u32 v185, v7, 5, v185'); a('v_lshrrev_b32 v7, 1, v6'); a('v_lshl_add_u32 v185, v7, 4, v185')
    a('v_lshrrev_b32 v21, 5, v1'); a('v_bfe_u32 v22, v1, 2, 2')
    a('v_lshl_add_u32 v7, v21, 3, v22'); a('v_lshlrev_b32 v7, 7, v7'); a('v_lshrrev_b32 v23, 1, v22'); a('v_lshl_add_u32 v7, v23, 6, v7')
    a('v_and_b32 v21, 1, v6'); a('v_lshl_add_u32 v7, v21, 5, v7')
    a('v_and_b32 v24, 3, v1'); a('v_lshl_add_u32 v187, v24, 3, v7')
    a('v_and_b32 v25, 1, v1'); a('v_lshl_add_u32 v7, v25, 4, v7'); a('v_bfe_u32 v25, v1, 1, 1'); a('v_lshl_add_u32 v188, v25, 3, v7')
    PA, PB = (189, 190) if PWHEN != 3 else (10, 4)
    if PWHEN != 3: a('v_add_u32 v%d, s76, v188' % PA); a('v_xor_b32 v%d, 64, v%d' % (PB, PA))
    a('v_lshl_add_u32 v7, v6, 3, v22'); a('v_lshlrev_b32 v186, 6, v7'); a('v_lshl_add_u32 v186, v24, 3, v186'); a('v_add_u32 v186, s76, v186')
    a('v_lshlrev_b32 v7, 7, v7'); a('v_lshl_add_u32 v23, v21, 1, v23'); a('v_xor_b32 v23, s48, v23'); a('v_lshl_add_u32 v7, v23, 5, v7')
    a('v_lshl_add_u32 v7, v24, 3, v7'); a('v_add_u32 v26, %d, v7' % L_K); a('v_xor_b32 v27, 64, v26')
    a('v_lshlrev_b32 v20, 12, v20'); a('s_lshl_b32 s53, s49, 7'); a('v_lshl_add_u32 v7, v6, 4, s53')
    a('v_add_u32 v28, v20, v7'); a('v_add_u32 v28, 0x%x, v28' % XT)
    a('v_sub_u32 v29, v20, v7'); a('v_add_u32 v29, %d, v29' % (4080 - 64 + KVR))
    a('v_and_b32 v4, 31, v1'); a('v_lshlrev_b32 v4, 3, v4'); a('v_mov_b32 v0, 0')
    if 'front' in EXP: a.stamp('addr done')
    a.wait('kvx')
    if 'front' in EXP: a.stamp('own landed')
    a('s_barrier')
    a.vm('global_load_dwordx2 v[2:3], v0, s[28:29] sc1', 'tag')
    a.stamp('k landed')
    if KWHEN == 2: kloads()
    if PWHEN == 2: ploads()
    for o in range(2):
        a(TR % (vr(30 + 6 * o, 2), 26, 512 + 4096 * o))
        a(TR % (vr(32 + 6 * o, 2), 27, 1024 + 4096 * o)); a(TR % (vr(34 + 6 * o, 2), 27, 1536 + 4096 * o))
    for o in range(2):
        for z in range(2): a(TR % (vr(112 + 4 * o + 2 * z, 2), 26, L_V - L_K + 512 * z + 4096 * o))
    for o in range(2):
        for z in range(2): a(TR % (vr(120 + 4 * o + 2 * z, 2), 26, L_X - L_K + 512 * z + 4096 * o))
    a(lo(70, 44)); a(hi(71, 44)); a(lo(72, 45)); a(hi(73, 45))
    a('s_waitcnt lgkmcnt(8)')
    for t in range(1, 12):
        for o in range(2): a((hi if t & 1 else lo)(46 + 2 * t + o, 30 + 6 * o + (t >> 1)))
    a('s_waitcnt lgkmcnt(0)')
    a.vm('buffer_store_dwordx4 v[120:123], v28, s[32:35], 0 offen sc1')
    a.vm('buffer_store_dwordx4 v[124:127], v28, s[32:35], 0 offen offset:64 sc1')
    for i in range(8): a(pk('v_pk_mul_f32', 94 + 2 * i, [48 + 2 * i, bc(73)]))
    for t in (1, 2, 3):
        for i in range(8): a(pk('v_pk_fma_f32', 94 + 2 * i, [48 + 2 * (i + t), bc(73 - t), 94 + 2 * i]))
    for i in range(8):
        for o in range(2): a((hi if i & 1 else lo)(78 + 2 * i + o, 112 + 4 * o + (i >> 1)))
    for i in range(8): a(pk('v_pk_mul_f32', 94 + 2 * i, [94 + 2 * i, 78 + 2 * i]))
    for o in range(2):
        for i in range(4): a('v_cvt_pk_bf16_f32 v%d, v%d, v%d' % (112 + 4 * o + i, 94 + 2 * (7 - 2 * i) + o, 94 + 2 * (6 - 2 * i) + o))
    a.vm('buffer_store_dwordx4 v[112:115], v29, s[32:35], 0 offen offset:64 sc1')
    a.vm('buffer_store_dwordx4 v[116:119], v29, s[32:35], 0 offen sc1', 'st')
    a.stamp('kv stored')
    if KWHEN == 1: kloads()
    if PWHEN == 1: ploads()
    a.wait('xr')
    for r in range(2):
        for i in range(4): a(lo(48 + 8 * r + 2 * i, 128 + 4 * r + i)); a(hi(49 + 8 * r + 2 * i, 128 + 4 * r + i))
    for r in range(2):
        b = 48 + 8 * r
        a(pk('v_pk_add_f32', 70 + 2 * r, [b, b + 2])); a(pk('v_pk_add_f32', 74 + 2 * r, [b + 4, b + 6]))
    for r in range(2): a(pk('v_pk_add_f32', 70 + 2 * r, [70 + 2 * r, 74 + 2 * r]))
    for r in range(2): a('v_add_f32 v%d, v%d, v%d' % (64 + r, 70 + 2 * r, 71 + 2 * r))
    allreduce(a, [64, 65], [66, 67])
    for r in range(2): a('v_mul_f32 v%d, s60, v%d' % (64 + r, 64 + r))
    for r in range(2):
        for i in range(0, 8, 2): a(pk('v_pk_add_f32', 48 + 8 * r + i, [48 + 8 * r + i, bc(64 + r)], neg=[0, 1]))
    for r in range(2):
        b = 48 + 8 * r
        a(pk('v_pk_mul_f32', 70 + 2 * r, [b, b]))
        for i in (2, 4, 6): a(pk('v_pk_fma_f32', 70 + 2 * r, [b + i, b + i, 70 + 2 * r]))
    for r in range(2): a('v_add_f32 v%d, v%d, v%d' % (68 + r, 70 + 2 * r, 71 + 2 * r))
    allreduce(a, [68, 69], [66, 67])
    for r in range(2): a('v_mul_f32 v%d, s60, v%d' % (68 + r, 68 + r))
    a('v_cvt_pk_bf16_f32 v68, v68, v69'); a(hi(69, 68)); a(lo(68, 68))
    for r in range(2): a('v_add_f32 v%d, 0x%x, v%d' % (68 + r, f2u(EPS), 68 + r))
    a('v_cvt_pk_bf16_f32 v68, v68, v69'); a(hi(69, 68)); a(lo(68, 68))
    for r in range(2): a('v_sqrt_f32 v%d, v%d' % (68 + r, 68 + r))
    a('s_lshl_b32 s53, s48, 3'); a('s_add_u32 s53, s53, %d' % L_CRED); a('v_mov_b32 v7, s53')
    a('v_cvt_pk_bf16_f32 v72, v68, v64'); a('v_cvt_pk_bf16_f32 v73, v69, v65')
    a('ds_write_b64 v7, v[72:73]')
    a('s_lshl_b32 s53, s49, 3'); a('s_add_u32 s58, s53, s72')
    a('s_mov_b32 s82, 0')
    a.wait('st', 'lgkmcnt(0)')
    a('Ltag:')
    a('v_readfirstlane_b32 s80, v2'); a('v_readfirstlane_b32 s81, v3')
    a('s_or_b32 s53, s80, s81'); a('s_cbranch_scc1 Ltagok')
    a('global_load_dwordx2 v[2:3], v0, s[28:29] sc1')
    a.guard()
    a('s_waitcnt vmcnt(0)')
    a('s_branch Ltag')
    a('Ltagok:')
    a.stamp('drained')
    a.signal('s58')
    if 'a' in RR:
        a.vm('buffer_load_dword v18, v29, s[32:35], 0 offen sc1'); a.vm('buffer_load_dword v19, v28, s[32:35], 0 offen sc1')
    a('s_cmp_lg_u32 s48, 1'); a('s_cbranch_scc1 Lnost')
    a('v_lshlrev_b32 v7, 3, v1'); a('ds_read_b64 v[72:73], v7 offset:%d' % L_CRED)
    a('s_lshl_b32 s53, s2, 6'); a('s_add_u32 s53, s53, 0x%x' % ST0); a('v_mov_b32 v75, s80')
    a('s_mov_b64 exec, 15'); a('s_waitcnt lgkmcnt(0)')
    a('v_mov_b32 v74, v73'); a('v_mov_b32 v73, s80')
    a('buffer_store_dwordx4 v[72:75], v14, s[32:35], s53 offen sc1'); a('s_mov_b64 exec, -1')
    a('Lnost:')
    def ptr():
        a(TR % ('v[192:193]', PA, 0)); a(TR % ('v[194:195]', PA, 512)); a(TR % ('v[196:197]', PB, 0)); a(TR % ('v[198:199]', PB, 512))
        for e in range(2):
            for z in range(2): a(TR % (vr(200 + 4 * e + 2 * z, 2), 186, 2048 + 32 * e + 256 * z))
    def late():
        if PWHEN != 3: ptr()
        a('v_add_u32 v7, s71, v10')
        for i in range(2):
            W = 136 + 6 * i; b = 20 + 12 * i
            for x in range(4): a('v_alignbit_b32 v%d, v%d, v%d, 16' % (b + x, W + x + 1, W + x))
            for x in range(4): a('v_mov_b32 v%d, v%d' % (b + 4 + x, W + x + 1))
            for x in range(4): a('v_alignbit_b32 v%d, v%d, v%d, 16' % (b + 8 + x, W + x + 2, W + x + 1))
            o = L_E4 + 32 + 1024 * i
            a('ds_write_b128 v7, %s offset:%d' % (vr(W + 2, 4), o + 3 * CS))
            a('ds_write_b128 v7, %s offset:%d' % (vr(b, 4), o))
            a('ds_write_b128 v7, %s offset:%d' % (vr(b + 4, 4), o + CS))
            a('ds_write_b128 v7, %s offset:%d' % (vr(b + 8, 4), o + 2 * CS))
    if KWHEN != 1 and PWHEN != 1: late()
    a('s_add_u32 s56, s70, s67'); a('s_mov_b32 m0, s56'); a('s_add_u32 s57, s66, %d' % KVR); a('s_add_u32 s58, s66, 0x%x' % XT)
    a.poll(4, 's72', True)
    a.stamp('X0 seen')
    a.vm('buffer_load_dwordx4 v10, s[32:35], s57 offen sc1 lds')
    a.vm('buffer_load_dwordx4 v10, s[32:35], s57 offen offset:1024 sc1 lds', 'kv')
    for i in range(4): a.vm('buffer_load_dwordx2 %s, v8, s[32:35], s58 offen offset:%d sc1' % (vr(208 + 2 * i, 2), 512 * i), 'xT')
    if KWHEN == 1 or PWHEN == 1: late()
    if PWHEN == 3:
        ploads(); a('v_add_u32 v%d, s76, v188' % PA); a('v_xor_b32 v%d, 64, v%d' % (PB, PA))
    pst = [[('buffer_store_dwordx4 %s, v14, s[32:35], %s offen offset:%d sc1' % (vr(192 + 4 * z, 4), ('s88', 's88', 's89', 's59')[z], 1024 if z == 1 else 0), None)] for z in range(4)]
    pst.append(['s_mov_b64 exec, 0xffff', ('buffer_store_dwordx4 v[252:255], v191, s[32:35], s79 offen sc1', None), 's_mov_b64 exec, -1'])
    if ZT: pst = [[('buffer_load_dword v192, v248, s[32:35], s86 offen', None)], [('buffer_load_dword v193, v248, s[32:35], s86 offen offset:1024', None)]][:0] + pst + [[('buffer_load_dword v4, v248, s[32:35], s86 offen', None)], [('buffer_load_dword v4, v248, s[32:35], s86 offen offset:1024', None)]]
    def wdma(srdn, label, ngrp, mask, ldsbase, srcoff):
        l = []
        for i in range(4 * ngrp):
            it = []
            if i % 4 == 0:
                it += ['s_add_u32 s55, s92, %d' % (1024 * i), 's_and_b32 s55, s55, 0x%x' % mask, 's_add_u32 s53, %s, s55' % ldsbase, 's_mov_b32 m0, s53',
                       's_lshl_b32 s55, s55, 3', 's_add_u32 s93, s78, s55']
                if srcoff: it.append('s_add_u32 s93, s93, %d' % srcoff)
            it.append(('buffer_load_dwordx4 v%d, s[%d:%d], s93 offen offset:%d lds' % (248 + (i & 3) if i & 3 else 184, srdn, srdn + 3, 1024 * (i & 3)), label))
            l.append(it)
        return l
    def stloads(fl=''):
        return [['s_mov_b32 s54, 0x%x' % (ST0 + 4096 * (i >> 2)),
                 ('buffer_load_dwordx4 %s, v9, s[32:35], s54 offen offset:%d %s' % (vr(216 + 4 * i, 4), 1024 * (i & 3), fl), 'st0')] for i in range(8)]
    w1l = wdma(44, 'w1', 4, 0x3fff, 's77', 0)
    bg = w1l; stl = stloads()
    if W2A: a('s_lshl_b32 s87, s48, 13'); a('s_add_u32 s87, s87, %d' % L_S2); bg += wdma(40, 'w1', 2, 0x1fff, 's87', 0)
    a('s_waitcnt lgkmcnt(0)')
    a('s_barrier')
    a.take(bg, PRE0)
    a('s_lshl_b32 s56, s65, 16'); a('s_and_b32 s57, s65, 0xffff0000'); a('s_cmp_eq_u32 s52, 0'); a('s_cselect_b32 s65, s56, s57')
    a('s_lshl_b32 s57, s51, 20'); a('s_lshl_b32 s58, s64, 7'); a('s_add_u32 s57, s57, s58'); a('s_add_u32 s57, s57, 0x%x' % HT)
    a('s_add_u32 s58, s57, 0x80000')
    a('s_lshl_b32 s53, s48, 12'); a('s_add_u32 s53, s53, %d' % L_CRED); a('v_add_u32 v190, s53, v14'); a('v_xor_b32 v189, 0x1000, v14')
    a('s_lshl_b32 s53, s48, 12'); a('v_xor_b32 v189, s53, v189'); a('v_add_u32 v189, %d, v189' % L_CRED)
    CA = 16; FR = 48
    def A(st, x): return FR + 64 * st + 4 * x
    def B(st, x): return FR + 64 * st + 32 + 4 * x
    def reads(rho):
        st = rho & 1; l = []
        for x in range(8):
            l.append('ds_read_b64 %s, v11 offset:%d' % (vr(A(st, x), 2), 512 * x + 64 * rho))
            l.append('ds_read_b64 %s, v11 offset:%d' % (vr(A(st, x) + 2, 2), 512 * x + 64 * rho + 8))
            l.append('ds_read_b128 %s, v12 offset:%d' % (vr(B(st, x), 4), 512 * (7 - x) + 64 * rho))
        return l
    XF = 48; XN = 64; KD = 80; RS = 96
    def shadow():
        l = ['s_waitcnt lgkmcnt(0)']
        for i in range(4):
            l += [hi(KD + 4 * i, 177 + 2 * i), lo(KD + 4 * i + 1, 177 + 2 * i), hi(KD + 4 * i + 2, 176 + 2 * i), lo(KD + 4 * i + 3, 176 + 2 * i)]
        l += ['v_mul_f32 v%d, s65, v%d' % (KD + i, KD + i) for i in range(16)]
        l.append(('wait', 'st0'))
        l += [(hi if i & 1 else lo)(XF + i, 208 + (i >> 1)) for i in range(16)]
        l.append(('check',))
        l += [lo(RS + i, 216 + 2 * i) for i in range(16)]
        l += ['v_rcp_f32 v%d, v%d' % (RS + i, RS + i) for i in range(16)]
        l += [hi(XN + i, 216 + 2 * i) for i in range(16)]
        l += ['v_sub_f32 v%d, v%d, v%d' % (XN + i, XF + i, XN + i) for i in range(16)]
        l += ['v_mul_f32 v%d, v%d, v%d' % (XN + i, XN + i, RS + i) for i in range(16)]
        return l
    def check():
        a('s_mov_b32 s82, 0')
        a('Lst0:')
        a('v_min3_u32 v7, v217, v219, v221'); a('v_max3_u32 v0, v217, v219, v221')
        for i in range(3, 15, 2):
            a('v_min3_u32 v7, v7, v%d, v%d' % (217 + 2 * i, 219 + 2 * i)); a('v_max3_u32 v0, v0, v%d, v%d' % (217 + 2 * i, 219 + 2 * i))
        a('v_min_u32 v7, v7, v247'); a('v_max_u32 v0, v0, v247')
        a('v_cmp_ne_u32 vcc, s80, v7'); a('v_cmp_ne_u32 s[54:55], s80, v0'); a('s_or_b64 vcc, vcc, s[54:55]')
        a('s_cbranch_vccz Lst0ok')
        for it in stloads('sc1'):
            for x in it: a(x[0] if isinstance(x, tuple) else x)
        a.guard()
        a('s_waitcnt vmcnt(0)')
        a('s_branch Lst0')
        a('Lst0ok:'); a.count(30)
    def emit_sh(x):
        if isinstance(x, str): a(x)
        elif x[0] == 'wait': a.wait(x[1])
        else: check()
    r0 = reads(0)
    for r in r0:
        if 'b64' in r: a(r)
    a.wait('kv')
    a('s_barrier')
    a.stamp('conv go')
    for r in r0:
        if 'b64' not in r: a(r)
    started = set(); sh = shadow()
    for rho in range(4):
        st = rho & 1
        nxt = reads(rho + 1) if rho < 3 else ['ds_read_b64 %s, v13 offset:%d' % (vr(176 + 2 * i, 2), 512 * (3 - i)) for i in range(4)]
        issued = 0; cnt = 0
        for x in range(8):
            pairs = [(x, b) for b in range(x + 1) if x + b <= 7] + [(aa, x) for aa in range(x) if aa + x <= 7]
            if rho == 0: a('s_waitcnt lgkmcnt(%d)' % min(15, 7 - x + issued))
            elif x == 0: a('s_waitcnt lgkmcnt(0)')
            for (aa, bb) in pairs:
                t = aa + bb
                c = vr(CA + 4 * t, 4) if t in started else '0'
                started.add(t)
                a(M16 % (vr(CA + 4 * t, 4), vr(A(st, aa), 4), vr(B(st, bb), 4), c))
                cnt += 1
                if (rho > 0 or x >= 2) and issued < len(nxt) and cnt <= 30:
                    a(nxt[issued]); issued += 1
                g = cnt + 36 * rho
                if g >= ST_AT and g % 3 == 0: a.take(stl)
                if PWHEN == 3 and g == PST_AT - 8:
                    a.wait('pk'); ptr()
                if PWHEN == 3 and g == PST_AT - 1: a('s_waitcnt lgkmcnt(0)')
                if g >= PST_AT and g % 4 == 1: a.take(pst)
                if g >= BG0 and g % PACE == 0 and (g < ST_AT or not stl): a.take(bg)
                if rho == 3 and cnt >= 8 and 'nosh' not in EXP:
                    for _ in range(2): emit_sh(sh.pop(0))
        while issued < len(nxt): a(nxt[issued]); issued += 1
        if 'rho' in EXP and rho < 3: a.stamp('rho%d' % rho)
    a.stamp('conv mfma')
    a('s_cmp_eq_u32 s51, 0'); a('s_cbranch_scc1 Lck0')
    for v, lab in ((1, None), (0, 'Lck0')):
        if lab: a(lab + ':')
        snd = 0 if v else 4; keep = 4 - snd
        for i in range(4): a('ds_write_b128 v189, %s offset:%d' % (vr(CA + 4 * (snd + i), 4), 1024 * i))
        for i in range(0, 16, 2): a(pk('v_pk_add_f32', KD + i, [KD + i, CA + 4 * keep + i]))
        if v: a('s_branch Lck1')
    a('Lck1:')
    a.take(pst, 7)
    while sh:
        emit_sh(sh.pop(0))
        if len(sh) % 9 == 0: a.take(bg)
    a.take(bg, 24)
    a('s_waitcnt lgkmcnt(0)'); a('s_barrier')
    for i in range(4): a('ds_read_b128 %s, v190 offset:%d' % (vr(112 + 4 * i, 4), 1024 * i))
    a.stamp('conv red')
    for i in range(4):
        a('s_waitcnt lgkmcnt(%d)' % (3 - i))
        for r in (0, 2): a(pk('v_pk_add_f32', KD + 4 * i + r, [KD + 4 * i + r, 112 + 4 * i + r]))
        for r in (0, 2): a(pk('v_pk_fma_f32', XF + 4 * i + r, [XN + 4 * i + r, KD + 4 * i + r, XF + 4 * i + r]))
        o = 128 + 2 * i
        a('v_cvt_pk_bf16_f32 v%d, v%d, v%d' % (o, XF + 4 * i, XF + 4 * i + 1)); a('v_cvt_pk_bf16_f32 v%d, v%d, v%d' % (o + 1, XF + 4 * i + 2, XF + 4 * i + 3))
        if i & 1:
            a('v_permlane16_swap_b32 v%d, v%d' % (o - 2, o)); a('v_permlane16_swap_b32 v%d, v%d' % (o - 1, o + 1))
            a.vm('buffer_store_dwordx4 %s, v185, s[32:35], s%d offen sc1' % (vr(o - 2, 4), 57 + (i >> 1)), 'h')
    assert not bg
    a.stamp('h stored')
    a('s_lshl_b32 s53, s52, 6'); a('s_add_u32 s54, s53, s77'); a('v_xor_b32 v9, s54, v188'); a('v_xor_b32 v8, 64, v9')
    def wtr(dst, n, va):
        for s in range(n):
            for ch in range(2):
                a(TR % (ur(dst + 8 * s + 4 * ch, 2), va + ch, 2048 * s)); a(TR % (ur(dst + 8 * s + 4 * ch + 2, 2), va + ch, 2048 * s + 512))
    if W2A: a('s_add_u32 s54, s53, s87'); a('v_xor_b32 v186, s54, v188'); a('v_xor_b32 v185, 64, v186')
    a.wait('w1')
    wtr(256, 8, 8)
    if W2A: wtr(256 + 64, 4, 185)
    a('s_lshl_b32 s53, s50, 5'); a('s_add_u32 s53, s53, s49'); a('s_mul_i32 s53, s53, %d' % HFS); a('s_add_u32 s58, s53, 0x%x' % F_H)
    a('v_mul_u32_u24 v7, %d, v1' % (256 * HFS))
    for slot in range(3):
        th, ch = slot >> 1, slot & 1
        a('s_xor_b32 s53, s48, %d' % ((1 - th) + 2 * (1 - ch))); a('s_mul_i32 s53, s53, 12288'); a('s_add_u32 s53, s53, %d' % (G_RED + 4096 * slot))
        a('v_add_u32 v%d, s53, v14' % (10 + slot))
    a('s_mul_i32 s53, s48, 12288'); a('s_add_u32 s53, s53, %d' % G_RED); a('v_add_u32 v13, s53, v14')
    ONES = 160; CSUM = 144
    for i in range(4): a('v_mov_b32 v%d, 0x3f803f80' % (ONES + i))
    w2l = wdma(40, 'w2', 2, 0x1fff, 's77', 65536) if W2A else wdma(40, 'w2', 4, 0x3fff, 's77', 0)
    a('s_waitcnt lgkmcnt(0)')
    a.take(w2l, W2PRE)
    a.wait('h')
    a.stamp('h drained')
    a.signal('s58', 7)
    a.take(w2l, 4)
    a('v_and_b32 v164, 31, v1'); a('v_lshlrev_b32 v164, 2, v164'); a('s_lshl_b32 s53, s52, 7'); a('s_add_u32 s53, s53, %d' % L_S2); a('v_add_u32 v165, s53, v164')
    a('s_lshl_b32 s53, s48, 8'); a('v_add_u32 v166, s53, v165'); a('v_xor_b32 v167, 0x80, v166')
    a('s_lshl_b32 s53, s48, 7'); a('s_add_u32 s53, s53, %d' % (L_S2 + 1024)); a('v_add_u32 v168, s53, v164')
    a('v_lshrrev_b32 v169, 5, v1'); a('v_lshl_add_u32 v169, v169, 4, s53')
    for s in range(8):
        for ch in range(2):
            a(M32 % (vr(acc(0, ch), 16), vr(ONES, 4), ur(256 + 8 * s + 4 * ch, 4), vr(acc(0, ch), 16) if s else '0'))
            if ch: a.take(w2l)
    a.take(w2l, 4)
    srd(a, 36, 30, 8 * 86 * 2048, '0x%x' % W4P); srd(a, 40, 30, 86 * 16384, '0x%x' % W3P)
    a('ds_write_b32 v167, v%d' % acc(0, 0)); a('ds_write_b32 v166, v%d' % acc(0, 1))
    a('v_lshlrev_b32 v189, 6, v6'); a('v_and_b32 v189, 64, v189'); a('v_xor_b32 v189, v189, v14')
    a('s_lshl_b32 s56, s48, 14')
    a('s_lshl_b32 s53, s51, 6'); a('s_add_u32 s54, s53, s56'); a('v_xor_b32 v191, s54, v187'); a('v_xor_b32 v190, 64, v191')
    a('s_lshl_b32 s54, s69, 13'); a('s_add_u32 s53, s53, s54'); a('s_lshl_b32 s54, s52, 12'); a('s_add_u32 s53, s53, s54'); a('v_xor_b32 v187, s53, v187')
    a('s_and_b32 s57, s50, %d' % (HREP - 1)); a('s_lshl_b32 s57, s57, 2'); a('s_add_u32 s53, s57, s48'); a('s_mul_i32 s53, s53, %d' % (64 * HFS)); a('s_add_u32 s58, s53, 0x%x' % F_H)
    a('v_lshlrev_b32 v4, 3, v1'); a('v_mul_u32_u24 v0, %d, v1' % HFS)
    a('s_lshl_b32 s57, s68, 16'); a('s_add_u32 s57, s57, s56'); a('s_add_u32 s57, s57, 0x%x' % HT)
    a('s_waitcnt lgkmcnt(0)'); a('s_barrier')
    for w in range(4): a('ds_read_b32 v%d, v165 offset:%d' % (80 + w, 256 * w))
    a('s_xor_b32 s53, s51, 1'); a('s_lshl_b32 s53, s53, 8'); a('v_xor_b32 v184, s53, v4')
    a('s_lshl_b32 s53, s48, 9'); a('s_add_u32 s53, s53, %d' % G_ST); a('v_add_u32 v184, s53, v184')
    a('v_and_b32 v7, 31, v1'); a('s_lshl_b32 s53, s51, 5'); a('v_add_u32 v7, s53, v7'); a('v_lshlrev_b32 v185, 3, v7'); a('v_add_u32 v185, %d, v185' % G_ST)
    a('s_waitcnt lgkmcnt(0)')
    a('v_add_f32 v80, v80, v81'); a('v_add_f32 v82, v82, v83'); a('v_add_f32 v80, v80, v82')
    a('ds_write_b32 v168, v80')
    for q in range(4): a('ds_read_b128 %s, v169 offset:%d' % (vr(CSUM + 4 * q, 4), 32 * q))
    a('s_lshl_b32 s53, s69, 12'); a('s_lshl_b32 s54, s52, 11'); a('s_add_u32 s70, s53, s54'); a('s_add_u32 s71, s70, 0x%x' % ZB)
    a('v_mov_b32 v186, v248'); a('v_cndmask_b32 v188, 0, -2, s[98:99]')
    a('s_mul_i32 s73, s69, 11'); a('s_mul_i32 s53, s48, 3'); a('s_add_u32 s73, s73, s53')
    a('s_lshl_b32 s74, s73, 14'); a('s_add_u32 s75, s74, 0x8000'); a('s_cmp_eq_u32 s48, 3'); a('s_cselect_b32 s75, 0x400000, s75')
    a('s_lshl_b32 s72, s68, 7'); a('s_lshl_b32 s53, s69, 3'); a('s_add_u32 s79, s72, s53')
    a('s_lshl_b32 s66, s68, 1'); a('s_add_u32 s66, s66, s51')
    BF = 80; ST = 172
    for i in range(4): a('v_mov_b32 v%d, 0' % (ST + i))
    a('s_mov_b32 m0, s56')
    a.stamp('X1 poll')
    a.poll(0, 's58', False, sleep=SLEEP)
    a.count(63); a.stamp('X1 seen')
    hl = []
    for i in range(16):
        it = []
        if i and i % 4 == 0: it += ['s_add_u32 s53, s56, %d' % (1024 * i), 's_mov_b32 m0, s53', 's_add_u32 s57, s57, 4096']
        it.append(('buffer_load_dwordx4 v189, s[32:35], s57 offen offset:%d sc1 lds' % (1024 * (i & 3)), 'h%d' % (i >> 1)))
        hl.append(it)
    a.take(hl, 8)
    if W2A: wtr(256 + 96, 4, 8)
    else: wtr(256 + 64, 8, 8)
    WR3 = [192, 256 + 128, 256 + 192]
    w3l = []
    for j in (1, 2, 0):
        for s in range(16):
            w3l.append(['s_add_u32 s87, s%d, %d' % (75 if j == 2 else 74, (16384 if j == 1 else 0) + 1024 * s),
                        ('buffer_load_dwordx4 %s, v14, s[40:43], s87 offen' % ur(WR3[j] + 4 * s, 4), 'w3')])
    if 'now3' in EXP: w3l = [['s_nop 0'] for it in w3l]
    def btr(s):
        for th in range(2):
            a(TR % (vr(BF + 32 * th + 4 * s, 2), 190 + th, 2048 * s)); a(TR % (vr(BF + 32 * th + 4 * s + 2, 2), 190 + th, 2048 * s + 512))
    a.wait('h0'); btr(0)
    a.stamp('h0 landed')
    for s in range(8):
        if s < 7:
            a.wait('h%d' % (s + 1)); btr(s + 1)
        a('s_waitcnt lgkmcnt(%d)' % (4 if s < 7 else 0))
        if s == 4: a('s_barrier')
        for th in range(2):
            for ch in range(2):
                a(M32 % (vr(acc(th, ch), 16), ur(256 + 8 * s + 4 * ch, 4), vr(BF + 32 * th + 4 * s, 4), vr(acc(th, ch), 16) if s else '0'))
                if ch == 0:
                    if hl: a.take(hl)
                    elif s >= 6: a.take(w3l)
    a.stamp('g1 mfma')
    wr = red_write(0) + red_write(1) + red_write(2)
    n = 0
    for s in range(8):
        for th in range(2):
            for i in range(4):
                b = BF + 32 * th + 4 * s + i
                a('v_dot2c_f32_bf16 v%d, v%d, v%d' % (ST + th, b, ONES)); a('v_dot2c_f32_bf16 v%d, v%d, v%d' % (ST + 2 + th, b, b))
                n += 1
                if n >= 6 and n % 4 == 2 and wr: a(wr.pop(0))
                if n % 6 == 0 and len(w3l) > 48 - W3A: a.take(w3l)
    assert not wr
    a('v_permlane32_swap_b32 v%d, v%d' % (ST, ST + 1)); a('v_permlane32_swap_b32 v%d, v%d' % (ST + 2, ST + 3))
    a('v_add_f32 v%d, v%d, v%d' % (ST, ST, ST + 1)); a('v_add_f32 v%d, v%d, v%d' % (ST + 1, ST + 2, ST + 3))
    a('ds_write_b64 v184, %s' % vr(ST, 2))
    a('s_waitcnt lgkmcnt(0)'); a('s_barrier')
    a.stamp('g1 red')
    for w in range(4): a('ds_read_b64 %s, v185 offset:%d' % (vr(164 + 2 * w, 2), 512 * w))
    rr = red_reads(80)
    for r in rr[:10]: a(r)
    M1 = 164; R1 = 166; RI = 168; CAa = 169; CBb = 170
    a('s_waitcnt lgkmcnt(10)')
    a(pk('v_pk_add_f32', 164, [164, 166])); a(pk('v_pk_add_f32', 168, [168, 170])); a(pk('v_pk_add_f32', 164, [164, 168]))
    for r in rr[10:]: a(r)
    for l in ['v_mul_f32 v164, s60, v164', 'v_mul_f32 v166, v164, v164', 'v_fma_f32 v165, v165, s60, -v166', 'v_max_f32 v165, 0, v165',
              'v_add_f32 v166, 0x%x, v165' % f2u(EPS), 'v_rsq_f32 v166, v166',
              'v_mul_f32 v167, v166, v166', 'v_mul_f32 v167, v167, v165', 'v_add_f32 v167, 0x%x, v167' % f2u(EPS), 'v_rsq_f32 v167, v167',
              'v_mul_f32 v167, v167, v166', 'v_rcp_f32 v168, v167', 'v_mul_f32 v169, 0x%x, v167' % f2u(C0),
              'v_mul_f32 v170, v167, v167', 'v_mul_f32 v170, v170, v167', 'v_mul_f32 v170, 0x%x, v170' % f2u(C1)]: a(l)
    o = acc(1, 1)
    for i in range(0, 16, 2): a(pk('v_pk_fma_f32', o + i, [bc(M1), CSUM + i, o + i], neg=[1, 0, 0]))
    red_adds(a, 80)
    HO = 176
    for s in range(2):
        a(TR % (vr(HO + 4 * s, 2), 187, 2048 * s)); a(TR % (vr(HO + 4 * s + 2, 2), 187, 2048 * s + 512))
    g = gelu_pk(o, CAa, CBb, RI, 80, 16)
    for i, l in enumerate(g):
        a(l)
        if i % 10 == 9 and len(w3l) > 48 - W3A: a.take(w3l)
    for i in range(8): a('v_cvt_pk_bf16_f32 v%d, v%d, v%d' % (96 + i, o + 2 * i, o + 2 * i + 1))
    for i in range(8): a('v_min_u32 v%d, v%d, v188' % (96 + i, 96 + i))
    a.vm('buffer_store_dwordx4 v[96:99], v186, s[32:35], s71 offen sc1')
    a.vm('buffer_store_dwordx4 v[100:103], v186, s[32:35], s71 offen offset:1024 sc1', 'z')
    a.stamp('z stored')
    a.take(w3l, W3B)
    HF = 144; HN = 176
    a('s_waitcnt lgkmcnt(0)')
    for i in range(8): a(lo(HF + 2 * i, HO + i)); a(hi(HF + 2 * i + 1, HO + i))
    for i in range(0, 16, 2): a(pk('v_pk_add_f32', HN + i, [HF + i, bc(M1)], neg=[0, 1]))
    for i in range(0, 16, 2): a(pk('v_pk_mul_f32', HN + i, [HN + i, bc(R1)]))
    a('s_add_u32 s59, s79, 0x%x' % F_Z); a('s_add_u32 s58, s72, 0x%x' % F_Z)
    a('v_and_b32 v4, 1, v1'); a('v_lshlrev_b32 v4, 3, v4'); a('s_lshl_b32 s54, s48, 4'); a('v_add_u32 v4, s54, v4')
    a('s_lshl_b32 s56, s66, 15'); a('s_add_u32 s64, s56, s70'); a('s_add_u32 s64, s64, 0x%x' % X1B)
    a('s_lshl_b32 s54, s48, 13'); a('s_add_u32 s56, s56, s54'); a('s_add_u32 s56, s56, 0x%x' % ZB); a('s_xor_b32 s57, s56, 0x8000')
    a('s_lshl_b32 s54, s68, 13'); a('s_lshr_b32 s55, s70, 2'); a('s_add_u32 s54, s54, s55'); a('s_lshl_b32 s55, s51, 8'); a('s_add_u32 s54, s54, s55')
    a('s_add_u32 s65, s54, 0x%x' % ST1); a('v_lshlrev_b32 v0, 3, v1')
    a.wait('z')
    if 'z' in RR:
        a.vm('buffer_load_dword v18, v248, s[32:35], s71 offen sc1'); a.vm('buffer_load_dword v19, v248, s[32:35], s71 offen offset:1024 sc1')
    a.stamp('z drained')
    a.signal('s59')
    a.poll(4, 's58', True)
    a.stamp('X2 seen')
    def bitems(nks, dst, lab):
        l = []
        for th in range(2):
            for s in range(nks):
                it = []
                if s % 4 == 0: it.append('s_add_u32 s93, s%d, %d' % (57 - th, 1024 * s))
                it.append(('buffer_load_dwordx4 %s, v14, s[32:35], s93 offen offset:%d sc1' % (ur(dst(nks * th + s), 4), 1024 * (s & 3)), '%s%d' % (lab, nks * th + s)))
                l.append(it)
        return l
    def ksplit(nks, wreg, breg, lab, bgl, nbg, check):
        bl = bitems(nks, breg, lab)
        a.take(bl, 8)
        for th in range(2):
            wr = (red_write(0) + red_write(1)) if th else []
            if th and check:
                assert not bl
                a('s_mov_b32 s82, 0'); a('Lhalo:'); a('v_mov_b32 v7, 0')
            for s in range(nks):
                k = nks * th + s
                a.wait('%s%d' % (lab, k))
                for ch in range(2):
                    a(M32 % (vr(acc(th, ch), 16), ur(wreg(s, ch), 4), ur(breg(k), 4), vr(acc(th, ch), 16) if s else '0'))
                    if th and check: a('v_max3_u32 v7, v7, v%d, v%d' % (breg(k) + 2 * ch, breg(k) + 2 * ch + 1))
                    if ch == 0 and bl: a.take(bl)
                    elif not bl and nbg > 0 and (ch or nbg > nks - s): a.take(bgl); nbg -= 1
                if wr and s >= 1: a(wr.pop(0))
                if wr and s >= nks - 1: a(wr.pop(0))
        if check:
            a('v_cmp_eq_u32 vcc, -1, v7'); a('s_cbranch_vccz Lhalook')
            for it in bitems(nks, breg, lab)[nks:]:
                for x in it: a(x[0] if isinstance(x, tuple) else x)
            a.guard(0x8000)
            a('s_waitcnt vmcnt(0)'); a('s_branch Lhalo')
            a('Lhalook:'); a.count(62)
        for w in red_write(2): a(w)
        a('s_waitcnt lgkmcnt(0)'); a('s_barrier')
    ksplit(8, lambda s, ch: 256 + 64 + 8 * s + 4 * ch, lambda k: 80 + 4 * k, 'b', w3l, W3C, True)
    a.stamp('g2 mfma')
    for r in red_reads(80): a(r)
    for i in range(0, 16, 2): a(pk('v_pk_add_f32', o + i, [o + i, HN + i]))
    red_adds(a, 80)
    for i in range(8): a('v_cvt_pk_bf16_f32 v%d, v%d, v%d' % (96 + i, o + 2 * i, o + 2 * i + 1))
    a.vm('buffer_store_dwordx4 v[96:99], v14, s[32:35], s64 offen sc1')
    a.vm('buffer_store_dwordx4 v[100:103], v14, s[32:35], s64 offen offset:1024 sc1')
    a('v_mov_b32 v104, 0'); a('v_mov_b32 v105, 0')
    for i in range(8):
        a('v_dot2c_f32_bf16 v104, v%d, v%d' % (96 + i, ONES)); a('v_dot2c_f32_bf16 v105, v%d, v%d' % (96 + i, 96 + i))
    a('v_mov_b32 v106, v104'); a('v_mov_b32 v107, v105')
    a('v_permlane32_swap_b32 v104, v106'); a('v_permlane32_swap_b32 v105, v107')
    a(pk('v_pk_add_f32', 104, [104, 106]))
    a('s_mov_b32 exec_hi, 0')
    a.vm('buffer_store_dwordx2 v[104:105], v0, s[32:35], s65 offen sc1', 'x1')
    a('s_mov_b32 exec_hi, -1')
    if 'front' not in EXP and 'rho' not in EXP: a.stamp('x1 stored')
    a.take(w3l, 48)
    RES = 128
    for i in range(8): a(lo(80 + 2 * i, 96 + i)); a(hi(81 + 2 * i, 96 + i))
    for i in range(0, 16, 2): a(pk('v_pk_add_f32', RES + i, [HF + i, 80 + i]))
    a('s_add_u32 s59, s79, 0x%x' % F_X); a('s_add_u32 s58, s72, 0x%x' % F_X)
    a('v_and_b32 v7, 7, v1'); a('v_lshlrev_b32 v7, 3, v7')
    a('s_mov_b32 s88, s64'); a('s_mov_b32 s89, s65')
    a('s_lshl_b32 s64, s48, 13'); a('s_lshl_b32 s65, s68, 16'); a('s_add_u32 s65, s65, s64'); a('s_add_u32 s65, s65, 0x%x' % X1B)
    a('s_lshl_b32 s67, s68, 13'); a('s_lshl_b32 s54, s48, 11'); a('s_add_u32 s67, s67, s54'); a('s_add_u32 s67, s67, 0x%x' % ST1)
    a('v_lshlrev_b32 v8, 9, v6'); a('v_lshl_add_u32 v8, v5, 4, v8'); a('v_add_u32 v9, 0x8000, v8')
    a('s_mul_i32 s74, s69, %d' % (86 * 2048)); a('s_mul_i32 s53, s48, %d' % (22 * 2048)); a('s_add_u32 s74, s74, s53')
    a('s_add_u32 s75, s74, %d' % (20 * 2048)); a('s_cmp_eq_u32 s48, 3'); a('s_cselect_b32 s75, 0x400000, s75')
    a('s_lshl_b32 s53, s52, 10'); a('v_add_u32 v113, s53, v14'); a('v_xor_b32 v112, 0x400, v113')
    srd(a, 44, 30, 64 * HTH, '0x%x' % HB)
    a('s_lshl_b32 s53, s68, 1'); a('s_mul_i32 s53, s53, %d' % HTH); a('s_lshl_b32 s54, s73, 10'); a('s_add_u32 s56, s53, s54')
    a('s_add_u32 s57, s56, %d' % HTH)
    a('s_cmp_eq_u32 s48, 3'); a('s_cselect_b32 s76, 0x%x, s56' % (64 * HTH)); a('s_cselect_b32 s77, 0x%x, s57' % (64 * HTH))
    a('s_lshl_b32 s53, s48, 3'); a('s_add_u32 s53, s53, %d' % G_ST); a('v_lshlrev_b32 v115, 5, v1'); a('v_add_u32 v114, s53, v115'); a('v_add_u32 v115, %d, v115' % G_ST)
    a('s_mov_b32 m0, s64')
    a('v_lshlrev_b32 v20, 5, v1')
    a.wait('x1')
    if 'x' in RR:
        a.vm('buffer_load_dword v18, v20, s[32:35], s88 offen sc1')
        a.vm('buffer_load_dword v19, v1, s[32:35], s89 offen sc1'.replace('v1,', 'v0,'))
    a.stamp('x1 drained')
    a.signal('s59')
    a.poll(7, 's58', True)
    a.stamp('X3 seen')
    for p in range(4): a.vm('buffer_load_dwordx2 %s, v0, s[32:35], s67 offen offset:%d sc1' % (vr(80 + 2 * p, 2), 512 * p), 'sp')
    xl = []
    for i in range(16):
        it = []
        if i % 4 == 0:
            oo = 32768 * (i >> 3) + 1024 * (i & 7)
            if i: it += ['s_add_u32 s53, s64, %d' % oo, 's_mov_b32 m0, s53']
            it.append('s_add_u32 s93, s65, %d' % oo)
        it.append(('buffer_load_dwordx4 v14, s[32:35], s93 offen offset:%d sc1 lds' % (1024 * (i & 3)), 'x%d' % (i >> 3)))
        xl.append(it)
    a.take(xl, 8)
    CS3 = 116
    for s in range(16):
        for j in range(3): a(M16 % (vr(CS3 + 4 * j, 4), ur(WR3[j] + 4 * s, 4), vr(ONES, 4), vr(CS3 + 4 * j, 4) if s else '0'))
    def w4reg(s, ch): return (256 + 8 * s + 4 * ch) if s < 16 else (144 + 8 * (s - 16) + 4 * ch)
    w4l = []
    for s in range(22):
        for ch in range(2):
            it = []
            if s % 2 == 0 and ch == 0: it.append('s_add_u32 s87, s74, %d' % (2048 * s) if s < 20 else 's_mov_b32 s87, s75')
            it.append(('buffer_load_dwordx4 %s, v%d, s[36:39], s87 offen offset:%d' % (ur(w4reg(s, ch), 4), 112 + ch, 2048 * (s & 1)), 'w4'))
            w4l.append(it)
    if 'now4' in EXP: w4l = []
    a.wait('sp')
    a(pk('v_pk_add_f32', 80, [80, 82])); a(pk('v_pk_add_f32', 84, [84, 86])); a(pk('v_pk_add_f32', 80, [80, 84]))
    a('ds_write_b64 v114, v[80:81]')
    a('s_lshl_b32 s53, s48, 10'); a('s_add_u32 s53, s53, %d' % G_ST2); a('v_add_u32 v7, s53, v14'); a('v_lshl_add_u32 v0, v5, 4, s53')
    a.wait('x0', 'lgkmcnt(0)')
    a('s_barrier')
    a.stamp('x0 landed')
    A3 = 16; BR = 40; TMP = 72; PK = 84; STT = 96
    a('ds_read_b128 v[72:75], v115'); a('ds_read_b128 v[76:79], v115 offset:16')
    def rd(k):
        tt, s = k >> 4, k & 15
        return 'ds_read_b128 %s, v%d offset:%d' % (vr(BR + 4 * (k & 7), 4), 8 + (tt >> 1), 2048 * s + 256 * (tt & 1))
    for k in range(6): a(rd(k))
    st = ['v_add_f32 v72, v72, v74', 'v_add_f32 v73, v73, v75', 'v_add_f32 v76, v76, v78', 'v_add_f32 v77, v77, v79',
          'v_add_f32 v72, v72, v76', 'v_add_f32 v73, v73, v77',
          'v_mul_f32 v72, s60, v72', 'v_mul_f32 v74, v72, v72', 'v_fma_f32 v73, v73, s60, -v74', 'v_max_f32 v73, 0, v73',
          'v_add_f32 v73, 0x%x, v73' % f2u(EPS), 'v_rsq_f32 v76, v73', 'v_sqrt_f32 v75, v73', 'v_mul_f32 v73, 0x%x, v76' % f2u(C0),
          'v_mul_f32 v74, v76, v76', 'v_mul_f32 v74, v74, v76', 'v_mul_f32 v74, 0x%x, v74' % f2u(C1), 'v_sub_f32 v72, 0, v72',
          ('ds', 'ds_write_b128 v7, v[72:75]')] + [('ds', 'ds_read_b128 %s, v0 offset:%d' % (vr(STT + 4 * tt, 4), 256 * tt)) for tt in range(4)]
    def epi(tt, packed):
        o3 = A3 + 12 * (tt & 1); m = STT + 4 * tt
        if packed:
            l = [pk('v_pk_fma_f32', o3 + i, [bc(m), CS3 + i, o3 + i]) for i in range(0, 12, 2)]
            l += gelu_pk(o3, m + 1, m + 2, m + 3, TMP, 12)
        else:
            l = ['v_fmac_f32 v%d, v%d, v%d' % (o3 + i, m, CS3 + i) for i in range(12)]
            l += gelu_plain(o3, m + 1, m + 2, m + 3, TMP, 12)
        for j in range(3):
            for i in range(2): l.append('v_cvt_pk_bf16_f32 v%d, v%d, v%d' % (PK + 4 * j + 2 * (tt & 1) + i, o3 + 4 * j + 2 * i, o3 + 4 * j + 2 * i + 1))
        if tt & 1:
            for j in range(3):
                l.append('v_permlane16_swap_b32 v%d, v%d' % (PK + 4 * j, PK + 4 * j + 2)); l.append('v_permlane16_swap_b32 v%d, v%d' % (PK + 4 * j + 1, PK + 4 * j + 3))
            for j in range(3):
                l.append(('vm', 'buffer_store_dwordx4 %s, v14, s[44:47], s%d offen offset:%d sc1' % (vr(PK + 4 * j, 4), (76 if j == 2 else 56) + (tt >> 1), 1024 * j)))
        return l
    pend = st
    lg = [('r', k) for k in range(6)]
    def cost(x): return 2 if isinstance(x, str) and x.startswith(('v_exp', 'v_rcp', 'v_rsq', 'v_sqrt')) else 1
    def emit_p(x):
        if isinstance(x, str): a(x)
        elif x[0] == 'vm': a.vm(x[1], 'H')
        elif x[0] == 'ds': a(x[1]); lg.append(('o', 0))
    for k in range(64):
        tt, s = k >> 4, k & 15
        if k == 26:
            a.wait('x1'); a('s_barrier')
        if k % 2 == 0:
            for kk in (k + 6, k + 7):
                if kk < 64: a(rd(kk)); lg.append(('r', kk))
            idx = lg.index(('r', k + 1)); a('s_waitcnt lgkmcnt(%d)' % (len(lg) - 1 - idx)); del lg[:idx + 1]
        left = sum(cost(x) for x in pend); slots = 3 * (16 - s)
        for j in range(3):
            o3 = A3 + 12 * (tt & 1) + 4 * j
            a(M16 % (vr(o3, 4), ur(WR3[j] + 4 * s, 4), vr(BR + 4 * (k & 7), 4), vr(o3, 4) if s else '0'))
            if s >= 1 or (tt == 0 and j):
                budget = max(2, -(-left // slots)) if tt else 2
                while pend and budget >= cost(pend[0]):
                    budget -= cost(pend[0]); emit_p(pend.pop(0))
            if j == 2 and xl: a.take(xl)
            elif j == 2 and len(w4l) > W4TAIL and (k - 8) * (44 - W4TAIL) >= (44 - len(w4l)) * (W4END - 8): a.take(w4l)
        if s == 15:
            while pend: emit_p(pend.pop(0))
            pend = epi(tt, tt == 3)
    a.stamp('g3 mfma')
    while pend: emit_p(pend.pop(0))
    if 'front' not in EXP and 'rho' not in EXP: a.stamp('H stored')
    a.take(w4l, 44)
    a('s_add_u32 s59, s79, 0x%x' % F_F); a('s_add_u32 s58, s72, 0x%x' % F_F); a('s_mov_b32 s88, s56'); a('s_mov_b32 s89, s57')
    a('s_mul_i32 s56, s66, %d' % HTH); a('s_xor_b32 s54, s66, 1'); a('s_mul_i32 s57, s54, %d' % HTH)
    a('s_mul_i32 s54, s48, %d' % (22 * 1024)); a('s_add_u32 s54, s54, 0x%x' % HB); a('s_add_u32 s56, s56, s54'); a('s_add_u32 s57, s57, s54')
    srd(a, 40, 26, 2 * MB)
    a('v_and_b32 v7, 31, v1'); a('v_lshlrev_b32 v7, 10, v7'); a('v_lshrrev_b32 v8, 5, v1'); a('v_lshl_add_u32 v7, v8, 4, v7')
    a('s_lshl_b32 s64, s66, 15'); a('s_lshr_b32 s54, s70, 5'); a('s_add_u32 s64, s64, s54')
    a('s_cmp_eq_u32 s48, 3'); a('s_cselect_b32 s53, 32, 48'); a('v_mul_u32_u24 v20, s53, v1')
    a.wait('H')
    if 'h' in RR:
        a.vm('buffer_load_dword v18, v20, s[44:47], s88 offen sc1'); a.vm('buffer_load_dword v19, v20, s[44:47], s89 offen sc1')
    a.stamp('H drained')
    a.signal('s59')
    a.poll(4, 's58', True)
    a.stamp('X4 seen')
    def b4(k): return (256 + 128 + 4 * k) if k < 32 else (192 + 4 * (k - 32))
    ksplit(22, w4reg, b4, 'f', None, 0, False)
    a.stamp('g4 mfma')
    for r in red_reads(80): a(r)
    for i in range(0, 16, 2): a(pk('v_pk_add_f32', o + i, [o + i, RES + i]))
    red_adds(a, 80)
    for i in range(8): a('v_cvt_pk_bf16_f32 v%d, v%d, v%d' % (96 + i, o + 2 * i, o + 2 * i + 1))
    a.vm('buffer_store_dwordx4 v[96:99], v7, s[40:43], s64 offen ' + OUTF)
    a.vm('buffer_store_dwordx4 v[100:103], v7, s[40:43], s64 offen offset:32 ' + OUTF)
    if stamp or SPIN:
        a.wait0(); a.stamp('end')
    if stamp:
        a('s_lshl_b32 s53, s63, 8'); a('s_add_u32 s53, s53, 0x%x' % STAMPS); a('v_lshlrev_b32 v7, 2, v1')
        a('buffer_store_dword v15, v7, s[32:35], s53 offen')
    if SPIN:
        a('s_sub_u32 s96, s97, s96'); a('s_mul_i32 s96, s96, %s' % SPIN[2])
        a('s_memrealtime s[90:91]'); a('s_waitcnt lgkmcnt(0)'); a('s_mov_b32 s97, s90')
        a('Lspin:'); a('s_memrealtime s[90:91]'); a('s_waitcnt lgkmcnt(0)'); a('s_sub_u32 s90, s90, s97'); a('s_cmp_lt_u32 s90, s96'); a('s_cbranch_scc1 Lspin')
    a('Lend:')
    a('s_endpgm')
    body = a.a.finish()
    print('instrs', len(a.a.L), 'nops', a.a.nops, file=sys.stderr)
    hdr = open('sequential_preLN__ssm_conv_h3__mixer_s_mlp__prompt.s.ref').read().split('; Override')[0]
    out = hdr + '; @launch grid=(256,1,1) block=(256,1,1) lds=%d\n' % LDS_BYTES
    if stamp: out += '; stamps: ' + '|'.join(a.names) + '\n'
    out += '.amdgcn_target "amdgcn-amd-amdhsa--gfx950"\n.text\n.globl %s\n.p2align 8\n.type %s,@function\n%s:\n' % (NAME, NAME, NAME)
    out += body
    out += '.fill 4096, 4, 0xbf800000\n'
    out += '''.section .rodata,"a"
.p2align 6
.amdhsa_kernel %s
  .amdhsa_next_free_vgpr 512
  .amdhsa_next_free_sgpr 102
  .amdhsa_accum_offset 256
  .amdhsa_group_segment_fixed_size 0
  .amdhsa_kernarg_size 112
  .amdhsa_user_sgpr_count 2
  .amdhsa_user_sgpr_kernarg_segment_ptr 1
  .amdhsa_system_sgpr_workgroup_id_x 1
  .amdhsa_float_denorm_mode_32 3
.end_amdhsa_kernel
''' % NAME
    return out

if __name__ == '__main__':
    open(sys.argv[1], 'w').write(build(len(sys.argv) > 2))
```

```python
import sys, struct, os
from asmlib import *

E = lambda n, d: type(d)(os.environ.get(n, d))
NT = E('NT', ''); NTX = E('NTX', ''); PACE = E('PACE', 7); PRE0 = E('PRE0', 0); NST = E('NST', 8); SLEEP = E('SLEEP', 4)
W4TAIL = E('W4TAIL', 4); W4END = E('W4END', 60); OUTF = E('OUTF', '')
TWHEN = E('TWHEN', 2); BG0 = E('BG0', 28); ST_AT = E('ST_AT', 3); PST_AT = E('PST_AT', 110); W2A = E('W2A', 0); ZT = E('ZT', 0); W2PRE = E('W2PRE', 0); RR = E('RR', ''); HFS = E('HFS', 8); HREP = E('HREP', 8)
KWHEN = E('KWHEN', 0); PWHEN = E('PWHEN', 1)
W3A = E('W3A', 20); W3B = E('W3B', 8); W3C = E('W3C', 12)
EXP = E('EXP', '').split(',')
ONLY = [x for x in E('ONLY', '').split(',') if x]
FINE = E('FINE', ''); FREGS = [4, 6, 8, 10, 12, 14, 16, 18, 20, 22, 24, 84, 90, 94, 96, 98, 100]
EAGER = E('EAGER', '4'); E4EARLY = E('E4EARLY', 1); XTLATE = E('XTLATE', 0); ENTRY = E('ENTRY', 1); LATE4 = E('LATE4', 8); OUT64 = E('OUT64', 1); PUBK = E('PUBK', 30)
SPIN = os.environ['SPIN'].split(',') if os.environ.get('SPIN') else None

MB = 1 << 20
KVR = 0; XT = 2 * MB; HT = 4 * MB; ZB = 6 * MB; X1B = 8 * MB; HB = 10 * MB
W3P = 16 * MB; W4P = W3P + 1408 * 1024
ST0 = 20 * MB
ST1 = ST0 + 65536
FL = ST1 + 262144
FGL = 0x10000
F_A = FL; F_Z = FL + 0x2000; F_X = FL + 0x4000; F_F = FL + 0x6000
F_H = FL + 0x20000
STAMPS = 64 * MB
DUMP = 0x10000000
HTH = 176 * 512
EPS = 1e-5
def f2u(f): return struct.unpack('<I', struct.pack('<f', f))[0]
C0 = -2.0 * 0.7978845608028654 * 1.4426950408889634
C1 = C0 * 0.044715
NAME = 'sequential_preLN__ssm_conv_h3__mixer_s_mlp__prompt_kernel'

CS = 4160
L_E4 = 0; L_KV = 33280; L_CRED = L_KV + 2 * 4608
L_S = 65536
L_S2 = 131072
L_K = L_S; L_V = L_K + 9216; L_X = L_V + 8192; L_PK = (L_S2 + 4096) if E('PWHEN', 1) == 3 else (L_S + 32768)
G_RED = 65536; G_ST = G_RED + 49152; G_ST2 = G_ST + 2048
LDS_BYTES = 163840

TAG = 's[80:81]'
class G:
    def __init__(self, stamp=False):
        self.a = Asm(); self.stamp_on = stamp; self.q = []; self.nst = 0; self.names = []; self.np = 0; self.fnames = []
    def __call__(self, t): self.a(t)
    def vm(self, text, label=None):
        self.a(text); self.q.append(label)
    def item(self, it):
        for x in it:
            if isinstance(x, tuple): self.vm(x[0], x[1])
            else: self.a(x)
    def take(self, lst, n=1):
        for _ in range(n):
            if lst: self.item(lst.pop(0))
    def wait(self, label, extra=''):
        if label not in self.q:
            if extra: self.a('s_waitcnt ' + extra)
            return
        idx = max(i for i, l in enumerate(self.q) if l == label)
        n = len(self.q) - 1 - idx
        assert n < 64
        self.a('s_waitcnt vmcnt(%d) %s' % (n, extra)); self.q = self.q[idx + 1:]
    def wait0(self, extra=''):
        self.a('s_waitcnt vmcnt(0) %s' % extra); self.q = []
    def count(self, lane):
        if self.stamp_on: self.a('v_writelane_b32 v15, s82, %d' % lane)
    def stamp(self, name):
        if SPIN and name in SPIN:
            self.a('s_memrealtime s[90:91]'); self.a('s_waitcnt lgkmcnt(0)'); self.a('s_mov_b32 s%d, s90' % (96 + SPIN.index(name)))
        if self.stamp_on and (not ONLY or name in ONLY):
            self.a('s_memrealtime s[90:91]'); self.a('s_memtime s[94:95]'); self.a('s_waitcnt lgkmcnt(0)'); self.a('v_writelane_b32 v15, s90, %d' % self.nst)
            self.a('v_writelane_b32 v15, s94, %d' % (32 + self.nst)); assert self.nst < 30
            self.names.append(name); self.nst += 1
    def fs(self, region, name):
        if FINE == region:
            r = FREGS[len(self.fnames)]
            self.a('s_memtime s[%d:%d]' % (r, r + 1)); self.fnames.append(name)
    def guard(self, limit=0x20000):
        self.a('s_add_u32 s82, s82, 1'); self.a('s_cmp_gt_u32 s82, 0x%x' % limit); self.a('s_cbranch_scc1 Lend')
    def publish(self, mine):
        a = self
        a('s_add_u32 s83, %s, 0x%x' % (mine, FGL)); a('s_mov_b64 exec, 1')
        a('buffer_store_dwordx2 v[2:3], off, s[32:35], s83 sc1'); a('s_mov_b64 exec, -1')
    def wsig(self, mine, label=None):
        a = self
        a('s_mov_b64 exec, 1'); a.vm('buffer_store_dwordx2 v[2:3], off, s[32:35], %s' % mine, label); a('s_mov_b64 exec, -1')
    def wpub(self, mine):
        a = self
        a('s_add_u32 s83, %s, 0x%x' % (mine, FGL)); a('s_mov_b64 exec, 1')
        a.vm('buffer_store_dwordx2 v[2:3], off, s[32:35], s83 sc1'); a('s_mov_b64 exec, -1')
    def late(self, mine):
        a = self; n = self.np; self.np += 1
        a('s_cmp_lg_u32 s48, 3'); a('s_cbranch_scc1 Llate%d' % n)
        a.publish(mine)
        a('Llate%d:' % n)
    def poll(self, vaddr, soff, dual, sleep=0, tmp=16, between=None):
        a = self; n = self.np; self.np += 1
        a('s_mov_b32 s82, 0')
        a('buffer_load_dwordx2 %s, v%d, s[32:35], %s offen sc1' % (vr(tmp, 2), vaddr, soff))
        if between: between()
        a('Lpoll%d:' % n)
        a.wait0()
        a('v_cmp_ne_u64 vcc, %s, %s' % (TAG, vr(tmp, 2)))
        a('s_cbranch_vccz Lpolld%d' % n)
        if sleep: a('s_sleep %d' % sleep)
        so = soff
        if dual:
            a('s_cmp_lg_u32 s82, 32'); a('s_cbranch_scc1 Lpollp%d' % n)
            a.publish(dual)
            a('Lpollp%d:' % n)
            a('s_cmp_lt_u32 s82, 32'); a('s_cselect_b32 s83, 0, 0x%x' % FGL); a('s_add_u32 s83, s83, %s' % soff); so = 's83'
        a('buffer_load_dwordx2 %s, v%d, s[32:35], %s offen sc1' % (vr(tmp, 2), vaddr, so))
        a.guard()
        a('s_branch Lpoll%d' % n)
        a('Lpolld%d:' % n)
    def signal(self, soff, rep=None, eager=False):
        a = self; n = self.np; self.np += 1
        a('s_barrier')
        a('s_cmp_lg_u32 s48, 0'); a('s_cbranch_scc1 Lsig%d' % n)
        if rep is None:
            a('s_mov_b64 exec, 1')
            a('buffer_store_dwordx2 v[2:3], off, s[32:35], %s' % soff)
            if eager:
                a('s_add_u32 s83, %s, 0x%x' % (soff, FGL))
                a('buffer_store_dwordx2 v[2:3], off, s[32:35], s83 sc1')
        else:
            a('s_mov_b64 exec, %d' % ((1 << HREP) - 1))
            a('buffer_store_dwordx2 v[2:3], v%d, s[32:35], %s offen sc1' % (rep, soff))
        a('s_mov_b64 exec, -1')
        a('Lsig%d:' % n)

def srd(a, d, p, size, off=None):
    if off is None:
        a('s_mov_b32 s%d, s%d' % (d, p)); a('s_mov_b32 s%d, s%d' % (d + 1, p + 1))
    else:
        a('s_add_u32 s%d, s%d, %s' % (d, p, off)); a('s_addc_u32 s%d, s%d, 0' % (d + 1, p + 1))
    a('s_mov_b32 s%d, 0x%x' % (d + 2, size)); a('s_mov_b32 s%d, 0x20000' % (d + 3))

def allreduce(a, regs, tmps):
    for m in ('quad_perm:[1,0,3,2]', 'quad_perm:[2,3,0,1]', 'row_half_mirror', 'row_mirror'):
        for r in regs: a('v_add_f32_dpp v%d, v%d, v%d %s row_mask:0xf bank_mask:0xf' % (r, r, r, m))
    for sw in ('v_permlane16_swap_b32', 'v_permlane32_swap_b32'):
        for r, t in zip(regs, tmps): a('v_mov_b32 v%d, v%d' % (t, r))
        for r, t in zip(regs, tmps): a('%s v%d, v%d' % (sw, r, t))
        for r, t in zip(regs, tmps): a('v_add_f32 v%d, v%d, v%d' % (r, r, t))

ACC = 16
def acc(th, ch): return ACC + 32 * th + 16 * ch
def red_write(slot):
    th, ch = slot >> 1, slot & 1
    return ['ds_write_b128 v%d, %s offset:%d' % (10 + slot, vr(acc(th, ch) + 4 * q, 4), 1024 * q) for q in range(4)]
def red_reads(tmp): return ['ds_read_b128 %s, v13 offset:%d' % (vr(tmp + 4 * i, 4), 1024 * i) for i in range(12)]
def red_adds(a, tmp, dst=None):
    o = acc(1, 1)
    for i in range(12):
        if i % 2 == 0: a('s_waitcnt lgkmcnt(%d)' % (10 - i))
        d = dst if (dst is not None and i >= 8) else o
        for r in (0, 2): a('v_pk_add_f32 %s, %s, %s' % (vr(d + 4 * (i & 3) + r, 2), vr(o + 4 * (i & 3) + r, 2), vr(tmp + 4 * i + r, 2)))

def lo(d, s): return 'v_lshlrev_b32 v%d, 16, v%d' % (d, s)
def hi(d, s): return 'v_and_b32 v%d, s61, v%d' % (d, s)
def bc(r): return vr(r & ~1, 2), r & 1
def pk(op, d, srcs, neg=None):
    names = []; l = []; h = []
    for s in srcs:
        if isinstance(s, tuple): names.append(s[0]); l.append(s[1]); h.append(s[1])
        else: names.append(vr(s, 2)); l.append(0); h.append(1)
    t = '%s %s, %s' % (op, vr(d, 2), ', '.join(names))
    if l != [0] * len(l) or h != [1] * len(h):
        t += ' op_sel:[%s] op_sel_hi:[%s]' % (','.join(map(str, l)), ','.join(map(str, h)))
    if neg: t += ' neg_lo:[%s] neg_hi:[%s]' % (','.join(map(str, neg)), ','.join(map(str, neg)))
    return t
def gelu_plain(t, ca, cb, ri, tmp, n):
    l = []
    for i in range(n): l.append('v_mul_f32 v%d, v%d, v%d' % (tmp + i, t + i, t + i))
    for i in range(n): l.append('v_fma_f32 v%d, v%d, v%d, v%d' % (tmp + i, tmp + i, cb, ca))
    for i in range(n): l.append('v_mul_f32 v%d, v%d, v%d' % (tmp + i, tmp + i, t + i))
    for i in range(n): l.append('v_exp_f32 v%d, v%d' % (tmp + i, tmp + i))
    for i in range(n): l.append('v_fma_f32 v%d, v%d, v%d, v%d' % (tmp + i, tmp + i, ri, ri))
    for i in range(n): l.append('v_rcp_f32 v%d, v%d' % (tmp + i, tmp + i))
    for i in range(n): l.append('v_mul_f32 v%d, v%d, v%d' % (t + i, t + i, tmp + i))
    return l
def gelu_pk(t, ca, cb, ri, tmp, n):
    l = []
    for i in range(0, n, 2): l.append(pk('v_pk_mul_f32', tmp + i, [t + i, t + i]))
    for i in range(0, n, 2): l.append(pk('v_pk_fma_f32', tmp + i, [tmp + i, bc(cb), bc(ca)]))
    for i in range(0, n, 2): l.append(pk('v_pk_mul_f32', tmp + i, [tmp + i, t + i]))
    for i in range(n): l.append('v_exp_f32 v%d, v%d' % (tmp + i, tmp + i))
    for i in range(0, n, 2): l.append(pk('v_pk_fma_f32', tmp + i, [tmp + i, bc(ri), bc(ri)]))
    for i in range(n): l.append('v_rcp_f32 v%d, v%d' % (tmp + i, tmp + i))
    for i in range(0, n, 2): l.append(pk('v_pk_mul_f32', t + i, [t + i, tmp + i]))
    return l
M32 = 'v_mfma_f32_32x32x16_bf16 %s, %s, %s, %s'
M16 = 'v_mfma_f32_16x16x32_bf16 %s, %s, %s, %s'
TR = 'ds_read_b64_tr_b16 %s, v%d offset:%d'

def build(stamp=False):
    a = G(stamp)
    a('s_cmp_ge_u32 s2, 256'); a('s_cbranch_scc1 Lend')
    if SPIN and SPIN[0] == 'entry': a.stamp('entry')
    if ENTRY:
        a('s_load_dwordx2 s[36:37], s[0:1], 8'); a('s_load_dwordx2 s[40:41], s[0:1], 16'); a('s_load_dwordx2 s[44:45], s[0:1], 0')
        a('s_getpc_b64 s[84:85]')
        a('s_lshr_b32 s49, s2, 3'); a('s_lshl_b32 s53, s49, 10'); a('v_lshlrev_b32 v7, 2, v0'); a('v_and_b32 v7, 0x380, v7'); a('v_add_u32 v7, s53, v7')
        a.vm('global_load_dword v148, v7, s[84:85]')
        a('v_lshrrev_b32 v1, 6, v0'); a('v_readfirstlane_b32 s48, v1'); a('v_and_b32 v1, 63, v0')
        a('s_mov_b32 s38, 0x200000'); a('s_mov_b32 s39, 0x20000'); a('s_mov_b32 s42, 0x200000'); a('s_mov_b32 s43, 0x20000'); a('s_mov_b32 s46, 0x200000'); a('s_mov_b32 s47, 0x20000')
        a('v_lshrrev_b32 v7, 3, v1'); a('v_lshlrev_b32 v7, 10, v7'); a('v_and_b32 v8, 7, v1'); a('v_lshl_add_u32 v7, v8, 4, v7')
        a('v_bfe_u32 v8, v1, 4, 1'); a('v_lshlrev_b32 v9, 5, v8'); a('v_xor_b32 v16, v9, v7'); a('v_xor_b32 v17, 64, v16')
        a('v_add_u32 v18, 0x1c00, v17'); a('v_add_u32 v19, 0x1c00, v16')
        a('s_and_b32 s50, s2, 7'); a('s_lshl_b32 s53, s49, 16'); a('s_lshl_b32 s54, s48, 14'); a('s_add_u32 s53, s53, s54'); a('s_lshl_b32 s54, s50, 7'); a('s_add_u32 s55, s53, s54')
        a('s_lshl_b32 s56, s48, 11'); a('s_add_u32 s53, s56, %d' % (L_K + 1024)); a('s_mov_b32 m0, s53')
        if stamp: a('v_mov_b32 v15, 0')
        a('s_waitcnt lgkmcnt(0)')
        a.stamp('start')
        a.vm('buffer_load_dwordx4 v17, s[36:39], s55 offen %s lds' % NT)
        a.vm('buffer_load_dwordx4 v19, s[36:39], s55 offen offset:1024 %s lds' % NT)
        a('s_add_u32 s53, s56, %d' % L_V); a('s_mov_b32 m0, s53')
        a('s_load_dwordx16 s[4:19], s[0:1], 0')
        a.vm('buffer_load_dwordx4 v16, s[40:43], s55 offen %s lds' % NT)
        a.vm('buffer_load_dwordx4 v18, s[40:43], s55 offen offset:1024 %s lds' % NT)
        a('s_add_u32 s53, s56, %d' % L_X); a('s_mov_b32 m0, s53')
        a('s_load_dwordx8 s[20:27], s[0:1], 64')
        a.vm('buffer_load_dwordx4 v16, s[44:47], s55 offen %s lds' % NTX)
        a.vm('buffer_load_dwordx4 v18, s[44:47], s55 offen offset:1024 %s lds' % NTX)
        a('s_load_dwordx4 s[28:31], s[0:1], 96')
        a('s_memrealtime s[80:81]')
        a('s_cmp_lg_u32 s48, 0'); a('s_cbranch_scc1 Lnoh')
        a('s_sub_u32 s53, s55, 0x2000'); a('s_cselect_b32 s53, 0x400000, s53'); a('s_mov_b32 m0, %d' % L_K)
        a('buffer_load_dwordx4 v16, s[36:39], s53 offen %s lds' % NT)
        a('Lnoh:')
        a('s_and_b32 s51, s48, 1'); a('s_lshr_b32 s52, s48, 1')
        a('v_and_b32 v5, 15, v1'); a('v_lshrrev_b32 v6, 4, v1'); a('v_lshlrev_b32 v14, 4, v1')
        a('v_lshlrev_b32 v9, 6, v8'); a('v_xor_b32 v184, v9, v7')
        a('s_mov_b32 s60, 0x%x' % f2u(1.0 / 512)); a('s_mov_b32 s61, 0xffff0000')
        a('s_lshl_b32 s63, s2, 2'); a('s_add_u32 s63, s63, s48')
        a('s_waitcnt lgkmcnt(0)')
        a('s_cmp_lg_u32 s63, 0'); a('s_cbranch_scc1 Lnotag')
        a('v_mov_b32 v2, s80'); a('v_mov_b32 v3, s81'); a('v_mov_b32 v4, 0'); a('s_mov_b64 exec, 1')
        a('global_store_dwordx2 v4, v[2:3], s[28:29] sc1'); a('s_mov_b64 exec, -1')
        a('Lnotag:')
    else:
        a('s_load_dwordx16 s[4:19], s[0:1], 0')
        a('s_getpc_b64 s[84:85]')
        a('s_lshr_b32 s49, s2, 3'); a('s_lshl_b32 s53, s49, 10'); a('v_lshlrev_b32 v7, 2, v0'); a('v_and_b32 v7, 0x380, v7'); a('v_add_u32 v7, s53, v7')
        a.vm('global_load_dword v148, v7, s[84:85]')
        a('s_load_dwordx8 s[20:27], s[0:1], 64')
        a('s_load_dwordx4 s[28:31], s[0:1], 96')
        a('s_memrealtime s[80:81]')
        a('v_lshrrev_b32 v1, 6, v0'); a('v_readfirstlane_b32 s48, v1'); a('v_and_b32 v1, 63, v0')
        if stamp: a('v_mov_b32 v15, 0')
        a('s_and_b32 s50, s2, 7')
        a('s_and_b32 s51, s48, 1'); a('s_lshr_b32 s52, s48, 1')
        a('v_and_b32 v5, 15, v1'); a('v_lshrrev_b32 v6, 4, v1'); a('v_lshlrev_b32 v14, 4, v1')
        a('v_lshrrev_b32 v7, 3, v1'); a('v_lshlrev_b32 v7, 10, v7'); a('v_and_b32 v8, 7, v1'); a('v_lshl_add_u32 v7, v8, 4, v7')
        a('v_and_b32 v8, 1, v6'); a('v_lshlrev_b32 v9, 6, v8'); a('v_xor_b32 v184, v9, v7')
        a('v_lshlrev_b32 v9, 5, v8'); a('v_xor_b32 v16, v9, v7'); a('v_xor_b32 v17, 64, v16'); a('v_add_u32 v18, 0x1c00, v17')
        a('s_lshl_b32 s53, s49, 16'); a('s_lshl_b32 s54, s48, 14'); a('s_add_u32 s53, s53, s54'); a('s_lshl_b32 s54, s50, 7'); a('s_add_u32 s55, s53, s54')
        a('s_lshl_b32 s56, s48, 11')
        a('v_add_u32 v19, 0x1c00, v16')
        a('s_movk_i32 s62, 0x1000'); a('s_mov_b32 s60, 0x%x' % f2u(1.0 / 512)); a('s_mov_b32 s61, 0xffff0000')
        a('s_lshl_b32 s63, s2, 2'); a('s_add_u32 s63, s63, s48')
        a('s_waitcnt lgkmcnt(0)')
        a.stamp('start')
        srd(a, 36, 6, 2 * MB)
        a('s_add_u32 s53, s56, %d' % (L_K + 1024)); a('s_mov_b32 m0, s53')
        a.vm('buffer_load_dwordx4 v17, s[36:39], s55 offen %s lds' % NT)
        a.vm('buffer_load_dwordx4 v19, s[36:39], s55 offen offset:1024 %s lds' % NT)
        srd(a, 40, 8, 2 * MB)
        a('s_add_u32 s53, s56, %d' % L_V); a('s_mov_b32 m0, s53')
        a.vm('buffer_load_dwordx4 v16, s[40:43], s55 offen %s lds' % NT)
        a.vm('buffer_load_dwordx4 v18, s[40:43], s55 offen offset:1024 %s lds' % NT)
        a('s_cmp_lg_u32 s48, 0'); a('s_cbranch_scc1 Lnoh')
        a('s_sub_u32 s53, s55, 0x2000'); a('s_cselect_b32 s53, 0x400000, s53'); a('s_mov_b32 m0, %d' % L_K)
        a('buffer_load_dwordx4 v16, s[36:39], s53 offen %s lds' % NT)
        a('s_cmp_lg_u32 s2, 0'); a('s_cbranch_scc1 Lnoh')
        a('v_mov_b32 v2, s80'); a('v_mov_b32 v3, s81'); a('v_mov_b32 v4, 0'); a('s_mov_b64 exec, 1')
        a('global_store_dwordx2 v4, v[2:3], s[28:29] sc1'); a('s_mov_b64 exec, -1')
        a('Lnoh:')
        srd(a, 44, 4, 2 * MB)
        a('s_add_u32 s53, s56, %d' % L_X); a('s_mov_b32 m0, s53')
        a.vm('buffer_load_dwordx4 v16, s[44:47], s55 offen %s lds' % NTX)
        a.vm('buffer_load_dwordx4 v18, s[44:47], s55 offen offset:1024 %s lds' % NTX)
    a('s_lshl_b32 s53, s50, 2'); a('s_add_u32 s53, s53, s48'); a('s_lshl_b32 s53, s53, 4'); a('v_add_u32 v20, s53, v5')
    a('v_lshlrev_b32 v7, 3, v20')
    a.vm('global_load_dwordx2 v[44:45], v7, s[10:11]', 'kvx')
    a('s_lshr_b32 s53, s2, 5'); a('s_lshl_b32 s53, s53, 18'); a('s_and_b32 s54, s63, 15'); a('s_lshl_b32 s54, s54, 14'); a('s_add_u32 s53, s53, s54')
    a('s_bfe_u32 s54, s2, 0x20002'); a('s_lshl_b32 s54, s54, 12'); a('s_add_u32 s53, s53, s54')
    a('s_bfe_u32 s54, s2, 0x10004'); a('s_lshl_b32 s54, s54, 11'); a('s_add_u32 s53, s53, s54'); a('v_add_u32 v7, s53, v14')
    a.vm('global_load_dwordx4 v[128:131], v7, s[4:5] ' + NTX); a.vm('global_load_dwordx4 v[132:135], v7, s[4:5] offset:1024 ' + NTX, 'xr')
    def kloads():
        a('s_lshl_b32 s64, s50, 6'); a('s_lshl_b32 s53, s49, 1'); a('s_add_u32 s64, s64, s53')
        a('s_lshl_b32 s53, s64, 1'); a('s_load_dword s65, s[14:15], s53')
        a('s_add_u32 s64, s64, s52'); a('s_lshl_b32 s66, s64, 12')
        srd(a, 36, 12, 4096, 's66')
        a('s_lshl_b32 s67, s51, 11'); a('v_add_u32 v10, s67, v14'); a('v_add_u32 v150, -8, v10'); a('v_add_u32 v151, 1016, v10')
        a.vm('buffer_load_dwordx2 v[136:137], v150, s[36:39], 0 offen ' + NT)
        a.vm('buffer_load_dwordx4 v[138:141], v10, s[36:39], 0 offen ' + NT)
        a.vm('buffer_load_dwordx2 v[142:143], v151, s[36:39], 0 offen ' + NT)
        a.vm('buffer_load_dwordx4 v[144:147], v10, s[36:39], 0 offen offset:1024 ' + NT, 'K')
    if KWHEN == 0: kloads()
    srd(a, 32, 30, 0x10000000)
    a('s_lshl_b32 s68, s50, 2'); a('s_and_b32 s53, s49, 3'); a('s_add_u32 s68, s68, s53')
    a('s_lshl_b32 s53, s50, 9'); a('s_add_u32 s72, s53, 0x%x' % F_A); a('s_lshl_b32 s54, s68, 8'); a('s_sub_u32 s54, s54, s53')
    a('v_bfe_u32 v7, v1, 1, 3'); a('v_min_u32 v7, 3, v7'); a('v_cmp_ne_u32 vcc, 0, v7'); a('v_lshlrev_b32 v7, 13, v7'); a('v_and_b32 v8, 1, v1'); a('v_lshl_add_u32 v7, v8, 7, v7')
    a('v_mov_b32 v8, s54'); a('v_cndmask_b32 v8, 0, v8, vcc'); a('v_add_u32 v7, v7, v8')
    a.vm('buffer_load_dword v149, v7, s[32:35], s72 offen sc1')
    a('s_lshl_b32 s76, s48, 12'); a('s_add_u32 s76, s76, %d' % L_PK); a('s_sub_u32 s74, 1023, s63')
    for i in range(1, 4): a('v_add_u32 v%d, %d, v184' % (248 + i, 7168 * i))
    def ploads():
        srd(a, 36, 24, 1376 * 1024)
        a('s_and_b32 s53, s63, 7'); a('s_lshl_b32 s53, s53, 7'); a('s_lshr_b32 s54, s63, 3'); a('s_lshl_b32 s54, s54, 14'); a('s_add_u32 s73, s53, s54')
        a('s_mov_b32 m0, s76')
        a.vm('buffer_load_dwordx4 v184, s[36:39], s73 offen %s lds' % NT)
        a.vm('buffer_load_dwordx4 v249, s[36:39], s73 offen offset:1024 %s lds' % NT)
        srd(a, 36, 22, 512 * 2752)
        a('s_and_b32 s53, s74, 15'); a('s_mul_i32 s53, s53, %d' % (32 * 2752)); a('s_lshr_b32 s54, s74, 4'); a('s_lshl_b32 s54, s54, 6')
        a('s_add_u32 s75, s53, s54'); a('s_cmp_lt_u32 s74, 688'); a('s_cselect_b32 s75, s75, 0x400000')
        a('v_lshrrev_b32 v150, 2, v1'); a('v_mul_u32_u24 v150, 2752, v150'); a('v_and_b32 v151, 3, v1'); a('v_lshl_add_u32 v150, v151, 4, v150')
        a('s_add_u32 s53, s76, 2048'); a('s_mov_b32 m0, s53'); a('s_add_u32 s54, s75, %d' % (16 * 2752 - 1024))
        a.vm('buffer_load_dwordx4 v150, s[36:39], s75 offen %s lds' % NT)
        a.vm('buffer_load_dwordx4 v150, s[36:39], s54 offen offset:1024 %s lds' % NT, 'pk')
    if PWHEN == 0: ploads()
    if 'front' in EXP: a.stamp('issued')
    a('s_and_b32 s53, s63, 7'); a('s_mul_i32 s53, s53, %d' % (86 * 2048)); a('s_lshr_b32 s54, s63, 3'); a('s_lshl_b32 s54, s54, 11'); a('s_add_u32 s53, s53, s54')
    a('s_add_u32 s53, s53, 0x%x' % W4P); a('s_cmp_lt_u32 s63, 688'); a('s_cselect_b32 s88, s53, 0x%x' % DUMP)
    a('s_lshr_b32 s54, s74, 4'); a('s_lshl_b32 s54, s54, 15'); a('s_and_b32 s55, s74, 15'); a('s_lshl_b32 s55, s55, 10'); a('s_add_u32 s54, s54, s55')
    a('s_add_u32 s54, s54, 0x%x' % W3P); a('s_cmp_lt_u32 s74, 688'); a('s_cselect_b32 s89, s54, 0x%x' % DUMP); a('s_add_u32 s59, s89, 0x4000')
    a('s_and_b32 s53, s49, 3')
    a('s_lshr_b32 s69, s2, 5')
    a('s_lshl_b32 s92, s53, 12')
    a('s_lshl_b32 s77, s48, 14'); a('s_add_u32 s77, s77, %d' % L_S)
    a('s_lshl_b32 s78, s48, 17'); a('s_lshl_b32 s53, s69, 7'); a('s_add_u32 s78, s78, s53')
    srd(a, 40, 20, 512 * 1024); srd(a, 44, 18, 512 * 1024)
    for i in range(4): a('v_mov_b32 v%d, 0' % (152 + i))
    a('s_mul_i32 s70, s52, 4608'); a('s_add_u32 s70, s70, %d' % L_KV)
    a('s_mul_i32 s71, s52, %d' % (4 * CS))
    a('v_and_b32 v7, 31, v1'); a('v_lshl_add_u32 v7, v7, 4, s70')
    a('ds_write_b128 v7, v[152:155] offset:4096')
    a('v_and_b32 v7, 1, v1'); a('v_lshlrev_b32 v7, 4, v7'); a('v_bfe_u32 v8, v1, 1, 2'); a('v_mul_u32_u24 v8, %d, v8' % CS)
    a('v_add3_u32 v7, v7, v8, s71')
    a('ds_write_b128 v7, v[152:155] offset:%d' % L_E4)
    for i in range(4): a('v_mov_b32 v%d, -1' % (252 + i))
    a('s_bfe_u32 s53, s69, 0x10001')
    a('v_bfe_u32 v7, v1, 3, 1'); a('s_mul_i32 s54, s53, 31'); a('v_xor_b32 v7, s54, v7'); a('v_lshlrev_b32 v7, 4, v7')
    a('v_and_b32 v8, 7, v1'); a('v_lshl_add_u32 v191, v8, 9, v7')
    a('s_lshl_b32 s54, s68, 1'); a('s_add_u32 s53, s53, s54'); a('s_lshl_b32 s53, s53, 15'); a('s_lshl_b32 s54, s69, 12'); a('s_add_u32 s53, s53, s54')
    a('s_add_u32 s79, s53, 0x%x' % ZB)
    a('s_movk_i32 s83, 0x800')
    a('v_and_b32 v7, 31, v1'); a('s_lshl_b32 s53, s51, 5'); a('v_add_u32 v7, s53, v7')
    a('s_lshr_b32 s53, s69, 1'); a('s_lshl_b32 s53, s53, 3'); a('s_lshr_b32 s53, 0xfe02ff01, s53'); a('s_sext_i32_i8 s53, s53')
    a('s_lshl_b32 s54, s68, 6'); a('s_add_u32 s53, s53, s54'); a('v_add_u32 v7, s53, v7')
    a('v_cmp_gt_u32 s[98:99], s62, v7'.replace('s62', 's83')); a('v_and_b32 v7, 0x7ff, v7')
    a('v_lshrrev_b32 v248, 5, v7'); a('v_lshlrev_b32 v248, 15, v248'); a('v_and_b32 v7, 31, v7'); a('v_lshl_add_u32 v248, v7, 4, v248')
    a('v_lshrrev_b32 v7, 5, v1'); a('v_lshl_add_u32 v248, v7, 9, v248')
    a('s_lshl_b32 s53, s69, 12'); a('s_lshl_b32 s54, s52, 11'); a('s_add_u32 s86, s53, s54'); a('s_add_u32 s86, s86, 0x%x' % ZB)
    a('v_and_b32 v11, 3, v5'); a('v_mul_u32_u24 v11, %d, v11' % CS); a('v_and_b32 v12, 12, v5'); a('v_lshl_add_u32 v11, v12, 1, v11')
    a('v_lshl_add_u32 v11, v6, 4, v11'); a('s_lshl_b32 s56, s51, 8'); a('s_add_u32 s57, s56, s71'); a('s_add_u32 s57, s57, %d' % (L_E4 + 8))
    a('v_add_u32 v11, s57, v11')
    a('v_lshlrev_b32 v12, 4, v6'); a('v_lshlrev_b32 v13, 5, v5'); a('v_sub_u32 v12, v12, v13')
    a('s_add_u32 s57, s56, s70'); a('s_add_u32 s57, s57, 480'); a('v_add_u32 v12, s57, v12')
    a('v_lshlrev_b32 v7, 4, v5'); a('v_lshl_add_u32 v7, v6, 2, v7'); a('s_lshl_b32 s56, s51, 10'); a('v_add_u32 v7, s56, v7')
    a('v_lshlrev_b32 v8, 1, v7'); a('s_lshl_b32 s56, s51, 13'); a('v_add_u32 v9, s56, v14')
    a('s_add_u32 s57, s70, %d' % (2 * (2044 - 768))); a('v_sub_u32 v13, s57, v8')
    a('v_and_b32 v185, 1, v6'); a('v_lshlrev_b32 v185, 18, v185'); a('v_lshrrev_b32 v7, 2, v5'); a('v_lshl_add_u32 v185, v7, 16, v185')
    a('v_and_b32 v7, 3, v5'); a('v_lshl_add_u32 v185, v7, 5, v185'); a('v_lshrrev_b32 v7, 1, v6'); a('v_lshl_add_u32 v185, v7, 4, v185')
    a('v_lshrrev_b32 v21, 5, v1'); a('v_bfe_u32 v22, v1, 2, 2')
    a('v_lshl_add_u32 v7, v21, 3, v22'); a('v_lshlrev_b32 v7, 7, v7'); a('v_lshrrev_b32 v23, 1, v22'); a('v_lshl_add_u32 v7, v23, 6, v7')
    a('v_and_b32 v21, 1, v6'); a('v_lshl_add_u32 v7, v21, 5, v7')
    a('v_and_b32 v24, 3, v1'); a('v_lshl_add_u32 v187, v24, 3, v7')
    a('v_and_b32 v25, 1, v1'); a('v_lshl_add_u32 v7, v25, 4, v7'); a('v_bfe_u32 v25, v1, 1, 1'); a('v_lshl_add_u32 v188, v25, 3, v7')
    PA, PB = (189, 190) if PWHEN != 3 else (10, 4)
    if PWHEN != 3: a('v_add_u32 v%d, s76, v188' % PA); a('v_xor_b32 v%d, 64, v%d' % (PB, PA))
    a('v_lshl_add_u32 v7, v6, 3, v22'); a('v_lshlrev_b32 v186, 6, v7'); a('v_lshl_add_u32 v186, v24, 3, v186'); a('v_add_u32 v186, s76, v186')
    a('v_lshlrev_b32 v7, 7, v7'); a('v_lshl_add_u32 v23, v21, 1, v23'); a('v_xor_b32 v23, s48, v23'); a('v_lshl_add_u32 v7, v23, 5, v7')
    a('v_lshl_add_u32 v7, v24, 3, v7'); a('v_add_u32 v26, %d, v7' % L_K); a('v_xor_b32 v27, 64, v26')
    a('v_lshlrev_b32 v20, 12, v20'); a('s_lshl_b32 s53, s49, 7'); a('v_lshl_add_u32 v7, v6, 4, s53')
    a('v_add_u32 v28, v20, v7'); a('v_add_u32 v28, 0x%x, v28' % XT)
    a('v_sub_u32 v29, v20, v7'); a('v_add_u32 v29, %d, v29' % (4080 - 64 + KVR))
    a('v_and_b32 v4, 31, v1'); a('v_lshlrev_b32 v4, 3, v4'); a('v_mov_b32 v0, 0')
    if 'front' in EXP: a.stamp('addr done')
    a.wait('kvx')
    if 'front' in EXP: a.stamp('own landed')
    a('s_barrier')
    a.vm('global_load_dwordx2 v[2:3], v0, s[28:29] sc1', 'tag')
    a.stamp('k landed')
    if KWHEN == 2: kloads()
    if PWHEN == 2: ploads()
    for o in range(2):
        a(TR % (vr(30 + 6 * o, 2), 26, 512 + 4096 * o))
        a(TR % (vr(32 + 6 * o, 2), 27, 1024 + 4096 * o)); a(TR % (vr(34 + 6 * o, 2), 27, 1536 + 4096 * o))
    for o in range(2):
        for z in range(2): a(TR % (vr(112 + 4 * o + 2 * z, 2), 26, L_V - L_K + 512 * z + 4096 * o))
    for o in range(2):
        for z in range(2): a(TR % (vr(120 + 4 * o + 2 * z, 2), 26, L_X - L_K + 512 * z + 4096 * o))
    a(lo(70, 44)); a(hi(71, 44)); a(lo(72, 45)); a(hi(73, 45))
    a('s_waitcnt lgkmcnt(8)')
    for t in range(1, 12):
        for o in range(2): a((hi if t & 1 else lo)(46 + 2 * t + o, 30 + 6 * o + (t >> 1)))
    a('s_waitcnt lgkmcnt(0)')
    a.vm('buffer_store_dwordx4 v[120:123], v28, s[32:35], 0 offen sc1')
    a.vm('buffer_store_dwordx4 v[124:127], v28, s[32:35], 0 offen offset:64 sc1')
    for i in range(8): a(pk('v_pk_mul_f32', 94 + 2 * i, [48 + 2 * i, bc(73)]))
    for t in (1, 2, 3):
        for i in range(8): a(pk('v_pk_fma_f32', 94 + 2 * i, [48 + 2 * (i + t), bc(73 - t), 94 + 2 * i]))
    for i in range(8):
        for o in range(2): a((hi if i & 1 else lo)(78 + 2 * i + o, 112 + 4 * o + (i >> 1)))
    for i in range(8): a(pk('v_pk_mul_f32', 94 + 2 * i, [94 + 2 * i, 78 + 2 * i]))
    for o in range(2):
        for i in range(4): a('v_cvt_pk_bf16_f32 v%d, v%d, v%d' % (112 + 4 * o + i, 94 + 2 * (7 - 2 * i) + o, 94 + 2 * (6 - 2 * i) + o))
    a.vm('buffer_store_dwordx4 v[112:115], v29, s[32:35], 0 offen offset:64 sc1')
    a.vm('buffer_store_dwordx4 v[116:119], v29, s[32:35], 0 offen sc1', 'st')
    a.stamp('kv stored')
    if KWHEN == 1: kloads()
    if PWHEN == 1: ploads()
    a.wait('xr')
    for r in range(2):
        for i in range(4): a(lo(48 + 8 * r + 2 * i, 128 + 4 * r + i)); a(hi(49 + 8 * r + 2 * i, 128 + 4 * r + i))
    for r in range(2):
        b = 48 + 8 * r
        a(pk('v_pk_add_f32', 70 + 2 * r, [b, b + 2])); a(pk('v_pk_add_f32', 74 + 2 * r, [b + 4, b + 6]))
    for r in range(2): a(pk('v_pk_add_f32', 70 + 2 * r, [70 + 2 * r, 74 + 2 * r]))
    for r in range(2): a('v_add_f32 v%d, v%d, v%d' % (64 + r, 70 + 2 * r, 71 + 2 * r))
    allreduce(a, [64, 65], [66, 67])
    for r in range(2): a('v_mul_f32 v%d, s60, v%d' % (64 + r, 64 + r))
    for r in range(2):
        for i in range(0, 8, 2): a(pk('v_pk_add_f32', 48 + 8 * r + i, [48 + 8 * r + i, bc(64 + r)], neg=[0, 1]))
    for r in range(2):
        b = 48 + 8 * r
        a(pk('v_pk_mul_f32', 70 + 2 * r, [b, b]))
        for i in (2, 4, 6): a(pk('v_pk_fma_f32', 70 + 2 * r, [b + i, b + i, 70 + 2 * r]))
    for r in range(2): a('v_add_f32 v%d, v%d, v%d' % (68 + r, 70 + 2 * r, 71 + 2 * r))
    allreduce(a, [68, 69], [66, 67])
    for r in range(2): a('v_mul_f32 v%d, s60, v%d' % (68 + r, 68 + r))
    a('v_cvt_pk_bf16_f32 v68, v68, v69'); a(hi(69, 68)); a(lo(68, 68))
    for r in range(2): a('v_add_f32 v%d, 0x%x, v%d' % (68 + r, f2u(EPS), 68 + r))
    a('v_cvt_pk_bf16_f32 v68, v68, v69'); a(hi(69, 68)); a(lo(68, 68))
    for r in range(2): a('v_sqrt_f32 v%d, v%d' % (68 + r, 68 + r))
    a('s_lshl_b32 s53, s48, 3'); a('s_add_u32 s53, s53, %d' % L_CRED); a('v_mov_b32 v7, s53')
    a('v_cvt_pk_bf16_f32 v72, v68, v64'); a('v_cvt_pk_bf16_f32 v73, v69, v65')
    a('ds_write_b64 v7, v[72:73]')
    a('s_lshl_b32 s53, s49, 3'); a('s_add_u32 s87, s53, s72')
    a('s_mov_b32 s82, 0')
    a.wait('st', 'lgkmcnt(0)')
    a('Ltag:')
    a('v_readfirstlane_b32 s80, v2'); a('v_readfirstlane_b32 s81, v3')
    a('s_or_b32 s53, s80, s81'); a('s_cbranch_scc1 Ltagok')
    a('global_load_dwordx2 v[2:3], v0, s[28:29] sc1')
    a.guard()
    a('s_waitcnt vmcnt(0)')
    a('s_branch Ltag')
    a('Ltagok:')
    a.stamp('drained')
    a.signal('s87', eager='0' in EAGER)
    a('s_cmp_lg_u32 s48, 1'); a('s_cbranch_scc1 Lnost')
    a('v_lshlrev_b32 v7, 3, v1'); a('ds_read_b64 v[72:73], v7 offset:%d' % L_CRED)
    a('s_lshl_b32 s53, s2, 6'); a('s_add_u32 s53, s53, 0x%x' % ST0); a('v_mov_b32 v75, s80')
    a('s_mov_b64 exec, 15'); a('s_waitcnt lgkmcnt(0)')
    a('v_mov_b32 v74, v73'); a('v_mov_b32 v73, s80')
    a('buffer_store_dwordx4 v[72:75], v14, s[32:35], s53 offen sc1'); a('s_mov_b64 exec, -1')
    a('Lnost:')
    def ptr():
        a(TR % ('v[192:193]', PA, 0)); a(TR % ('v[194:195]', PA, 512)); a(TR % ('v[196:197]', PB, 0)); a(TR % ('v[198:199]', PB, 512))
        for e in range(2):
            for z in range(2): a(TR % (vr(200 + 4 * e + 2 * z, 2), 186, 2048 + 32 * e + 256 * z))
    def late():
        if PWHEN != 3 and not (E4EARLY and PWHEN == 1 and KWHEN == 0): ptr()
        a('v_add_u32 v7, s71, v10')
        for i in range(2):
            W = 136 + 6 * i; b = 20 + 12 * i
            for x in range(4): a('v_alignbit_b32 v%d, v%d, v%d, 16' % (b + x, W + x + 1, W + x))
            for x in range(4): a('v_mov_b32 v%d, v%d' % (b + 4 + x, W + x + 1))
            for x in range(4): a('v_alignbit_b32 v%d, v%d, v%d, 16' % (b + 8 + x, W + x + 2, W + x + 1))
            o = L_E4 + 32 + 1024 * i
            a('ds_write_b128 v7, %s offset:%d' % (vr(W + 2, 4), o + 3 * CS))
            a('ds_write_b128 v7, %s offset:%d' % (vr(b, 4), o))
            a('ds_write_b128 v7, %s offset:%d' % (vr(b + 4, 4), o + CS))
            a('ds_write_b128 v7, %s offset:%d' % (vr(b + 8, 4), o + 2 * CS))
    if (KWHEN != 1 and PWHEN != 1) or (E4EARLY and PWHEN == 1 and KWHEN == 0): late()
    a('s_add_u32 s56, s70, s67'); a('s_mov_b32 m0, s56'); a('s_add_u32 s57, s66, %d' % KVR); a('s_add_u32 s58, s66, 0x%x' % XT)
    a.poll(4, 's72', 's87')
    a.stamp('X0 seen')
    a.vm('buffer_load_dwordx4 v10, s[32:35], s57 offen sc1 lds')
    a.vm('buffer_load_dwordx4 v10, s[32:35], s57 offen offset:1024 sc1 lds', 'kv')
    for i in range(4): a.vm('buffer_load_dwordx2 %s, v8, s[32:35], s58 offen offset:%d sc1' % (vr(208 + 2 * i, 2), 512 * i), 'xT')
    if '0' not in EAGER: a.late('s87')
    if E4EARLY and PWHEN == 1 and KWHEN == 0: ptr()
    elif KWHEN == 1 or PWHEN == 1: late()
    if PWHEN == 3:
        ploads(); a('v_add_u32 v%d, s76, v188' % PA); a('v_xor_b32 v%d, 64, v%d' % (PB, PA))
    pst = [[('buffer_store_dwordx4 %s, v14, s[32:35], %s offen offset:%d sc1' % (vr(192 + 4 * z, 4), ('s88', 's88', 's89', 's59')[z], 1024 if z == 1 else 0), None)] for z in range(4)]
    pst.append(['s_mov_b64 exec, 0xffff', ('buffer_store_dwordx4 v[252:255], v191, s[32:35], s79 offen sc1', None), 's_mov_b64 exec, -1'])
    if ZT: pst = [[('buffer_load_dword v192, v248, s[32:35], s86 offen', None)], [('buffer_load_dword v193, v248, s[32:35], s86 offen offset:1024', None)]][:0] + pst + [[('buffer_load_dword v4, v248, s[32:35], s86 offen', None)], [('buffer_load_dword v4, v248, s[32:35], s86 offen offset:1024', None)]]
    def wdma(srdn, label, ngrp, mask, ldsbase, srcoff):
        l = []
        for i in range(4 * ngrp):
            it = []
            if i % 4 == 0:
                it += ['s_add_u32 s55, s92, %d' % (1024 * i), 's_and_b32 s55, s55, 0x%x' % mask, 's_add_u32 s53, %s, s55' % ldsbase, 's_mov_b32 m0, s53',
                       's_lshl_b32 s55, s55, 3', 's_add_u32 s93, s78, s55']
                if srcoff: it.append('s_add_u32 s93, s93, %d' % srcoff)
            it.append(('buffer_load_dwordx4 v%d, s[%d:%d], s93 offen offset:%d lds' % (248 + (i & 3) if i & 3 else 184, srdn, srdn + 3, 1024 * (i & 3)), label))
            l.append(it)
        return l
    def stloads(fl=''):
        return [['s_mov_b32 s54, 0x%x' % (ST0 + 4096 * (i >> 2)),
                 ('buffer_load_dwordx4 %s, v9, s[32:35], s54 offen offset:%d %s' % (vr(216 + 4 * i, 4), 1024 * (i & 3), fl), 'st0')] for i in range(8)]
    w1l = wdma(44, 'w1', 4, 0x3fff, 's77', 0)
    bg = w1l; stl = stloads()
    if W2A: a('s_lshl_b32 s87, s48, 13'); a('s_add_u32 s87, s87, %d' % L_S2); bg += wdma(40, 'w1', 2, 0x1fff, 's87', 0)
    a('s_waitcnt lgkmcnt(0)')
    a('s_barrier')
    a.take(bg, PRE0)
    a('s_lshl_b32 s56, s65, 16'); a('s_and_b32 s57, s65, 0xffff0000'); a('s_cmp_eq_u32 s52, 0'); a('s_cselect_b32 s65, s56, s57')
    a('s_lshl_b32 s57, s51, 20'); a('s_lshl_b32 s58, s64, 7'); a('s_add_u32 s57, s57, s58'); a('s_add_u32 s57, s57, 0x%x' % HT)
    a('s_add_u32 s58, s57, 0x80000')
    a('s_lshl_b32 s53, s48, 12'); a('s_add_u32 s53, s53, %d' % L_CRED); a('v_add_u32 v190, s53, v14'); a('v_xor_b32 v189, 0x1000, v14')
    a('s_lshl_b32 s53, s48, 12'); a('v_xor_b32 v189, s53, v189'); a('v_add_u32 v189, %d, v189' % L_CRED)
    CA = 16; FR = 48
    def A(st, x): return FR + 64 * st + 4 * x
    def B(st, x): return FR + 64 * st + 32 + 4 * x
    def reads(rho):
        st = rho & 1; l = []
        for x in range(8):
            l.append('ds_read_b64 %s, v11 offset:%d' % (vr(A(st, x), 2), 512 * x + 64 * rho))
            l.append('ds_read_b64 %s, v11 offset:%d' % (vr(A(st, x) + 2, 2), 512 * x + 64 * rho + 8))
            l.append('ds_read_b128 %s, v12 offset:%d' % (vr(B(st, x), 4), 512 * (7 - x) + 64 * rho))
        return l
    XF = 48; XN = 64; KD = 80; RS = 96
    def shadow():
        l = ['s_waitcnt lgkmcnt(0)']
        for i in range(4):
            l += [hi(KD + 4 * i, 177 + 2 * i), lo(KD + 4 * i + 1, 177 + 2 * i), hi(KD + 4 * i + 2, 176 + 2 * i), lo(KD + 4 * i + 3, 176 + 2 * i)]
        l += ['v_mul_f32 v%d, s65, v%d' % (KD + i, KD + i) for i in range(16)]
        l.append(('wait', 'st0'))
        l += [(hi if i & 1 else lo)(XF + i, 208 + (i >> 1)) for i in range(16)]
        l.append(('check',))
        l += [lo(RS + i, 216 + 2 * i) for i in range(16)]
        l += ['v_rcp_f32 v%d, v%d' % (RS + i, RS + i) for i in range(16)]
        l += [hi(XN + i, 216 + 2 * i) for i in range(16)]
        l += ['v_sub_f32 v%d, v%d, v%d' % (XN + i, XF + i, XN + i) for i in range(16)]
        l += ['v_mul_f32 v%d, v%d, v%d' % (XN + i, XN + i, RS + i) for i in range(16)]
        return l
    def check():
        a('s_mov_b32 s82, 0')
        a('Lst0:')
        a('v_min3_u32 v7, v217, v219, v221'); a('v_max3_u32 v0, v217, v219, v221')
        for i in range(3, 15, 2):
            a('v_min3_u32 v7, v7, v%d, v%d' % (217 + 2 * i, 219 + 2 * i)); a('v_max3_u32 v0, v0, v%d, v%d' % (217 + 2 * i, 219 + 2 * i))
        a('v_min_u32 v7, v7, v247'); a('v_max_u32 v0, v0, v247')
        a('v_cmp_ne_u32 vcc, s80, v7'); a('v_cmp_ne_u32 s[54:55], s80, v0'); a('s_or_b64 vcc, vcc, s[54:55]')
        a('s_cbranch_vccz Lst0ok')
        for it in stloads('sc1'):
            for x in it: a(x[0] if isinstance(x, tuple) else x)
        a.guard()
        a('s_waitcnt vmcnt(0)')
        a('s_branch Lst0')
        a('Lst0ok:'); a.count(30)
    def emit_sh(x):
        if isinstance(x, str): a(x)
        elif x[0] == 'wait': a.wait(x[1])
        else: check()
    r0 = reads(0)
    for r in r0:
        if 'b64' in r: a(r)
    a.wait('kv')
    a('s_barrier')
    a.stamp('conv go')
    for r in r0:
        if 'b64' not in r: a(r)
    started = set(); sh = shadow()
    for rho in range(4):
        st = rho & 1
        nxt = reads(rho + 1) if rho < 3 else ['ds_read_b64 %s, v13 offset:%d' % (vr(176 + 2 * i, 2), 512 * (3 - i)) for i in range(4)]
        issued = 0; cnt = 0
        for x in range(8):
            pairs = [(x, b) for b in range(x + 1) if x + b <= 7] + [(aa, x) for aa in range(x) if aa + x <= 7]
            if rho == 0: a('s_waitcnt lgkmcnt(%d)' % min(15, 7 - x + issued))
            elif x == 0: a('s_waitcnt lgkmcnt(0)')
            for (aa, bb) in pairs:
                t = aa + bb
                c = vr(CA + 4 * t, 4) if t in started else '0'
                started.add(t)
                a(M16 % (vr(CA + 4 * t, 4), vr(A(st, aa), 4), vr(B(st, bb), 4), c))
                cnt += 1
                if (rho > 0 or x >= 2) and issued < len(nxt) and cnt <= 30:
                    a(nxt[issued]); issued += 1
                g = cnt + 36 * rho
                if g >= ST_AT and g % 3 == 0: a.take(stl)
                if PWHEN == 3 and g == PST_AT - 8:
                    a.wait('pk'); ptr()
                if PWHEN == 3 and g == PST_AT - 1: a('s_waitcnt lgkmcnt(0)')
                if g >= PST_AT and g % 4 == 1: a.take(pst)
                if g >= BG0 and g % PACE == 0 and (g < ST_AT or not stl): a.take(bg)
                if rho == 3 and cnt >= 8 and 'nosh' not in EXP:
                    for _ in range(2): emit_sh(sh.pop(0))
        while issued < len(nxt): a(nxt[issued]); issued += 1
        if 'rho' in EXP and rho < 3: a.stamp('rho%d' % rho)
    a.stamp('conv mfma')
    a('s_cmp_eq_u32 s51, 0'); a('s_cbranch_scc1 Lck0')
    for v, lab in ((1, None), (0, 'Lck0')):
        if lab: a(lab + ':')
        snd = 0 if v else 4; keep = 4 - snd
        for i in range(4): a('ds_write_b128 v189, %s offset:%d' % (vr(CA + 4 * (snd + i), 4), 1024 * i))
        for i in range(0, 16, 2): a(pk('v_pk_add_f32', KD + i, [KD + i, CA + 4 * keep + i]))
        if v: a('s_branch Lck1')
    a('Lck1:')
    a.take(pst, 7)
    while sh:
        emit_sh(sh.pop(0))
        if len(sh) % 9 == 0: a.take(bg)
    a.take(bg, 24)
    a('s_waitcnt lgkmcnt(0)'); a('s_barrier')
    for i in range(4): a('ds_read_b128 %s, v190 offset:%d' % (vr(112 + 4 * i, 4), 1024 * i))
    a.stamp('conv red')
    for i in range(4):
        a('s_waitcnt lgkmcnt(%d)' % (3 - i))
        for r in (0, 2): a(pk('v_pk_add_f32', KD + 4 * i + r, [KD + 4 * i + r, 112 + 4 * i + r]))
        for r in (0, 2): a(pk('v_pk_fma_f32', XF + 4 * i + r, [XN + 4 * i + r, KD + 4 * i + r, XF + 4 * i + r]))
        o = 128 + 2 * i
        a('v_cvt_pk_bf16_f32 v%d, v%d, v%d' % (o, XF + 4 * i, XF + 4 * i + 1)); a('v_cvt_pk_bf16_f32 v%d, v%d, v%d' % (o + 1, XF + 4 * i + 2, XF + 4 * i + 3))
        if i & 1:
            a('v_permlane16_swap_b32 v%d, v%d' % (o - 2, o)); a('v_permlane16_swap_b32 v%d, v%d' % (o - 1, o + 1))
            a.vm('buffer_store_dwordx4 %s, v185, s[32:35], s%d offen sc1' % (vr(o - 2, 4), 57 + (i >> 1)), 'h')
    assert not bg
    a.stamp('h stored')
    a('s_lshl_b32 s53, s52, 6'); a('s_add_u32 s54, s53, s77'); a('v_xor_b32 v9, s54, v188'); a('v_xor_b32 v8, 64, v9')
    def wtr(dst, n, va):
        for s in range(n):
            for ch in range(2):
                a(TR % (ur(dst + 8 * s + 4 * ch, 2), va + ch, 2048 * s)); a(TR % (ur(dst + 8 * s + 4 * ch + 2, 2), va + ch, 2048 * s + 512))
    if W2A: a('s_add_u32 s54, s53, s87'); a('v_xor_b32 v186, s54, v188'); a('v_xor_b32 v185, 64, v186')
    a.wait('w1')
    wtr(256, 8, 8)
    if W2A: wtr(256 + 64, 4, 185)
    a('s_lshl_b32 s53, s50, 5'); a('s_add_u32 s53, s53, s49'); a('s_mul_i32 s53, s53, %d' % HFS); a('s_add_u32 s58, s53, 0x%x' % F_H)
    a('v_mul_u32_u24 v7, %d, v1' % (256 * HFS))
    for slot in range(3):
        th, ch = slot >> 1, slot & 1
        a('s_xor_b32 s53, s48, %d' % ((1 - th) + 2 * (1 - ch))); a('s_mul_i32 s53, s53, 12288'); a('s_add_u32 s53, s53, %d' % (G_RED + 4096 * slot))
        a('v_add_u32 v%d, s53, v14' % (10 + slot))
    a('s_mul_i32 s53, s48, 12288'); a('s_add_u32 s53, s53, %d' % G_RED); a('v_add_u32 v13, s53, v14')
    ONES = 160; CSUM = 144
    for i in range(4): a('v_mov_b32 v%d, 0x3f803f80' % (ONES + i))
    w2l = wdma(40, 'w2', 2, 0x1fff, 's77', 65536) if W2A else wdma(40, 'w2', 4, 0x3fff, 's77', 0)
    a('s_waitcnt lgkmcnt(0)')
    a.take(w2l, W2PRE)
    a.wait('h')
    a.stamp('h drained')
    a.signal('s58', 7)
    a.take(w2l, 4)
    a('v_and_b32 v164, 31, v1'); a('v_lshlrev_b32 v164, 2, v164'); a('s_lshl_b32 s53, s52, 7'); a('s_add_u32 s53, s53, %d' % L_S2); a('v_add_u32 v165, s53, v164')
    a('s_lshl_b32 s53, s48, 8'); a('v_add_u32 v166, s53, v165'); a('v_xor_b32 v167, 0x80, v166')
    a('s_lshl_b32 s53, s48, 7'); a('s_add_u32 s53, s53, %d' % (L_S2 + 1024)); a('v_add_u32 v168, s53, v164')
    a('v_lshrrev_b32 v169, 5, v1'); a('v_lshl_add_u32 v169, v169, 4, s53')
    for s in range(8):
        for ch in range(2):
            a(M32 % (vr(acc(0, ch), 16), vr(ONES, 4), ur(256 + 8 * s + 4 * ch, 4), vr(acc(0, ch), 16) if s else '0'))
            if ch: a.take(w2l)
    a.take(w2l, 4)
    srd(a, 36, 30, 8 * 86 * 2048, '0x%x' % W4P); srd(a, 40, 30, 86 * 16384, '0x%x' % W3P)
    a('ds_write_b32 v167, v%d' % acc(0, 0)); a('ds_write_b32 v166, v%d' % acc(0, 1))
    a('v_lshlrev_b32 v189, 6, v6'); a('v_and_b32 v189, 64, v189'); a('v_xor_b32 v189, v189, v14')
    a('s_lshl_b32 s56, s48, 14')
    a('s_lshl_b32 s53, s51, 6'); a('s_add_u32 s54, s53, s56'); a('v_xor_b32 v191, s54, v187'); a('v_xor_b32 v190, 64, v191')
    a('s_lshl_b32 s54, s69, 13'); a('s_add_u32 s53, s53, s54'); a('s_lshl_b32 s54, s52, 12'); a('s_add_u32 s53, s53, s54'); a('v_xor_b32 v187, s53, v187')
    a('s_and_b32 s57, s50, %d' % (HREP - 1)); a('s_lshl_b32 s57, s57, 2'); a('s_add_u32 s53, s57, s48'); a('s_mul_i32 s53, s53, %d' % (64 * HFS)); a('s_add_u32 s58, s53, 0x%x' % F_H)
    a('v_lshlrev_b32 v4, 3, v1'); a('v_mul_u32_u24 v0, %d, v1' % HFS)
    a('s_lshl_b32 s57, s68, 16'); a('s_add_u32 s57, s57, s56'); a('s_add_u32 s57, s57, 0x%x' % HT)
    a('s_waitcnt lgkmcnt(0)'); a('s_barrier')
    for w in range(4): a('ds_read_b32 v%d, v165 offset:%d' % (80 + w, 256 * w))
    a('s_xor_b32 s53, s51, 1'); a('s_lshl_b32 s53, s53, 8'); a('v_xor_b32 v184, s53, v4')
    a('s_lshl_b32 s53, s48, 9'); a('s_add_u32 s53, s53, %d' % G_ST); a('v_add_u32 v184, s53, v184')
    a('v_and_b32 v7, 31, v1'); a('s_lshl_b32 s53, s51, 5'); a('v_add_u32 v7, s53, v7'); a('v_lshlrev_b32 v185, 3, v7'); a('v_add_u32 v185, %d, v185' % G_ST)
    a('s_waitcnt lgkmcnt(0)')
    a('v_add_f32 v80, v80, v81'); a('v_add_f32 v82, v82, v83'); a('v_add_f32 v80, v80, v82')
    a('ds_write_b32 v168, v80')
    for q in range(4): a('ds_read_b128 %s, v169 offset:%d' % (vr(CSUM + 4 * q, 4), 32 * q))
    a('s_lshl_b32 s53, s69, 12'); a('s_lshl_b32 s54, s52, 11'); a('s_add_u32 s70, s53, s54'); a('s_add_u32 s71, s70, 0x%x' % ZB)
    a('v_mov_b32 v186, v248'); a('v_cndmask_b32 v188, 0, -2, s[98:99]')
    a('s_mul_i32 s73, s69, 11'); a('s_mul_i32 s53, s48, 3'); a('s_add_u32 s73, s73, s53')
    a('s_lshl_b32 s74, s73, 14'); a('s_add_u32 s75, s74, 0x8000'); a('s_cmp_eq_u32 s48, 3'); a('s_cselect_b32 s75, 0x400000, s75')
    a('s_lshl_b32 s72, s68, 8'); a('s_lshl_b32 s53, s69, 3'); a('s_add_u32 s79, s72, s53')
    a('s_lshl_b32 s53, s48, 4'); a('s_add_u32 s72, s72, s53')
    a('s_lshl_b32 s66, s68, 1'); a('s_add_u32 s66, s66, s51')
    BF = 80; ST = 172
    for i in range(4): a('v_mov_b32 v%d, 0' % (ST + i))
    a('s_mov_b32 m0, s56')
    a.stamp('X1 poll')
    a.wait('w2')
    a.poll(0, 's58', False, sleep=SLEEP, between=lambda: wtr(256 + 64, 8, 8))
    a.count(63); a.stamp('X1 seen')
    hl = []
    for i in range(16):
        it = []
        if i and i % 4 == 0: it += ['s_add_u32 s53, s56, %d' % (1024 * i), 's_mov_b32 m0, s53', 's_add_u32 s57, s57, 4096']
        it.append(('buffer_load_dwordx4 v189, s[32:35], s57 offen offset:%d sc1 lds' % (1024 * (i & 3)), 'h%d' % (i >> 1)))
        hl.append(it)
    a.take(hl, 8)
    WR3 = [192, 256 + 128, 256 + 192]
    w3l = []
    for j in (1, 2, 0):
        for s in range(16):
            w3l.append(['s_add_u32 s87, s%d, %d' % (75 if j == 2 else 74, (16384 if j == 1 else 0) + 1024 * s),
                        ('buffer_load_dwordx4 %s, v14, s[40:43], s87 offen' % ur(WR3[j] + 4 * s, 4), 'w3')])
    if 'now3' in EXP: w3l = [['s_nop 0'] for it in w3l]
    def btr(s):
        for th in range(2):
            a(TR % (vr(BF + 32 * th + 4 * s, 2), 190 + th, 2048 * s)); a(TR % (vr(BF + 32 * th + 4 * s + 2, 2), 190 + th, 2048 * s + 512))
    a.wait('h0'); btr(0)
    a.stamp('h0 landed')
    for s in range(8):
        if s < 7:
            a.wait('h%d' % (s + 1)); btr(s + 1)
        a('s_waitcnt lgkmcnt(%d)' % (4 if s < 7 else 0))
        if s == 4: a('s_barrier')
        for th in range(2):
            for ch in range(2):
                a(M32 % (vr(acc(th, ch), 16), ur(256 + 8 * s + 4 * ch, 4), vr(BF + 32 * th + 4 * s, 4), vr(acc(th, ch), 16) if s else '0'))
                if ch == 0:
                    if hl: a.take(hl)
                    elif s >= 6: a.take(w3l)
    a.stamp('g1 mfma')
    wr = red_write(0) + red_write(1) + red_write(2)
    n = 0
    for s in range(8):
        for th in range(2):
            for i in range(4):
                b = BF + 32 * th + 4 * s + i
                a('v_dot2c_f32_bf16 v%d, v%d, v%d' % (ST + th, b, ONES)); a('v_dot2c_f32_bf16 v%d, v%d, v%d' % (ST + 2 + th, b, b))
                n += 1
                if n >= 6 and n % 4 == 2 and wr: a(wr.pop(0))
                if n % 6 == 0 and len(w3l) > 48 - W3A: a.take(w3l)
    assert not wr
    a('v_permlane32_swap_b32 v%d, v%d' % (ST, ST + 1)); a('v_permlane32_swap_b32 v%d, v%d' % (ST + 2, ST + 3))
    a('v_add_f32 v%d, v%d, v%d' % (ST, ST, ST + 1)); a('v_add_f32 v%d, v%d, v%d' % (ST + 1, ST + 2, ST + 3))
    a('ds_write_b64 v184, %s' % vr(ST, 2))
    a('s_waitcnt lgkmcnt(0)'); a('s_barrier')
    a.stamp('g1 red')
    for w in range(4): a('ds_read_b64 %s, v185 offset:%d' % (vr(164 + 2 * w, 2), 512 * w))
    rr = red_reads(80)
    for r in rr[:10]: a(r)
    M1 = 164; R1 = 166; RI = 168; CAa = 169; CBb = 170
    a('s_waitcnt lgkmcnt(10)')
    a(pk('v_pk_add_f32', 164, [164, 166])); a(pk('v_pk_add_f32', 168, [168, 170])); a(pk('v_pk_add_f32', 164, [164, 168]))
    for r in rr[10:]: a(r)
    for l in ['v_mul_f32 v164, s60, v164', 'v_mul_f32 v166, v164, v164', 'v_fma_f32 v165, v165, s60, -v166', 'v_max_f32 v165, 0, v165',
              'v_add_f32 v166, 0x%x, v165' % f2u(EPS), 'v_rsq_f32 v166, v166',
              'v_mul_f32 v167, v166, v166', 'v_mul_f32 v167, v167, v165', 'v_add_f32 v167, 0x%x, v167' % f2u(EPS), 'v_rsq_f32 v167, v167',
              'v_mul_f32 v167, v167, v166', 'v_rcp_f32 v168, v167', 'v_mul_f32 v169, 0x%x, v167' % f2u(C0),
              'v_mul_f32 v170, v167, v167', 'v_mul_f32 v170, v170, v167', 'v_mul_f32 v170, 0x%x, v170' % f2u(C1)]: a(l)
    o = acc(1, 1)
    for i in range(0, 16, 2): a(pk('v_pk_fma_f32', o + i, [bc(M1), CSUM + i, o + i], neg=[1, 0, 0]))
    red_adds(a, 80)
    HO = 176
    for s in range(2):
        a(TR % (vr(HO + 4 * s, 2), 187, 2048 * s)); a(TR % (vr(HO + 4 * s + 2, 2), 187, 2048 * s + 512))
    g = gelu_pk(o, CAa, CBb, RI, 80, 16)
    for i, l in enumerate(g):
        a(l)
        if i % 10 == 9 and len(w3l) > 48 - W3A: a.take(w3l)
    for i in range(8): a('v_cvt_pk_bf16_f32 v%d, v%d, v%d' % (96 + i, o + 2 * i, o + 2 * i + 1))
    for i in range(8): a('v_min_u32 v%d, v%d, v188' % (96 + i, 96 + i))
    a.vm('buffer_store_dwordx4 v[96:99], v186, s[32:35], s71 offen sc1')
    a.vm('buffer_store_dwordx4 v[100:103], v186, s[32:35], s71 offen offset:1024 sc1', 'z')
    a.stamp('z stored')
    a.take(w3l, W3B)
    HF = 144; HN = 176
    a('s_waitcnt lgkmcnt(0)')
    for i in range(8): a(lo(HF + 2 * i, HO + i)); a(hi(HF + 2 * i + 1, HO + i))
    for i in range(0, 16, 2): a(pk('v_pk_add_f32', HN + i, [HF + i, bc(M1)], neg=[0, 1]))
    for i in range(0, 16, 2): a(pk('v_pk_mul_f32', HN + i, [HN + i, bc(R1)]))
    a('s_add_u32 s59, s79, 0x%x' % F_Z); a('s_add_u32 s58, s72, 0x%x' % F_Z)
    a('v_and_b32 v4, 1, v1'); a('v_lshlrev_b32 v4, 3, v4')
    a('s_lshl_b32 s56, s66, 15'); a('s_add_u32 s64, s56, s70'); a('s_add_u32 s64, s64, 0x%x' % X1B)
    a('s_lshl_b32 s54, s48, 13'); a('s_add_u32 s56, s56, s54'); a('s_add_u32 s56, s56, 0x%x' % ZB); a('s_xor_b32 s57, s56, 0x8000')
    a('s_lshl_b32 s54, s68, 13'); a('s_lshr_b32 s55, s70, 2'); a('s_add_u32 s54, s54, s55'); a('s_lshl_b32 s55, s51, 8'); a('s_add_u32 s54, s54, s55')
    a('s_add_u32 s65, s54, 0x%x' % ST1); a('v_lshlrev_b32 v0, 3, v1')
    a.wait('z')
    a.stamp('z drained')
    a.signal('s59', eager='2' in EAGER)
    a.poll(4, 's58', 's59')
    a.stamp('X2 seen')
    def bitems(nks, dst, lab):
        l = []
        for th in range(2):
            for s in range(nks):
                it = []
                if s % 4 == 0: it.append('s_add_u32 s93, s%d, %d' % (57 - th, 1024 * s))
                it.append(('buffer_load_dwordx4 %s, v14, s[32:35], s93 offen offset:%d sc1' % (ur(dst(nks * th + s), 4), 1024 * (s & 3)), '%s%d' % (lab, nks * th + s)))
                l.append(it)
        return l
    def ksplit(nks, wreg, breg, lab, bgl, nbg, check):
        bl = bitems(nks, breg, lab)
        a.take(bl, 8)
        for th in range(2):
            wr = (red_write(0) + red_write(1)) if th else []
            if th and check:
                assert not bl
                if '2' not in EAGER: a.late('s59')
                a('s_mov_b32 s82, 0'); a('Lhalo:'); a('v_mov_b32 v7, 0')
            for s in range(nks):
                k = nks * th + s
                a.wait('%s%d' % (lab, k))
                for ch in range(2):
                    a(M32 % (vr(acc(th, ch), 16), ur(wreg(s, ch), 4), ur(breg(k), 4), vr(acc(th, ch), 16) if s else '0'))
                    if th and check: a('v_max3_u32 v7, v7, v%d, v%d' % (breg(k) + 2 * ch, breg(k) + 2 * ch + 1))
                    if ch == 0 and bl: a.take(bl)
                    elif not bl and nbg > 0 and (ch or nbg > nks - s): a.take(bgl); nbg -= 1
                if wr and s >= 1: a(wr.pop(0))
                if wr and s >= nks - 1: a(wr.pop(0))
                if th and not check and s == nks - LATE4 and '4' not in EAGER: a.late('s59')
        if check:
            a('v_cmp_eq_u32 vcc, -1, v7'); a('s_cbranch_vccz Lhalook')
            for it in bitems(nks, breg, lab)[nks:]:
                for x in it: a(x[0] if isinstance(x, tuple) else x)
            a.guard(0x8000)
            a('s_waitcnt vmcnt(0)'); a('s_branch Lhalo')
            a('Lhalook:'); a.count(62)
        for w in red_write(2): a(w)
        a('s_waitcnt lgkmcnt(0)'); a('s_barrier')
    ksplit(8, lambda s, ch: 256 + 64 + 8 * s + 4 * ch, lambda k: 80 + 4 * k, 'b', w3l, W3C, True)
    a.stamp('g2 mfma')
    for r in red_reads(80): a(r)
    for i in range(0, 16, 2): a(pk('v_pk_add_f32', o + i, [o + i, HN + i]))
    red_adds(a, 80)
    for i in range(8): a('v_cvt_pk_bf16_f32 v%d, v%d, v%d' % (96 + i, o + 2 * i, o + 2 * i + 1))
    a.vm('buffer_store_dwordx4 v[96:99], v14, s[32:35], s64 offen sc1')
    a.vm('buffer_store_dwordx4 v[100:103], v14, s[32:35], s64 offen offset:1024 sc1')
    a('v_mov_b32 v104, 0'); a('v_mov_b32 v105, 0')
    for i in range(8):
        a('v_dot2c_f32_bf16 v104, v%d, v%d' % (96 + i, ONES)); a('v_dot2c_f32_bf16 v105, v%d, v%d' % (96 + i, 96 + i))
    a('v_mov_b32 v106, v104'); a('v_mov_b32 v107, v105')
    a('v_permlane32_swap_b32 v104, v106'); a('v_permlane32_swap_b32 v105, v107')
    a(pk('v_pk_add_f32', 104, [104, 106]))
    a('s_mov_b32 exec_hi, 0')
    a.vm('buffer_store_dwordx2 v[104:105], v0, s[32:35], s65 offen sc1', 'x1')
    a('s_mov_b32 exec_hi, -1')
    if 'front' not in EXP and 'rho' not in EXP: a.stamp('x1 stored')
    a.take(w3l, 48)
    RES = 128
    for i in range(8): a(lo(80 + 2 * i, 96 + i)); a(hi(81 + 2 * i, 96 + i))
    for i in range(0, 16, 2): a(pk('v_pk_add_f32', RES + i, [HF + i, 80 + i]))
    a('s_add_u32 s59, s79, 0x%x' % F_X); a('s_add_u32 s58, s72, 0x%x' % F_X)
    a('s_lshl_b32 s64, s48, 13'); a('s_lshl_b32 s65, s68, 16'); a('s_add_u32 s65, s65, s64'); a('s_add_u32 s65, s65, 0x%x' % X1B)
    a('s_lshl_b32 s67, s68, 13'); a('s_lshl_b32 s54, s48, 11'); a('s_add_u32 s67, s67, s54'); a('s_add_u32 s67, s67, 0x%x' % ST1)
    a('v_lshlrev_b32 v8, 9, v6'); a('v_lshl_add_u32 v8, v5, 4, v8'); a('v_add_u32 v9, 0x8000, v8')
    a('s_mul_i32 s74, s69, %d' % (86 * 2048)); a('s_mul_i32 s53, s48, %d' % (22 * 2048)); a('s_add_u32 s74, s74, s53')
    a('s_add_u32 s75, s74, %d' % (20 * 2048)); a('s_cmp_eq_u32 s48, 3'); a('s_cselect_b32 s75, 0x400000, s75')
    a('s_lshl_b32 s53, s52, 10'); a('v_add_u32 v113, s53, v14'); a('v_xor_b32 v112, 0x400, v113')
    srd(a, 44, 30, 64 * HTH, '0x%x' % HB)
    a('s_lshl_b32 s53, s68, 1'); a('s_mul_i32 s53, s53, %d' % HTH); a('s_lshl_b32 s54, s73, 10'); a('s_add_u32 s56, s53, s54')
    a('s_add_u32 s57, s56, %d' % HTH)
    a('s_cmp_eq_u32 s48, 3'); a('s_cselect_b32 s76, 0x%x, s56' % (64 * HTH)); a('s_cselect_b32 s77, 0x%x, s57' % (64 * HTH))
    a('s_lshl_b32 s53, s48, 3'); a('s_add_u32 s53, s53, %d' % G_ST); a('v_lshlrev_b32 v115, 5, v1'); a('v_add_u32 v114, s53, v115'); a('v_add_u32 v115, %d, v115' % G_ST)
    a('s_mov_b32 m0, s64')
    a.wait('x1')
    a.stamp('x1 drained')
    a.signal('s59', eager='3' in EAGER)
    a.poll(4, 's58', 's59')
    a.stamp('X3 seen')
    for p in range(4): a.vm('buffer_load_dwordx2 %s, v0, s[32:35], s67 offen offset:%d sc1' % (vr(80 + 2 * p, 2), 512 * p), 'sp')
    xl = []
    for i in range(16):
        it = []
        if i % 4 == 0:
            oo = 32768 * (i >> 3) + 1024 * (i & 7)
            if i: it += ['s_add_u32 s53, s64, %d' % oo, 's_mov_b32 m0, s53']
            it.append('s_add_u32 s93, s65, %d' % oo)
        it.append(('buffer_load_dwordx4 v14, s[32:35], s93 offen offset:%d sc1 lds' % (1024 * (i & 3)), 'x%d' % (i >> 3)))
        xl.append(it)
    a.take(xl, 8)
    if '3' not in EAGER: a.late('s59')
    CS3 = 116
    for s in range(16):
        for j in range(3): a(M16 % (vr(CS3 + 4 * j, 4), ur(WR3[j] + 4 * s, 4), vr(ONES, 4), vr(CS3 + 4 * j, 4) if s else '0'))
    def w4reg(s, ch): return (256 + 8 * s + 4 * ch) if s < 16 else (144 + 8 * (s - 16) + 4 * ch)
    w4l = []
    for s in range(22):
        for ch in range(2):
            it = []
            if s % 2 == 0 and ch == 0: it.append('s_add_u32 s87, s74, %d' % (2048 * s) if s < 20 else 's_mov_b32 s87, s75')
            it.append(('buffer_load_dwordx4 %s, v%d, s[36:39], s87 offen offset:%d' % (ur(w4reg(s, ch), 4), 112 + ch, 2048 * (s & 1)), 'w4'))
            w4l.append(it)
    if 'now4' in EXP: w4l = []
    a.wait('sp')
    a(pk('v_pk_add_f32', 80, [80, 82])); a(pk('v_pk_add_f32', 84, [84, 86])); a(pk('v_pk_add_f32', 80, [80, 84]))
    a('ds_write_b64 v114, v[80:81]')
    a('s_lshl_b32 s53, s48, 10'); a('s_add_u32 s53, s53, %d' % G_ST2); a('v_add_u32 v7, s53, v14'); a('v_lshl_add_u32 v0, v5, 4, s53')
    a.wait('x0', 'lgkmcnt(0)')
    a('s_barrier')
    a.stamp('x0 landed')
    A3 = 16; BR = 40; TMP = 72; PK = 84; STT = 96
    a('ds_read_b128 v[72:75], v115'); a('ds_read_b128 v[76:79], v115 offset:16')
    def rd(k):
        tt, s = k >> 4, k & 15
        return 'ds_read_b128 %s, v%d offset:%d' % (vr(BR + 4 * (k & 7), 4), 8 + (tt >> 1), 2048 * s + 256 * (tt & 1))
    for k in range(6): a(rd(k))
    st = ['v_add_f32 v72, v72, v74', 'v_add_f32 v73, v73, v75', 'v_add_f32 v76, v76, v78', 'v_add_f32 v77, v77, v79',
          'v_add_f32 v72, v72, v76', 'v_add_f32 v73, v73, v77',
          'v_mul_f32 v72, s60, v72', 'v_mul_f32 v74, v72, v72', 'v_fma_f32 v73, v73, s60, -v74', 'v_max_f32 v73, 0, v73',
          'v_add_f32 v73, 0x%x, v73' % f2u(EPS), 'v_rsq_f32 v76, v73', 'v_sqrt_f32 v75, v73', 'v_mul_f32 v73, 0x%x, v76' % f2u(C0),
          'v_mul_f32 v74, v76, v76', 'v_mul_f32 v74, v74, v76', 'v_mul_f32 v74, 0x%x, v74' % f2u(C1), 'v_sub_f32 v72, 0, v72',
          ('ds', 'ds_write_b128 v7, v[72:75]')] + [('ds', 'ds_read_b128 %s, v0 offset:%d' % (vr(STT + 4 * tt, 4), 256 * tt)) for tt in range(4)]
    def epi(tt, packed):
        o3 = A3 + 12 * (tt & 1); m = STT + 4 * tt
        if packed:
            l = [pk('v_pk_fma_f32', o3 + i, [bc(m), CS3 + i, o3 + i]) for i in range(0, 12, 2)]
            l += gelu_pk(o3, m + 1, m + 2, m + 3, TMP, 12)
        else:
            l = ['v_fmac_f32 v%d, v%d, v%d' % (o3 + i, m, CS3 + i) for i in range(12)]
            l += gelu_plain(o3, m + 1, m + 2, m + 3, TMP, 12)
        for j in range(3):
            for i in range(2): l.append('v_cvt_pk_bf16_f32 v%d, v%d, v%d' % (PK + 4 * j + 2 * (tt & 1) + i, o3 + 4 * j + 2 * i, o3 + 4 * j + 2 * i + 1))
        if tt & 1:
            for j in range(3):
                l.append('v_permlane16_swap_b32 v%d, v%d' % (PK + 4 * j, PK + 4 * j + 2)); l.append('v_permlane16_swap_b32 v%d, v%d' % (PK + 4 * j + 1, PK + 4 * j + 3))
            for j in range(3):
                l.append(('vm', 'buffer_store_dwordx4 %s, v14, s[44:47], s%d offen offset:%d sc1' % (vr(PK + 4 * j, 4), (76 if j == 2 else 56) + (tt >> 1), 1024 * j)))
        return l
    pend = st
    lg = [('r', k) for k in range(6)]
    def cost(x): return 2 if isinstance(x, str) and x.startswith(('v_exp', 'v_rcp', 'v_rsq', 'v_sqrt')) else 1
    def emit_p(x):
        if isinstance(x, str): a(x)
        elif x[0] == 'vm': a.vm(x[1], 'H')
        elif x[0] == 'ds': a(x[1]); lg.append(('o', 0))
    for k in range(64):
        tt, s = k >> 4, k & 15
        if k == 26:
            a.wait('x1'); a('s_barrier')
        if k % 2 == 0:
            for kk in (k + 6, k + 7):
                if kk < 64: a(rd(kk)); lg.append(('r', kk))
            idx = lg.index(('r', k + 1)); a('s_waitcnt lgkmcnt(%d)' % (len(lg) - 1 - idx)); del lg[:idx + 1]
        left = sum(cost(x) for x in pend); slots = 3 * (16 - s)
        for j in range(3):
            o3 = A3 + 12 * (tt & 1) + 4 * j
            a(M16 % (vr(o3, 4), ur(WR3[j] + 4 * s, 4), vr(BR + 4 * (k & 7), 4), vr(o3, 4) if s else '0'))
            if s >= 1 or (tt == 0 and j):
                budget = max(2, -(-left // slots)) if tt else 2
                while pend and budget >= cost(pend[0]):
                    budget -= cost(pend[0]); emit_p(pend.pop(0))
            if j == 2 and xl: a.take(xl)
            elif j == 2 and len(w4l) > W4TAIL and (k - 8) * (44 - W4TAIL) >= (44 - len(w4l)) * (W4END - 8): a.take(w4l)
        if s == 15:
            while pend: emit_p(pend.pop(0))
            pend = epi(tt, tt == 3)
    a.stamp('g3 mfma')
    while pend: emit_p(pend.pop(0))
    if 'front' not in EXP and 'rho' not in EXP: a.stamp('H stored')
    a.take(w4l, 44)
    a('s_add_u32 s59, s79, 0x%x' % F_F); a('s_add_u32 s58, s72, 0x%x' % F_F)
    a('s_mul_i32 s56, s66, %d' % HTH); a('s_xor_b32 s54, s66, 1'); a('s_mul_i32 s57, s54, %d' % HTH)
    a('s_mul_i32 s54, s48, %d' % (22 * 1024)); a('s_add_u32 s54, s54, 0x%x' % HB); a('s_add_u32 s56, s56, s54'); a('s_add_u32 s57, s57, s54')
    srd(a, 40, 26, 2 * MB)
    if OUT64:
        a('v_lshlrev_b32 v7, 10, v5'); a('v_lshrrev_b32 v8, 5, v1'); a('v_lshl_add_u32 v7, v8, 4, v7'); a('v_and_b32 v8, 1, v6'); a('v_lshl_add_u32 v7, v8, 5, v7')
    else:
        a('v_and_b32 v7, 31, v1'); a('v_lshlrev_b32 v7, 10, v7'); a('v_lshrrev_b32 v8, 5, v1'); a('v_lshl_add_u32 v7, v8, 4, v7')
    a('s_lshl_b32 s64, s66, 15'); a('s_lshr_b32 s54, s70, 5'); a('s_add_u32 s64, s64, s54')
    a.wait('H')
    a.stamp('H drained')
    a.signal('s59', eager='4' in EAGER)
    a.poll(4, 's58', 's59')
    a.stamp('X4 seen')
    def b4(k): return (256 + 128 + 4 * k) if k < 32 else (192 + 4 * (k - 32))
    ksplit(22, w4reg, b4, 'f', None, 0, False)
    a.stamp('g4 mfma')
    for r in red_reads(80): a(r)
    for i in range(0, 16, 2): a(pk('v_pk_add_f32', o + i, [o + i, RES + i]))
    red_adds(a, 80)
    for i in range(8): a('v_cvt_pk_bf16_f32 v%d, v%d, v%d' % (96 + i, o + 2 * i, o + 2 * i + 1))
    if OUT64:
        a('s_add_u32 s65, s64, 0x4000')
        for i in range(4): a('v_permlane16_swap_b32 v%d, v%d' % (96 + i, 100 + i))
        a.vm('buffer_store_dwordx4 v[96:99], v7, s[40:43], s64 offen ' + OUTF)
        a.vm('buffer_store_dwordx4 v[100:103], v7, s[40:43], s65 offen ' + OUTF)
    else:
        a.vm('buffer_store_dwordx4 v[96:99], v7, s[40:43], s64 offen ' + OUTF)
        a.vm('buffer_store_dwordx4 v[100:103], v7, s[40:43], s64 offen offset:32 ' + OUTF)
    if stamp or SPIN:
        a.wait0(); a.stamp('end')
    if stamp:
        a('s_lshl_b32 s53, s63, 8'); a('s_add_u32 s53, s53, 0x%x' % STAMPS); a('v_lshlrev_b32 v7, 2, v1')
        a('buffer_store_dword v15, v7, s[32:35], s53 offen')
    if SPIN:
        a('s_sub_u32 s96, s97, s96'); a('s_mul_i32 s96, s96, %s' % SPIN[2])
        a('s_memrealtime s[90:91]'); a('s_waitcnt lgkmcnt(0)'); a('s_mov_b32 s97, s90')
        a('Lspin:'); a('s_memrealtime s[90:91]'); a('s_waitcnt lgkmcnt(0)'); a('s_sub_u32 s90, s90, s97'); a('s_cmp_lt_u32 s90, s96'); a('s_cbranch_scc1 Lspin')
    a('Lend:')
    a('s_endpgm')
    body = a.a.finish()
    print('instrs', len(a.a.L), 'nops', a.a.nops, file=sys.stderr)
    hdr = open('sequential_preLN__ssm_conv_h3__mixer_s_mlp__prompt.s.ref').read().split('; Override')[0]
    out = hdr + '; @launch grid=(256,1,1) block=(256,1,1) lds=%d\n' % LDS_BYTES
    if stamp: out += '; stamps: ' + '|'.join(a.names) + '\n'
    out += '.amdgcn_target "amdgcn-amd-amdhsa--gfx950"\n.text\n.globl %s\n.p2align 8\n.type %s,@function\n%s:\n' % (NAME, NAME, NAME)
    out += body
    out += '.fill 4096, 4, 0xbf800000\n'
    out += '''.section .rodata,"a"
.p2align 6
.amdhsa_kernel %s
  .amdhsa_next_free_vgpr 512
  .amdhsa_next_free_sgpr 102
  .amdhsa_accum_offset 256
  .amdhsa_group_segment_fixed_size 0
  .amdhsa_kernarg_size 112
  .amdhsa_user_sgpr_count 2
  .amdhsa_user_sgpr_kernarg_segment_ptr 1
  .amdhsa_system_sgpr_workgroup_id_x 1
  .amdhsa_float_denorm_mode_32 3
.end_amdhsa_kernel
''' % NAME
    return out

if __name__ == '__main__':
    open(sys.argv[1], 'w').write(build(len(sys.argv) > 2))
```

```python
import sys, struct, os
from asmlib import *

E = lambda n, d: type(d)(os.environ.get(n, d))
NT = E('NT', ''); NTX = E('NTX', ''); PACE = E('PACE', 6); PRE0 = E('PRE0', 0); NST = E('NST', 8); SLEEP = E('SLEEP', 0)
W4TAIL = E('W4TAIL', 0); W4END = E('W4END', 60); OUTF = E('OUTF', '')
TWHEN = E('TWHEN', 2); BG0 = E('BG0', 28); ST_AT = E('ST_AT', 3); PST_AT = E('PST_AT', 110); W2A = E('W2A', 0); ZT = E('ZT', 0); W2PRE = E('W2PRE', 0); RR = E('RR', ''); HFS = E('HFS', 8); HREP = E('HREP', 8)
KWHEN = E('KWHEN', 0); PWHEN = E('PWHEN', 1)
W3A = E('W3A', 18); W3B = E('W3B', 6); W3C = E('W3C', 16)
EXP = E('EXP', '').split(',')
ONLY = [x for x in E('ONLY', '').split(',') if x]
FINE = E('FINE', ''); FREGS = [4, 6, 8, 10, 12, 14, 16, 18, 20, 22, 24, 84, 90, 94, 96, 100]
if FINE == 'f0': FREGS = [90, 94, 96, 100, 16]
SUMM = E('SUMM', 0); WRS = E('WRS', 5); CSE = E('CSE', 2); SH0 = E('SH0', 66); SH3 = E('SH3', 5); EAGER = E('EAGER', '0234'); E4EARLY = E('E4EARLY', 1); XTLATE = E('XTLATE', 0); ENTRY = E('ENTRY', 1); LATE4 = E('LATE4', 8); OUT64 = E('OUT64', 1); PUBK = E('PUBK', 30)
SPIN = os.environ['SPIN'].split(',') if os.environ.get('SPIN') else None

MB = 1 << 20
KVR = 0; XT = 2 * MB; HT = 4 * MB; ZB = 6 * MB; X1B = 8 * MB; HB = 10 * MB
W3P = 16 * MB; W4P = W3P + 1408 * 1024
ST0 = 20 * MB
ST1 = ST0 + 65536
FL = ST1 + 262144
FGL = 0x10000
F_A = FL; F_Z = FL + 0x2000; F_X = FL + 0x4000; F_F = FL + 0x6000
F_H = FL + 0x20000
STAMPS = 64 * MB
DUMP = 0x10000000
HTH = 176 * 512
EPS = 1e-5
def f2u(f): return struct.unpack('<I', struct.pack('<f', f))[0]
C0 = -2.0 * 0.7978845608028654 * 1.4426950408889634
C1 = C0 * 0.044715
NAME = 'sequential_preLN__ssm_conv_h3__mixer_s_mlp__prompt_kernel'

CS = 4160
L_E4 = 0; L_KV = 33280; L_CRED = L_KV + 2 * 4608
L_S = 65536
L_S2 = 131072
L_K = L_S; L_V = L_K + 9216; L_X = L_V + 8192; L_PK = (L_S2 + 4096) if E('PWHEN', 1) == 3 else (L_S + 32768)
G_RED = 65536; G_ST = G_RED + 49152; G_ST2 = G_ST + 2048
LDS_BYTES = 163840

TAG = 's[80:81]'
class G:
    def __init__(self, stamp=False):
        self.a = Asm(); self.stamp_on = stamp; self.q = []; self.nst = 0; self.names = []; self.np = 0; self.fnames = []
    def __call__(self, t): self.a(t)
    def vm(self, text, label=None):
        self.a(text); self.q.append(label)
    def item(self, it):
        for x in it:
            if isinstance(x, tuple): self.vm(x[0], x[1])
            else: self.a(x)
    def take(self, lst, n=1):
        for _ in range(n):
            if lst: self.item(lst.pop(0))
    def wait(self, label, extra=''):
        if label not in self.q:
            if extra: self.a('s_waitcnt ' + extra)
            return
        idx = max(i for i, l in enumerate(self.q) if l == label)
        n = len(self.q) - 1 - idx
        assert n < 64
        self.a('s_waitcnt vmcnt(%d) %s' % (n, extra)); self.q = self.q[idx + 1:]
    def wait0(self, extra=''):
        self.a('s_waitcnt vmcnt(0) %s' % extra); self.q = []
    def count(self, lane):
        if self.stamp_on: self.a('v_writelane_b32 v15, s82, %d' % lane)
    def stamp(self, name):
        if SPIN and name in SPIN:
            self.a('s_memrealtime s[90:91]'); self.a('s_waitcnt lgkmcnt(0)'); self.a('s_mov_b32 s%d, s90' % (96 + SPIN.index(name)))
        if self.stamp_on and (not ONLY or name in ONLY):
            self.a('s_memrealtime s[90:91]'); self.a('s_memtime s[94:95]'); self.a('s_waitcnt lgkmcnt(0)'); self.a('v_writelane_b32 v15, s90, %d' % self.nst)
            self.a('v_writelane_b32 v15, s94, %d' % (32 + self.nst)); assert self.nst < 30
            self.names.append(name); self.nst += 1
    def fs(self, region, name):
        if FINE == region:
            r = FREGS[len(self.fnames)]
            self.a('s_memtime s[%d:%d]' % (r, r + 1)); self.fnames.append(name)
    def guard(self, limit=0x20000):
        self.a('s_add_u32 s82, s82, 1'); self.a('s_cmp_gt_u32 s82, 0x%x' % limit); self.a('s_cbranch_scc1 Lend')
    def publish(self, mine):
        a = self
        a('s_add_u32 s83, %s, 0x%x' % (mine, FGL)); a('s_mov_b64 exec, 1')
        a('buffer_store_dwordx2 v[2:3], off, s[32:35], s83 sc1'); a('s_mov_b64 exec, -1')
    def wsig(self, mine, label=None):
        a = self
        a('s_mov_b64 exec, 1'); a.vm('buffer_store_dwordx2 v[2:3], off, s[32:35], %s' % mine, label); a('s_mov_b64 exec, -1')
    def wpub(self, mine):
        a = self
        a('s_add_u32 s83, %s, 0x%x' % (mine, FGL)); a('s_mov_b64 exec, 1')
        a.vm('buffer_store_dwordx2 v[2:3], off, s[32:35], s83 sc1'); a('s_mov_b64 exec, -1')
    def late(self, mine):
        a = self; n = self.np; self.np += 1
        a('s_cmp_lg_u32 s48, 3'); a('s_cbranch_scc1 Llate%d' % n)
        a.publish(mine)
        a('Llate%d:' % n)
    def poll(self, vaddr, soff, dual, sleep=0, tmp=16, between=None):
        a = self; n = self.np; self.np += 1
        a('s_mov_b32 s82, 0')
        a('buffer_load_dwordx2 %s, v%d, s[32:35], %s offen sc1' % (vr(tmp, 2), vaddr, soff))
        if between: between()
        a('Lpoll%d:' % n)
        a.wait0()
        a('v_cmp_ne_u64 vcc, %s, %s' % (TAG, vr(tmp, 2)))
        a('s_cbranch_vccz Lpolld%d' % n)
        if sleep: a('s_sleep %d' % sleep)
        so = soff
        if dual:
            a('s_cmp_lg_u32 s82, 32'); a('s_cbranch_scc1 Lpollp%d' % n)
            a.publish(dual)
            a('Lpollp%d:' % n)
            a('s_cmp_lt_u32 s82, 32'); a('s_cselect_b32 s83, 0, 0x%x' % FGL); a('s_add_u32 s83, s83, %s' % soff); so = 's83'
        a('buffer_load_dwordx2 %s, v%d, s[32:35], %s offen sc1' % (vr(tmp, 2), vaddr, so))
        a.guard()
        a('s_branch Lpoll%d' % n)
        a('Lpolld%d:' % n)
    def signal(self, soff, rep=None, eager=False):
        a = self; n = self.np; self.np += 1
        a('s_barrier')
        a('s_cmp_lg_u32 s48, 0'); a('s_cbranch_scc1 Lsig%d' % n)
        if rep is None:
            a('s_mov_b64 exec, 1')
            a('buffer_store_dwordx2 v[2:3], off, s[32:35], %s' % soff)
            if eager:
                a('s_add_u32 s83, %s, 0x%x' % (soff, FGL))
                a('buffer_store_dwordx2 v[2:3], off, s[32:35], s83 sc1')
        else:
            a('s_mov_b64 exec, %d' % ((1 << HREP) - 1))
            a('buffer_store_dwordx2 v[2:3], v%d, s[32:35], %s offen sc1' % (rep, soff))
        a('s_mov_b64 exec, -1')
        a('Lsig%d:' % n)

def srd(a, d, p, size, off=None):
    if off is None:
        a('s_mov_b32 s%d, s%d' % (d, p)); a('s_mov_b32 s%d, s%d' % (d + 1, p + 1))
    else:
        a('s_add_u32 s%d, s%d, %s' % (d, p, off)); a('s_addc_u32 s%d, s%d, 0' % (d + 1, p + 1))
    a('s_mov_b32 s%d, 0x%x' % (d + 2, size)); a('s_mov_b32 s%d, 0x20000' % (d + 3))

def allreduce(a, regs, tmps):
    for m in ('quad_perm:[1,0,3,2]', 'quad_perm:[2,3,0,1]', 'row_half_mirror', 'row_mirror'):
        for r in regs: a('v_add_f32_dpp v%d, v%d, v%d %s row_mask:0xf bank_mask:0xf' % (r, r, r, m))
    for sw in ('v_permlane16_swap_b32', 'v_permlane32_swap_b32'):
        for r, t in zip(regs, tmps): a('v_mov_b32 v%d, v%d' % (t, r))
        for r, t in zip(regs, tmps): a('%s v%d, v%d' % (sw, r, t))
        for r, t in zip(regs, tmps): a('v_add_f32 v%d, v%d, v%d' % (r, r, t))

ACC = 16
def acc(th, ch): return ACC + 32 * th + 16 * ch
def red_write(slot):
    th, ch = slot >> 1, slot & 1
    return ['ds_write_b128 v%d, %s offset:%d' % (10 + slot, vr(acc(th, ch) + 4 * q, 4), 1024 * q) for q in range(4)]
def red_reads(tmp): return ['ds_read_b128 %s, v13 offset:%d' % (vr(tmp + 4 * i, 4), 1024 * i) for i in range(12)]
def red_adds(a, tmp, dst=None):
    o = acc(1, 1)
    for i in range(12):
        if i % 2 == 0: a('s_waitcnt lgkmcnt(%d)' % (10 - i))
        d = dst if (dst is not None and i >= 8) else o
        for r in (0, 2): a('v_pk_add_f32 %s, %s, %s' % (vr(d + 4 * (i & 3) + r, 2), vr(o + 4 * (i & 3) + r, 2), vr(tmp + 4 * i + r, 2)))

def lo(d, s): return 'v_lshlrev_b32 v%d, 16, v%d' % (d, s)
def hi(d, s): return 'v_and_b32 v%d, s61, v%d' % (d, s)
def bc(r): return vr(r & ~1, 2), r & 1
def pk(op, d, srcs, neg=None):
    names = []; l = []; h = []
    for s in srcs:
        if isinstance(s, tuple): names.append(s[0]); l.append(s[1]); h.append(s[1])
        else: names.append(vr(s, 2)); l.append(0); h.append(1)
    t = '%s %s, %s' % (op, vr(d, 2), ', '.join(names))
    if l != [0] * len(l) or h != [1] * len(h):
        t += ' op_sel:[%s] op_sel_hi:[%s]' % (','.join(map(str, l)), ','.join(map(str, h)))
    if neg: t += ' neg_lo:[%s] neg_hi:[%s]' % (','.join(map(str, neg)), ','.join(map(str, neg)))
    return t
def gelu_plain(t, ca, cb, ri, tmp, n):
    l = []
    for i in range(n): l.append('v_mul_f32 v%d, v%d, v%d' % (tmp + i, t + i, t + i))
    for i in range(n): l.append('v_fma_f32 v%d, v%d, v%d, v%d' % (tmp + i, tmp + i, cb, ca))
    for i in range(n): l.append('v_mul_f32 v%d, v%d, v%d' % (tmp + i, tmp + i, t + i))
    for i in range(n): l.append('v_exp_f32 v%d, v%d' % (tmp + i, tmp + i))
    for i in range(n): l.append('v_fma_f32 v%d, v%d, v%d, v%d' % (tmp + i, tmp + i, ri, ri))
    for i in range(n): l.append('v_rcp_f32 v%d, v%d' % (tmp + i, tmp + i))
    for i in range(n): l.append('v_mul_f32 v%d, v%d, v%d' % (t + i, t + i, tmp + i))
    return l
def gelu_pk(t, ca, cb, ri, tmp, n):
    l = []
    for i in range(0, n, 2): l.append(pk('v_pk_mul_f32', tmp + i, [t + i, t + i]))
    for i in range(0, n, 2): l.append(pk('v_pk_fma_f32', tmp + i, [tmp + i, bc(cb), bc(ca)]))
    for i in range(0, n, 2): l.append(pk('v_pk_mul_f32', tmp + i, [tmp + i, t + i]))
    for i in range(n): l.append('v_exp_f32 v%d, v%d' % (tmp + i, tmp + i))
    for i in range(0, n, 2): l.append(pk('v_pk_fma_f32', tmp + i, [tmp + i, bc(ri), bc(ri)]))
    for i in range(n): l.append('v_rcp_f32 v%d, v%d' % (tmp + i, tmp + i))
    for i in range(0, n, 2): l.append(pk('v_pk_mul_f32', t + i, [t + i, tmp + i]))
    return l
M32 = 'v_mfma_f32_32x32x16_bf16 %s, %s, %s, %s'
M16 = 'v_mfma_f32_16x16x32_bf16 %s, %s, %s, %s'
TR = 'ds_read_b64_tr_b16 %s, v%d offset:%d'

DOC = '''; One persistent launch, 256 workgroups (one per CU) x 4 waves. Phases, separated by flag hand-offs through d_ws:
'''

def build(stamp=False):
    a = G(stamp)
    a('s_cmp_ge_u32 s2, 256'); a('s_cbranch_scc1 Lend')
    if SPIN and SPIN[0] == 'entry': a.stamp('entry')
    a.fs('f0', 'entry')
    if ENTRY:
        a('s_load_dwordx2 s[36:37], s[0:1], 8'); a('s_load_dwordx2 s[40:41], s[0:1], 16'); a('s_load_dwordx2 s[44:45], s[0:1], 0')
        a('s_getpc_b64 s[84:85]')
        a('s_lshr_b32 s49, s2, 3'); a('s_lshl_b32 s53, s49, 10'); a('v_lshlrev_b32 v7, 2, v0'); a('v_and_b32 v7, 0x380, v7'); a('v_add_u32 v7, s53, v7')
        a.vm('global_load_dword v148, v7, s[84:85]')
        a('v_lshrrev_b32 v1, 6, v0'); a('v_readfirstlane_b32 s48, v1'); a('v_and_b32 v1, 63, v0')
        a('s_mov_b32 s38, 0x200000'); a('s_mov_b32 s39, 0x20000'); a('s_mov_b32 s42, 0x200000'); a('s_mov_b32 s43, 0x20000'); a('s_mov_b32 s46, 0x200000'); a('s_mov_b32 s47, 0x20000')
        a('v_lshrrev_b32 v7, 3, v1'); a('v_lshlrev_b32 v7, 10, v7'); a('v_and_b32 v8, 7, v1'); a('v_lshl_add_u32 v7, v8, 4, v7')
        a('v_bfe_u32 v8, v1, 4, 1'); a('v_lshlrev_b32 v9, 5, v8'); a('v_xor_b32 v16, v9, v7'); a('v_xor_b32 v17, 64, v16')
        a('v_add_u32 v18, 0x1c00, v17'); a('v_add_u32 v19, 0x1c00, v16')
        a('s_and_b32 s50, s2, 7'); a('s_lshl_b32 s53, s49, 16'); a('s_lshl_b32 s54, s48, 14'); a('s_add_u32 s53, s53, s54'); a('s_lshl_b32 s54, s50, 7'); a('s_add_u32 s55, s53, s54')
        a('s_lshl_b32 s56, s48, 11'); a('s_add_u32 s53, s56, %d' % (L_K + 1024)); a('s_mov_b32 m0, s53')
        if stamp: a('v_mov_b32 v15, 0')
        a('s_waitcnt lgkmcnt(0)')
        a.stamp('start'); a.fs('f0', 'karg')
        a.vm('buffer_load_dwordx4 v17, s[36:39], s55 offen %s lds' % NT)
        a.vm('buffer_load_dwordx4 v19, s[36:39], s55 offen offset:1024 %s lds' % NT)
        a('s_add_u32 s53, s56, %d' % L_V); a('s_mov_b32 m0, s53')
        a('s_load_dwordx16 s[4:19], s[0:1], 0')
        a.vm('buffer_load_dwordx4 v16, s[40:43], s55 offen %s lds' % NT)
        a.vm('buffer_load_dwordx4 v18, s[40:43], s55 offen offset:1024 %s lds' % NT)
        a('s_add_u32 s53, s56, %d' % L_X); a('s_mov_b32 m0, s53')
        a('s_load_dwordx8 s[20:27], s[0:1], 64')
        a.vm('buffer_load_dwordx4 v16, s[44:47], s55 offen %s lds' % NTX)
        a.vm('buffer_load_dwordx4 v18, s[44:47], s55 offen offset:1024 %s lds' % NTX)
        a('s_load_dwordx4 s[28:31], s[0:1], 96')
        a('s_memrealtime s[80:81]'); a.fs('f0', 'kvx issued')
        a('s_cmp_lg_u32 s48, 0'); a('s_cbranch_scc1 Lnoh')
        a('s_sub_u32 s53, s55, 0x2000'); a('s_cselect_b32 s53, 0x400000, s53'); a('s_mov_b32 m0, %d' % L_K)
        a('buffer_load_dwordx4 v16, s[36:39], s53 offen %s lds' % NT)
        a('Lnoh:')
        a('s_and_b32 s51, s48, 1'); a('s_lshr_b32 s52, s48, 1')
        a('v_and_b32 v5, 15, v1'); a('v_lshrrev_b32 v6, 4, v1'); a('v_lshlrev_b32 v14, 4, v1')
        a('v_lshlrev_b32 v9, 6, v8'); a('v_xor_b32 v184, v9, v7')
        a('s_mov_b32 s60, 0x%x' % f2u(1.0 / 512)); a('s_mov_b32 s61, 0xffff0000')
        a('s_lshl_b32 s63, s2, 2'); a('s_add_u32 s63, s63, s48')
        a('s_waitcnt lgkmcnt(0)')
        a('s_cmp_lg_u32 s63, 0'); a('s_cbranch_scc1 Lnotag')
        a('v_mov_b32 v2, s80'); a('v_mov_b32 v3, s81'); a('v_mov_b32 v4, 0'); a('s_mov_b64 exec, 1')
        a('global_store_dwordx2 v4, v[2:3], s[28:29] sc1'); a('s_mov_b64 exec, -1')
        a('Lnotag:')
    else:
        a('s_load_dwordx16 s[4:19], s[0:1], 0')
        a('s_getpc_b64 s[84:85]')
        a('s_lshr_b32 s49, s2, 3'); a('s_lshl_b32 s53, s49, 10'); a('v_lshlrev_b32 v7, 2, v0'); a('v_and_b32 v7, 0x380, v7'); a('v_add_u32 v7, s53, v7')
        a.vm('global_load_dword v148, v7, s[84:85]')
        a('s_load_dwordx8 s[20:27], s[0:1], 64')
        a('s_load_dwordx4 s[28:31], s[0:1], 96')
        a('s_memrealtime s[80:81]')
        a('v_lshrrev_b32 v1, 6, v0'); a('v_readfirstlane_b32 s48, v1'); a('v_and_b32 v1, 63, v0')
        if stamp: a('v_mov_b32 v15, 0')
        a('s_and_b32 s50, s2, 7')
        a('s_and_b32 s51, s48, 1'); a('s_lshr_b32 s52, s48, 1')
        a('v_and_b32 v5, 15, v1'); a('v_lshrrev_b32 v6, 4, v1'); a('v_lshlrev_b32 v14, 4, v1')
        a('v_lshrrev_b32 v7, 3, v1'); a('v_lshlrev_b32 v7, 10, v7'); a('v_and_b32 v8, 7, v1'); a('v_lshl_add_u32 v7, v8, 4, v7')
        a('v_and_b32 v8, 1, v6'); a('v_lshlrev_b32 v9, 6, v8'); a('v_xor_b32 v184, v9, v7')
        a('v_lshlrev_b32 v9, 5, v8'); a('v_xor_b32 v16, v9, v7'); a('v_xor_b32 v17, 64, v16'); a('v_add_u32 v18, 0x1c00, v17')
        a('s_lshl_b32 s53, s49, 16'); a('s_lshl_b32 s54, s48, 14'); a('s_add_u32 s53, s53, s54'); a('s_lshl_b32 s54, s50, 7'); a('s_add_u32 s55, s53, s54')
        a('s_lshl_b32 s56, s48, 11')
        a('v_add_u32 v19, 0x1c00, v16')
        a('s_movk_i32 s62, 0x1000'); a('s_mov_b32 s60, 0x%x' % f2u(1.0 / 512)); a('s_mov_b32 s61, 0xffff0000')
        a('s_lshl_b32 s63, s2, 2'); a('s_add_u32 s63, s63, s48')
        a('s_waitcnt lgkmcnt(0)')
        a.stamp('start')
        srd(a, 36, 6, 2 * MB)
        a('s_add_u32 s53, s56, %d' % (L_K + 1024)); a('s_mov_b32 m0, s53')
        a.vm('buffer_load_dwordx4 v17, s[36:39], s55 offen %s lds' % NT)
        a.vm('buffer_load_dwordx4 v19, s[36:39], s55 offen offset:1024 %s lds' % NT)
        srd(a, 40, 8, 2 * MB)
        a('s_add_u32 s53, s56, %d' % L_V); a('s_mov_b32 m0, s53')
        a.vm('buffer_load_dwordx4 v16, s[40:43], s55 offen %s lds' % NT)
        a.vm('buffer_load_dwordx4 v18, s[40:43], s55 offen offset:1024 %s lds' % NT)
        a('s_cmp_lg_u32 s48, 0'); a('s_cbranch_scc1 Lnoh')
        a('s_sub_u32 s53, s55, 0x2000'); a('s_cselect_b32 s53, 0x400000, s53'); a('s_mov_b32 m0, %d' % L_K)
        a('buffer_load_dwordx4 v16, s[36:39], s53 offen %s lds' % NT)
        a('s_cmp_lg_u32 s2, 0'); a('s_cbranch_scc1 Lnoh')
        a('v_mov_b32 v2, s80'); a('v_mov_b32 v3, s81'); a('v_mov_b32 v4, 0'); a('s_mov_b64 exec, 1')
        a('global_store_dwordx2 v4, v[2:3], s[28:29] sc1'); a('s_mov_b64 exec, -1')
        a('Lnoh:')
        srd(a, 44, 4, 2 * MB)
        a('s_add_u32 s53, s56, %d' % L_X); a('s_mov_b32 m0, s53')
        a.vm('buffer_load_dwordx4 v16, s[44:47], s55 offen %s lds' % NTX)
        a.vm('buffer_load_dwordx4 v18, s[44:47], s55 offen offset:1024 %s lds' % NTX)
    a('s_lshl_b32 s53, s50, 2'); a('s_add_u32 s53, s53, s48'); a('s_lshl_b32 s53, s53, 4'); a('v_add_u32 v20, s53, v5')
    a('v_lshlrev_b32 v7, 3, v20')
    a.vm('global_load_dwordx2 v[44:45], v7, s[10:11]', 'kvx')
    a('s_lshr_b32 s53, s2, 5'); a('s_lshl_b32 s53, s53, 18'); a('s_and_b32 s54, s63, 15'); a('s_lshl_b32 s54, s54, 14'); a('s_add_u32 s53, s53, s54')
    a('s_bfe_u32 s54, s2, 0x20002'); a('s_lshl_b32 s54, s54, 12'); a('s_add_u32 s53, s53, s54')
    a('s_bfe_u32 s54, s2, 0x10004'); a('s_lshl_b32 s54, s54, 11'); a('s_add_u32 s53, s53, s54'); a('v_add_u32 v7, s53, v14')
    a.vm('global_load_dwordx4 v[128:131], v7, s[4:5] ' + NTX); a.vm('global_load_dwordx4 v[132:135], v7, s[4:5] offset:1024 ' + NTX, 'xr')
    def kloads():
        a('s_lshl_b32 s64, s50, 6'); a('s_lshl_b32 s53, s49, 1'); a('s_add_u32 s64, s64, s53')
        a('s_lshl_b32 s53, s64, 1'); a('s_load_dword s65, s[14:15], s53')
        a('s_add_u32 s64, s64, s52'); a('s_lshl_b32 s66, s64, 12')
        srd(a, 36, 12, 4096, 's66')
        a('s_lshl_b32 s67, s51, 11'); a('v_add_u32 v10, s67, v14'); a('v_add_u32 v150, -8, v10'); a('v_add_u32 v151, 1016, v10')
        a.vm('buffer_load_dwordx2 v[136:137], v150, s[36:39], 0 offen ' + NT)
        a.vm('buffer_load_dwordx4 v[138:141], v10, s[36:39], 0 offen ' + NT)
        a.vm('buffer_load_dwordx2 v[142:143], v151, s[36:39], 0 offen ' + NT)
        a.vm('buffer_load_dwordx4 v[144:147], v10, s[36:39], 0 offen offset:1024 ' + NT, 'K')
    if KWHEN == 0: kloads()
    srd(a, 32, 30, 0x10000000)
    a('s_lshl_b32 s68, s50, 2'); a('s_and_b32 s53, s49, 3'); a('s_add_u32 s68, s68, s53')
    a('s_lshl_b32 s53, s50, 9'); a('s_add_u32 s72, s53, 0x%x' % F_A); a('s_lshl_b32 s54, s68, 8'); a('s_sub_u32 s54, s54, s53')
    a('v_bfe_u32 v7, v1, 1, 3'); a('v_min_u32 v7, 3, v7'); a('v_cmp_ne_u32 vcc, 0, v7'); a('v_lshlrev_b32 v7, 13, v7'); a('v_and_b32 v8, 1, v1'); a('v_lshl_add_u32 v7, v8, 7, v7')
    a('v_mov_b32 v8, s54'); a('v_cndmask_b32 v8, 0, v8, vcc'); a('v_add_u32 v7, v7, v8')
    a.vm('buffer_load_dword v149, v7, s[32:35], s72 offen sc1')
    a('s_lshl_b32 s76, s48, 12'); a('s_add_u32 s76, s76, %d' % L_PK); a('s_sub_u32 s74, 1023, s63')
    for i in range(1, 4): a('v_add_u32 v%d, %d, v184' % (248 + i, 7168 * i))
    def ploads():
        srd(a, 36, 24, 1376 * 1024)
        a('s_and_b32 s53, s63, 7'); a('s_lshl_b32 s53, s53, 7'); a('s_lshr_b32 s54, s63, 3'); a('s_lshl_b32 s54, s54, 14'); a('s_add_u32 s73, s53, s54')
        a('s_mov_b32 m0, s76')
        a.vm('buffer_load_dwordx4 v184, s[36:39], s73 offen %s lds' % NT)
        a.vm('buffer_load_dwordx4 v249, s[36:39], s73 offen offset:1024 %s lds' % NT)
        srd(a, 36, 22, 512 * 2752)
        a('s_and_b32 s53, s74, 15'); a('s_mul_i32 s53, s53, %d' % (32 * 2752)); a('s_lshr_b32 s54, s74, 4'); a('s_lshl_b32 s54, s54, 6')
        a('s_add_u32 s75, s53, s54'); a('s_cmp_lt_u32 s74, 688'); a('s_cselect_b32 s75, s75, 0x400000')
        a('v_lshrrev_b32 v150, 2, v1'); a('v_mul_u32_u24 v150, 2752, v150'); a('v_and_b32 v151, 3, v1'); a('v_lshl_add_u32 v150, v151, 4, v150')
        a('s_add_u32 s53, s76, 2048'); a('s_mov_b32 m0, s53'); a('s_add_u32 s54, s75, %d' % (16 * 2752 - 1024))
        a.vm('buffer_load_dwordx4 v150, s[36:39], s75 offen %s lds' % NT)
        a.vm('buffer_load_dwordx4 v150, s[36:39], s54 offen offset:1024 %s lds' % NT, 'pk')
    if PWHEN == 0: ploads()
    if 'front' in EXP: a.stamp('issued')
    a('s_and_b32 s53, s63, 7'); a('s_mul_i32 s53, s53, %d' % (86 * 2048)); a('s_lshr_b32 s54, s63, 3'); a('s_lshl_b32 s54, s54, 11'); a('s_add_u32 s53, s53, s54')
    a('s_add_u32 s53, s53, 0x%x' % W4P); a('s_cmp_lt_u32 s63, 688'); a('s_cselect_b32 s88, s53, 0x%x' % DUMP)
    a('s_lshr_b32 s54, s74, 4'); a('s_lshl_b32 s54, s54, 15'); a('s_and_b32 s55, s74, 15'); a('s_lshl_b32 s55, s55, 10'); a('s_add_u32 s54, s54, s55')
    a('s_add_u32 s54, s54, 0x%x' % W3P); a('s_cmp_lt_u32 s74, 688'); a('s_cselect_b32 s89, s54, 0x%x' % DUMP); a('s_add_u32 s59, s89, 0x4000')
    a('s_and_b32 s53, s49, 3')
    a('s_lshr_b32 s69, s2, 5')
    a('s_lshl_b32 s92, s53, 12')
    a('s_lshl_b32 s77, s48, 14'); a('s_add_u32 s77, s77, %d' % L_S)
    a('s_lshl_b32 s78, s48, 17'); a('s_lshl_b32 s53, s69, 7'); a('s_add_u32 s78, s78, s53')
    srd(a, 40, 20, 512 * 1024); srd(a, 44, 18, 512 * 1024)
    for i in range(4): a('v_mov_b32 v%d, 0' % (152 + i))
    a('s_mul_i32 s70, s52, 4608'); a('s_add_u32 s70, s70, %d' % L_KV)
    a('s_mul_i32 s71, s52, %d' % (4 * CS))
    a('v_and_b32 v7, 31, v1'); a('v_lshl_add_u32 v7, v7, 4, s70')
    a('ds_write_b128 v7, v[152:155] offset:4096')
    a('v_and_b32 v7, 1, v1'); a('v_lshlrev_b32 v7, 4, v7'); a('v_bfe_u32 v8, v1, 1, 2'); a('v_mul_u32_u24 v8, %d, v8' % CS)
    a('v_add3_u32 v7, v7, v8, s71')
    a('ds_write_b128 v7, v[152:155] offset:%d' % L_E4)
    for i in range(4): a('v_mov_b32 v%d, -1' % (252 + i))
    a('s_bfe_u32 s53, s69, 0x10001')
    a('v_bfe_u32 v7, v1, 3, 1'); a('s_mul_i32 s54, s53, 31'); a('v_xor_b32 v7, s54, v7'); a('v_lshlrev_b32 v7, 4, v7')
    a('v_and_b32 v8, 7, v1'); a('v_lshl_add_u32 v191, v8, 9, v7')
    a('s_lshl_b32 s54, s68, 1'); a('s_add_u32 s53, s53, s54'); a('s_lshl_b32 s53, s53, 15'); a('s_lshl_b32 s54, s69, 12'); a('s_add_u32 s53, s53, s54')
    a('s_add_u32 s79, s53, 0x%x' % ZB)
    a('s_movk_i32 s83, 0x800')
    a('v_and_b32 v7, 31, v1'); a('s_lshl_b32 s53, s51, 5'); a('v_add_u32 v7, s53, v7')
    a('s_lshr_b32 s53, s69, 1'); a('s_lshl_b32 s53, s53, 3'); a('s_lshr_b32 s53, 0xfe02ff01, s53'); a('s_sext_i32_i8 s53, s53')
    a('s_lshl_b32 s54, s68, 6'); a('s_add_u32 s53, s53, s54'); a('v_add_u32 v7, s53, v7')
    a('v_cmp_gt_u32 s[98:99], s62, v7'.replace('s62', 's83')); a('v_and_b32 v7, 0x7ff, v7')
    a('v_lshrrev_b32 v248, 5, v7'); a('v_lshlrev_b32 v248, 15, v248'); a('v_and_b32 v7, 31, v7'); a('v_lshl_add_u32 v248, v7, 4, v248')
    a('v_lshrrev_b32 v7, 5, v1'); a('v_lshl_add_u32 v248, v7, 9, v248')
    a('s_lshl_b32 s53, s69, 12'); a('s_lshl_b32 s54, s52, 11'); a('s_add_u32 s86, s53, s54'); a('s_add_u32 s86, s86, 0x%x' % ZB)
    a('v_and_b32 v11, 3, v5'); a('v_mul_u32_u24 v11, %d, v11' % CS); a('v_and_b32 v12, 12, v5'); a('v_lshl_add_u32 v11, v12, 1, v11')
    a('v_lshl_add_u32 v11, v6, 4, v11'); a('s_lshl_b32 s56, s51, 8'); a('s_add_u32 s57, s56, s71'); a('s_add_u32 s57, s57, %d' % (L_E4 + 8))
    a('v_add_u32 v11, s57, v11')
    a('v_lshlrev_b32 v12, 4, v6'); a('v_lshlrev_b32 v13, 5, v5'); a('v_sub_u32 v12, v12, v13')
    a('s_add_u32 s57, s56, s70'); a('s_add_u32 s57, s57, 480'); a('v_add_u32 v12, s57, v12')
    a('v_lshlrev_b32 v7, 4, v5'); a('v_lshl_add_u32 v7, v6, 2, v7'); a('s_lshl_b32 s56, s51, 10'); a('v_add_u32 v7, s56, v7')
    a('v_lshlrev_b32 v8, 1, v7'); a('s_lshl_b32 s56, s51, 13'); a('v_add_u32 v9, s56, v14')
    a('s_add_u32 s57, s70, %d' % (2 * (2044 - 768))); a('v_sub_u32 v13, s57, v8')
    a('v_and_b32 v185, 1, v6'); a('v_lshlrev_b32 v185, 18, v185'); a('v_lshrrev_b32 v7, 2, v5'); a('v_lshl_add_u32 v185, v7, 16, v185')
    a('v_and_b32 v7, 3, v5'); a('v_lshl_add_u32 v185, v7, 5, v185'); a('v_lshrrev_b32 v7, 1, v6'); a('v_lshl_add_u32 v185, v7, 4, v185')
    a('v_lshrrev_b32 v21, 5, v1'); a('v_bfe_u32 v22, v1, 2, 2')
    a('v_lshl_add_u32 v7, v21, 3, v22'); a('v_lshlrev_b32 v7, 7, v7'); a('v_lshrrev_b32 v23, 1, v22'); a('v_lshl_add_u32 v7, v23, 6, v7')
    a('v_and_b32 v21, 1, v6'); a('v_lshl_add_u32 v7, v21, 5, v7')
    a('v_and_b32 v24, 3, v1'); a('v_lshl_add_u32 v187, v24, 3, v7')
    a('v_and_b32 v25, 1, v1'); a('v_lshl_add_u32 v7, v25, 4, v7'); a('v_bfe_u32 v25, v1, 1, 1'); a('v_lshl_add_u32 v188, v25, 3, v7')
    PA, PB = (189, 190) if PWHEN != 3 else (10, 4)
    if PWHEN != 3: a('v_add_u32 v%d, s76, v188' % PA); a('v_xor_b32 v%d, 64, v%d' % (PB, PA))
    a('v_lshl_add_u32 v7, v6, 3, v22'); a('v_lshlrev_b32 v186, 6, v7'); a('v_lshl_add_u32 v186, v24, 3, v186'); a('v_add_u32 v186, s76, v186')
    a('v_lshlrev_b32 v7, 7, v7'); a('v_lshl_add_u32 v23, v21, 1, v23'); a('v_xor_b32 v23, s48, v23'); a('v_lshl_add_u32 v7, v23, 5, v7')
    a('v_lshl_add_u32 v7, v24, 3, v7'); a('v_add_u32 v26, %d, v7' % L_K); a('v_xor_b32 v27, 64, v26')
    a('v_lshlrev_b32 v20, 12, v20'); a('s_lshl_b32 s53, s49, 7'); a('v_lshl_add_u32 v7, v6, 4, s53')
    a('v_add_u32 v28, v20, v7'); a('v_add_u32 v28, 0x%x, v28' % XT)
    a('v_sub_u32 v29, v20, v7'); a('v_add_u32 v29, %d, v29' % (4080 - 64 + KVR))
    a('v_and_b32 v4, 31, v1'); a('v_lshlrev_b32 v4, 3, v4'); a('v_mov_b32 v0, 0')
    if 'front' in EXP: a.stamp('addr done')
    a.fs('f0', 'addr done')
    a.wait('kvx')
    if 'front' in EXP: a.stamp('own landed')
    a.fs('f0', 'landed')
    a('s_barrier')
    a.vm('global_load_dwordx2 v[2:3], v0, s[28:29] sc1', 'tag')
    a.stamp('k landed')
    if KWHEN == 2: kloads()
    if PWHEN == 2: ploads()
    for o in range(2):
        a(TR % (vr(30 + 6 * o, 2), 26, 512 + 4096 * o))
        a(TR % (vr(32 + 6 * o, 2), 27, 1024 + 4096 * o)); a(TR % (vr(34 + 6 * o, 2), 27, 1536 + 4096 * o))
    for o in range(2):
        for z in range(2): a(TR % (vr(112 + 4 * o + 2 * z, 2), 26, L_V - L_K + 512 * z + 4096 * o))
    for o in range(2):
        for z in range(2): a(TR % (vr(120 + 4 * o + 2 * z, 2), 26, L_X - L_K + 512 * z + 4096 * o))
    a(lo(70, 44)); a(hi(71, 44)); a(lo(72, 45)); a(hi(73, 45))
    a('s_waitcnt lgkmcnt(8)')
    for t in range(1, 12):
        for o in range(2): a((hi if t & 1 else lo)(46 + 2 * t + o, 30 + 6 * o + (t >> 1)))
    a('s_waitcnt lgkmcnt(0)')
    a.vm('buffer_store_dwordx4 v[120:123], v28, s[32:35], 0 offen sc1')
    a.vm('buffer_store_dwordx4 v[124:127], v28, s[32:35], 0 offen offset:64 sc1')
    for i in range(8): a(pk('v_pk_mul_f32', 94 + 2 * i, [48 + 2 * i, bc(73)]))
    for t in (1, 2, 3):
        for i in range(8): a(pk('v_pk_fma_f32', 94 + 2 * i, [48 + 2 * (i + t), bc(73 - t), 94 + 2 * i]))
    for i in range(8):
        for o in range(2): a((hi if i & 1 else lo)(78 + 2 * i + o, 112 + 4 * o + (i >> 1)))
    for i in range(8): a(pk('v_pk_mul_f32', 94 + 2 * i, [94 + 2 * i, 78 + 2 * i]))
    for o in range(2):
        for i in range(4): a('v_cvt_pk_bf16_f32 v%d, v%d, v%d' % (112 + 4 * o + i, 94 + 2 * (7 - 2 * i) + o, 94 + 2 * (6 - 2 * i) + o))
    a.vm('buffer_store_dwordx4 v[112:115], v29, s[32:35], 0 offen offset:64 sc1')
    a.vm('buffer_store_dwordx4 v[116:119], v29, s[32:35], 0 offen sc1', 'st')
    a.stamp('kv stored')
    if KWHEN == 1: kloads()
    if PWHEN == 1: ploads()
    a.wait('xr')
    for r in range(2):
        for i in range(4): a(lo(48 + 8 * r + 2 * i, 128 + 4 * r + i)); a(hi(49 + 8 * r + 2 * i, 128 + 4 * r + i))
    for r in range(2):
        b = 48 + 8 * r
        a(pk('v_pk_add_f32', 70 + 2 * r, [b, b + 2])); a(pk('v_pk_add_f32', 74 + 2 * r, [b + 4, b + 6]))
    for r in range(2): a(pk('v_pk_add_f32', 70 + 2 * r, [70 + 2 * r, 74 + 2 * r]))
    for r in range(2): a('v_add_f32 v%d, v%d, v%d' % (64 + r, 70 + 2 * r, 71 + 2 * r))
    allreduce(a, [64, 65], [66, 67])
    for r in range(2): a('v_mul_f32 v%d, s60, v%d' % (64 + r, 64 + r))
    for r in range(2):
        for i in range(0, 8, 2): a(pk('v_pk_add_f32', 48 + 8 * r + i, [48 + 8 * r + i, bc(64 + r)], neg=[0, 1]))
    for r in range(2):
        b = 48 + 8 * r
        a(pk('v_pk_mul_f32', 70 + 2 * r, [b, b]))
        for i in (2, 4, 6): a(pk('v_pk_fma_f32', 70 + 2 * r, [b + i, b + i, 70 + 2 * r]))
    for r in range(2): a('v_add_f32 v%d, v%d, v%d' % (68 + r, 70 + 2 * r, 71 + 2 * r))
    allreduce(a, [68, 69], [66, 67])
    for r in range(2): a('v_mul_f32 v%d, s60, v%d' % (68 + r, 68 + r))
    a('v_cvt_pk_bf16_f32 v68, v68, v69'); a(hi(69, 68)); a(lo(68, 68))
    for r in range(2): a('v_add_f32 v%d, 0x%x, v%d' % (68 + r, f2u(EPS), 68 + r))
    a('v_cvt_pk_bf16_f32 v68, v68, v69'); a(hi(69, 68)); a(lo(68, 68))
    for r in range(2): a('v_sqrt_f32 v%d, v%d' % (68 + r, 68 + r))
    a('s_lshl_b32 s53, s48, 3'); a('s_add_u32 s53, s53, %d' % L_CRED); a('v_mov_b32 v7, s53')
    a('v_cvt_pk_bf16_f32 v72, v68, v64'); a('v_cvt_pk_bf16_f32 v73, v69, v65')
    a('ds_write_b64 v7, v[72:73]')
    a('s_lshl_b32 s53, s49, 3'); a('s_add_u32 s87, s53, s72')
    a('s_mov_b32 s82, 0')
    a.wait('tag' if 'nd0' in EXP else 'st', 'lgkmcnt(0)')
    a('Ltag:')
    a('v_readfirstlane_b32 s80, v2'); a('v_readfirstlane_b32 s81, v3')
    a('s_or_b32 s53, s80, s81'); a('s_cbranch_scc1 Ltagok')
    a('global_load_dwordx2 v[2:3], v0, s[28:29] sc1')
    a.guard()
    a('s_waitcnt vmcnt(0)')
    a('s_branch Ltag')
    a('Ltagok:')
    a.stamp('drained')
    a.signal('s87', eager='0' in EAGER)
    a('s_cmp_lg_u32 s48, 1'); a('s_cbranch_scc1 Lnost')
    a('v_lshlrev_b32 v7, 3, v1'); a('ds_read_b64 v[72:73], v7 offset:%d' % L_CRED)
    a('s_lshl_b32 s53, s2, 6'); a('s_add_u32 s53, s53, 0x%x' % ST0); a('v_mov_b32 v75, s80')
    a('s_mov_b64 exec, 15'); a('s_waitcnt lgkmcnt(0)')
    a('v_mov_b32 v74, v73'); a('v_mov_b32 v73, s80')
    a('buffer_store_dwordx4 v[72:75], v14, s[32:35], s53 offen sc1'); a('s_mov_b64 exec, -1')
    a('Lnost:')
    def ptr():
        a(TR % ('v[192:193]', PA, 0)); a(TR % ('v[194:195]', PA, 512)); a(TR % ('v[196:197]', PB, 0)); a(TR % ('v[198:199]', PB, 512))
        for e in range(2):
            for z in range(2): a(TR % (vr(200 + 4 * e + 2 * z, 2), 186, 2048 + 32 * e + 256 * z))
    def late():
        if PWHEN != 3 and not (E4EARLY and PWHEN == 1 and KWHEN == 0): ptr()
        a('v_add_u32 v7, s71, v10')
        for i in range(2):
            W = 136 + 6 * i; b = 20 + 12 * i
            for x in range(4): a('v_alignbit_b32 v%d, v%d, v%d, 16' % (b + x, W + x + 1, W + x))
            for x in range(4): a('v_mov_b32 v%d, v%d' % (b + 4 + x, W + x + 1))
            for x in range(4): a('v_alignbit_b32 v%d, v%d, v%d, 16' % (b + 8 + x, W + x + 2, W + x + 1))
            o = L_E4 + 32 + 1024 * i
            a('ds_write_b128 v7, %s offset:%d' % (vr(W + 2, 4), o + 3 * CS))
            a('ds_write_b128 v7, %s offset:%d' % (vr(b, 4), o))
            a('ds_write_b128 v7, %s offset:%d' % (vr(b + 4, 4), o + CS))
            a('ds_write_b128 v7, %s offset:%d' % (vr(b + 8, 4), o + 2 * CS))
    if (KWHEN != 1 and PWHEN != 1) or (E4EARLY and PWHEN == 1 and KWHEN == 0): late()
    a('s_add_u32 s56, s70, s67'); a('s_mov_b32 m0, s56'); a('s_add_u32 s57, s66, %d' % KVR); a('s_add_u32 s58, s66, 0x%x' % XT)
    a.poll(4, 's72', 's87')
    a.stamp('X0 seen')
    a.vm('buffer_load_dwordx4 v10, s[32:35], s57 offen sc1 lds')
    a.vm('buffer_load_dwordx4 v10, s[32:35], s57 offen offset:1024 sc1 lds', 'kv')
    for i in range(4): a.vm('buffer_load_dwordx2 %s, v8, s[32:35], s58 offen offset:%d sc1' % (vr(208 + 2 * i, 2), 512 * i), 'xT')
    if '0' not in EAGER: a.late('s87')
    if E4EARLY and PWHEN == 1 and KWHEN == 0: ptr()
    elif KWHEN == 1 or PWHEN == 1: late()
    if PWHEN == 3:
        ploads(); a('v_add_u32 v%d, s76, v188' % PA); a('v_xor_b32 v%d, 64, v%d' % (PB, PA))
    pst = [[('buffer_store_dwordx4 %s, v14, s[32:35], %s offen offset:%d sc1' % (vr(192 + 4 * z, 4), ('s88', 's88', 's89', 's59')[z], 1024 if z == 1 else 0), None)] for z in range(4)]
    pst.append(['s_mov_b64 exec, 0xffff', ('buffer_store_dwordx4 v[252:255], v191, s[32:35], s79 offen sc1', None), 's_mov_b64 exec, -1'])
    if ZT: pst = [[('buffer_load_dword v192, v248, s[32:35], s86 offen', None)], [('buffer_load_dword v193, v248, s[32:35], s86 offen offset:1024', None)]][:0] + pst + [[('buffer_load_dword v4, v248, s[32:35], s86 offen', None)], [('buffer_load_dword v4, v248, s[32:35], s86 offen offset:1024', None)]]
    def wdma(srdn, label, ngrp, mask, ldsbase, srcoff):
        l = []
        for i in range(4 * ngrp):
            it = []
            if i % 4 == 0:
                it += ['s_add_u32 s55, s92, %d' % (1024 * i), 's_and_b32 s55, s55, 0x%x' % mask, 's_add_u32 s53, %s, s55' % ldsbase, 's_mov_b32 m0, s53',
                       's_lshl_b32 s55, s55, 3', 's_add_u32 s93, s78, s55']
                if srcoff: it.append('s_add_u32 s93, s93, %d' % srcoff)
            it.append(('buffer_load_dwordx4 v%d, s[%d:%d], s93 offen offset:%d lds' % (248 + (i & 3) if i & 3 else 184, srdn, srdn + 3, 1024 * (i & 3)), label))
            l.append(it)
        return l
    def stloads(fl=''):
        return [['s_mov_b32 s54, 0x%x' % (ST0 + 4096 * (i >> 2)),
                 ('buffer_load_dwordx4 %s, v9, s[32:35], s54 offen offset:%d %s' % (vr(216 + 4 * i, 4), 1024 * (i & 3), fl), 'st0')] for i in range(8)]
    w1l = wdma(44, 'w1', 4, 0x3fff, 's77', 0)
    bg = w1l; stl = stloads()
    if W2A: a('s_lshl_b32 s87, s48, 13'); a('s_add_u32 s87, s87, %d' % L_S2); bg += wdma(40, 'w1', 2, 0x1fff, 's87', 0)
    a('s_waitcnt lgkmcnt(0)')
    a('s_barrier')
    a.take(bg, PRE0)
    a('s_lshl_b32 s56, s65, 16'); a('s_and_b32 s57, s65, 0xffff0000'); a('s_cmp_eq_u32 s52, 0'); a('s_cselect_b32 s65, s56, s57')
    a('s_lshl_b32 s57, s51, 20'); a('s_lshl_b32 s58, s64, 7'); a('s_add_u32 s57, s57, s58'); a('s_add_u32 s57, s57, 0x%x' % HT)
    a('s_add_u32 s58, s57, 0x80000')
    a('s_lshl_b32 s53, s48, 12'); a('s_add_u32 s53, s53, %d' % L_CRED); a('v_add_u32 v190, s53, v14'); a('v_xor_b32 v189, 0x1000, v14')
    a('s_lshl_b32 s53, s48, 12'); a('v_xor_b32 v189, s53, v189'); a('v_add_u32 v189, %d, v189' % L_CRED)
    CA = 16; FR = 48
    def A(st, x): return FR + 64 * st + 4 * x
    def B(st, x): return FR + 64 * st + 32 + 4 * x
    def reads(rho):
        st = rho & 1; l = []
        for x in range(8):
            l.append('ds_read_b64 %s, v11 offset:%d' % (vr(A(st, x), 2), 512 * x + 64 * rho))
            l.append('ds_read_b64 %s, v11 offset:%d' % (vr(A(st, x) + 2, 2), 512 * x + 64 * rho + 8))
            l.append('ds_read_b128 %s, v12 offset:%d' % (vr(B(st, x), 4), 512 * (7 - x) + 64 * rho))
        return l
    XF = 48; XN = 64; KD = 80
    def tagscan():
        l = ['v_min3_u32 v7, v217, v219, v221', 'v_max3_u32 v0, v217, v219, v221']
        for i in range(3, 15, 2):
            l += ['v_min3_u32 v7, v7, v%d, v%d' % (217 + 2 * i, 219 + 2 * i), 'v_max3_u32 v0, v0, v%d, v%d' % (217 + 2 * i, 219 + 2 * i)]
        return l + ['v_min_u32 v7, v7, v247', 'v_max_u32 v0, v0, v247']
    def check():
        a('s_mov_b32 s82, 0')
        a('Lst0:')
        a('v_cmp_ne_u32 vcc, s80, v7'); a('v_cmp_ne_u32 s[54:55], s80, v0'); a('s_or_b64 vcc, vcc, s[54:55]')
        a('s_cbranch_vccz Lst0ok')
        for it in stloads('sc1'):
            for x in it: a(x[0] if isinstance(x, tuple) else x)
        a.guard()
        a('s_waitcnt vmcnt(0)')
        for x in tagscan(): a(x)
        a('s_branch Lst0')
        a('Lst0ok:'); a.count(30)
    sh1 = [('wait', 'st0')] + tagscan() + [('check',)]
    for i in range(0, 16, 4):
        sh1 += [lo(217 + 2 * (i + e), 216 + 2 * (i + e)) for e in range(4)]
        for e in range(4): sh1 += ['v_rcp_f32 v%d, v%d' % (217 + 2 * (i + e), 217 + 2 * (i + e)), hi(216 + 2 * (i + e), 216 + 2 * (i + e))]
    sh3 = [(hi if i & 1 else lo)(XF + i, 208 + (i >> 1)) for i in range(16)]
    sh3 += ['v_sub_f32 v%d, v%d, v%d' % (XN + i, XF + i, 216 + 2 * i) for i in range(16)]
    sh3 += ['s_waitcnt lgkmcnt(0)']
    for i in range(4):
        sh3 += [hi(KD + 4 * i, 177 + 2 * i), lo(KD + 4 * i + 1, 177 + 2 * i), hi(KD + 4 * i + 2, 176 + 2 * i), lo(KD + 4 * i + 3, 176 + 2 * i)]
    nkd = len(sh3)
    sh3 += ['v_mul_f32 v%d, v%d, v%d' % (XN + i, XN + i, 217 + 2 * i) for i in range(16)]
    def emit_sh(x):
        if isinstance(x, str): a(x)
        elif x[0] == 'wait': a.wait(x[1])
        else: check()
    r0 = reads(0)
    for r in r0:
        if 'b64' in r: a(r)
    a.wait('kv')
    a('s_barrier')
    a.stamp('conv go')
    for r in r0:
        if 'b64' not in r: a(r)
    started = set(); sh = sh3; n3 = [0]
    for rho in range(4):
        st = rho & 1
        nxt = reads(rho + 1) if rho < 3 else ['ds_read_b64 %s, v13 offset:%d' % (vr(176 + 2 * i, 2), 512 * (3 - i)) for i in range(4)]
        issued = 0; cnt = 0
        for x in range(8):
            pairs = [(x, b) for b in range(x + 1) if x + b <= 7] + [(aa, x) for aa in range(x) if aa + x <= 7]
            if rho == 0: a('s_waitcnt lgkmcnt(%d)' % min(15, 7 - x + issued))
            elif x == 0: a('s_waitcnt lgkmcnt(0)')
            for (aa, bb) in pairs:
                t = aa + bb
                c = vr(CA + 4 * t, 4) if t in started else '0'
                started.add(t)
                a(M16 % (vr(CA + 4 * t, 4), vr(A(st, aa), 4), vr(B(st, bb), 4), c))
                cnt += 1
                if (rho > 0 or x >= 2) and issued < len(nxt) and cnt <= 30:
                    a(nxt[issued]); issued += 1
                g = cnt + 36 * rho
                if g >= ST_AT and g % 3 == 0: a.take(stl)
                if PWHEN == 3 and g == PST_AT - 8:
                    a.wait('pk'); ptr()
                if PWHEN == 3 and g == PST_AT - 1: a('s_waitcnt lgkmcnt(0)')
                if g >= PST_AT and g % 4 == 1: a.take(pst)
                if g >= BG0 and g % PACE == 0 and (g < ST_AT or not stl): a.take(bg)
                budget = 1 if (rho < 3 and cnt <= 24) or (rho == 3 and cnt <= 4) else 2
                while budget > 0 and g >= SH0 and sh1:
                    x = sh1.pop(0); emit_sh(x); budget -= 2 if isinstance(x, str) and x.startswith('v_rcp') else 1
                while budget > 0 and rho == 3 and cnt >= SH3 and not sh1 and sh:
                    emit_sh(sh.pop(0)); budget -= 1; n3[0] += 1
        while issued < len(nxt): a(nxt[issued]); issued += 1
        if 'rho' in EXP and rho < 3: a.stamp('rho%d' % rho)
    a.stamp('conv mfma')
    while sh1: emit_sh(sh1.pop(0))
    while n3[0] < nkd: emit_sh(sh.pop(0)); n3[0] += 1
    a('s_cmp_eq_u32 s51, 0'); a('s_cbranch_scc1 Lck0')
    for v, lab in ((1, None), (0, 'Lck0')):
        if lab: a(lab + ':')
        snd = 0 if v else 4; keep = 4 - snd
        for i in range(4): a('ds_write_b128 v189, %s offset:%d' % (vr(CA + 4 * (snd + i), 4), 1024 * i))
        for i in range(0, 16, 2): a(pk('v_pk_fma_f32', KD + i, [KD + i, ('s[64:65]', 1), CA + 4 * keep + i]))
        if v: a('s_branch Lck1')
    a('Lck1:')
    a.take(pst, 7)
    while sh:
        emit_sh(sh.pop(0))
        if len(sh) % 9 == 0: a.take(bg)
    a.take(bg, 24)
    a('s_waitcnt lgkmcnt(0)'); a('s_barrier')
    for i in range(4): a('ds_read_b128 %s, v190 offset:%d' % (vr(112 + 4 * i, 4), 1024 * i))
    a.stamp('conv red')
    for i in range(4):
        a('s_waitcnt lgkmcnt(%d)' % (3 - i))
        for r in (0, 2): a(pk('v_pk_add_f32', KD + 4 * i + r, [KD + 4 * i + r, 112 + 4 * i + r]))
        for r in (0, 2): a(pk('v_pk_fma_f32', XF + 4 * i + r, [XN + 4 * i + r, KD + 4 * i + r, XF + 4 * i + r]))
        o = 128 + 2 * i
        a('v_cvt_pk_bf16_f32 v%d, v%d, v%d' % (o, XF + 4 * i, XF + 4 * i + 1)); a('v_cvt_pk_bf16_f32 v%d, v%d, v%d' % (o + 1, XF + 4 * i + 2, XF + 4 * i + 3))
        if i & 1:
            a('v_permlane16_swap_b32 v%d, v%d' % (o - 2, o)); a('v_permlane16_swap_b32 v%d, v%d' % (o - 1, o + 1))
            a.vm('buffer_store_dwordx4 %s, v185, s[32:35], s%d offen sc1' % (vr(o - 2, 4), 57 + (i >> 1)), 'h')
    assert not bg
    a.stamp('h stored')
    a('s_lshl_b32 s53, s52, 6'); a('s_add_u32 s54, s53, s77'); a('v_xor_b32 v9, s54, v188'); a('v_xor_b32 v8, 64, v9')
    def wtr(dst, n, va):
        for s in range(n):
            for ch in range(2):
                a(TR % (ur(dst + 8 * s + 4 * ch, 2), va + ch, 2048 * s)); a(TR % (ur(dst + 8 * s + 4 * ch + 2, 2), va + ch, 2048 * s + 512))
    if W2A: a('s_add_u32 s54, s53, s87'); a('v_xor_b32 v186, s54, v188'); a('v_xor_b32 v185, 64, v186')
    a.wait('w1')
    wtr(256, 8, 8)
    if W2A: wtr(256 + 64, 4, 185)
    a('s_lshl_b32 s53, s50, 5'); a('s_add_u32 s53, s53, s49'); a('s_mul_i32 s53, s53, %d' % HFS); a('s_add_u32 s58, s53, 0x%x' % F_H)
    a('v_mul_u32_u24 v7, %d, v1' % (256 * HFS))
    for slot in range(3):
        th, ch = slot >> 1, slot & 1
        a('s_xor_b32 s53, s48, %d' % ((1 - th) + 2 * (1 - ch))); a('s_mul_i32 s53, s53, 12288'); a('s_add_u32 s53, s53, %d' % (G_RED + 4096 * slot))
        a('v_add_u32 v%d, s53, v14' % (10 + slot))
    a('s_mul_i32 s53, s48, 12288'); a('s_add_u32 s53, s53, %d' % G_RED); a('v_add_u32 v13, s53, v14')
    ONES = 160; CSUM = 144
    for i in range(4): a('v_mov_b32 v%d, 0x3f803f80' % (ONES + i))
    w2l = wdma(40, 'w2', 2, 0x1fff, 's77', 65536) if W2A else wdma(40, 'w2', 4, 0x3fff, 's77', 0)
    a('s_waitcnt lgkmcnt(0)')
    a.take(w2l, W2PRE)
    if 'nd1' not in EXP: a.wait('h')
    a.stamp('h drained')
    a.signal('s58', 7)
    a.take(w2l, 4)
    a('v_and_b32 v164, 31, v1'); a('v_lshlrev_b32 v164, 2, v164'); a('s_lshl_b32 s53, s52, 7'); a('s_add_u32 s53, s53, %d' % L_S2); a('v_add_u32 v165, s53, v164')
    a('s_lshl_b32 s53, s48, 8'); a('v_add_u32 v166, s53, v165'); a('v_xor_b32 v167, 0x80, v166')
    a('s_lshl_b32 s53, s48, 7'); a('s_add_u32 s53, s53, %d' % (L_S2 + 1024)); a('v_add_u32 v168, s53, v164')
    a('v_lshrrev_b32 v169, 5, v1'); a('v_lshl_add_u32 v169, v169, 4, s53')
    for s in range(8):
        for ch in range(2):
            a(M32 % (vr(acc(0, ch), 16), vr(ONES, 4), ur(256 + 8 * s + 4 * ch, 4), vr(acc(0, ch), 16) if s else '0'))
            if ch: a.take(w2l)
    a.take(w2l, 4)
    srd(a, 36, 30, 8 * 86 * 2048, '0x%x' % W4P); srd(a, 40, 30, 86 * 16384, '0x%x' % W3P)
    a('ds_write_b32 v167, v%d' % acc(0, 0)); a('ds_write_b32 v166, v%d' % acc(0, 1))
    a('v_lshlrev_b32 v189, 6, v6'); a('v_and_b32 v189, 64, v189'); a('v_xor_b32 v189, v189, v14')
    a('s_lshl_b32 s56, s48, 14')
    a('s_lshl_b32 s53, s51, 6'); a('s_add_u32 s54, s53, s56'); a('v_xor_b32 v191, s54, v187'); a('v_xor_b32 v190, 64, v191')
    a('s_lshl_b32 s54, s69, 13'); a('s_add_u32 s53, s53, s54'); a('s_lshl_b32 s54, s52, 12'); a('s_add_u32 s53, s53, s54'); a('v_xor_b32 v187, s53, v187')
    a('s_and_b32 s57, s50, %d' % (HREP - 1)); a('s_lshl_b32 s57, s57, 2'); a('s_add_u32 s53, s57, s48'); a('s_mul_i32 s53, s53, %d' % (64 * HFS)); a('s_add_u32 s58, s53, 0x%x' % F_H)
    a('v_lshlrev_b32 v4, 3, v1'); a('v_mul_u32_u24 v0, %d, v1' % HFS)
    a('s_lshl_b32 s57, s68, 16'); a('s_add_u32 s57, s57, s56'); a('s_add_u32 s57, s57, 0x%x' % HT)
    a('s_waitcnt lgkmcnt(0)'); a('s_barrier')
    for w in range(4): a('ds_read_b32 v%d, v165 offset:%d' % (80 + w, 256 * w))
    a('s_xor_b32 s53, s51, 1'); a('s_lshl_b32 s53, s53, 8'); a('v_xor_b32 v184, s53, v4')
    a('s_lshl_b32 s53, s48, 9'); a('s_add_u32 s53, s53, %d' % G_ST); a('v_add_u32 v184, s53, v184')
    a('v_and_b32 v7, 31, v1'); a('s_lshl_b32 s53, s51, 5'); a('v_add_u32 v7, s53, v7'); a('v_lshlrev_b32 v185, 3, v7'); a('v_add_u32 v185, %d, v185' % G_ST)
    a('s_waitcnt lgkmcnt(0)')
    a('v_add_f32 v80, v80, v81'); a('v_add_f32 v82, v82, v83'); a('v_add_f32 v80, v80, v82')
    a('ds_write_b32 v168, v80')
    for q in range(4): a('ds_read_b128 %s, v169 offset:%d' % (vr(CSUM + 4 * q, 4), 32 * q))
    a('s_lshl_b32 s53, s69, 12'); a('s_lshl_b32 s54, s52, 11'); a('s_add_u32 s70, s53, s54'); a('s_add_u32 s71, s70, 0x%x' % ZB)
    a('v_mov_b32 v186, v248'); a('v_cndmask_b32 v188, 0, -2, s[98:99]')
    a('s_mul_i32 s73, s69, 11'); a('s_mul_i32 s53, s48, 3'); a('s_add_u32 s73, s73, s53')
    a('s_lshl_b32 s74, s73, 14'); a('s_add_u32 s75, s74, 0x8000'); a('s_cmp_eq_u32 s48, 3'); a('s_cselect_b32 s75, 0x400000, s75')
    a('s_lshl_b32 s72, s68, 8'); a('s_lshl_b32 s53, s69, 3'); a('s_add_u32 s79, s72, s53')
    a('s_lshl_b32 s53, s48, 4'); a('s_add_u32 s72, s72, s53')
    a('s_lshl_b32 s66, s68, 1'); a('s_add_u32 s66, s66, s51')
    BF = 80; ST = 172
    for i in range(4): a('v_mov_b32 v%d, 0' % (ST + i))
    a('s_mov_b32 m0, s56')
    a.stamp('X1 poll')
    a.wait('w2')
    a.poll(0, 's58', False, sleep=SLEEP, between=lambda: wtr(256 + 64, 8, 8))
    a.count(63); a.stamp('X1 seen')
    hl = []
    for i in range(16):
        it = []
        if i and i % 4 == 0: it += ['s_add_u32 s53, s56, %d' % (1024 * i), 's_mov_b32 m0, s53', 's_add_u32 s57, s57, 4096']
        it.append(('buffer_load_dwordx4 v189, s[32:35], s57 offen offset:%d sc1 lds' % (1024 * (i & 3)), 'h%d' % (i >> 1)))
        hl.append(it)
    a.take(hl, 8)
    WR3 = [192, 256 + 128, 256 + 192]
    w3l = []
    for j in (1, 2, 0):
        for s in range(16):
            w3l.append(['s_add_u32 s87, s%d, %d' % (75 if j == 2 else 74, (16384 if j == 1 else 0) + 1024 * s),
                        ('buffer_load_dwordx4 %s, v14, s[40:43], s87 offen' % ur(WR3[j] + 4 * s, 4), 'w3')])
    if 'now3' in EXP: w3l = [['s_nop 0'] for it in w3l]
    def btr(s):
        for th in range(2):
            a(TR % (vr(BF + 32 * th + 4 * s, 2), 190 + th, 2048 * s)); a(TR % (vr(BF + 32 * th + 4 * s + 2, 2), 190 + th, 2048 * s + 512))
    a.wait('h0'); btr(0)
    a.stamp('h0 landed')
    for s in range(8):
        if s < 7:
            a.wait('h%d' % (s + 1)); btr(s + 1)
        a('s_waitcnt lgkmcnt(%d)' % (4 if s < 7 else 0))
        if s == 4: a('s_barrier')
        for th in range(2):
            for ch in range(2):
                a(M32 % (vr(acc(th, ch), 16), ur(256 + 8 * s + 4 * ch, 4), vr(BF + 32 * th + 4 * s, 4), vr(acc(th, ch), 16) if s else '0'))
                if ch == 0:
                    if hl: a.take(hl)
                    elif s >= 6: a.take(w3l)
            if SUMM:
                a(M32 % (vr(192 + 16 * th, 16), vr(ONES, 4), vr(BF + 32 * th + 4 * s, 4), vr(192 + 16 * th, 16) if s else '0'))
    a.stamp('g1 mfma')
    wr = red_write(0) + red_write(1) + red_write(2)
    n = 0
    for s in range(8):
        for th in range(2):
            for i in range(4):
                b = BF + 32 * th + 4 * s + i
                if not SUMM: a('v_dot2c_f32_bf16 v%d, v%d, v%d' % (ST + th, b, ONES))
                a('v_dot2c_f32_bf16 v%d, v%d, v%d' % (ST + 2 + th, b, b))
                n += 1
                if not SUMM and n >= 6 and n % 4 == 2 and wr: a(wr.pop(0))
                if SUMM and n % WRS == 0 and wr: a(wr.pop(0))
                if n % 6 == 0 and len(w3l) > 48 - W3A: a.take(w3l)
    assert not wr
    assert W3A <= 32
    if SUMM:
        a('v_permlane32_swap_b32 v192, v208'); a('v_permlane32_swap_b32 v%d, v%d' % (ST + 2, ST + 3))
        a('v_mov_b32 v%d, v192' % ST); a('v_add_f32 v%d, v%d, v%d' % (ST + 1, ST + 2, ST + 3))
    else:
        a('v_permlane32_swap_b32 v%d, v%d' % (ST, ST + 1)); a('v_permlane32_swap_b32 v%d, v%d' % (ST + 2, ST + 3))
        a('v_add_f32 v%d, v%d, v%d' % (ST, ST, ST + 1)); a('v_add_f32 v%d, v%d, v%d' % (ST + 1, ST + 2, ST + 3))
    a('ds_write_b64 v184, %s' % vr(ST, 2))
    a('s_waitcnt lgkmcnt(0)'); a('s_barrier')
    a.stamp('g1 red')
    for w in range(4): a('ds_read_b64 %s, v185 offset:%d' % (vr(164 + 2 * w, 2), 512 * w))
    rr = red_reads(80)
    for r in rr[:10]: a(r)
    M1 = 164; R1 = 166; RI = 168; CAa = 169; CBb = 170
    a('s_waitcnt lgkmcnt(10)')
    a(pk('v_pk_add_f32', 164, [164, 166])); a(pk('v_pk_add_f32', 168, [168, 170])); a(pk('v_pk_add_f32', 164, [164, 168]))
    for r in rr[10:]: a(r)
    for l in ['v_mul_f32 v164, s60, v164', 'v_mul_f32 v166, v164, v164', 'v_fma_f32 v165, v165, s60, -v166', 'v_max_f32 v165, 0, v165',
              'v_add_f32 v166, 0x%x, v165' % f2u(EPS), 'v_rsq_f32 v166, v166',
              'v_mul_f32 v167, v166, v166', 'v_mul_f32 v167, v167, v165', 'v_add_f32 v167, 0x%x, v167' % f2u(EPS), 'v_rsq_f32 v167, v167',
              'v_mul_f32 v167, v167, v166', 'v_rcp_f32 v168, v167', 'v_mul_f32 v169, 0x%x, v167' % f2u(C0),
              'v_mul_f32 v170, v167, v167', 'v_mul_f32 v170, v170, v167', 'v_mul_f32 v170, 0x%x, v170' % f2u(C1)]: a(l)
    o = acc(1, 1)
    for i in range(0, 16, 2): a(pk('v_pk_fma_f32', o + i, [bc(M1), CSUM + i, o + i], neg=[1, 0, 0]))
    red_adds(a, 80)
    HO = 176
    for s in range(2):
        a(TR % (vr(HO + 4 * s, 2), 187, 2048 * s)); a(TR % (vr(HO + 4 * s + 2, 2), 187, 2048 * s + 512))
    g = gelu_pk(o, CAa, CBb, RI, 80, 16)
    for i, l in enumerate(g):
        a(l)
        if i % 10 == 9 and len(w3l) > 48 - W3A: a.take(w3l)
    for i in range(8): a('v_cvt_pk_bf16_f32 v%d, v%d, v%d' % (96 + i, o + 2 * i, o + 2 * i + 1))
    for i in range(8): a('v_min_u32 v%d, v%d, v188' % (96 + i, 96 + i))
    a.vm('buffer_store_dwordx4 v[96:99], v186, s[32:35], s71 offen sc1')
    a.vm('buffer_store_dwordx4 v[100:103], v186, s[32:35], s71 offen offset:1024 sc1', 'z')
    a.stamp('z stored')
    a.take(w3l, W3B)
    HF = 144; HN = 176
    a('s_waitcnt lgkmcnt(0)')
    for i in range(8): a(lo(HF + 2 * i, HO + i)); a(hi(HF + 2 * i + 1, HO + i))
    for i in range(0, 16, 2): a(pk('v_pk_add_f32', HN + i, [HF + i, bc(M1)], neg=[0, 1]))
    for i in range(0, 16, 2): a(pk('v_pk_mul_f32', HN + i, [HN + i, bc(R1)]))
    a('s_add_u32 s59, s79, 0x%x' % F_Z); a('s_add_u32 s58, s72, 0x%x' % F_Z)
    a('v_and_b32 v4, 1, v1'); a('v_lshlrev_b32 v4, 3, v4')
    a('s_lshl_b32 s56, s66, 15'); a('s_add_u32 s64, s56, s70'); a('s_add_u32 s64, s64, 0x%x' % X1B)
    a('s_lshl_b32 s54, s48, 13'); a('s_add_u32 s56, s56, s54'); a('s_add_u32 s56, s56, 0x%x' % ZB); a('s_xor_b32 s57, s56, 0x8000')
    a('s_lshl_b32 s54, s68, 13'); a('s_lshr_b32 s55, s70, 2'); a('s_add_u32 s54, s54, s55'); a('s_lshl_b32 s55, s51, 8'); a('s_add_u32 s54, s54, s55')
    a('s_add_u32 s65, s54, 0x%x' % ST1); a('v_lshlrev_b32 v0, 3, v1')
    if 'nd2' not in EXP: a.wait('z')
    a.stamp('z drained')
    a.signal('s59', eager='2' in EAGER)
    a.poll(4, 's58', 's59')
    a.stamp('X2 seen')
    def bitems(nks, dst, lab):
        l = []
        for th in range(2):
            for s in range(nks):
                it = []
                if s % 4 == 0: it.append('s_add_u32 s93, s%d, %d' % (57 - th, 1024 * s))
                it.append(('buffer_load_dwordx4 %s, v14, s[32:35], s93 offen offset:%d sc1' % (ur(dst(nks * th + s), 4), 1024 * (s & 3)), '%s%d' % (lab, nks * th + s)))
                l.append(it)
        return l
    def ksplit(nks, wreg, breg, lab, bgl, nbg, check):
        bl = bitems(nks, breg, lab)
        a.take(bl, 8)
        for th in range(2):
            wr = (red_write(0) + red_write(1)) if th else []
            if th and check:
                assert not bl
                if '2' not in EAGER: a.late('s59')
                a('s_mov_b32 s82, 0'); a('Lhalo:'); a('v_mov_b32 v7, 0')
            for s in range(nks):
                k = nks * th + s
                a.wait('%s%d' % (lab, k))
                for ch in range(2):
                    a(M32 % (vr(acc(th, ch), 16), ur(wreg(s, ch), 4), ur(breg(k), 4), vr(acc(th, ch), 16) if s else '0'))
                    if th and check: a('v_max3_u32 v7, v7, v%d, v%d' % (breg(k) + 2 * ch, breg(k) + 2 * ch + 1))
                    if ch == 0 and bl: a.take(bl)
                    elif not bl and nbg > 0 and (ch or nbg > nks - s): a.take(bgl); nbg -= 1
                if wr and s >= 1: a(wr.pop(0))
                if wr and s >= nks - 1: a(wr.pop(0))
                if th and not check and s == nks - LATE4 and '4' not in EAGER: a.late('s59')
        if check:
            a('v_cmp_eq_u32 vcc, -1, v7'); a('s_cbranch_vccz Lhalook')
            for it in bitems(nks, breg, lab)[nks:]:
                for x in it: a(x[0] if isinstance(x, tuple) else x)
            a.guard(0x8000)
            a('s_waitcnt vmcnt(0)'); a('s_branch Lhalo')
            a('Lhalook:'); a.count(62)
        for w in red_write(2): a(w)
        a('s_waitcnt lgkmcnt(0)'); a('s_barrier')
    ksplit(8, lambda s, ch: 256 + 64 + 8 * s + 4 * ch, lambda k: 80 + 4 * k, 'b', w3l, W3C, True)
    a.stamp('g2 mfma')
    for r in red_reads(80): a(r)
    for i in range(0, 16, 2): a(pk('v_pk_add_f32', o + i, [o + i, HN + i]))
    red_adds(a, 80)
    for i in range(8): a('v_cvt_pk_bf16_f32 v%d, v%d, v%d' % (96 + i, o + 2 * i, o + 2 * i + 1))
    a.vm('buffer_store_dwordx4 v[96:99], v14, s[32:35], s64 offen sc1')
    a.vm('buffer_store_dwordx4 v[100:103], v14, s[32:35], s64 offen offset:1024 sc1')
    a('v_mov_b32 v104, 0'); a('v_mov_b32 v105, 0')
    for i in range(8):
        a('v_dot2c_f32_bf16 v104, v%d, v%d' % (96 + i, ONES)); a('v_dot2c_f32_bf16 v105, v%d, v%d' % (96 + i, 96 + i))
    a('v_mov_b32 v106, v104'); a('v_mov_b32 v107, v105')
    a('v_permlane32_swap_b32 v104, v106'); a('v_permlane32_swap_b32 v105, v107')
    a(pk('v_pk_add_f32', 104, [104, 106]))
    a('s_mov_b32 exec_hi, 0')
    a.vm('buffer_store_dwordx2 v[104:105], v0, s[32:35], s65 offen sc1', 'x1')
    a('s_mov_b32 exec_hi, -1')
    if 'front' not in EXP and 'rho' not in EXP: a.stamp('x1 stored')
    a.take(w3l, 48)
    RES = 128
    for i in range(8): a(lo(80 + 2 * i, 96 + i)); a(hi(81 + 2 * i, 96 + i))
    for i in range(0, 16, 2): a(pk('v_pk_add_f32', RES + i, [HF + i, 80 + i]))
    a('s_add_u32 s59, s79, 0x%x' % F_X); a('s_add_u32 s58, s72, 0x%x' % F_X)
    a('s_lshl_b32 s64, s48, 13'); a('s_lshl_b32 s65, s68, 16'); a('s_add_u32 s65, s65, s64'); a('s_add_u32 s65, s65, 0x%x' % X1B)
    a('s_lshl_b32 s67, s68, 13'); a('s_lshl_b32 s54, s48, 11'); a('s_add_u32 s67, s67, s54'); a('s_add_u32 s67, s67, 0x%x' % ST1)
    a('v_lshlrev_b32 v8, 9, v6'); a('v_lshl_add_u32 v8, v5, 4, v8'); a('v_add_u32 v9, 0x8000, v8')
    a('s_mul_i32 s74, s69, %d' % (86 * 2048)); a('s_mul_i32 s53, s48, %d' % (22 * 2048)); a('s_add_u32 s74, s74, s53')
    a('s_add_u32 s75, s74, %d' % (20 * 2048)); a('s_cmp_eq_u32 s48, 3'); a('s_cselect_b32 s75, 0x400000, s75')
    a('s_lshl_b32 s53, s52, 10'); a('v_add_u32 v113, s53, v14'); a('v_xor_b32 v112, 0x400, v113')
    srd(a, 44, 30, 64 * HTH, '0x%x' % HB)
    a('s_lshl_b32 s53, s68, 1'); a('s_mul_i32 s53, s53, %d' % HTH); a('s_lshl_b32 s54, s73, 10'); a('s_add_u32 s56, s53, s54')
    a('s_add_u32 s57, s56, %d' % HTH)
    a('s_cmp_eq_u32 s48, 3'); a('s_cselect_b32 s76, 0x%x, s56' % (64 * HTH)); a('s_cselect_b32 s77, 0x%x, s57' % (64 * HTH))
    a('s_lshl_b32 s53, s48, 3'); a('s_add_u32 s53, s53, %d' % G_ST); a('v_lshlrev_b32 v115, 5, v1'); a('v_add_u32 v114, s53, v115'); a('v_add_u32 v115, %d, v115' % G_ST)
    a('s_mov_b32 m0, s64')
    if 'nd3' not in EXP: a.wait('x1')
    a.stamp('x1 drained')
    a.signal('s59', eager='3' in EAGER)
    CS3 = 116
    def cs3(js):
        for s in range(16):
            for j in js: a(M16 % (vr(CS3 + 4 * j, 4), ur(WR3[j] + 4 * s, 4), vr(ONES, 4), vr(CS3 + 4 * j, 4) if s else '0'))
    assert W3A + W3B + W3C >= 16 * CSE or CSE == 0
    a.poll(4, 's58', 's59', between=lambda: cs3((1, 2, 0)[:CSE]))
    a.stamp('X3 seen')
    for p in range(4): a.vm('buffer_load_dwordx2 %s, v0, s[32:35], s67 offen offset:%d sc1' % (vr(80 + 2 * p, 2), 512 * p), 'sp')
    xl = []
    for i in range(16):
        it = []
        if i % 4 == 0:
            oo = 32768 * (i >> 3) + 1024 * (i & 7)
            if i: it += ['s_add_u32 s53, s64, %d' % oo, 's_mov_b32 m0, s53']
            it.append('s_add_u32 s93, s65, %d' % oo)
        it.append(('buffer_load_dwordx4 v14, s[32:35], s93 offen offset:%d sc1 lds' % (1024 * (i & 3)), 'x%d' % (i >> 3)))
        xl.append(it)
    a.take(xl, 8)
    if '3' not in EAGER: a.late('s59')
    cs3((1, 2, 0)[CSE:])
    def w4reg(s, ch): return (256 + 8 * s + 4 * ch) if s < 16 else (144 + 8 * (s - 16) + 4 * ch)
    w4l = []
    for s in range(22):
        for ch in range(2):
            it = []
            if s % 2 == 0 and ch == 0: it.append('s_add_u32 s87, s74, %d' % (2048 * s) if s < 20 else 's_mov_b32 s87, s75')
            it.append(('buffer_load_dwordx4 %s, v%d, s[36:39], s87 offen offset:%d' % (ur(w4reg(s, ch), 4), 112 + ch, 2048 * (s & 1)), 'w4'))
            w4l.append(it)
    if 'now4' in EXP: w4l = []
    if 'hit4' in EXP: w4l = [[('s_mov_b32 s87, s74' if isinstance(x, str) else (x[0].replace('offset:2048', 'offset:0'), x[1])) for x in it] for it in w4l]
    a.wait('sp')
    a(pk('v_pk_add_f32', 80, [80, 82])); a(pk('v_pk_add_f32', 84, [84, 86])); a(pk('v_pk_add_f32', 80, [80, 84]))
    a('ds_write_b64 v114, v[80:81]')
    a('s_lshl_b32 s53, s48, 10'); a('s_add_u32 s53, s53, %d' % G_ST2); a('v_add_u32 v7, s53, v14'); a('v_lshl_add_u32 v0, v5, 4, s53')
    a.wait('x0', 'lgkmcnt(0)')
    a('s_barrier')
    a.stamp('x0 landed')
    A3 = 16; BR = 40; TMP = 72; PK = 84; STT = 96
    a('ds_read_b128 v[72:75], v115'); a('ds_read_b128 v[76:79], v115 offset:16')
    def rd(k):
        tt, s = k >> 4, k & 15
        return 'ds_read_b128 %s, v%d offset:%d' % (vr(BR + 4 * (k & 7), 4), 8 + (tt >> 1), 2048 * s + 256 * (tt & 1))
    for k in range(6): a(rd(k))
    st = ['v_add_f32 v72, v72, v74', 'v_add_f32 v73, v73, v75', 'v_add_f32 v76, v76, v78', 'v_add_f32 v77, v77, v79',
          'v_add_f32 v72, v72, v76', 'v_add_f32 v73, v73, v77',
          'v_mul_f32 v72, s60, v72', 'v_mul_f32 v74, v72, v72', 'v_fma_f32 v73, v73, s60, -v74', 'v_max_f32 v73, 0, v73',
          'v_add_f32 v73, 0x%x, v73' % f2u(EPS), 'v_rsq_f32 v76, v73', 'v_sqrt_f32 v75, v73', 'v_mul_f32 v73, 0x%x, v76' % f2u(C0),
          'v_mul_f32 v74, v76, v76', 'v_mul_f32 v74, v74, v76', 'v_mul_f32 v74, 0x%x, v74' % f2u(C1), 'v_sub_f32 v72, 0, v72',
          ('ds', 'ds_write_b128 v7, v[72:75]')] + [('ds', 'ds_read_b128 %s, v0 offset:%d' % (vr(STT + 4 * tt, 4), 256 * tt)) for tt in range(4)]
    def epi(tt, packed):
        o3 = A3 + 12 * (tt & 1); m = STT + 4 * tt
        if packed:
            l = [pk('v_pk_fma_f32', o3 + i, [bc(m), CS3 + i, o3 + i]) for i in range(0, 12, 2)]
            l += gelu_pk(o3, m + 1, m + 2, m + 3, TMP, 12)
        else:
            l = ['v_fmac_f32 v%d, v%d, v%d' % (o3 + i, m, CS3 + i) for i in range(12)]
            l += gelu_plain(o3, m + 1, m + 2, m + 3, TMP, 12)
        for j in range(3):
            for i in range(2): l.append('v_cvt_pk_bf16_f32 v%d, v%d, v%d' % (PK + 4 * j + 2 * (tt & 1) + i, o3 + 4 * j + 2 * i, o3 + 4 * j + 2 * i + 1))
        if tt & 1:
            for j in range(3):
                l.append('v_permlane16_swap_b32 v%d, v%d' % (PK + 4 * j, PK + 4 * j + 2)); l.append('v_permlane16_swap_b32 v%d, v%d' % (PK + 4 * j + 1, PK + 4 * j + 3))
            for j in range(3):
                l.append(('vm', 'buffer_store_dwordx4 %s, v14, s[44:47], s%d offen offset:%d sc1' % (vr(PK + 4 * j, 4), (76 if j == 2 else 56) + (tt >> 1), 1024 * j)))
        return l
    pend = st
    lg = [('r', k) for k in range(6)]
    def cost(x): return 2 if isinstance(x, str) and x.startswith(('v_exp', 'v_rcp', 'v_rsq', 'v_sqrt')) else 1
    def emit_p(x):
        if isinstance(x, str): a(x)
        elif x[0] == 'vm': a.vm(x[1], 'H')
        elif x[0] == 'ds': a(x[1]); lg.append(('o', 0))
    for k in range(64):
        tt, s = k >> 4, k & 15
        if k % 8 == 0: a.fs('g3', 'k%d' % k)
        if k == 26:
            a.wait('x1'); a('s_barrier')
        if k % 2 == 0:
            for kk in (k + 6, k + 7):
                if kk < 64: a(rd(kk)); lg.append(('r', kk))
            idx = lg.index(('r', k + 1)); a('s_waitcnt lgkmcnt(%d)' % (len(lg) - 1 - idx)); del lg[:idx + 1]
        left = sum(cost(x) for x in pend); slots = 3 * (16 - s)
        for j in range(3):
            o3 = A3 + 12 * (tt & 1) + 4 * j
            a(M16 % (vr(o3, 4), ur(WR3[j] + 4 * s, 4), vr(BR + 4 * (k & 7), 4), vr(o3, 4) if s else '0'))
            if s >= 1 or (tt == 0 and j):
                budget = max(2, -(-left // slots)) if tt else 2
                while pend and budget >= cost(pend[0]):
                    budget -= cost(pend[0]); emit_p(pend.pop(0))
            if j == 2 and xl: a.take(xl)
            elif j == 2 and len(w4l) > W4TAIL and (k - 8) * (44 - W4TAIL) >= (44 - len(w4l)) * (W4END - 8): a.take(w4l)
        if s == 15:
            while pend: emit_p(pend.pop(0))
            pend = epi(tt, tt == 3)
            if 'nogelu' in EXP and tt < 3: pend = [x for x in pend if not isinstance(x, str)]
    a.stamp('g3 mfma'); a.fs('g3', 'end')
    while pend: emit_p(pend.pop(0))
    if 'front' not in EXP and 'rho' not in EXP: a.stamp('H stored')
    a.take(w4l, 44)
    a('s_add_u32 s59, s79, 0x%x' % F_F); a('s_add_u32 s58, s72, 0x%x' % F_F)
    a('s_mul_i32 s56, s66, %d' % HTH); a('s_xor_b32 s54, s66, 1'); a('s_mul_i32 s57, s54, %d' % HTH)
    a('s_mul_i32 s54, s48, %d' % (22 * 1024)); a('s_add_u32 s54, s54, 0x%x' % HB); a('s_add_u32 s56, s56, s54'); a('s_add_u32 s57, s57, s54')
    srd(a, 40, 26, 2 * MB)
    if OUT64:
        a('v_lshlrev_b32 v7, 10, v5'); a('v_lshrrev_b32 v8, 5, v1'); a('v_lshl_add_u32 v7, v8, 4, v7'); a('v_and_b32 v8, 1, v6'); a('v_lshl_add_u32 v7, v8, 5, v7')
    else:
        a('v_and_b32 v7, 31, v1'); a('v_lshlrev_b32 v7, 10, v7'); a('v_lshrrev_b32 v8, 5, v1'); a('v_lshl_add_u32 v7, v8, 4, v7')
    a('s_lshl_b32 s64, s66, 15'); a('s_lshr_b32 s54, s70, 5'); a('s_add_u32 s64, s64, s54')
    if 'nd4' not in EXP: a.wait('H')
    a.stamp('H drained'); a.fs('g3', 'drained')
    a.signal('s59', eager='4' in EAGER)
    a.poll(4, 's58', 's59')
    a.stamp('X4 seen'); a.fs('g3', 'X4')
    def b4(k): return (256 + 128 + 4 * k) if k < 32 else (192 + 4 * (k - 32))
    ksplit(22, w4reg, b4, 'f', None, 0, False)
    a.stamp('g4 mfma')
    for r in red_reads(80): a(r)
    for i in range(0, 16, 2): a(pk('v_pk_add_f32', o + i, [o + i, RES + i]))
    red_adds(a, 80)
    for i in range(8): a('v_cvt_pk_bf16_f32 v%d, v%d, v%d' % (96 + i, o + 2 * i, o + 2 * i + 1))
    if OUT64:
        a('s_add_u32 s65, s64, 0x4000')
        for i in range(4): a('v_permlane16_swap_b32 v%d, v%d' % (96 + i, 100 + i))
        a.vm('buffer_store_dwordx4 v[96:99], v7, s[40:43], s64 offen ' + OUTF)
        a.vm('buffer_store_dwordx4 v[100:103], v7, s[40:43], s65 offen ' + OUTF)
    else:
        a.vm('buffer_store_dwordx4 v[96:99], v7, s[40:43], s64 offen ' + OUTF)
        a.vm('buffer_store_dwordx4 v[100:103], v7, s[40:43], s64 offen offset:32 ' + OUTF)
    if stamp or SPIN:
        a.wait0(); a.stamp('end')
    if FINE:
        a('s_waitcnt vmcnt(0) lgkmcnt(0)'); a('v_mov_b32 v15, 0')
        for i in range(len(a.fnames)):
            a('v_writelane_b32 v15, s%d, %d' % (FREGS[i], i)); a('v_writelane_b32 v15, s%d, %d' % (FREGS[i], 32 + i))
        a.names = a.fnames
    if stamp or FINE:
        a('s_lshl_b32 s53, s63, 8'); a('s_add_u32 s53, s53, 0x%x' % STAMPS); a('v_lshlrev_b32 v7, 2, v1')
        a('buffer_store_dword v15, v7, s[32:35], s53 offen')
    if SPIN:
        a('s_sub_u32 s96, s97, s96'); a('s_mul_i32 s96, s96, %s' % SPIN[2])
        a('s_memrealtime s[90:91]'); a('s_waitcnt lgkmcnt(0)'); a('s_mov_b32 s97, s90')
        a('Lspin:'); a('s_memrealtime s[90:91]'); a('s_waitcnt lgkmcnt(0)'); a('s_sub_u32 s90, s90, s97'); a('s_cmp_lt_u32 s90, s96'); a('s_cbranch_scc1 Lspin')
    a('Lend:')
    a('s_endpgm')
    body = a.a.finish()
    print('instrs', len(a.a.L), 'nops', a.a.nops, file=sys.stderr)
    hdr = open('sequential_preLN__ssm_conv_h3__mixer_s_mlp__prompt.s.ref').read().split('; Override')[0]
    out = hdr + DOC + '; @launch grid=(256,1,1) block=(256,1,1) lds=%d\n' % LDS_BYTES
    if stamp or FINE: out += '; stamps: ' + '|'.join(a.names) + '\n'
    out += '.amdgcn_target "amdgcn-amd-amdhsa--gfx950"\n.text\n.globl %s\n.p2align 8\n.type %s,@function\n%s:\n' % (NAME, NAME, NAME)
    out += body
    out += '.fill 4096, 4, 0xbf810000\n'
    out += '''.section .rodata,"a"
.p2align 6
.amdhsa_kernel %s
  .amdhsa_next_free_vgpr 512
  .amdhsa_next_free_sgpr 102
  .amdhsa_accum_offset 256
  .amdhsa_group_segment_fixed_size 0
  .amdhsa_kernarg_size 112
  .amdhsa_user_sgpr_count 2
  .amdhsa_user_sgpr_kernarg_segment_ptr 1
  .amdhsa_system_sgpr_workgroup_id_x 1
  .amdhsa_float_denorm_mode_32 3
.end_amdhsa_kernel
''' % NAME
    return out

if __name__ == '__main__':
    open(sys.argv[1], 'w').write(build(len(sys.argv) > 2))
```

```python
import sys, struct, os
from asmlib import *

E = lambda n, d: type(d)(os.environ.get(n, d))
NT = E('NT', ''); NTX = E('NTX', ''); PACE = E('PACE', 6); PRE0 = E('PRE0', 0); NST = E('NST', 8); SLEEP = E('SLEEP', 0)
W4TAIL = E('W4TAIL', 0); W4END = E('W4END', 56); OUTF = E('OUTF', '')
TWHEN = E('TWHEN', 2); BG0 = E('BG0', 28); ST_AT = E('ST_AT', 3); PST_AT = E('PST_AT', 110); W2A = E('W2A', 0); ZT = E('ZT', 0); W2PRE = E('W2PRE', 0); RR = E('RR', ''); HFS = E('HFS', 8); HREP = E('HREP', 8)
KWHEN = E('KWHEN', 0); PWHEN = E('PWHEN', 1)
W3A = E('W3A', 18); W3B = E('W3B', 4); W3C = E('W3C', 16)
EXP = E('EXP', '').split(',')
ONLY = [x for x in E('ONLY', '').split(',') if x]
FINE = E('FINE', ''); FREGS = [4, 6, 8, 10, 12, 14, 16, 18, 20, 22, 24, 84, 90, 94, 96, 100]
if FINE == 'f0': FREGS = [90, 94, 96, 100, 16]
PB2 = E('PB2', 8); PB4 = E('PB4', 8); PH = E('PH', 8); PX3 = E('PX3', 8); OWNH = E('OWNH', 0); SUMM = E('SUMM', 0); WRS = E('WRS', 5); CSE = E('CSE', 2); SH0 = E('SH0', 66); SH3 = E('SH3', 5); EAGER = E('EAGER', '0234'); E4EARLY = E('E4EARLY', 1); XTLATE = E('XTLATE', 0); ENTRY = E('ENTRY', 1); LATE4 = E('LATE4', 8); OUT64 = E('OUT64', 1); PUBK = E('PUBK', 30)
SPIN = os.environ['SPIN'].split(',') if os.environ.get('SPIN') else None

MB = 1 << 20
KVR = 0; XT = 2 * MB; HT = 4 * MB; ZB = 6 * MB; X1B = 8 * MB; HB = 10 * MB
W3P = 16 * MB; W4P = W3P + 1408 * 1024
ST0 = 20 * MB
ST1 = ST0 + 65536
FL = ST1 + 262144
FGL = 0x10000
F_A = FL; F_Z = FL + 0x2000; F_X = FL + 0x4000; F_F = FL + 0x6000
F_H = FL + 0x20000
STAMPS = 64 * MB
DUMP = 0x10000000
HTH = 176 * 512
EPS = 1e-5
def f2u(f): return struct.unpack('<I', struct.pack('<f', f))[0]
C0 = -2.0 * 0.7978845608028654 * 1.4426950408889634
C1 = C0 * 0.044715
NAME = 'sequential_preLN__ssm_conv_h3__mixer_s_mlp__prompt_kernel'

CS = 4160
L_E4 = 0; L_KV = 33280; L_CRED = L_KV + 2 * 4608
L_S = 65536
L_S2 = 131072
L_K = L_S; L_V = L_K + 9216; L_X = L_V + 8192; L_PK = (L_S2 + 4096) if E('PWHEN', 1) == 3 else (L_S + 32768)
G_RED = 65536; G_ST = G_RED + 49152; G_ST2 = G_ST + 2048
LDS_BYTES = 163840

TAG = 's[80:81]'
class G:
    def __init__(self, stamp=False):
        self.a = Asm(); self.stamp_on = stamp; self.q = []; self.nst = 0; self.names = []; self.np = 0; self.fnames = []
    def __call__(self, t): self.a(t)
    def vm(self, text, label=None):
        self.a(text); self.q.append(label)
    def item(self, it):
        for x in it:
            if isinstance(x, tuple): self.vm(x[0], x[1])
            else: self.a(x)
    def take(self, lst, n=1):
        for _ in range(n):
            if lst: self.item(lst.pop(0))
    def wait(self, label, extra=''):
        if label not in self.q:
            if extra: self.a('s_waitcnt ' + extra)
            return
        idx = max(i for i, l in enumerate(self.q) if l == label)
        n = len(self.q) - 1 - idx
        assert n < 64
        self.a('s_waitcnt vmcnt(%d) %s' % (n, extra)); self.q = self.q[idx + 1:]
    def wait0(self, extra=''):
        self.a('s_waitcnt vmcnt(0) %s' % extra); self.q = []
    def count(self, lane):
        if self.stamp_on: self.a('v_writelane_b32 v15, s82, %d' % lane)
    def stamp(self, name):
        if SPIN and name in SPIN:
            self.a('s_memrealtime s[90:91]'); self.a('s_waitcnt lgkmcnt(0)'); self.a('s_mov_b32 s%d, s90' % (96 + SPIN.index(name)))
        if self.stamp_on and (not ONLY or name in ONLY):
            self.a('s_memrealtime s[90:91]'); self.a('s_memtime s[94:95]'); self.a('s_waitcnt lgkmcnt(0)'); self.a('v_writelane_b32 v15, s90, %d' % self.nst)
            self.a('v_writelane_b32 v15, s94, %d' % (32 + self.nst)); assert self.nst < 30
            self.names.append(name); self.nst += 1
    def fs(self, region, name):
        if FINE == region:
            r = FREGS[len(self.fnames)]
            self.a('s_memtime s[%d:%d]' % (r, r + 1)); self.fnames.append(name)
    def guard(self, limit=0x20000):
        self.a('s_add_u32 s82, s82, 1'); self.a('s_cmp_gt_u32 s82, 0x%x' % limit); self.a('s_cbranch_scc1 Lend')
    def publish(self, mine):
        a = self
        a('s_add_u32 s83, %s, 0x%x' % (mine, FGL)); a('s_mov_b64 exec, 1')
        a('buffer_store_dwordx2 v[2:3], off, s[32:35], s83 sc1'); a('s_mov_b64 exec, -1')
    def wsig(self, mine, label=None):
        a = self
        a('s_mov_b64 exec, 1'); a.vm('buffer_store_dwordx2 v[2:3], off, s[32:35], %s' % mine, label); a('s_mov_b64 exec, -1')
    def wpub(self, mine):
        a = self
        a('s_add_u32 s83, %s, 0x%x' % (mine, FGL)); a('s_mov_b64 exec, 1')
        a.vm('buffer_store_dwordx2 v[2:3], off, s[32:35], s83 sc1'); a('s_mov_b64 exec, -1')
    def late(self, mine):
        a = self; n = self.np; self.np += 1
        a('s_cmp_lg_u32 s48, 3'); a('s_cbranch_scc1 Llate%d' % n)
        a.publish(mine)
        a('Llate%d:' % n)
    def poll(self, vaddr, soff, dual, sleep=0, tmp=16, between=None):
        a = self; n = self.np; self.np += 1
        a('s_mov_b32 s82, 0')
        a('buffer_load_dwordx2 %s, v%d, s[32:35], %s offen sc1' % (vr(tmp, 2), vaddr, soff))
        if between: between()
        a('Lpoll%d:' % n)
        a.wait0()
        a('v_cmp_ne_u64 vcc, %s, %s' % (TAG, vr(tmp, 2)))
        a('s_cbranch_vccz Lpolld%d' % n)
        if sleep: a('s_sleep %d' % sleep)
        so = soff
        if dual:
            a('s_cmp_lg_u32 s82, 32'); a('s_cbranch_scc1 Lpollp%d' % n)
            a.publish(dual)
            a('Lpollp%d:' % n)
            a('s_cmp_lt_u32 s82, 32'); a('s_cselect_b32 s83, 0, 0x%x' % FGL); a('s_add_u32 s83, s83, %s' % soff); so = 's83'
        a('buffer_load_dwordx2 %s, v%d, s[32:35], %s offen sc1' % (vr(tmp, 2), vaddr, so))
        a.guard()
        a('s_branch Lpoll%d' % n)
        a('Lpolld%d:' % n)
    def signal(self, soff, rep=None, eager=False):
        a = self; n = self.np; self.np += 1
        a('s_barrier')
        a('s_cmp_lg_u32 s48, 0'); a('s_cbranch_scc1 Lsig%d' % n)
        if rep is None:
            a('s_mov_b64 exec, 1')
            a('buffer_store_dwordx2 v[2:3], off, s[32:35], %s' % soff)
            if eager:
                a('s_add_u32 s83, %s, 0x%x' % (soff, FGL))
                a('buffer_store_dwordx2 v[2:3], off, s[32:35], s83 sc1')
        else:
            a('s_mov_b64 exec, %d' % ((1 << HREP) - 1))
            a('buffer_store_dwordx2 v[2:3], v%d, s[32:35], %s offen sc1' % (rep, soff))
        a('s_mov_b64 exec, -1')
        a('Lsig%d:' % n)

def srd(a, d, p, size, off=None):
    if off is None:
        a('s_mov_b32 s%d, s%d' % (d, p)); a('s_mov_b32 s%d, s%d' % (d + 1, p + 1))
    else:
        a('s_add_u32 s%d, s%d, %s' % (d, p, off)); a('s_addc_u32 s%d, s%d, 0' % (d + 1, p + 1))
    a('s_mov_b32 s%d, 0x%x' % (d + 2, size)); a('s_mov_b32 s%d, 0x20000' % (d + 3))

def allreduce(a, regs, tmps):
    for m in ('quad_perm:[1,0,3,2]', 'quad_perm:[2,3,0,1]', 'row_half_mirror', 'row_mirror'):
        for r in regs: a('v_add_f32_dpp v%d, v%d, v%d %s row_mask:0xf bank_mask:0xf' % (r, r, r, m))
    for sw in ('v_permlane16_swap_b32', 'v_permlane32_swap_b32'):
        for r, t in zip(regs, tmps): a('v_mov_b32 v%d, v%d' % (t, r))
        for r, t in zip(regs, tmps): a('%s v%d, v%d' % (sw, r, t))
        for r, t in zip(regs, tmps): a('v_add_f32 v%d, v%d, v%d' % (r, r, t))

ACC = 16
def acc(th, ch): return ACC + 32 * th + 16 * ch
def red_write(slot):
    th, ch = slot >> 1, slot & 1
    return ['ds_write_b128 v%d, %s offset:%d' % (10 + slot, vr(acc(th, ch) + 4 * q, 4), 1024 * q) for q in range(4)]
def red_reads(tmp): return ['ds_read_b128 %s, v13 offset:%d' % (vr(tmp + 4 * i, 4), 1024 * i) for i in range(12)]
def red_adds(a, tmp, dst=None):
    o = acc(1, 1)
    for i in range(12):
        if i % 2 == 0: a('s_waitcnt lgkmcnt(%d)' % (10 - i))
        d = dst if (dst is not None and i >= 8) else o
        for r in (0, 2): a('v_pk_add_f32 %s, %s, %s' % (vr(d + 4 * (i & 3) + r, 2), vr(o + 4 * (i & 3) + r, 2), vr(tmp + 4 * i + r, 2)))

def lo(d, s): return 'v_lshlrev_b32 v%d, 16, v%d' % (d, s)
def hi(d, s): return 'v_and_b32 v%d, s61, v%d' % (d, s)
def bc(r): return vr(r & ~1, 2), r & 1
def pk(op, d, srcs, neg=None):
    names = []; l = []; h = []
    for s in srcs:
        if isinstance(s, tuple): names.append(s[0]); l.append(s[1]); h.append(s[1])
        else: names.append(vr(s, 2)); l.append(0); h.append(1)
    t = '%s %s, %s' % (op, vr(d, 2), ', '.join(names))
    if l != [0] * len(l) or h != [1] * len(h):
        t += ' op_sel:[%s] op_sel_hi:[%s]' % (','.join(map(str, l)), ','.join(map(str, h)))
    if neg: t += ' neg_lo:[%s] neg_hi:[%s]' % (','.join(map(str, neg)), ','.join(map(str, neg)))
    return t
def gelu_plain(t, ca, cb, ri, tmp, n):
    l = []
    for i in range(n): l.append('v_mul_f32 v%d, v%d, v%d' % (tmp + i, t + i, t + i))
    for i in range(n): l.append('v_fma_f32 v%d, v%d, v%d, v%d' % (tmp + i, tmp + i, cb, ca))
    for i in range(n): l.append('v_mul_f32 v%d, v%d, v%d' % (tmp + i, tmp + i, t + i))
    for i in range(n): l.append('v_exp_f32 v%d, v%d' % (tmp + i, tmp + i))
    for i in range(n): l.append('v_fma_f32 v%d, v%d, v%d, v%d' % (tmp + i, tmp + i, ri, ri))
    for i in range(n): l.append('v_rcp_f32 v%d, v%d' % (tmp + i, tmp + i))
    for i in range(n): l.append('v_mul_f32 v%d, v%d, v%d' % (t + i, t + i, tmp + i))
    return l
def gelu_pk(t, ca, cb, ri, tmp, n):
    l = []
    for i in range(0, n, 2): l.append(pk('v_pk_mul_f32', tmp + i, [t + i, t + i]))
    for i in range(0, n, 2): l.append(pk('v_pk_fma_f32', tmp + i, [tmp + i, bc(cb), bc(ca)]))
    for i in range(0, n, 2): l.append(pk('v_pk_mul_f32', tmp + i, [tmp + i, t + i]))
    for i in range(n): l.append('v_exp_f32 v%d, v%d' % (tmp + i, tmp + i))
    for i in range(0, n, 2): l.append(pk('v_pk_fma_f32', tmp + i, [tmp + i, bc(ri), bc(ri)]))
    for i in range(n): l.append('v_rcp_f32 v%d, v%d' % (tmp + i, tmp + i))
    for i in range(0, n, 2): l.append(pk('v_pk_mul_f32', t + i, [t + i, tmp + i]))
    return l
M32 = 'v_mfma_f32_32x32x16_bf16 %s, %s, %s, %s'
M16 = 'v_mfma_f32_16x16x32_bf16 %s, %s, %s, %s'
TR = 'ds_read_b64_tr_b16 %s, v%d offset:%d'

DOC = '''; One persistent launch, 256 workgroups (one per CU) x 4 waves. Phases, separated by flag hand-offs through d_ws:
'''

def build(stamp=False):
    a = G(stamp)
    a('s_cmp_ge_u32 s2, 256'); a('s_cbranch_scc1 Lend')
    if SPIN and SPIN[0] == 'entry': a.stamp('entry')
    a.fs('f0', 'entry')
    if ENTRY:
        a('s_load_dwordx2 s[36:37], s[0:1], 8'); a('s_load_dwordx2 s[40:41], s[0:1], 16'); a('s_load_dwordx2 s[44:45], s[0:1], 0')
        a('s_getpc_b64 s[84:85]')
        a('s_lshr_b32 s49, s2, 3'); a('s_lshl_b32 s53, s49, 10'); a('v_lshlrev_b32 v7, 2, v0'); a('v_and_b32 v7, 0x380, v7'); a('v_add_u32 v7, s53, v7')
        a.vm('global_load_dword v148, v7, s[84:85]')
        a('v_lshrrev_b32 v1, 6, v0'); a('v_readfirstlane_b32 s48, v1'); a('v_and_b32 v1, 63, v0')
        a('s_mov_b32 s38, 0x200000'); a('s_mov_b32 s39, 0x20000'); a('s_mov_b32 s42, 0x200000'); a('s_mov_b32 s43, 0x20000'); a('s_mov_b32 s46, 0x200000'); a('s_mov_b32 s47, 0x20000')
        a('v_lshrrev_b32 v7, 3, v1'); a('v_lshlrev_b32 v7, 10, v7'); a('v_and_b32 v8, 7, v1'); a('v_lshl_add_u32 v7, v8, 4, v7')
        a('v_bfe_u32 v8, v1, 4, 1'); a('v_lshlrev_b32 v9, 5, v8'); a('v_xor_b32 v16, v9, v7'); a('v_xor_b32 v17, 64, v16')
        a('v_add_u32 v18, 0x1c00, v17'); a('v_add_u32 v19, 0x1c00, v16')
        a('s_and_b32 s50, s2, 7'); a('s_lshl_b32 s53, s49, 16'); a('s_lshl_b32 s54, s48, 14'); a('s_add_u32 s53, s53, s54'); a('s_lshl_b32 s54, s50, 7'); a('s_add_u32 s55, s53, s54')
        a('s_lshl_b32 s56, s48, 11'); a('s_add_u32 s53, s56, %d' % (L_K + 1024)); a('s_mov_b32 m0, s53')
        if stamp: a('v_mov_b32 v15, 0')
        a('s_waitcnt lgkmcnt(0)')
        a.stamp('start'); a.fs('f0', 'karg')
        a.vm('buffer_load_dwordx4 v17, s[36:39], s55 offen %s lds' % NT)
        a.vm('buffer_load_dwordx4 v19, s[36:39], s55 offen offset:1024 %s lds' % NT)
        a('s_add_u32 s53, s56, %d' % L_V); a('s_mov_b32 m0, s53')
        a('s_load_dwordx16 s[4:19], s[0:1], 0')
        a.vm('buffer_load_dwordx4 v16, s[40:43], s55 offen %s lds' % NT)
        a.vm('buffer_load_dwordx4 v18, s[40:43], s55 offen offset:1024 %s lds' % NT)
        a('s_add_u32 s53, s56, %d' % L_X); a('s_mov_b32 m0, s53')
        a('s_load_dwordx8 s[20:27], s[0:1], 64')
        a.vm('buffer_load_dwordx4 v16, s[44:47], s55 offen %s lds' % NTX)
        a.vm('buffer_load_dwordx4 v18, s[44:47], s55 offen offset:1024 %s lds' % NTX)
        a('s_load_dwordx4 s[28:31], s[0:1], 96')
        a('s_memrealtime s[80:81]'); a.fs('f0', 'kvx issued')
        a('s_cmp_lg_u32 s48, 0'); a('s_cbranch_scc1 Lnoh')
        a('s_sub_u32 s53, s55, 0x2000'); a('s_cselect_b32 s53, 0x400000, s53'); a('s_mov_b32 m0, %d' % L_K)
        a('buffer_load_dwordx4 v16, s[36:39], s53 offen %s lds' % NT)
        a('Lnoh:')
        a('s_and_b32 s51, s48, 1'); a('s_lshr_b32 s52, s48, 1')
        a('v_and_b32 v5, 15, v1'); a('v_lshrrev_b32 v6, 4, v1'); a('v_lshlrev_b32 v14, 4, v1')
        a('v_lshlrev_b32 v9, 6, v8'); a('v_xor_b32 v184, v9, v7')
        a('s_mov_b32 s60, 0x%x' % f2u(1.0 / 512)); a('s_mov_b32 s61, 0xffff0000')
        a('s_lshl_b32 s63, s2, 2'); a('s_add_u32 s63, s63, s48')
        a('s_waitcnt lgkmcnt(0)')
        a('s_cmp_lg_u32 s63, 0'); a('s_cbranch_scc1 Lnotag')
        a('v_mov_b32 v2, s80'); a('v_mov_b32 v3, s81'); a('v_mov_b32 v4, 0'); a('s_mov_b64 exec, 1')
        a('global_store_dwordx2 v4, v[2:3], s[28:29] sc1'); a('s_mov_b64 exec, -1')
        a('Lnotag:')
    else:
        a('s_load_dwordx16 s[4:19], s[0:1], 0')
        a('s_getpc_b64 s[84:85]')
        a('s_lshr_b32 s49, s2, 3'); a('s_lshl_b32 s53, s49, 10'); a('v_lshlrev_b32 v7, 2, v0'); a('v_and_b32 v7, 0x380, v7'); a('v_add_u32 v7, s53, v7')
        a.vm('global_load_dword v148, v7, s[84:85]')
        a('s_load_dwordx8 s[20:27], s[0:1], 64')
        a('s_load_dwordx4 s[28:31], s[0:1], 96')
        a('s_memrealtime s[80:81]')
        a('v_lshrrev_b32 v1, 6, v0'); a('v_readfirstlane_b32 s48, v1'); a('v_and_b32 v1, 63, v0')
        if stamp: a('v_mov_b32 v15, 0')
        a('s_and_b32 s50, s2, 7')
        a('s_and_b32 s51, s48, 1'); a('s_lshr_b32 s52, s48, 1')
        a('v_and_b32 v5, 15, v1'); a('v_lshrrev_b32 v6, 4, v1'); a('v_lshlrev_b32 v14, 4, v1')
        a('v_lshrrev_b32 v7, 3, v1'); a('v_lshlrev_b32 v7, 10, v7'); a('v_and_b32 v8, 7, v1'); a('v_lshl_add_u32 v7, v8, 4, v7')
        a('v_and_b32 v8, 1, v6'); a('v_lshlrev_b32 v9, 6, v8'); a('v_xor_b32 v184, v9, v7')
        a('v_lshlrev_b32 v9, 5, v8'); a('v_xor_b32 v16, v9, v7'); a('v_xor_b32 v17, 64, v16'); a('v_add_u32 v18, 0x1c00, v17')
        a('s_lshl_b32 s53, s49, 16'); a('s_lshl_b32 s54, s48, 14'); a('s_add_u32 s53, s53, s54'); a('s_lshl_b32 s54, s50, 7'); a('s_add_u32 s55, s53, s54')
        a('s_lshl_b32 s56, s48, 11')
        a('v_add_u32 v19, 0x1c00, v16')
        a('s_movk_i32 s62, 0x1000'); a('s_mov_b32 s60, 0x%x' % f2u(1.0 / 512)); a('s_mov_b32 s61, 0xffff0000')
        a('s_lshl_b32 s63, s2, 2'); a('s_add_u32 s63, s63, s48')
        a('s_waitcnt lgkmcnt(0)')
        a.stamp('start')
        srd(a, 36, 6, 2 * MB)
        a('s_add_u32 s53, s56, %d' % (L_K + 1024)); a('s_mov_b32 m0, s53')
        a.vm('buffer_load_dwordx4 v17, s[36:39], s55 offen %s lds' % NT)
        a.vm('buffer_load_dwordx4 v19, s[36:39], s55 offen offset:1024 %s lds' % NT)
        srd(a, 40, 8, 2 * MB)
        a('s_add_u32 s53, s56, %d' % L_V); a('s_mov_b32 m0, s53')
        a.vm('buffer_load_dwordx4 v16, s[40:43], s55 offen %s lds' % NT)
        a.vm('buffer_load_dwordx4 v18, s[40:43], s55 offen offset:1024 %s lds' % NT)
        a('s_cmp_lg_u32 s48, 0'); a('s_cbranch_scc1 Lnoh')
        a('s_sub_u32 s53, s55, 0x2000'); a('s_cselect_b32 s53, 0x400000, s53'); a('s_mov_b32 m0, %d' % L_K)
        a('buffer_load_dwordx4 v16, s[36:39], s53 offen %s lds' % NT)
        a('s_cmp_lg_u32 s2, 0'); a('s_cbranch_scc1 Lnoh')
        a('v_mov_b32 v2, s80'); a('v_mov_b32 v3, s81'); a('v_mov_b32 v4, 0'); a('s_mov_b64 exec, 1')
        a('global_store_dwordx2 v4, v[2:3], s[28:29] sc1'); a('s_mov_b64 exec, -1')
        a('Lnoh:')
        srd(a, 44, 4, 2 * MB)
        a('s_add_u32 s53, s56, %d' % L_X); a('s_mov_b32 m0, s53')
        a.vm('buffer_load_dwordx4 v16, s[44:47], s55 offen %s lds' % NTX)
        a.vm('buffer_load_dwordx4 v18, s[44:47], s55 offen offset:1024 %s lds' % NTX)
    a('s_lshl_b32 s53, s50, 2'); a('s_add_u32 s53, s53, s48'); a('s_lshl_b32 s53, s53, 4'); a('v_add_u32 v20, s53, v5')
    a('v_lshlrev_b32 v7, 3, v20')
    a.vm('global_load_dwordx2 v[44:45], v7, s[10:11]', 'kvx')
    a('s_lshr_b32 s53, s2, 5'); a('s_lshl_b32 s53, s53, 18'); a('s_and_b32 s54, s63, 15'); a('s_lshl_b32 s54, s54, 14'); a('s_add_u32 s53, s53, s54')
    a('s_bfe_u32 s54, s2, 0x20002'); a('s_lshl_b32 s54, s54, 12'); a('s_add_u32 s53, s53, s54')
    a('s_bfe_u32 s54, s2, 0x10004'); a('s_lshl_b32 s54, s54, 11'); a('s_add_u32 s53, s53, s54'); a('v_add_u32 v7, s53, v14')
    a.vm('global_load_dwordx4 v[128:131], v7, s[4:5] ' + NTX); a.vm('global_load_dwordx4 v[132:135], v7, s[4:5] offset:1024 ' + NTX, 'xr')
    def kloads():
        a('s_lshl_b32 s64, s50, 6'); a('s_lshl_b32 s53, s49, 1'); a('s_add_u32 s64, s64, s53')
        a('s_lshl_b32 s53, s64, 1'); a('s_load_dword s65, s[14:15], s53')
        a('s_add_u32 s64, s64, s52'); a('s_lshl_b32 s66, s64, 12')
        srd(a, 36, 12, 4096, 's66')
        a('s_lshl_b32 s67, s51, 11'); a('v_add_u32 v10, s67, v14'); a('v_add_u32 v150, -8, v10'); a('v_add_u32 v151, 1016, v10')
        a.vm('buffer_load_dwordx2 v[136:137], v150, s[36:39], 0 offen ' + NT)
        a.vm('buffer_load_dwordx4 v[138:141], v10, s[36:39], 0 offen ' + NT)
        a.vm('buffer_load_dwordx2 v[142:143], v151, s[36:39], 0 offen ' + NT)
        a.vm('buffer_load_dwordx4 v[144:147], v10, s[36:39], 0 offen offset:1024 ' + NT, 'K')
    if KWHEN == 0: kloads()
    srd(a, 32, 30, 0x10000000)
    a('s_lshl_b32 s68, s50, 2'); a('s_and_b32 s53, s49, 3'); a('s_add_u32 s68, s68, s53')
    a('s_lshl_b32 s53, s50, 9'); a('s_add_u32 s72, s53, 0x%x' % F_A); a('s_lshl_b32 s54, s68, 8'); a('s_sub_u32 s54, s54, s53')
    a('v_bfe_u32 v7, v1, 1, 3'); a('v_min_u32 v7, 3, v7'); a('v_cmp_ne_u32 vcc, 0, v7'); a('v_lshlrev_b32 v7, 13, v7'); a('v_and_b32 v8, 1, v1'); a('v_lshl_add_u32 v7, v8, 7, v7')
    a('v_mov_b32 v8, s54'); a('v_cndmask_b32 v8, 0, v8, vcc'); a('v_add_u32 v7, v7, v8')
    a.vm('buffer_load_dword v149, v7, s[32:35], s72 offen sc1')
    a('s_lshl_b32 s76, s48, 12'); a('s_add_u32 s76, s76, %d' % L_PK); a('s_sub_u32 s74, 1023, s63')
    for i in range(1, 4): a('v_add_u32 v%d, %d, v184' % (248 + i, 7168 * i))
    def ploads():
        srd(a, 36, 24, 1376 * 1024)
        a('s_and_b32 s53, s63, 7'); a('s_lshl_b32 s53, s53, 7'); a('s_lshr_b32 s54, s63, 3'); a('s_lshl_b32 s54, s54, 14'); a('s_add_u32 s73, s53, s54')
        a('s_mov_b32 m0, s76')
        a.vm('buffer_load_dwordx4 v184, s[36:39], s73 offen %s lds' % NT)
        a.vm('buffer_load_dwordx4 v249, s[36:39], s73 offen offset:1024 %s lds' % NT)
        srd(a, 36, 22, 512 * 2752)
        a('s_and_b32 s53, s74, 15'); a('s_mul_i32 s53, s53, %d' % (32 * 2752)); a('s_lshr_b32 s54, s74, 4'); a('s_lshl_b32 s54, s54, 6')
        a('s_add_u32 s75, s53, s54'); a('s_cmp_lt_u32 s74, 688'); a('s_cselect_b32 s75, s75, 0x400000')
        a('v_lshrrev_b32 v150, 2, v1'); a('v_mul_u32_u24 v150, 2752, v150'); a('v_and_b32 v151, 3, v1'); a('v_lshl_add_u32 v150, v151, 4, v150')
        a('s_add_u32 s53, s76, 2048'); a('s_mov_b32 m0, s53'); a('s_add_u32 s54, s75, %d' % (16 * 2752 - 1024))
        a.vm('buffer_load_dwordx4 v150, s[36:39], s75 offen %s lds' % NT)
        a.vm('buffer_load_dwordx4 v150, s[36:39], s54 offen offset:1024 %s lds' % NT, 'pk')
    if PWHEN == 0: ploads()
    if 'front' in EXP: a.stamp('issued')
    a('s_and_b32 s53, s63, 7'); a('s_mul_i32 s53, s53, %d' % (86 * 2048)); a('s_lshr_b32 s54, s63, 3'); a('s_lshl_b32 s54, s54, 11'); a('s_add_u32 s53, s53, s54')
    a('s_add_u32 s53, s53, 0x%x' % W4P); a('s_cmp_lt_u32 s63, 688'); a('s_cselect_b32 s88, s53, 0x%x' % DUMP)
    a('s_lshr_b32 s54, s74, 4'); a('s_lshl_b32 s54, s54, 15'); a('s_and_b32 s55, s74, 15'); a('s_lshl_b32 s55, s55, 10'); a('s_add_u32 s54, s54, s55')
    a('s_add_u32 s54, s54, 0x%x' % W3P); a('s_cmp_lt_u32 s74, 688'); a('s_cselect_b32 s89, s54, 0x%x' % DUMP); a('s_add_u32 s59, s89, 0x4000')
    a('s_and_b32 s53, s49, 3')
    a('s_lshr_b32 s69, s2, 5')
    a('s_lshl_b32 s92, s53, 12')
    a('s_lshl_b32 s77, s48, 14'); a('s_add_u32 s77, s77, %d' % L_S)
    a('s_lshl_b32 s78, s48, 17'); a('s_lshl_b32 s53, s69, 7'); a('s_add_u32 s78, s78, s53')
    srd(a, 40, 20, 512 * 1024); srd(a, 44, 18, 512 * 1024)
    for i in range(4): a('v_mov_b32 v%d, 0' % (152 + i))
    a('s_mul_i32 s70, s52, 4608'); a('s_add_u32 s70, s70, %d' % L_KV)
    a('s_mul_i32 s71, s52, %d' % (4 * CS))
    a('v_and_b32 v7, 31, v1'); a('v_lshl_add_u32 v7, v7, 4, s70')
    a('ds_write_b128 v7, v[152:155] offset:4096')
    a('v_and_b32 v7, 1, v1'); a('v_lshlrev_b32 v7, 4, v7'); a('v_bfe_u32 v8, v1, 1, 2'); a('v_mul_u32_u24 v8, %d, v8' % CS)
    a('v_add3_u32 v7, v7, v8, s71')
    a('ds_write_b128 v7, v[152:155] offset:%d' % L_E4)
    for i in range(4): a('v_mov_b32 v%d, -1' % (252 + i))
    a('s_bfe_u32 s53, s69, 0x10001'); a('s_xor_b32 s53, s53, 1')
    a('v_bfe_u32 v7, v1, 3, 1'); a('s_mul_i32 s54, s53, 31'); a('v_xor_b32 v7, s54, v7'); a('v_lshlrev_b32 v7, 4, v7')
    a('v_and_b32 v8, 7, v1'); a('v_lshl_add_u32 v191, v8, 9, v7')
    a('s_lshl_b32 s54, s68, 1'); a('s_add_u32 s53, s53, s54'); a('s_lshl_b32 s53, s53, 15'); a('s_lshl_b32 s54, s69, 12'); a('s_add_u32 s53, s53, s54')
    a('s_add_u32 s79, s53, 0x%x' % ZB)
    a('v_and_b32 v11, 3, v5'); a('v_mul_u32_u24 v11, %d, v11' % CS); a('v_and_b32 v12, 12, v5'); a('v_lshl_add_u32 v11, v12, 1, v11')
    a('v_lshl_add_u32 v11, v6, 4, v11'); a('s_lshl_b32 s56, s51, 8'); a('s_add_u32 s57, s56, s71'); a('s_add_u32 s57, s57, %d' % (L_E4 + 8))
    a('v_add_u32 v11, s57, v11')
    a('v_lshlrev_b32 v12, 4, v6'); a('v_lshlrev_b32 v13, 5, v5'); a('v_sub_u32 v12, v12, v13')
    a('s_add_u32 s57, s56, s70'); a('s_add_u32 s57, s57, 480'); a('v_add_u32 v12, s57, v12')
    a('v_lshlrev_b32 v7, 4, v5'); a('v_lshl_add_u32 v7, v6, 2, v7'); a('s_lshl_b32 s56, s51, 10'); a('v_add_u32 v7, s56, v7')
    a('v_lshlrev_b32 v8, 1, v7'); a('s_lshl_b32 s56, s51, 13'); a('v_add_u32 v9, s56, v14')
    a('s_add_u32 s57, s70, %d' % (2 * (2044 - 768))); a('v_sub_u32 v13, s57, v8')
    a('v_and_b32 v185, 1, v6'); a('v_lshlrev_b32 v185, 18, v185'); a('v_lshrrev_b32 v7, 2, v5'); a('v_lshl_add_u32 v185, v7, 16, v185')
    a('v_and_b32 v7, 3, v5'); a('v_lshl_add_u32 v185, v7, 5, v185'); a('v_lshrrev_b32 v7, 1, v6'); a('v_lshl_add_u32 v185, v7, 4, v185')
    a('v_lshrrev_b32 v21, 5, v1'); a('v_bfe_u32 v22, v1, 2, 2')
    a('v_lshl_add_u32 v7, v21, 3, v22'); a('v_lshlrev_b32 v7, 7, v7'); a('v_lshrrev_b32 v23, 1, v22'); a('v_lshl_add_u32 v7, v23, 6, v7')
    a('v_and_b32 v21, 1, v6'); a('v_lshl_add_u32 v7, v21, 5, v7')
    a('v_and_b32 v24, 3, v1'); a('v_lshl_add_u32 v187, v24, 3, v7')
    a('v_and_b32 v25, 1, v1'); a('v_lshl_add_u32 v7, v25, 4, v7'); a('v_bfe_u32 v25, v1, 1, 1'); a('v_lshl_add_u32 v188, v25, 3, v7')
    PA, PB = (189, 190) if PWHEN != 3 else (10, 4)
    if PWHEN != 3: a('v_add_u32 v%d, s76, v188' % PA); a('v_xor_b32 v%d, 64, v%d' % (PB, PA))
    a('v_lshl_add_u32 v7, v6, 3, v22'); a('v_lshlrev_b32 v186, 6, v7'); a('v_lshl_add_u32 v186, v24, 3, v186'); a('v_add_u32 v186, s76, v186')
    a('v_lshlrev_b32 v7, 7, v7'); a('v_lshl_add_u32 v23, v21, 1, v23'); a('v_xor_b32 v23, s48, v23'); a('v_lshl_add_u32 v7, v23, 5, v7')
    a('v_lshl_add_u32 v7, v24, 3, v7'); a('v_add_u32 v26, %d, v7' % L_K); a('v_xor_b32 v27, 64, v26')
    a('v_lshlrev_b32 v20, 12, v20'); a('s_lshl_b32 s53, s49, 7'); a('v_lshl_add_u32 v7, v6, 4, s53')
    a('v_add_u32 v28, v20, v7'); a('v_add_u32 v28, 0x%x, v28' % XT)
    a('v_sub_u32 v29, v20, v7'); a('v_add_u32 v29, %d, v29' % (4080 - 64 + KVR))
    a('v_and_b32 v4, 31, v1'); a('v_lshlrev_b32 v4, 3, v4'); a('v_mov_b32 v0, 0')
    if 'front' in EXP: a.stamp('addr done')
    a.fs('f0', 'addr done')
    a.wait('kvx')
    if 'front' in EXP: a.stamp('own landed')
    a.fs('f0', 'landed')
    a('s_barrier')
    a.vm('global_load_dwordx2 v[2:3], v0, s[28:29] sc1', 'tag')
    a.stamp('k landed')
    if KWHEN == 2: kloads()
    if PWHEN == 2: ploads()
    for o in range(2):
        a(TR % (vr(30 + 6 * o, 2), 26, 512 + 4096 * o))
        a(TR % (vr(32 + 6 * o, 2), 27, 1024 + 4096 * o)); a(TR % (vr(34 + 6 * o, 2), 27, 1536 + 4096 * o))
    for o in range(2):
        for z in range(2): a(TR % (vr(112 + 4 * o + 2 * z, 2), 26, L_V - L_K + 512 * z + 4096 * o))
    for o in range(2):
        for z in range(2): a(TR % (vr(120 + 4 * o + 2 * z, 2), 26, L_X - L_K + 512 * z + 4096 * o))
    a(lo(70, 44)); a(hi(71, 44)); a(lo(72, 45)); a(hi(73, 45))
    a('s_waitcnt lgkmcnt(8)')
    for t in range(1, 12):
        for o in range(2): a((hi if t & 1 else lo)(46 + 2 * t + o, 30 + 6 * o + (t >> 1)))
    a('s_waitcnt lgkmcnt(0)')
    a.vm('buffer_store_dwordx4 v[120:123], v28, s[32:35], 0 offen sc1')
    a.vm('buffer_store_dwordx4 v[124:127], v28, s[32:35], 0 offen offset:64 sc1')
    for i in range(8): a(pk('v_pk_mul_f32', 94 + 2 * i, [48 + 2 * i, bc(73)]))
    for t in (1, 2, 3):
        for i in range(8): a(pk('v_pk_fma_f32', 94 + 2 * i, [48 + 2 * (i + t), bc(73 - t), 94 + 2 * i]))
    for i in range(8):
        for o in range(2): a((hi if i & 1 else lo)(78 + 2 * i + o, 112 + 4 * o + (i >> 1)))
    for i in range(8): a(pk('v_pk_mul_f32', 94 + 2 * i, [94 + 2 * i, 78 + 2 * i]))
    for o in range(2):
        for i in range(4): a('v_cvt_pk_bf16_f32 v%d, v%d, v%d' % (112 + 4 * o + i, 94 + 2 * (7 - 2 * i) + o, 94 + 2 * (6 - 2 * i) + o))
    a.vm('buffer_store_dwordx4 v[112:115], v29, s[32:35], 0 offen offset:64 sc1')
    a.vm('buffer_store_dwordx4 v[116:119], v29, s[32:35], 0 offen sc1', 'st')
    a.stamp('kv stored')
    if KWHEN == 1: kloads()
    if PWHEN == 1: ploads()
    a.wait('xr')
    for r in range(2):
        for i in range(4): a(lo(48 + 8 * r + 2 * i, 128 + 4 * r + i)); a(hi(49 + 8 * r + 2 * i, 128 + 4 * r + i))
    for r in range(2):
        b = 48 + 8 * r
        a(pk('v_pk_add_f32', 70 + 2 * r, [b, b + 2])); a(pk('v_pk_add_f32', 74 + 2 * r, [b + 4, b + 6]))
    for r in range(2): a(pk('v_pk_add_f32', 70 + 2 * r, [70 + 2 * r, 74 + 2 * r]))
    for r in range(2): a('v_add_f32 v%d, v%d, v%d' % (64 + r, 70 + 2 * r, 71 + 2 * r))
    allreduce(a, [64, 65], [66, 67])
    for r in range(2): a('v_mul_f32 v%d, s60, v%d' % (64 + r, 64 + r))
    for r in range(2):
        for i in range(0, 8, 2): a(pk('v_pk_add_f32', 48 + 8 * r + i, [48 + 8 * r + i, bc(64 + r)], neg=[0, 1]))
    for r in range(2):
        b = 48 + 8 * r
        a(pk('v_pk_mul_f32', 70 + 2 * r, [b, b]))
        for i in (2, 4, 6): a(pk('v_pk_fma_f32', 70 + 2 * r, [b + i, b + i, 70 + 2 * r]))
    for r in range(2): a('v_add_f32 v%d, v%d, v%d' % (68 + r, 70 + 2 * r, 71 + 2 * r))
    allreduce(a, [68, 69], [66, 67])
    for r in range(2): a('v_mul_f32 v%d, s60, v%d' % (68 + r, 68 + r))
    a('v_cvt_pk_bf16_f32 v68, v68, v69'); a(hi(69, 68)); a(lo(68, 68))
    for r in range(2): a('v_add_f32 v%d, 0x%x, v%d' % (68 + r, f2u(EPS), 68 + r))
    a('v_cvt_pk_bf16_f32 v68, v68, v69'); a(hi(69, 68)); a(lo(68, 68))
    for r in range(2): a('v_sqrt_f32 v%d, v%d' % (68 + r, 68 + r))
    a('s_lshl_b32 s53, s48, 3'); a('s_add_u32 s53, s53, %d' % L_CRED); a('v_mov_b32 v7, s53')
    a('v_cvt_pk_bf16_f32 v72, v68, v64'); a('v_cvt_pk_bf16_f32 v73, v69, v65')
    a('ds_write_b64 v7, v[72:73]')
    a('s_lshl_b32 s53, s49, 3'); a('s_add_u32 s87, s53, s72')
    a('s_mov_b32 s82, 0')
    a.wait('tag' if 'nd0' in EXP else 'st', 'lgkmcnt(0)')
    a('Ltag:')
    a('v_readfirstlane_b32 s80, v2'); a('v_readfirstlane_b32 s81, v3')
    a('s_or_b32 s53, s80, s81'); a('s_cbranch_scc1 Ltagok')
    a('global_load_dwordx2 v[2:3], v0, s[28:29] sc1')
    a.guard()
    a('s_waitcnt vmcnt(0)')
    a('s_branch Ltag')
    a('Ltagok:')
    a.stamp('drained')
    a.signal('s87', eager='0' in EAGER)
    a('s_cmp_lg_u32 s48, 1'); a('s_cbranch_scc1 Lnost')
    a('v_lshlrev_b32 v7, 3, v1'); a('ds_read_b64 v[72:73], v7 offset:%d' % L_CRED)
    a('s_lshl_b32 s53, s2, 6'); a('s_add_u32 s53, s53, 0x%x' % ST0); a('v_mov_b32 v75, s80')
    a('s_mov_b64 exec, 15'); a('s_waitcnt lgkmcnt(0)')
    a('v_mov_b32 v74, v73'); a('v_mov_b32 v73, s80')
    a('buffer_store_dwordx4 v[72:75], v14, s[32:35], s53 offen sc1'); a('s_mov_b64 exec, -1')
    a('Lnost:')
    def ptr():
        a(TR % ('v[192:193]', PA, 0)); a(TR % ('v[194:195]', PA, 512)); a(TR % ('v[196:197]', PB, 0)); a(TR % ('v[198:199]', PB, 512))
        for e in range(2):
            for z in range(2): a(TR % (vr(200 + 4 * e + 2 * z, 2), 186, 2048 + 32 * e + 256 * z))
    def late():
        if PWHEN != 3 and not (E4EARLY and PWHEN == 1 and KWHEN == 0): ptr()
        a('v_add_u32 v7, s71, v10')
        for i in range(2):
            W = 136 + 6 * i; b = 20 + 12 * i
            for x in range(4): a('v_alignbit_b32 v%d, v%d, v%d, 16' % (b + x, W + x + 1, W + x))
            for x in range(4): a('v_mov_b32 v%d, v%d' % (b + 4 + x, W + x + 1))
            for x in range(4): a('v_alignbit_b32 v%d, v%d, v%d, 16' % (b + 8 + x, W + x + 2, W + x + 1))
            o = L_E4 + 32 + 1024 * i
            a('ds_write_b128 v7, %s offset:%d' % (vr(W + 2, 4), o + 3 * CS))
            a('ds_write_b128 v7, %s offset:%d' % (vr(b, 4), o))
            a('ds_write_b128 v7, %s offset:%d' % (vr(b + 4, 4), o + CS))
            a('ds_write_b128 v7, %s offset:%d' % (vr(b + 8, 4), o + 2 * CS))
    if (KWHEN != 1 and PWHEN != 1) or (E4EARLY and PWHEN == 1 and KWHEN == 0): late()
    a('s_add_u32 s56, s70, s67'); a('s_mov_b32 m0, s56'); a('s_add_u32 s57, s66, %d' % KVR); a('s_add_u32 s58, s66, 0x%x' % XT)
    a.poll(4, 's72', 's87')
    a.stamp('X0 seen')
    a.vm('buffer_load_dwordx4 v10, s[32:35], s57 offen sc1 lds')
    a.vm('buffer_load_dwordx4 v10, s[32:35], s57 offen offset:1024 sc1 lds', 'kv')
    for i in range(4): a.vm('buffer_load_dwordx2 %s, v8, s[32:35], s58 offen offset:%d sc1' % (vr(208 + 2 * i, 2), 512 * i), 'xT')
    if '0' not in EAGER: a.late('s87')
    if E4EARLY and PWHEN == 1 and KWHEN == 0: ptr()
    elif KWHEN == 1 or PWHEN == 1: late()
    if PWHEN == 3:
        ploads(); a('v_add_u32 v%d, s76, v188' % PA); a('v_xor_b32 v%d, 64, v%d' % (PB, PA))
    pst = [[('buffer_store_dwordx4 %s, v14, s[32:35], %s offen offset:%d sc1' % (vr(192 + 4 * z, 4), ('s88', 's88', 's89', 's59')[z], 1024 if z == 1 else 0), None)] for z in range(4)]
    pst.append(['s_mov_b64 exec, 0xffff', ('buffer_store_dwordx4 v[252:255], v191, s[32:35], s79 offen sc1', None), 's_mov_b64 exec, -1'])
    def wdma(srdn, label, ngrp, mask, ldsbase, srcoff):
        l = []
        for i in range(4 * ngrp):
            it = []
            if i % 4 == 0:
                it += ['s_add_u32 s55, s92, %d' % (1024 * i), 's_and_b32 s55, s55, 0x%x' % mask, 's_add_u32 s53, %s, s55' % ldsbase, 's_mov_b32 m0, s53',
                       's_lshl_b32 s55, s55, 3', 's_add_u32 s93, s78, s55']
                if srcoff: it.append('s_add_u32 s93, s93, %d' % srcoff)
            it.append(('buffer_load_dwordx4 v%d, s[%d:%d], s93 offen offset:%d lds' % (248 + (i & 3) if i & 3 else 184, srdn, srdn + 3, 1024 * (i & 3)), label))
            l.append(it)
        return l
    def stloads(fl=''):
        return [['s_mov_b32 s54, 0x%x' % (ST0 + 4096 * (i >> 2)),
                 ('buffer_load_dwordx4 %s, v9, s[32:35], s54 offen offset:%d %s' % (vr(216 + 4 * i, 4), 1024 * (i & 3), fl), 'st0')] for i in range(8)]
    w1l = wdma(44, 'w1', 4, 0x3fff, 's77', 0)
    bg = w1l; stl = stloads()
    if W2A: a('s_lshl_b32 s87, s48, 13'); a('s_add_u32 s87, s87, %d' % L_S2); bg += wdma(40, 'w1', 2, 0x1fff, 's87', 0)
    a('s_waitcnt lgkmcnt(0)')
    a('s_barrier')
    a.take(bg, PRE0)
    a('s_lshl_b32 s56, s65, 16'); a('s_and_b32 s57, s65, 0xffff0000'); a('s_cmp_eq_u32 s52, 0'); a('s_cselect_b32 s65, s56, s57')
    a('s_lshl_b32 s57, s51, 20'); a('s_lshl_b32 s58, s64, 7'); a('s_add_u32 s57, s57, s58'); a('s_add_u32 s57, s57, 0x%x' % HT)
    a('s_add_u32 s58, s57, 0x80000')
    a('s_lshl_b32 s53, s48, 12'); a('s_add_u32 s53, s53, %d' % L_CRED); a('v_add_u32 v190, s53, v14'); a('v_xor_b32 v189, 0x1000, v14')
    a('s_lshl_b32 s53, s48, 12'); a('v_xor_b32 v189, s53, v189'); a('v_add_u32 v189, %d, v189' % L_CRED)
    CA = 16; FR = 48
    def A(st, x): return FR + 64 * st + 4 * x
    def B(st, x): return FR + 64 * st + 32 + 4 * x
    def reads(rho):
        st = rho & 1; l = []
        for x in range(8):
            l.append('ds_read_b64 %s, v11 offset:%d' % (vr(A(st, x), 2), 512 * x + 64 * rho))
            l.append('ds_read_b64 %s, v11 offset:%d' % (vr(A(st, x) + 2, 2), 512 * x + 64 * rho + 8))
            l.append('ds_read_b128 %s, v12 offset:%d' % (vr(B(st, x), 4), 512 * (7 - x) + 64 * rho))
        return l
    XF = 48; XN = 64; KD = 80
    def tagscan():
        l = ['v_min3_u32 v7, v217, v219, v221', 'v_max3_u32 v0, v217, v219, v221']
        for i in range(3, 15, 2):
            l += ['v_min3_u32 v7, v7, v%d, v%d' % (217 + 2 * i, 219 + 2 * i), 'v_max3_u32 v0, v0, v%d, v%d' % (217 + 2 * i, 219 + 2 * i)]
        return l + ['v_min_u32 v7, v7, v247', 'v_max_u32 v0, v0, v247']
    def check():
        a('s_mov_b32 s82, 0')
        a('Lst0:')
        a('v_cmp_ne_u32 vcc, s80, v7'); a('v_cmp_ne_u32 s[54:55], s80, v0'); a('s_or_b64 vcc, vcc, s[54:55]')
        a('s_cbranch_vccz Lst0ok')
        for it in stloads('sc1'):
            for x in it: a(x[0] if isinstance(x, tuple) else x)
        a.guard()
        a('s_waitcnt vmcnt(0)')
        for x in tagscan(): a(x)
        a('s_branch Lst0')
        a('Lst0ok:'); a.count(30)
    sh1 = [('wait', 'st0')] + tagscan() + [('check',)]
    for i in range(0, 16, 4):
        sh1 += [lo(217 + 2 * (i + e), 216 + 2 * (i + e)) for e in range(4)]
        for e in range(4): sh1 += ['v_rcp_f32 v%d, v%d' % (217 + 2 * (i + e), 217 + 2 * (i + e)), hi(216 + 2 * (i + e), 216 + 2 * (i + e))]
    sh3 = [(hi if i & 1 else lo)(XF + i, 208 + (i >> 1)) for i in range(16)]
    sh3 += ['v_sub_f32 v%d, v%d, v%d' % (XN + i, XF + i, 216 + 2 * i) for i in range(16)]
    sh3 += ['s_waitcnt lgkmcnt(0)']
    for i in range(4):
        sh3 += [hi(KD + 4 * i, 177 + 2 * i), lo(KD + 4 * i + 1, 177 + 2 * i), hi(KD + 4 * i + 2, 176 + 2 * i), lo(KD + 4 * i + 3, 176 + 2 * i)]
    nkd = len(sh3)
    sh3 += ['v_mul_f32 v%d, v%d, v%d' % (XN + i, XN + i, 217 + 2 * i) for i in range(16)]
    def emit_sh(x):
        if isinstance(x, str): a(x)
        elif x[0] == 'wait': a.wait(x[1])
        else: check()
    r0 = reads(0)
    for r in r0:
        if 'b64' in r: a(r)
    a.wait('kv')
    a('s_barrier')
    a.stamp('conv go')
    for r in r0:
        if 'b64' not in r: a(r)
    started = set(); sh = sh3; n3 = [0]
    for rho in range(4):
        st = rho & 1
        nxt = reads(rho + 1) if rho < 3 else ['ds_read_b64 %s, v13 offset:%d' % (vr(176 + 2 * i, 2), 512 * (3 - i)) for i in range(4)]
        issued = 0; cnt = 0
        for x in range(8):
            pairs = [(x, b) for b in range(x + 1) if x + b <= 7] + [(aa, x) for aa in range(x) if aa + x <= 7]
            if rho == 0: a('s_waitcnt lgkmcnt(%d)' % min(15, 7 - x + issued))
            elif x == 0: a('s_waitcnt lgkmcnt(0)')
            for (aa, bb) in pairs:
                t = aa + bb
                c = vr(CA + 4 * t, 4) if t in started else '0'
                started.add(t)
                a(M16 % (vr(CA + 4 * t, 4), vr(A(st, aa), 4), vr(B(st, bb), 4), c))
                cnt += 1
                if (rho > 0 or x >= 2) and issued < len(nxt) and cnt <= 30:
                    a(nxt[issued]); issued += 1
                g = cnt + 36 * rho
                if g >= ST_AT and g % 3 == 0: a.take(stl)
                if PWHEN == 3 and g == PST_AT - 8:
                    a.wait('pk'); ptr()
                if PWHEN == 3 and g == PST_AT - 1: a('s_waitcnt lgkmcnt(0)')
                if g >= PST_AT and g % 4 == 1: a.take(pst)
                if g >= BG0 and g % PACE == 0 and (g < ST_AT or not stl): a.take(bg)
                budget = 1 if (rho < 3 and cnt <= 24) or (rho == 3 and cnt <= 4) else 2
                while budget > 0 and g >= SH0 and sh1:
                    x = sh1.pop(0); emit_sh(x); budget -= 2 if isinstance(x, str) and x.startswith('v_rcp') else 1
                while budget > 0 and rho == 3 and cnt >= SH3 and not sh1 and sh:
                    emit_sh(sh.pop(0)); budget -= 1; n3[0] += 1
        while issued < len(nxt): a(nxt[issued]); issued += 1
        if 'rho' in EXP and rho < 3: a.stamp('rho%d' % rho)
    a.stamp('conv mfma')
    while sh1: emit_sh(sh1.pop(0))
    while n3[0] < nkd: emit_sh(sh.pop(0)); n3[0] += 1
    a('s_cmp_eq_u32 s51, 0'); a('s_cbranch_scc1 Lck0')
    for v, lab in ((1, None), (0, 'Lck0')):
        if lab: a(lab + ':')
        snd = 0 if v else 4; keep = 4 - snd
        for i in range(4): a('ds_write_b128 v189, %s offset:%d' % (vr(CA + 4 * (snd + i), 4), 1024 * i))
        for i in range(0, 16, 2): a(pk('v_pk_fma_f32', KD + i, [KD + i, ('s[64:65]', 1), CA + 4 * keep + i]))
        if v: a('s_branch Lck1')
    a('Lck1:')
    a.take(pst, 7)
    while sh:
        emit_sh(sh.pop(0))
        if len(sh) % 9 == 0: a.take(bg)
    a.take(bg, 24)
    a('s_waitcnt lgkmcnt(0)'); a('s_barrier')
    for i in range(4): a('ds_read_b128 %s, v190 offset:%d' % (vr(112 + 4 * i, 4), 1024 * i))
    a.stamp('conv red')
    for i in range(4):
        a('s_waitcnt lgkmcnt(%d)' % (3 - i))
        for r in (0, 2): a(pk('v_pk_add_f32', KD + 4 * i + r, [KD + 4 * i + r, 112 + 4 * i + r]))
        for r in (0, 2): a(pk('v_pk_fma_f32', XF + 4 * i + r, [XN + 4 * i + r, KD + 4 * i + r, XF + 4 * i + r]))
        o = 128 + 2 * i
        a('v_cvt_pk_bf16_f32 v%d, v%d, v%d' % (o, XF + 4 * i, XF + 4 * i + 1)); a('v_cvt_pk_bf16_f32 v%d, v%d, v%d' % (o + 1, XF + 4 * i + 2, XF + 4 * i + 3))
        if i & 1:
            a('v_permlane16_swap_b32 v%d, v%d' % (o - 2, o)); a('v_permlane16_swap_b32 v%d, v%d' % (o - 1, o + 1))
            a.vm('buffer_store_dwordx4 %s, v185, s[32:35], s%d offen sc1' % (vr(o - 2, 4), 57 + (i >> 1)), 'h')
    assert not bg
    a.stamp('h stored')
    a('s_lshl_b32 s53, s52, 6'); a('s_add_u32 s54, s53, s77'); a('v_xor_b32 v9, s54, v188'); a('v_xor_b32 v8, 64, v9')
    def wtr(dst, n, va):
        for s in range(n):
            for ch in range(2):
                a(TR % (ur(dst + 8 * s + 4 * ch, 2), va + ch, 2048 * s)); a(TR % (ur(dst + 8 * s + 4 * ch + 2, 2), va + ch, 2048 * s + 512))
    if W2A: a('s_add_u32 s54, s53, s87'); a('v_xor_b32 v186, s54, v188'); a('v_xor_b32 v185, 64, v186')
    a.wait('w1')
    wtr(256, 8, 8)
    if W2A: wtr(256 + 64, 4, 185)
    a('s_lshl_b32 s53, s50, 5'); a('s_add_u32 s53, s53, s49'); a('s_mul_i32 s53, s53, %d' % HFS); a('s_add_u32 s58, s53, 0x%x' % F_H)
    a('v_mul_u32_u24 v7, %d, v1' % (256 * HFS))
    for slot in range(3):
        th, ch = slot >> 1, slot & 1
        a('s_xor_b32 s53, s48, %d' % ((1 - th) + 2 * (1 - ch))); a('s_mul_i32 s53, s53, 12288'); a('s_add_u32 s53, s53, %d' % (G_RED + 4096 * slot))
        a('v_add_u32 v%d, s53, v14' % (10 + slot))
    a('s_mul_i32 s53, s48, 12288'); a('s_add_u32 s53, s53, %d' % G_RED); a('v_add_u32 v13, s53, v14')
    ONES = 160; CSUM = 144
    for i in range(4): a('v_mov_b32 v%d, 0x3f803f80' % (ONES + i))
    w2l = wdma(40, 'w2', 2, 0x1fff, 's77', 65536) if W2A else wdma(40, 'w2', 4, 0x3fff, 's77', 0)
    a('s_waitcnt lgkmcnt(0)')
    a.take(w2l, W2PRE)
    if 'nd1' not in EXP: a.wait('h')
    a.stamp('h drained')
    a.signal('s58', 7)
    a.take(w2l, 4)
    a('v_and_b32 v164, 31, v1'); a('v_lshlrev_b32 v164, 2, v164'); a('s_lshl_b32 s53, s52, 7'); a('s_add_u32 s53, s53, %d' % L_S2); a('v_add_u32 v165, s53, v164')
    a('s_lshl_b32 s53, s48, 8'); a('v_add_u32 v166, s53, v165'); a('v_xor_b32 v167, 0x80, v166')
    a('s_lshl_b32 s53, s48, 7'); a('s_add_u32 s53, s53, %d' % (L_S2 + 1024)); a('v_add_u32 v168, s53, v164')
    a('v_lshrrev_b32 v169, 5, v1'); a('v_lshl_add_u32 v169, v169, 4, s53')
    for s in range(8):
        for ch in range(2):
            a(M32 % (vr(acc(0, ch), 16), vr(ONES, 4), ur(256 + 8 * s + 4 * ch, 4), vr(acc(0, ch), 16) if s else '0'))
            if ch: a.take(w2l)
    a.take(w2l, 4)
    srd(a, 36, 30, 8 * 86 * 2048, '0x%x' % W4P); srd(a, 40, 30, 86 * 16384, '0x%x' % W3P)
    a('ds_write_b32 v167, v%d' % acc(0, 0)); a('ds_write_b32 v166, v%d' % acc(0, 1))
    a('v_lshlrev_b32 v189, 6, v6'); a('v_and_b32 v189, 64, v189'); a('v_xor_b32 v189, v189, v14')
    a('s_lshl_b32 s56, s48, 14')
    a('s_lshl_b32 s53, s51, 6'); a('s_add_u32 s54, s53, s56'); a('v_xor_b32 v191, s54, v187'); a('v_xor_b32 v190, 64, v191')
    a('s_lshl_b32 s54, s69, 13'); a('s_add_u32 s53, s53, s54'); a('s_lshl_b32 s54, s52, 12'); a('s_add_u32 s53, s53, s54'); a('v_xor_b32 v187, s53, v187')
    a('s_and_b32 s57, s50, %d' % (HREP - 1)); a('s_lshl_b32 s57, s57, 2'); a('s_add_u32 s53, s57, s48'); a('s_mul_i32 s53, s53, %d' % (64 * HFS)); a('s_add_u32 s58, s53, 0x%x' % F_H)
    a('v_lshlrev_b32 v4, 3, v1'); a('v_mul_u32_u24 v0, %d, v1' % HFS)
    a('s_lshl_b32 s57, s68, 16'); a('s_add_u32 s57, s57, s56'); a('s_add_u32 s57, s57, 0x%x' % HT)
    a('s_waitcnt lgkmcnt(0)'); a('s_barrier')
    for w in range(4): a('ds_read_b32 v%d, v165 offset:%d' % (80 + w, 256 * w))
    a('s_xor_b32 s53, s51, 1'); a('s_lshl_b32 s53, s53, 8'); a('v_xor_b32 v184, s53, v4')
    a('s_lshl_b32 s53, s48, 9'); a('s_add_u32 s53, s53, %d' % G_ST); a('v_add_u32 v184, s53, v184')
    a('v_and_b32 v7, 31, v1'); a('s_lshl_b32 s53, s51, 5'); a('v_add_u32 v7, s53, v7'); a('v_lshlrev_b32 v185, 3, v7'); a('v_add_u32 v185, %d, v185' % G_ST)
    a('s_waitcnt lgkmcnt(0)')
    a('v_add_f32 v80, v80, v81'); a('v_add_f32 v82, v82, v83'); a('v_add_f32 v80, v80, v82')
    a('ds_write_b32 v168, v80')
    for q in range(4): a('ds_read_b128 %s, v169 offset:%d' % (vr(CSUM + 4 * q, 4), 32 * q))
    a('s_lshl_b32 s53, s69, 12'); a('s_lshl_b32 s54, s52, 11'); a('s_add_u32 s70, s53, s54')
    a('s_mul_i32 s73, s69, 11'); a('s_mul_i32 s53, s48, 3'); a('s_add_u32 s73, s73, s53')
    a('s_lshl_b32 s74, s73, 14'); a('s_add_u32 s75, s74, 0x8000'); a('s_cmp_eq_u32 s48, 3'); a('s_cselect_b32 s75, 0x400000, s75')
    a('s_lshl_b32 s72, s68, 8'); a('s_lshl_b32 s53, s69, 3'); a('s_add_u32 s79, s72, s53')
    a('s_lshl_b32 s53, s48, 4'); a('s_add_u32 s72, s72, s53')
    a('s_lshl_b32 s66, s68, 1'); a('s_add_u32 s66, s66, s51')
    a('s_lshl_b32 s71, s66, 15'); a('s_add_u32 s71, s71, s70'); a('s_add_u32 s71, s71, 0x%x' % ZB)
    BF = 80; ST = 172
    for i in range(4): a('v_mov_b32 v%d, 0' % (ST + i))
    a('s_mov_b32 m0, s56')
    a.stamp('X1 poll')
    a.wait('w2')
    a.poll(0, 's58', False, sleep=SLEEP, between=lambda: wtr(256 + 64, 8, 8))
    a.count(63); a.stamp('X1 seen')
    hl = []
    for i in range(16):
        it = []
        if i and i % 4 == 0: it += ['s_add_u32 s53, s56, %d' % (1024 * i), 's_mov_b32 m0, s53', 's_add_u32 s57, s57, 4096']
        it.append(('buffer_load_dwordx4 v189, s[32:35], s57 offen offset:%d sc1 lds' % (1024 * (i & 3)), 'h%d' % (i >> 1)))
        hl.append(it)
    a.take(hl, PH)
    WR3 = [192, 256 + 128, 256 + 192]
    w3l = []
    for j in (1, 2, 0):
        for s in range(16):
            w3l.append(['s_add_u32 s87, s%d, %d' % (75 if j == 2 else 74, (16384 if j == 1 else 0) + 1024 * s),
                        ('buffer_load_dwordx4 %s, v14, s[40:43], s87 offen' % ur(WR3[j] + 4 * s, 4), 'w3')])
    if 'now3' in EXP: w3l = [['s_nop 0'] for it in w3l]
    def btr(s):
        for th in range(2):
            a(TR % (vr(BF + 32 * th + 4 * s, 2), 190 + th, 2048 * s)); a(TR % (vr(BF + 32 * th + 4 * s + 2, 2), 190 + th, 2048 * s + 512))
    a.wait('h0'); btr(0)
    a.stamp('h0 landed')
    for s in range(8):
        if s < 7:
            a.wait('h%d' % (s + 1)); btr(s + 1)
        a('s_waitcnt lgkmcnt(%d)' % (4 if s < 7 else 0))
        if s == 4: a('s_barrier')
        for th in range(2):
            for ch in range(2):
                a(M32 % (vr(acc(th, ch), 16), ur(256 + 8 * s + 4 * ch, 4), vr(BF + 32 * th + 4 * s, 4), vr(acc(th, ch), 16) if s else '0'))
                if ch == 0:
                    if hl: a.take(hl)
                    elif s >= 6: a.take(w3l)
            if SUMM:
                a(M32 % (vr(192 + 16 * th, 16), vr(ONES, 4), vr(BF + 32 * th + 4 * s, 4), vr(192 + 16 * th, 16) if s else '0'))
    a.stamp('g1 mfma')
    wr = red_write(0) + red_write(1) + red_write(2)
    n = 0
    for s in range(8):
        for th in range(2):
            for i in range(4):
                b = BF + 32 * th + 4 * s + i
                if not SUMM: a('v_dot2c_f32_bf16 v%d, v%d, v%d' % (ST + th, b, ONES))
                a('v_dot2c_f32_bf16 v%d, v%d, v%d' % (ST + 2 + th, b, b))
                n += 1
                if not SUMM and n >= 6 and n % 4 == 2 and wr: a(wr.pop(0))
                if SUMM and n % WRS == 0 and wr: a(wr.pop(0))
                if n % 6 == 0 and len(w3l) > 48 - W3A: a.take(w3l)
    assert not wr
    assert W3A <= 32
    if SUMM:
        a('v_permlane32_swap_b32 v192, v208'); a('v_permlane32_swap_b32 v%d, v%d' % (ST + 2, ST + 3))
        a('v_mov_b32 v%d, v192' % ST); a('v_add_f32 v%d, v%d, v%d' % (ST + 1, ST + 2, ST + 3))
    else:
        a('v_permlane32_swap_b32 v%d, v%d' % (ST, ST + 1)); a('v_permlane32_swap_b32 v%d, v%d' % (ST + 2, ST + 3))
        a('v_add_f32 v%d, v%d, v%d' % (ST, ST, ST + 1)); a('v_add_f32 v%d, v%d, v%d' % (ST + 1, ST + 2, ST + 3))
    a('ds_write_b64 v184, %s' % vr(ST, 2))
    a('s_waitcnt lgkmcnt(0)'); a('s_barrier')
    a.stamp('g1 red')
    for w in range(4): a('ds_read_b64 %s, v185 offset:%d' % (vr(164 + 2 * w, 2), 512 * w))
    rr = red_reads(80)
    for r in rr[:10]: a(r)
    M1 = 164; R1 = 166; RI = 168; CAa = 169; CBb = 170
    a('s_waitcnt lgkmcnt(10)')
    a(pk('v_pk_add_f32', 164, [164, 166])); a(pk('v_pk_add_f32', 168, [168, 170])); a(pk('v_pk_add_f32', 164, [164, 168]))
    for r in rr[10:]: a(r)
    for l in ['v_mul_f32 v164, s60, v164', 'v_mul_f32 v166, v164, v164', 'v_fma_f32 v165, v165, s60, -v166', 'v_max_f32 v165, 0, v165',
              'v_add_f32 v166, 0x%x, v165' % f2u(EPS), 'v_rsq_f32 v166, v166',
              'v_mul_f32 v167, v166, v166', 'v_mul_f32 v167, v167, v165', 'v_add_f32 v167, 0x%x, v167' % f2u(EPS), 'v_rsq_f32 v167, v167',
              'v_mul_f32 v167, v167, v166', 'v_rcp_f32 v168, v167', 'v_mul_f32 v169, 0x%x, v167' % f2u(C0),
              'v_mul_f32 v170, v167, v167', 'v_mul_f32 v170, v170, v167', 'v_mul_f32 v170, 0x%x, v170' % f2u(C1)]: a(l)
    o = acc(1, 1)
    for i in range(0, 16, 2): a(pk('v_pk_fma_f32', o + i, [bc(M1), CSUM + i, o + i], neg=[1, 0, 0]))
    red_adds(a, 80)
    HO = 176
    for s in range(2):
        a(TR % (vr(HO + 4 * s, 2), 187, 2048 * s)); a(TR % (vr(HO + 4 * s + 2, 2), 187, 2048 * s + 512))
    g = gelu_pk(o, CAa, CBb, RI, 80, 16)
    for i, l in enumerate(g):
        a(l)
        if i % 10 == 9 and len(w3l) > 48 - W3A: a.take(w3l)
    for i in range(8): a('v_cvt_pk_bf16_f32 v%d, v%d, v%d' % (96 + i, o + 2 * i, o + 2 * i + 1))
    for i in range(8): a('v_min_u32 v%d, -2, v%d' % (96 + i, 96 + i))
    a.vm('buffer_store_dwordx4 v[96:99], v14, s[32:35], s71 offen sc1')
    a.vm('buffer_store_dwordx4 v[100:103], v14, s[32:35], s71 offen offset:1024 sc1', 'z')
    a.stamp('z stored')
    a.take(w3l, W3B)
    HF = 144; HN = 176
    a('s_waitcnt lgkmcnt(0)')
    for i in range(8): a(lo(HF + 2 * i, HO + i)); a(hi(HF + 2 * i + 1, HO + i))
    for i in range(0, 16, 2): a(pk('v_pk_add_f32', HN + i, [HF + i, bc(M1)], neg=[0, 1]))
    for i in range(0, 16, 2): a(pk('v_pk_mul_f32', HN + i, [HN + i, bc(R1)]))
    a('s_add_u32 s59, s79, 0x%x' % F_Z); a('s_add_u32 s58, s72, 0x%x' % F_Z)
    a('v_and_b32 v4, 1, v1'); a('v_lshlrev_b32 v4, 3, v4')
    a('s_lshl_b32 s56, s66, 15'); a('s_add_u32 s64, s56, s70'); a('s_add_u32 s64, s64, 0x%x' % X1B)
    srd(a, 44, 30, 2 * MB, '0x%x' % ZB)
    a('s_lshl_b32 s56, s48, 13'); a('s_mov_b32 s57, s56')
    a('s_lshl_b32 s53, s48, 3'); a('s_lshr_b32 s53, 0xfe02ff01, s53'); a('s_sext_i32_i8 s53, s53')
    a('v_and_b32 v7, 31, v1'); a('v_subrev_u32 v7, s53, v7'); a('v_lshrrev_b32 v172, 5, v1'); a('v_lshlrev_b32 v172, 9, v172')
    for th in range(2):
        a('s_xor_b32 s54, s66, %d' % (1 - th)); a('s_lshl_b32 s54, s54, 5'); a('v_add_u32 v173, s54, v7')
        a('v_lshrrev_b32 v174, 5, v173'); a('v_lshl_add_u32 v174, v174, 15, v172'); a('v_and_b32 v173, 31, v173'); a('v_lshl_add_u32 v%d, v173, 4, v174' % (8 + th))
    a('s_lshl_b32 s54, s68, 13'); a('s_lshr_b32 s55, s70, 2'); a('s_add_u32 s54, s54, s55'); a('s_lshl_b32 s55, s51, 8'); a('s_add_u32 s54, s54, s55')
    a('s_add_u32 s65, s54, 0x%x' % ST1); a('v_lshlrev_b32 v0, 3, v1')
    if 'nd2' not in EXP: a.wait('z')
    a.stamp('z drained')
    a.signal('s59', eager='2' in EAGER)
    a.poll(4, 's58', 's59')
    a.stamp('X2 seen')
    def bitems(nks, dst, lab):
        l = []
        for th in range(2):
            for s in range(nks):
                it = []
                if s % 4 == 0: it.append('s_add_u32 s93, s%d, %d' % (57 - th, 1024 * s))
                va, sd = (8 + th, 's[44:47]') if lab == 'b' else (14, 's[32:35]')
                if OWNH and lab == 'f': it.append('s_mov_b64 exec, s[%d:%d]' % ((96, 97) if s < 11 else (98, 99)))
                it.append(('buffer_load_dwordx4 %s, v%d, %s, s93 offen offset:%d sc1' % (ur(dst(nks * th + s), 4), va, sd, 1024 * (s & 3)), '%s%d' % (lab, nks * th + s)))
                if OWNH and lab == 'f': it.append('s_mov_b64 exec, -1')
                l.append(it)
        return l
    def ksplit(nks, wreg, breg, lab, bgl, nbg, check):
        bl = bitems(nks, breg, lab)
        a.take(bl, PB2 if check else PB4)
        for th in range(2):
            wr = (red_write(0) + red_write(1)) if th else []
            if th and check:
                assert not bl
                if '2' not in EAGER: a.late('s59')
                a('s_mov_b32 s82, 0'); a('Lhalo:'); a('v_mov_b32 v7, 0')
            for s in range(nks):
                k = nks * th + s
                a.wait('%s%d' % (lab, k))
                for ch in range(2):
                    a(M32 % (vr(acc(th, ch), 16), ur(wreg(s, ch), 4), ur(breg(k), 4), vr(acc(th, ch), 16) if s else '0'))
                    if th and check: a('v_max3_u32 v7, v7, v%d, v%d' % (breg(k) + 2 * ch, breg(k) + 2 * ch + 1))
                    if ch == 0 and bl: a.take(bl)
                    elif not bl and nbg > 0 and (ch or nbg > nks - s): a.take(bgl); nbg -= 1
                if wr and s >= 1: a(wr.pop(0))
                if wr and s >= nks - 1: a(wr.pop(0))
                if th and not check and s == nks - LATE4 and '4' not in EAGER: a.late('s59')
        if check:
            a('v_cmp_eq_u32 vcc, -1, v7'); a('s_cbranch_vccz Lhalook')
            for it in bitems(nks, breg, lab)[nks:]:
                for x in it: a(x[0] if isinstance(x, tuple) else x)
            a.guard(0x8000)
            a('s_waitcnt vmcnt(0)'); a('s_branch Lhalo')
            a('Lhalook:'); a.count(62)
        for w in red_write(2): a(w)
        a('s_waitcnt lgkmcnt(0)'); a('s_barrier')
    ksplit(8, lambda s, ch: 256 + 64 + 8 * s + 4 * ch, lambda k: 80 + 4 * k, 'b', w3l, W3C, True)
    a.stamp('g2 mfma')
    for r in red_reads(80): a(r)
    for i in range(0, 16, 2): a(pk('v_pk_add_f32', o + i, [o + i, HN + i]))
    red_adds(a, 80)
    for i in range(8): a('v_cvt_pk_bf16_f32 v%d, v%d, v%d' % (96 + i, o + 2 * i, o + 2 * i + 1))
    a.vm('buffer_store_dwordx4 v[96:99], v14, s[32:35], s64 offen sc1')
    a.vm('buffer_store_dwordx4 v[100:103], v14, s[32:35], s64 offen offset:1024 sc1')
    a('v_mov_b32 v104, 0'); a('v_mov_b32 v105, 0')
    for i in range(8):
        a('v_dot2c_f32_bf16 v104, v%d, v%d' % (96 + i, ONES)); a('v_dot2c_f32_bf16 v105, v%d, v%d' % (96 + i, 96 + i))
    a('v_mov_b32 v106, v104'); a('v_mov_b32 v107, v105')
    a('v_permlane32_swap_b32 v104, v106'); a('v_permlane32_swap_b32 v105, v107')
    a(pk('v_pk_add_f32', 104, [104, 106]))
    a('s_mov_b32 exec_hi, 0')
    a.vm('buffer_store_dwordx2 v[104:105], v0, s[32:35], s65 offen sc1', 'x1')
    a('s_mov_b32 exec_hi, -1')
    if 'front' not in EXP and 'rho' not in EXP: a.stamp('x1 stored')
    a.take(w3l, 48)
    RES = 128
    for i in range(8): a(lo(80 + 2 * i, 96 + i)); a(hi(81 + 2 * i, 96 + i))
    for i in range(0, 16, 2): a(pk('v_pk_add_f32', RES + i, [HF + i, 80 + i]))
    a('s_add_u32 s59, s79, 0x%x' % F_X); a('s_add_u32 s58, s72, 0x%x' % F_X)
    a('s_lshl_b32 s64, s48, 13'); a('s_lshl_b32 s65, s68, 16'); a('s_add_u32 s65, s65, s64'); a('s_add_u32 s65, s65, 0x%x' % X1B)
    a('s_lshl_b32 s67, s68, 13'); a('s_lshl_b32 s54, s48, 11'); a('s_add_u32 s67, s67, s54'); a('s_add_u32 s67, s67, 0x%x' % ST1)
    a('v_lshlrev_b32 v8, 9, v6'); a('v_lshl_add_u32 v8, v5, 4, v8'); a('v_add_u32 v9, 0x8000, v8')
    a('s_mul_i32 s74, s69, %d' % (86 * 2048)); a('s_mul_i32 s53, s48, %d' % (22 * 2048)); a('s_add_u32 s74, s74, s53')
    a('s_add_u32 s75, s74, %d' % (20 * 2048)); a('s_cmp_eq_u32 s48, 3'); a('s_cselect_b32 s75, 0x400000, s75')
    a('s_lshl_b32 s53, s52, 10'); a('v_add_u32 v113, s53, v14'); a('v_xor_b32 v112, 0x400, v113')
    srd(a, 44, 30, 64 * HTH, '0x%x' % HB)
    a('s_lshl_b32 s53, s68, 1'); a('s_mul_i32 s53, s53, %d' % HTH); a('s_lshl_b32 s54, s73, 10'); a('s_add_u32 s56, s53, s54')
    a('s_add_u32 s57, s56, %d' % HTH)
    a('s_cmp_eq_u32 s48, 3'); a('s_cselect_b32 s76, 0x%x, s56' % (64 * HTH)); a('s_cselect_b32 s77, 0x%x, s57' % (64 * HTH))
    a('s_lshl_b32 s53, s48, 3'); a('s_add_u32 s53, s53, %d' % G_ST); a('v_lshlrev_b32 v115, 5, v1'); a('v_add_u32 v114, s53, v115'); a('v_add_u32 v115, %d, v115' % G_ST)
    a('s_mov_b32 m0, s64')
    if 'nd3' not in EXP: a.wait('x1')
    a.stamp('x1 drained')
    a.signal('s59', eager='3' in EAGER)
    CS3 = 116
    def cs3(js):
        for s in range(16):
            for j in js: a(M16 % (vr(CS3 + 4 * j, 4), ur(WR3[j] + 4 * s, 4), vr(ONES, 4), vr(CS3 + 4 * j, 4) if s else '0'))
    assert W3A + W3B + W3C >= 16 * CSE or CSE == 0
    a.poll(4, 's58', 's59', between=lambda: cs3((1, 2, 0)[:CSE]))
    a.stamp('X3 seen')
    for p in range(4): a.vm('buffer_load_dwordx2 %s, v0, s[32:35], s67 offen offset:%d sc1' % (vr(80 + 2 * p, 2), 512 * p), 'sp')
    xl = []
    for i in range(16):
        it = []
        if i % 4 == 0:
            oo = 32768 * (i >> 3) + 1024 * (i & 7)
            if i: it += ['s_add_u32 s53, s64, %d' % oo, 's_mov_b32 m0, s53']
            it.append('s_add_u32 s93, s65, %d' % oo)
        it.append(('buffer_load_dwordx4 v14, s[32:35], s93 offen offset:%d sc1 lds' % (1024 * (i & 3)), 'x%d' % (i >> 3)))
        xl.append(it)
    a.take(xl, PX3)
    if '3' not in EAGER: a.late('s59')
    cs3((1, 2, 0)[CSE:])
    def w4reg(s, ch): return (256 + 8 * s + 4 * ch) if s < 16 else (144 + 8 * (s - 16) + 4 * ch)
    w4l = []
    for s in range(22):
        for ch in range(2):
            it = []
            if s % 2 == 0 and ch == 0: it.append('s_add_u32 s87, s74, %d' % (2048 * s) if s < 20 else 's_mov_b32 s87, s75')
            it.append(('buffer_load_dwordx4 %s, v%d, s[36:39], s87 offen offset:%d' % (ur(w4reg(s, ch), 4), 112 + ch, 2048 * (s & 1)), 'w4'))
            w4l.append(it)
    if 'now4' in EXP: w4l = []
    if 'hit4' in EXP: w4l = [[('s_mov_b32 s87, s74' if isinstance(x, str) else (x[0].replace('offset:2048', 'offset:0'), x[1])) for x in it] for it in w4l]
    a.wait('sp')
    a(pk('v_pk_add_f32', 80, [80, 82])); a(pk('v_pk_add_f32', 84, [84, 86])); a(pk('v_pk_add_f32', 80, [80, 84]))
    a('ds_write_b64 v114, v[80:81]')
    a('s_lshl_b32 s53, s48, 10'); a('s_add_u32 s53, s53, %d' % G_ST2); a('v_add_u32 v7, s53, v14'); a('v_lshl_add_u32 v0, v5, 4, s53')
    a.wait('x0', 'lgkmcnt(0)')
    a('s_barrier')
    a.stamp('x0 landed')
    A3 = 16; BR = 40; TMP = 72; PK = 84; STT = 96
    a('ds_read_b128 v[72:75], v115'); a('ds_read_b128 v[76:79], v115 offset:16')
    if OWNH: a('s_mul_i32 s53, s48, 3072'); a('s_add_u32 s53, s53, %d' % L_S2); a('v_add_u32 v114, s53, v14')
    def rd(k):
        tt, s = k >> 4, k & 15
        return 'ds_read_b128 %s, v%d offset:%d' % (vr(BR + 4 * (k & 7), 4), 8 + (tt >> 1), 2048 * s + 256 * (tt & 1))
    for k in range(6): a(rd(k))
    st = ['v_add_f32 v72, v72, v74', 'v_add_f32 v73, v73, v75', 'v_add_f32 v76, v76, v78', 'v_add_f32 v77, v77, v79',
          'v_add_f32 v72, v72, v76', 'v_add_f32 v73, v73, v77',
          'v_mul_f32 v72, s60, v72', 'v_mul_f32 v74, v72, v72', 'v_fma_f32 v73, v73, s60, -v74', 'v_max_f32 v73, 0, v73',
          'v_add_f32 v73, 0x%x, v73' % f2u(EPS), 'v_rsq_f32 v76, v73', 'v_sqrt_f32 v75, v73', 'v_mul_f32 v73, 0x%x, v76' % f2u(C0),
          'v_mul_f32 v74, v76, v76', 'v_mul_f32 v74, v74, v76', 'v_mul_f32 v74, 0x%x, v74' % f2u(C1), 'v_sub_f32 v72, 0, v72',
          ('ds', 'ds_write_b128 v7, v[72:75]')] + [('ds', 'ds_read_b128 %s, v0 offset:%d' % (vr(STT + 4 * tt, 4), 256 * tt)) for tt in range(4)]
    def epi(tt, packed):
        o3 = A3 + 12 * (tt & 1); m = STT + 4 * tt
        if packed:
            l = [pk('v_pk_fma_f32', o3 + i, [bc(m), CS3 + i, o3 + i]) for i in range(0, 12, 2)]
            l += gelu_pk(o3, m + 1, m + 2, m + 3, TMP, 12)
        else:
            l = ['v_fmac_f32 v%d, v%d, v%d' % (o3 + i, m, CS3 + i) for i in range(12)]
            l += gelu_plain(o3, m + 1, m + 2, m + 3, TMP, 12)
        for j in range(3):
            for i in range(2): l.append('v_cvt_pk_bf16_f32 v%d, v%d, v%d' % (PK + 4 * j + 2 * (tt & 1) + i, o3 + 4 * j + 2 * i, o3 + 4 * j + 2 * i + 1))
        if tt & 1:
            for j in range(3):
                l.append('v_permlane16_swap_b32 v%d, v%d' % (PK + 4 * j, PK + 4 * j + 2)); l.append('v_permlane16_swap_b32 v%d, v%d' % (PK + 4 * j + 1, PK + 4 * j + 3))
            for j in range(3):
                l.append(('vm', 'buffer_store_dwordx4 %s, v14, s[44:47], s%d offen offset:%d sc1' % (vr(PK + 4 * j, 4), (76 if j == 2 else 56) + (tt >> 1), 1024 * j)))
                if OWNH: l.append(('ds', 'ds_write_b128 v114, %s offset:%d' % (vr(PK + 4 * j, 4), 12288 * (tt >> 1) + 1024 * j)))
        return l
    pend = st
    lg = [('r', k) for k in range(6)]
    def cost(x): return 2 if isinstance(x, str) and x.startswith(('v_exp', 'v_rcp', 'v_rsq', 'v_sqrt')) else 1
    def emit_p(x):
        if isinstance(x, str): a(x)
        elif x[0] == 'vm': a.vm(x[1], 'H')
        elif x[0] == 'ds': a(x[1]); lg.append(('o', 0))
    for k in range(64):
        tt, s = k >> 4, k & 15
        if k % 8 == 0: a.fs('g3', 'k%d' % k)
        if k == 26:
            a.wait('x1'); a('s_barrier')
        if k % 2 == 0:
            for kk in (k + 6, k + 7):
                if kk < 64: a(rd(kk)); lg.append(('r', kk))
            idx = lg.index(('r', k + 1)); a('s_waitcnt lgkmcnt(%d)' % (len(lg) - 1 - idx)); del lg[:idx + 1]
        left = sum(cost(x) for x in pend); slots = 3 * (16 - s)
        for j in range(3):
            o3 = A3 + 12 * (tt & 1) + 4 * j
            a(M16 % (vr(o3, 4), ur(WR3[j] + 4 * s, 4), vr(BR + 4 * (k & 7), 4), vr(o3, 4) if s else '0'))
            if s >= 1 or (tt == 0 and j):
                budget = max(2, -(-left // slots)) if tt else 2
                while pend and budget >= cost(pend[0]):
                    budget -= cost(pend[0]); emit_p(pend.pop(0))
            if j == 2 and xl: a.take(xl)
            elif j == 2 and len(w4l) > W4TAIL and (k - 8) * (44 - W4TAIL) >= (44 - len(w4l)) * (W4END - 8): a.take(w4l)
        if s == 15:
            while pend: emit_p(pend.pop(0))
            pend = epi(tt, tt == 3)
            if 'nogelu' in EXP and tt < 3: pend = [x for x in pend if not isinstance(x, str)]
    a.stamp('g3 mfma'); a.fs('g3', 'end')
    while pend: emit_p(pend.pop(0))
    if 'front' not in EXP and 'rho' not in EXP: a.stamp('H stored')
    a.take(w4l, 44)
    a('s_add_u32 s59, s79, 0x%x' % F_F); a('s_add_u32 s58, s72, 0x%x' % F_F)
    a('s_mul_i32 s56, s66, %d' % HTH); a('s_xor_b32 s54, s66, 1'); a('s_mul_i32 s57, s54, %d' % HTH)
    a('s_mul_i32 s54, s48, %d' % (22 * 1024)); a('s_add_u32 s54, s54, 0x%x' % HB); a('s_add_u32 s56, s56, s54'); a('s_add_u32 s57, s57, s54')
    srd(a, 40, 26, 2 * MB)
    if OUT64:
        a('v_lshlrev_b32 v7, 10, v5'); a('v_lshrrev_b32 v8, 5, v1'); a('v_lshl_add_u32 v7, v8, 4, v7'); a('v_and_b32 v8, 1, v6'); a('v_lshl_add_u32 v7, v8, 5, v7')
    else:
        a('v_and_b32 v7, 31, v1'); a('v_lshlrev_b32 v7, 10, v7'); a('v_lshrrev_b32 v8, 5, v1'); a('v_lshl_add_u32 v7, v8, 4, v7')
    a('s_lshl_b32 s64, s66, 15'); a('s_lshr_b32 s54, s70, 5'); a('s_add_u32 s64, s64, s54')
    if OWNH:
        a('s_lshr_b32 s53, s69, 1'); a('s_cmp_eq_u32 s53, s48'); a('s_cselect_b32 s54, 1, 0'); a('s_and_b32 s55, s69, 1')
        a('s_andn2_b32 s53, s54, s55'); a('s_sub_u32 s96, s53, 1'); a('s_mov_b32 s97, s96')
        a('s_and_b32 s53, s54, s55'); a('s_sub_u32 s98, s53, 1'); a('s_mov_b32 s99, s98')
        a('s_mul_i32 s53, s51, 12288'); a('s_add_u32 s53, s53, %d' % L_S2); a('v_add_u32 v9, s53, v14')
        a('s_xor_b32 s53, s51, 1'); a('s_mul_i32 s53, s53, 12288'); a('s_add_u32 s53, s53, %d' % L_S2); a('v_add_u32 v8, s53, v14')
    if 'nd4' not in EXP: a.wait('H', 'lgkmcnt(0)')
    a.stamp('H drained'); a.fs('g3', 'drained')
    a.signal('s59', eager='4' in EAGER)
    def b4(k): return (256 + 128 + 4 * k) if k < 32 else (192 + 4 * (k - 32))
    def ownh():
        for half in range(2):
            a('s_cmp_lg_u32 s%d, 0' % (96 + 2 * half)); a('s_cbranch_scc1 Lown%d' % half)
            for th in range(2):
                for i in range(11): a('ds_read_b128 %s, v%d offset:%d' % (ur(b4(22 * th + 11 * half + i), 4), 8 + th, 1024 * i))
            a('s_waitcnt lgkmcnt(0)')
            a('Lown%d:' % half)
    a.poll(4, 's58', 's59', between=ownh if OWNH else None)
    a.stamp('X4 seen'); a.fs('g3', 'X4')
    ksplit(22, w4reg, b4, 'f', None, 0, False)
    a.stamp('g4 mfma')
    for r in red_reads(80): a(r)
    for i in range(0, 16, 2): a(pk('v_pk_add_f32', o + i, [o + i, RES + i]))
    red_adds(a, 80)
    if E('OSC', 0.0):
        for i in range(16): a('v_mul_f32 v%d, 0x%x, v%d' % (o + i, f2u(1.0 + E('OSC', 0.0)), o + i))
    for i in range(8): a('v_cvt_pk_bf16_f32 v%d, v%d, v%d' % (96 + i, o + 2 * i, o + 2 * i + 1))
    if OUT64:
        a('s_add_u32 s65, s64, 0x4000')
        for i in range(4): a('v_permlane16_swap_b32 v%d, v%d' % (96 + i, 100 + i))
        a.vm('buffer_store_dwordx4 v[96:99], v7, s[40:43], s64 offen ' + OUTF)
        a.vm('buffer_store_dwordx4 v[100:103], v7, s[40:43], s65 offen ' + OUTF)
    else:
        a.vm('buffer_store_dwordx4 v[96:99], v7, s[40:43], s64 offen ' + OUTF)
        a.vm('buffer_store_dwordx4 v[100:103], v7, s[40:43], s64 offen offset:32 ' + OUTF)
    if stamp or SPIN:
        a.wait0(); a.stamp('end')
    if FINE:
        a('s_waitcnt vmcnt(0) lgkmcnt(0)'); a('v_mov_b32 v15, 0')
        for i in range(len(a.fnames)):
            a('v_writelane_b32 v15, s%d, %d' % (FREGS[i], i)); a('v_writelane_b32 v15, s%d, %d' % (FREGS[i], 32 + i))
        a.names = a.fnames
    if stamp or FINE:
        a('s_lshl_b32 s53, s63, 8'); a('s_add_u32 s53, s53, 0x%x' % STAMPS); a('v_lshlrev_b32 v7, 2, v1')
        a('buffer_store_dword v15, v7, s[32:35], s53 offen')
    if SPIN:
        a('s_sub_u32 s96, s97, s96'); a('s_mul_i32 s96, s96, %s' % SPIN[2])
        a('s_memrealtime s[90:91]'); a('s_waitcnt lgkmcnt(0)'); a('s_mov_b32 s97, s90')
        a('Lspin:'); a('s_memrealtime s[90:91]'); a('s_waitcnt lgkmcnt(0)'); a('s_sub_u32 s90, s90, s97'); a('s_cmp_lt_u32 s90, s96'); a('s_cbranch_scc1 Lspin')
    a('Lend:')
    a('s_endpgm')
    body = a.a.finish()
    print('instrs', len(a.a.L), 'nops', a.a.nops, file=sys.stderr)
    hdr = open('sequential_preLN__ssm_conv_h3__mixer_s_mlp__prompt.s.ref').read().split('; Override')[0]
    out = hdr + DOC + '; @launch grid=(256,1,1) block=(256,1,1) lds=%d\n' % LDS_BYTES
    if stamp or FINE: out += '; stamps: ' + '|'.join(a.names) + '\n'
    out += '.amdgcn_target "amdgcn-amd-amdhsa--gfx950"\n.text\n.globl %s\n.p2align 8\n.type %s,@function\n%s:\n' % (NAME, NAME, NAME)
    out += body
    out += '.fill 4096, 4, 0xbf810000\n'
    out += '''.section .rodata,"a"
.p2align 6
.amdhsa_kernel %s
  .amdhsa_next_free_vgpr 512
  .amdhsa_next_free_sgpr 102
  .amdhsa_accum_offset 256
  .amdhsa_group_segment_fixed_size 0
  .amdhsa_kernarg_size 112
  .amdhsa_user_sgpr_count 2
  .amdhsa_user_sgpr_kernarg_segment_ptr 1
  .amdhsa_system_sgpr_workgroup_id_x 1
  .amdhsa_float_denorm_mode_32 3
.end_amdhsa_kernel
''' % NAME
    return out

if __name__ == '__main__':
    open(sys.argv[1], 'w').write(build(len(sys.argv) > 2))
```

```python
import sys, struct, os
from asmlib import *

E = lambda n, d: type(d)(os.environ.get(n, d))
NT = E('NT', ''); NTX = E('NTX', ''); PACE = E('PACE', 6); PRE0 = E('PRE0', 0); NST = E('NST', 8); SLEEP = E('SLEEP', 0)
W4TAIL = E('W4TAIL', 0); W4END = E('W4END', 52); OUTF = E('OUTF', '')
TWHEN = E('TWHEN', 2); BG0 = E('BG0', 28); ST_AT = E('ST_AT', 3); PST_AT = E('PST_AT', 110); W2A = E('W2A', 0); ZT = E('ZT', 0); W2PRE = E('W2PRE', 0); RR = E('RR', ''); HFS = E('HFS', 8); HREP = E('HREP', 8)
KWHEN = E('KWHEN', 0); PWHEN = E('PWHEN', 1)
W3A = E('W3A', 18); W3B = E('W3B', 4); W3C = E('W3C', 16)
EXP = E('EXP', '').split(',')
ONLY = [x for x in E('ONLY', '').split(',') if x]
FINE = E('FINE', ''); FREGS = [4, 6, 8, 10, 12, 14, 16, 18, 20, 22, 24, 84, 90, 94, 96, 100]
if FINE == 'f0': FREGS = [90, 94, 96, 100, 16]
PB2 = E('PB2', 8); PB4 = E('PB4', 8); PH = E('PH', 8); PX3 = E('PX3', 8); OWNH = E('OWNH', 0); G0AT = E('G0AT', 60); G0N = E('G0N', 10); PRE4 = E('PRE4', 8); F1POLL = E('F1POLL', 8); F1CHK = E('F1CHK', 13); GE = E('GE', 1); FE = E('FE', 1); SUMM = E('SUMM', 0); WRS = E('WRS', 5); CSE = E('CSE', 2); SH0 = E('SH0', 66); SH3 = E('SH3', 5); EAGER = E('EAGER', '0234'); E4EARLY = E('E4EARLY', 1); XTLATE = E('XTLATE', 0); ENTRY = E('ENTRY', 1); LATE4 = E('LATE4', 8); OUT64 = E('OUT64', 1); PUBK = E('PUBK', 30)
SPIN = os.environ['SPIN'].split(',') if os.environ.get('SPIN') else None

MB = 1 << 20
KVR = 0; XT = 2 * MB; HT = 4 * MB; ZB = 6 * MB; X1B = 8 * MB; HB = 10 * MB
W3P = 16 * MB; W4P = W3P + 1408 * 1024
ST0 = 20 * MB
ST1 = ST0 + 65536
FL = ST1 + 262144
FGL = 0x10000
F_A = FL; F_Z = FL + 0x2000; F_X = FL + 0x4000; F_F = FL + 0x6000; F_G = FL + 0x8000
F_H = FL + 0x20000
STAMPS = 64 * MB
DUMP = 0x10000000
HTH = 176 * 512
EPS = 1e-5
def f2u(f): return struct.unpack('<I', struct.pack('<f', f))[0]
C0 = -2.0 * 0.7978845608028654 * 1.4426950408889634
C1 = C0 * 0.044715
NAME = 'sequential_preLN__ssm_conv_h3__mixer_s_mlp__prompt_kernel'

CS = 4160
L_E4 = 0; L_KV = 33280; L_CRED = L_KV + 2 * 4608
L_S = 65536
L_S2 = 131072
L_K = L_S; L_V = L_K + 9216; L_X = L_V + 8192; L_PK = (L_S2 + 4096) if E('PWHEN', 1) == 3 else (L_S + 32768)
G_RED = 65536; G_ST = G_RED + 49152; G_ST2 = G_ST + 2048
LDS_BYTES = 163840

TAG = 's[80:81]'
class G:
    def __init__(self, stamp=False):
        self.a = Asm(); self.stamp_on = stamp; self.q = []; self.nst = 0; self.names = []; self.np = 0; self.fnames = []
    def __call__(self, t): self.a(t)
    def vm(self, text, label=None):
        self.a(text); self.q.append(label)
    def item(self, it):
        for x in it:
            if isinstance(x, tuple): self.vm(x[0], x[1])
            else: self.a(x)
    def take(self, lst, n=1):
        for _ in range(n):
            if lst: self.item(lst.pop(0))
    def wait(self, label, extra=''):
        if label not in self.q:
            if extra: self.a('s_waitcnt ' + extra)
            return
        idx = max(i for i, l in enumerate(self.q) if l == label)
        n = len(self.q) - 1 - idx
        assert n < 64
        self.a('s_waitcnt vmcnt(%d) %s' % (n, extra)); self.q = self.q[idx + 1:]
    def wait0(self, extra=''):
        self.a('s_waitcnt vmcnt(0) %s' % extra); self.q = []
    def count(self, lane):
        if self.stamp_on: self.a('v_writelane_b32 v15, s82, %d' % lane)
    def stamp(self, name):
        if SPIN and name in SPIN:
            self.a('s_memrealtime s[90:91]'); self.a('s_waitcnt lgkmcnt(0)'); self.a('s_mov_b32 s%d, s90' % (96 + SPIN.index(name)))
        if self.stamp_on and (not ONLY or name in ONLY):
            self.a('s_memrealtime s[90:91]'); self.a('s_memtime s[94:95]'); self.a('s_waitcnt lgkmcnt(0)'); self.a('v_writelane_b32 v15, s90, %d' % self.nst)
            self.a('v_writelane_b32 v15, s94, %d' % (32 + self.nst)); assert self.nst < 30
            self.names.append(name); self.nst += 1
    def fs(self, region, name):
        if FINE == region:
            r = FREGS[len(self.fnames)]
            self.a('s_memtime s[%d:%d]' % (r, r + 1)); self.fnames.append(name)
    def guard(self, limit=0x20000):
        self.a('s_add_u32 s82, s82, 1'); self.a('s_cmp_gt_u32 s82, 0x%x' % limit); self.a('s_cbranch_scc1 Lend')
    def publish(self, mine):
        a = self
        a('s_add_u32 s83, %s, 0x%x' % (mine, FGL)); a('s_mov_b64 exec, 1')
        a('buffer_store_dwordx2 v[2:3], off, s[32:35], s83 sc1'); a('s_mov_b64 exec, -1')
    def wsig(self, mine, label=None):
        a = self
        a('s_mov_b64 exec, 1'); a.vm('buffer_store_dwordx2 v[2:3], off, s[32:35], %s' % mine, label); a('s_mov_b64 exec, -1')
    def wpub(self, mine):
        a = self
        a('s_add_u32 s83, %s, 0x%x' % (mine, FGL)); a('s_mov_b64 exec, 1')
        a.vm('buffer_store_dwordx2 v[2:3], off, s[32:35], s83 sc1'); a('s_mov_b64 exec, -1')
    def late(self, mine):
        a = self; n = self.np; self.np += 1
        a('s_cmp_lg_u32 s48, 3'); a('s_cbranch_scc1 Llate%d' % n)
        a.publish(mine)
        a('Llate%d:' % n)
    def poll(self, vaddr, soff, dual, sleep=0, tmp=16, between=None):
        a = self; n = self.np; self.np += 1
        a('s_mov_b32 s82, 0')
        a('buffer_load_dwordx2 %s, v%d, s[32:35], %s offen sc1' % (vr(tmp, 2), vaddr, soff))
        if between: between()
        a('Lpoll%d:' % n)
        a.wait0()
        a('v_cmp_ne_u64 vcc, %s, %s' % (TAG, vr(tmp, 2)))
        a('s_cbranch_vccz Lpolld%d' % n)
        if sleep: a('s_sleep %d' % sleep)
        so = soff
        if dual:
            a('s_cmp_lg_u32 s82, 32'); a('s_cbranch_scc1 Lpollp%d' % n)
            a.publish(dual)
            a('Lpollp%d:' % n)
            a('s_cmp_lt_u32 s82, 32'); a('s_cselect_b32 s83, 0, 0x%x' % FGL); a('s_add_u32 s83, s83, %s' % soff); so = 's83'
        a('buffer_load_dwordx2 %s, v%d, s[32:35], %s offen sc1' % (vr(tmp, 2), vaddr, so))
        a.guard()
        a('s_branch Lpoll%d' % n)
        a('Lpolld%d:' % n)
    def signal(self, soff, rep=None, eager=False):
        a = self; n = self.np; self.np += 1
        a('s_barrier')
        a('s_cmp_lg_u32 s48, 0'); a('s_cbranch_scc1 Lsig%d' % n)
        if rep is None:
            a('s_mov_b64 exec, 1')
            a('buffer_store_dwordx2 v[2:3], off, s[32:35], %s' % soff)
            if eager:
                a('s_add_u32 s83, %s, 0x%x' % (soff, FGL))
                a('buffer_store_dwordx2 v[2:3], off, s[32:35], s83 sc1')
        else:
            a('s_mov_b64 exec, %d' % ((1 << HREP) - 1))
            a('buffer_store_dwordx2 v[2:3], v%d, s[32:35], %s offen sc1' % (rep, soff))
        a('s_mov_b64 exec, -1')
        a('Lsig%d:' % n)

def srd(a, d, p, size, off=None):
    if off is None:
        a('s_mov_b32 s%d, s%d' % (d, p)); a('s_mov_b32 s%d, s%d' % (d + 1, p + 1))
    else:
        a('s_add_u32 s%d, s%d, %s' % (d, p, off)); a('s_addc_u32 s%d, s%d, 0' % (d + 1, p + 1))
    a('s_mov_b32 s%d, 0x%x' % (d + 2, size)); a('s_mov_b32 s%d, 0x20000' % (d + 3))

def allreduce(a, regs, tmps):
    for m in ('quad_perm:[1,0,3,2]', 'quad_perm:[2,3,0,1]', 'row_half_mirror', 'row_mirror'):
        for r in regs: a('v_add_f32_dpp v%d, v%d, v%d %s row_mask:0xf bank_mask:0xf' % (r, r, r, m))
    for sw in ('v_permlane16_swap_b32', 'v_permlane32_swap_b32'):
        for r, t in zip(regs, tmps): a('v_mov_b32 v%d, v%d' % (t, r))
        for r, t in zip(regs, tmps): a('%s v%d, v%d' % (sw, r, t))
        for r, t in zip(regs, tmps): a('v_add_f32 v%d, v%d, v%d' % (r, r, t))

ACC = 16
def acc(th, ch): return ACC + 32 * th + 16 * ch
def red_write(slot):
    th, ch = slot >> 1, slot & 1
    return ['ds_write_b128 v%d, %s offset:%d' % (10 + slot, vr(acc(th, ch) + 4 * q, 4), 1024 * q) for q in range(4)]
def red_reads(tmp): return ['ds_read_b128 %s, v13 offset:%d' % (vr(tmp + 4 * i, 4), 1024 * i) for i in range(12)]
def red_adds(a, tmp, dst=None):
    o = acc(1, 1)
    for i in range(12):
        if i % 2 == 0: a('s_waitcnt lgkmcnt(%d)' % (10 - i))
        d = dst if (dst is not None and i >= 8) else o
        for r in (0, 2): a('v_pk_add_f32 %s, %s, %s' % (vr(d + 4 * (i & 3) + r, 2), vr(o + 4 * (i & 3) + r, 2), vr(tmp + 4 * i + r, 2)))

def lo(d, s): return 'v_lshlrev_b32 v%d, 16, v%d' % (d, s)
def hi(d, s): return 'v_and_b32 v%d, s61, v%d' % (d, s)
def bc(r): return vr(r & ~1, 2), r & 1
def pk(op, d, srcs, neg=None):
    names = []; l = []; h = []
    for s in srcs:
        if isinstance(s, tuple): names.append(s[0]); l.append(s[1]); h.append(s[1])
        else: names.append(vr(s, 2)); l.append(0); h.append(1)
    t = '%s %s, %s' % (op, vr(d, 2), ', '.join(names))
    if l != [0] * len(l) or h != [1] * len(h):
        t += ' op_sel:[%s] op_sel_hi:[%s]' % (','.join(map(str, l)), ','.join(map(str, h)))
    if neg: t += ' neg_lo:[%s] neg_hi:[%s]' % (','.join(map(str, neg)), ','.join(map(str, neg)))
    return t
def gelu_plain(t, ca, cb, ri, tmp, n):
    l = []
    for i in range(n): l.append('v_mul_f32 v%d, v%d, v%d' % (tmp + i, t + i, t + i))
    for i in range(n): l.append('v_fma_f32 v%d, v%d, v%d, v%d' % (tmp + i, tmp + i, cb, ca))
    for i in range(n): l.append('v_mul_f32 v%d, v%d, v%d' % (tmp + i, tmp + i, t + i))
    for i in range(n): l.append('v_exp_f32 v%d, v%d' % (tmp + i, tmp + i))
    for i in range(n): l.append('v_fma_f32 v%d, v%d, v%d, v%d' % (tmp + i, tmp + i, ri, ri))
    for i in range(n): l.append('v_rcp_f32 v%d, v%d' % (tmp + i, tmp + i))
    for i in range(n): l.append('v_mul_f32 v%d, v%d, v%d' % (t + i, t + i, tmp + i))
    return l
def gelu_pk(t, ca, cb, ri, tmp, n):
    l = []
    for i in range(0, n, 2): l.append(pk('v_pk_mul_f32', tmp + i, [t + i, t + i]))
    for i in range(0, n, 2): l.append(pk('v_pk_fma_f32', tmp + i, [tmp + i, bc(cb), bc(ca)]))
    for i in range(0, n, 2): l.append(pk('v_pk_mul_f32', tmp + i, [tmp + i, t + i]))
    for i in range(n): l.append('v_exp_f32 v%d, v%d' % (tmp + i, tmp + i))
    for i in range(0, n, 2): l.append(pk('v_pk_fma_f32', tmp + i, [tmp + i, bc(ri), bc(ri)]))
    for i in range(n): l.append('v_rcp_f32 v%d, v%d' % (tmp + i, tmp + i))
    for i in range(0, n, 2): l.append(pk('v_pk_mul_f32', t + i, [t + i, tmp + i]))
    return l
M32 = 'v_mfma_f32_32x32x16_bf16 %s, %s, %s, %s'
M16 = 'v_mfma_f32_16x16x32_bf16 %s, %s, %s, %s'
TR = 'ds_read_b64_tr_b16 %s, v%d offset:%d'

DOC = '''; One persistent launch, 256 workgroups (one per CU) x 4 waves. Phases, separated by flag hand-offs through d_ws:
'''

def build(stamp=False):
    a = G(stamp)
    a('s_cmp_ge_u32 s2, 256'); a('s_cbranch_scc1 Lend')
    if SPIN and SPIN[0] == 'entry': a.stamp('entry')
    a.fs('f0', 'entry')
    if ENTRY:
        a('s_load_dwordx2 s[36:37], s[0:1], 8'); a('s_load_dwordx2 s[40:41], s[0:1], 16'); a('s_load_dwordx2 s[44:45], s[0:1], 0')
        a('s_getpc_b64 s[84:85]')
        a('s_lshr_b32 s49, s2, 3'); a('s_lshl_b32 s53, s49, 10'); a('v_lshlrev_b32 v7, 2, v0'); a('v_and_b32 v7, 0x380, v7'); a('v_add_u32 v7, s53, v7')
        a.vm('global_load_dword v148, v7, s[84:85]')
        a('v_lshrrev_b32 v1, 6, v0'); a('v_readfirstlane_b32 s48, v1'); a('v_and_b32 v1, 63, v0')
        a('s_mov_b32 s38, 0x200000'); a('s_mov_b32 s39, 0x20000'); a('s_mov_b32 s42, 0x200000'); a('s_mov_b32 s43, 0x20000'); a('s_mov_b32 s46, 0x200000'); a('s_mov_b32 s47, 0x20000')
        a('v_lshrrev_b32 v7, 3, v1'); a('v_lshlrev_b32 v7, 10, v7'); a('v_and_b32 v8, 7, v1'); a('v_lshl_add_u32 v7, v8, 4, v7')
        a('v_bfe_u32 v8, v1, 4, 1'); a('v_lshlrev_b32 v9, 5, v8'); a('v_xor_b32 v16, v9, v7'); a('v_xor_b32 v17, 64, v16')
        a('v_add_u32 v18, 0x1c00, v17'); a('v_add_u32 v19, 0x1c00, v16')
        a('s_and_b32 s50, s2, 7'); a('s_lshl_b32 s53, s49, 16'); a('s_lshl_b32 s54, s48, 14'); a('s_add_u32 s53, s53, s54'); a('s_lshl_b32 s54, s50, 7'); a('s_add_u32 s55, s53, s54')
        a('s_lshl_b32 s56, s48, 11'); a('s_add_u32 s53, s56, %d' % (L_K + 1024)); a('s_mov_b32 m0, s53')
        if stamp: a('v_mov_b32 v15, 0')
        a('s_waitcnt lgkmcnt(0)')
        a.stamp('start'); a.fs('f0', 'karg')
        a.vm('buffer_load_dwordx4 v17, s[36:39], s55 offen %s lds' % NT)
        a.vm('buffer_load_dwordx4 v19, s[36:39], s55 offen offset:1024 %s lds' % NT)
        a('s_add_u32 s53, s56, %d' % L_V); a('s_mov_b32 m0, s53')
        a('s_load_dwordx16 s[4:19], s[0:1], 0')
        a.vm('buffer_load_dwordx4 v16, s[40:43], s55 offen %s lds' % NT)
        a.vm('buffer_load_dwordx4 v18, s[40:43], s55 offen offset:1024 %s lds' % NT)
        a('s_add_u32 s53, s56, %d' % L_X); a('s_mov_b32 m0, s53')
        a('s_load_dwordx8 s[20:27], s[0:1], 64')
        a.vm('buffer_load_dwordx4 v16, s[44:47], s55 offen %s lds' % NTX)
        a.vm('buffer_load_dwordx4 v18, s[44:47], s55 offen offset:1024 %s lds' % NTX)
        a('s_load_dwordx4 s[28:31], s[0:1], 96')
        a('s_memrealtime s[80:81]'); a.fs('f0', 'kvx issued')
        a('s_cmp_lg_u32 s48, 0'); a('s_cbranch_scc1 Lnoh')
        a('s_sub_u32 s53, s55, 0x2000'); a('s_cselect_b32 s53, 0x400000, s53'); a('s_mov_b32 m0, %d' % L_K)
        a('buffer_load_dwordx4 v16, s[36:39], s53 offen %s lds' % NT)
        a('Lnoh:')
        a('s_and_b32 s51, s48, 1'); a('s_lshr_b32 s52, s48, 1')
        a('v_and_b32 v5, 15, v1'); a('v_lshrrev_b32 v6, 4, v1'); a('v_lshlrev_b32 v14, 4, v1')
        a('v_lshlrev_b32 v9, 6, v8'); a('v_xor_b32 v184, v9, v7')
        a('s_mov_b32 s60, 0x%x' % f2u(1.0 / 512)); a('s_mov_b32 s61, 0xffff0000')
        a('s_lshl_b32 s63, s2, 2'); a('s_add_u32 s63, s63, s48')
        a('s_waitcnt lgkmcnt(0)')
        a('s_cmp_lg_u32 s63, 0'); a('s_cbranch_scc1 Lnotag')
        a('v_mov_b32 v2, s80'); a('v_mov_b32 v3, s81'); a('v_mov_b32 v4, 0'); a('s_mov_b64 exec, 1')
        a('global_store_dwordx2 v4, v[2:3], s[28:29] sc1'); a('s_mov_b64 exec, -1')
        a('Lnotag:')
    else:
        a('s_load_dwordx16 s[4:19], s[0:1], 0')
        a('s_getpc_b64 s[84:85]')
        a('s_lshr_b32 s49, s2, 3'); a('s_lshl_b32 s53, s49, 10'); a('v_lshlrev_b32 v7, 2, v0'); a('v_and_b32 v7, 0x380, v7'); a('v_add_u32 v7, s53, v7')
        a.vm('global_load_dword v148, v7, s[84:85]')
        a('s_load_dwordx8 s[20:27], s[0:1], 64')
        a('s_load_dwordx4 s[28:31], s[0:1], 96')
        a('s_memrealtime s[80:81]')
        a('v_lshrrev_b32 v1, 6, v0'); a('v_readfirstlane_b32 s48, v1'); a('v_and_b32 v1, 63, v0')
        if stamp: a('v_mov_b32 v15, 0')
        a('s_and_b32 s50, s2, 7')
        a('s_and_b32 s51, s48, 1'); a('s_lshr_b32 s52, s48, 1')
        a('v_and_b32 v5, 15, v1'); a('v_lshrrev_b32 v6, 4, v1'); a('v_lshlrev_b32 v14, 4, v1')
        a('v_lshrrev_b32 v7, 3, v1'); a('v_lshlrev_b32 v7, 10, v7'); a('v_and_b32 v8, 7, v1'); a('v_lshl_add_u32 v7, v8, 4, v7')
        a('v_and_b32 v8, 1, v6'); a('v_lshlrev_b32 v9, 6, v8'); a('v_xor_b32 v184, v9, v7')
        a('v_lshlrev_b32 v9, 5, v8'); a('v_xor_b32 v16, v9, v7'); a('v_xor_b32 v17, 64, v16'); a('v_add_u32 v18, 0x1c00, v17')
        a('s_lshl_b32 s53, s49, 16'); a('s_lshl_b32 s54, s48, 14'); a('s_add_u32 s53, s53, s54'); a('s_lshl_b32 s54, s50, 7'); a('s_add_u32 s55, s53, s54')
        a('s_lshl_b32 s56, s48, 11')
        a('v_add_u32 v19, 0x1c00, v16')
        a('s_movk_i32 s62, 0x1000'); a('s_mov_b32 s60, 0x%x' % f2u(1.0 / 512)); a('s_mov_b32 s61, 0xffff0000')
        a('s_lshl_b32 s63, s2, 2'); a('s_add_u32 s63, s63, s48')
        a('s_waitcnt lgkmcnt(0)')
        a.stamp('start')
        srd(a, 36, 6, 2 * MB)
        a('s_add_u32 s53, s56, %d' % (L_K + 1024)); a('s_mov_b32 m0, s53')
        a.vm('buffer_load_dwordx4 v17, s[36:39], s55 offen %s lds' % NT)
        a.vm('buffer_load_dwordx4 v19, s[36:39], s55 offen offset:1024 %s lds' % NT)
        srd(a, 40, 8, 2 * MB)
        a('s_add_u32 s53, s56, %d' % L_V); a('s_mov_b32 m0, s53')
        a.vm('buffer_load_dwordx4 v16, s[40:43], s55 offen %s lds' % NT)
        a.vm('buffer_load_dwordx4 v18, s[40:43], s55 offen offset:1024 %s lds' % NT)
        a('s_cmp_lg_u32 s48, 0'); a('s_cbranch_scc1 Lnoh')
        a('s_sub_u32 s53, s55, 0x2000'); a('s_cselect_b32 s53, 0x400000, s53'); a('s_mov_b32 m0, %d' % L_K)
        a('buffer_load_dwordx4 v16, s[36:39], s53 offen %s lds' % NT)
        a('s_cmp_lg_u32 s2, 0'); a('s_cbranch_scc1 Lnoh')
        a('v_mov_b32 v2, s80'); a('v_mov_b32 v3, s81'); a('v_mov_b32 v4, 0'); a('s_mov_b64 exec, 1')
        a('global_store_dwordx2 v4, v[2:3], s[28:29] sc1'); a('s_mov_b64 exec, -1')
        a('Lnoh:')
        srd(a, 44, 4, 2 * MB)
        a('s_add_u32 s53, s56, %d' % L_X); a('s_mov_b32 m0, s53')
        a.vm('buffer_load_dwordx4 v16, s[44:47], s55 offen %s lds' % NTX)
        a.vm('buffer_load_dwordx4 v18, s[44:47], s55 offen offset:1024 %s lds' % NTX)
    a('s_lshl_b32 s53, s50, 2'); a('s_add_u32 s53, s53, s48'); a('s_lshl_b32 s53, s53, 4'); a('v_add_u32 v20, s53, v5')
    a('v_lshlrev_b32 v7, 3, v20')
    a.vm('global_load_dwordx2 v[44:45], v7, s[10:11]', 'kvx')
    a('s_lshr_b32 s53, s2, 5'); a('s_lshl_b32 s53, s53, 18'); a('s_and_b32 s54, s63, 15'); a('s_lshl_b32 s54, s54, 14'); a('s_add_u32 s53, s53, s54')
    a('s_bfe_u32 s54, s2, 0x20002'); a('s_lshl_b32 s54, s54, 12'); a('s_add_u32 s53, s53, s54')
    a('s_bfe_u32 s54, s2, 0x10004'); a('s_lshl_b32 s54, s54, 11'); a('s_add_u32 s53, s53, s54'); a('v_add_u32 v7, s53, v14')
    a.vm('global_load_dwordx4 v[128:131], v7, s[4:5] ' + NTX); a.vm('global_load_dwordx4 v[132:135], v7, s[4:5] offset:1024 ' + NTX, 'xr')
    def kloads():
        a('s_lshl_b32 s64, s50, 6'); a('s_lshl_b32 s53, s49, 1'); a('s_add_u32 s64, s64, s53')
        a('s_lshl_b32 s53, s64, 1'); a('s_load_dword s65, s[14:15], s53')
        a('s_add_u32 s64, s64, s52'); a('s_lshl_b32 s66, s64, 12')
        a('s_lshl_b32 s67, s51, 11'); a('v_add_u32 v10, s67, v14')
        if KWHEN != 3: kl2()
    def kl2():
        srd(a, 36, 12, 4096, 's66')
        a('v_add_u32 v150, -8, v10'); a('v_add_u32 v151, 1016, v10')
        a.vm('buffer_load_dwordx2 v[136:137], v150, s[36:39], 0 offen ' + NT)
        a.vm('buffer_load_dwordx4 v[138:141], v10, s[36:39], 0 offen ' + NT)
        a.vm('buffer_load_dwordx2 v[142:143], v151, s[36:39], 0 offen ' + NT)
        a.vm('buffer_load_dwordx4 v[144:147], v10, s[36:39], 0 offen offset:1024 ' + NT, 'K')
    if KWHEN in (0, 3): kloads()
    srd(a, 32, 30, 0x10000000)
    a('s_lshl_b32 s68, s50, 2'); a('s_and_b32 s53, s49, 3'); a('s_add_u32 s68, s68, s53')
    a('s_lshl_b32 s53, s50, 9'); a('s_add_u32 s72, s53, 0x%x' % F_A); a('s_lshl_b32 s54, s68, 8'); a('s_sub_u32 s54, s54, s53')
    a('v_bfe_u32 v7, v1, 1, 3'); a('v_min_u32 v7, 4, v7'); a('v_cmp_ne_u32 vcc, 0, v7'); a('v_lshlrev_b32 v7, 13, v7'); a('v_and_b32 v8, 1, v1'); a('v_lshl_add_u32 v7, v8, 7, v7')
    a('v_mov_b32 v8, s54'); a('v_cndmask_b32 v8, 0, v8, vcc'); a('v_add_u32 v7, v7, v8')
    a.vm('buffer_load_dword v149, v7, s[32:35], s72 offen sc1')
    a('s_lshl_b32 s76, s48, 12'); a('s_add_u32 s76, s76, %d' % L_PK); a('s_sub_u32 s74, 1023, s63')
    for i in range(1, 4): a('v_add_u32 v%d, %d, v184' % (248 + i, 7168 * i))
    def ploads():
        srd(a, 36, 24, 1376 * 1024)
        a('s_and_b32 s53, s63, 7'); a('s_lshl_b32 s53, s53, 7'); a('s_lshr_b32 s54, s63, 3'); a('s_lshl_b32 s54, s54, 14'); a('s_add_u32 s73, s53, s54')
        a('s_mov_b32 m0, s76')
        a.vm('buffer_load_dwordx4 v184, s[36:39], s73 offen %s lds' % NT)
        a.vm('buffer_load_dwordx4 v249, s[36:39], s73 offen offset:1024 %s lds' % NT)
        srd(a, 36, 22, 512 * 2752)
        a('s_and_b32 s53, s74, 15'); a('s_mul_i32 s53, s53, %d' % (32 * 2752)); a('s_lshr_b32 s54, s74, 4'); a('s_lshl_b32 s54, s54, 6')
        a('s_add_u32 s75, s53, s54'); a('s_cmp_lt_u32 s74, 688'); a('s_cselect_b32 s75, s75, 0x400000')
        a('v_lshrrev_b32 v150, 2, v1'); a('v_mul_u32_u24 v150, 2752, v150'); a('v_and_b32 v151, 3, v1'); a('v_lshl_add_u32 v150, v151, 4, v150')
        a('s_add_u32 s53, s76, 2048'); a('s_mov_b32 m0, s53'); a('s_add_u32 s54, s75, %d' % (16 * 2752 - 1024))
        a.vm('buffer_load_dwordx4 v150, s[36:39], s75 offen %s lds' % NT)
        a.vm('buffer_load_dwordx4 v150, s[36:39], s54 offen offset:1024 %s lds' % NT, 'pk')
    if PWHEN == 0: ploads()
    if 'front' in EXP: a.stamp('issued')
    a('s_and_b32 s53, s63, 7'); a('s_mul_i32 s53, s53, %d' % (86 * 2048)); a('s_lshr_b32 s54, s63, 3'); a('s_lshl_b32 s54, s54, 11'); a('s_add_u32 s53, s53, s54')
    a('s_add_u32 s53, s53, 0x%x' % W4P); a('s_cmp_lt_u32 s63, 688'); a('s_cselect_b32 s88, s53, 0x%x' % DUMP)
    a('s_lshr_b32 s54, s74, 4'); a('s_lshl_b32 s54, s54, 15'); a('s_and_b32 s55, s74, 15'); a('s_lshl_b32 s55, s55, 10'); a('s_add_u32 s54, s54, s55')
    a('s_add_u32 s54, s54, 0x%x' % W3P); a('s_cmp_lt_u32 s74, 688'); a('s_cselect_b32 s89, s54, 0x%x' % DUMP); a('s_add_u32 s59, s89, 0x4000')
    a('s_and_b32 s53, s49, 3')
    a('s_lshr_b32 s69, s2, 5')
    a('s_lshl_b32 s92, s53, 12')
    a('s_lshl_b32 s77, s48, 14'); a('s_add_u32 s77, s77, %d' % L_S)
    a('s_lshl_b32 s78, s48, 17'); a('s_lshl_b32 s53, s69, 7'); a('s_add_u32 s78, s78, s53')
    srd(a, 40, 20, 512 * 1024); srd(a, 44, 18, 512 * 1024)
    for i in range(4): a('v_mov_b32 v%d, 0' % (152 + i))
    a('s_mul_i32 s70, s52, 4608'); a('s_add_u32 s70, s70, %d' % L_KV)
    a('s_mul_i32 s71, s52, %d' % (4 * CS))
    a('v_and_b32 v7, 31, v1'); a('v_lshl_add_u32 v7, v7, 4, s70')
    a('ds_write_b128 v7, v[152:155] offset:4096')
    a('v_and_b32 v7, 1, v1'); a('v_lshlrev_b32 v7, 4, v7'); a('v_bfe_u32 v8, v1, 1, 2'); a('v_mul_u32_u24 v8, %d, v8' % CS)
    a('v_add3_u32 v7, v7, v8, s71')
    a('ds_write_b128 v7, v[152:155] offset:%d' % L_E4)
    for i in range(4): a('v_mov_b32 v%d, -1' % (252 + i))
    a('s_bfe_u32 s53, s69, 0x10001'); a('s_xor_b32 s53, s53, 1')
    a('v_bfe_u32 v7, v1, 3, 1'); a('s_mul_i32 s54, s53, 31'); a('v_xor_b32 v7, s54, v7'); a('v_lshlrev_b32 v7, 4, v7')
    a('v_and_b32 v8, 7, v1'); a('v_lshl_add_u32 v191, v8, 9, v7')
    a('s_lshl_b32 s54, s68, 1'); a('s_add_u32 s53, s53, s54'); a('s_lshl_b32 s53, s53, 15'); a('s_lshl_b32 s54, s69, 12'); a('s_add_u32 s53, s53, s54')
    a('s_add_u32 s79, s53, 0x%x' % ZB)
    a('v_and_b32 v11, 3, v5'); a('v_mul_u32_u24 v11, %d, v11' % CS); a('v_and_b32 v12, 12, v5'); a('v_lshl_add_u32 v11, v12, 1, v11')
    a('v_lshl_add_u32 v11, v6, 4, v11'); a('s_lshl_b32 s56, s51, 8'); a('s_add_u32 s57, s56, s71'); a('s_add_u32 s57, s57, %d' % (L_E4 + 8))
    a('v_add_u32 v11, s57, v11')
    a('v_lshlrev_b32 v12, 4, v6'); a('v_lshlrev_b32 v13, 5, v5'); a('v_sub_u32 v12, v12, v13')
    a('s_add_u32 s57, s56, s70'); a('s_add_u32 s57, s57, 480'); a('v_add_u32 v12, s57, v12')
    a('v_lshlrev_b32 v7, 4, v5'); a('v_lshl_add_u32 v7, v6, 2, v7'); a('s_lshl_b32 s56, s51, 10'); a('v_add_u32 v7, s56, v7')
    a('v_lshlrev_b32 v8, 1, v7'); a('s_lshl_b32 s56, s51, 13'); a('v_add_u32 v9, s56, v14')
    a('s_add_u32 s57, s70, %d' % (2 * (2044 - 768))); a('v_sub_u32 v13, s57, v8')
    a('v_and_b32 v185, 1, v6'); a('v_lshlrev_b32 v185, 18, v185'); a('v_lshrrev_b32 v7, 2, v5'); a('v_lshl_add_u32 v185, v7, 16, v185')
    a('v_and_b32 v7, 3, v5'); a('v_lshl_add_u32 v185, v7, 5, v185'); a('v_lshrrev_b32 v7, 1, v6'); a('v_lshl_add_u32 v185, v7, 4, v185')
    a('v_lshrrev_b32 v21, 5, v1'); a('v_bfe_u32 v22, v1, 2, 2')
    a('v_lshl_add_u32 v7, v21, 3, v22'); a('v_lshlrev_b32 v7, 7, v7'); a('v_lshrrev_b32 v23, 1, v22'); a('v_lshl_add_u32 v7, v23, 6, v7')
    a('v_and_b32 v21, 1, v6'); a('v_lshl_add_u32 v7, v21, 5, v7')
    a('v_and_b32 v24, 3, v1'); a('v_lshl_add_u32 v187, v24, 3, v7')
    a('v_and_b32 v25, 1, v1'); a('v_lshl_add_u32 v7, v25, 4, v7'); a('v_bfe_u32 v25, v1, 1, 1'); a('v_lshl_add_u32 v188, v25, 3, v7')
    PA, PB = (189, 190) if PWHEN != 3 else (10, 4)
    if PWHEN != 3: a('v_add_u32 v%d, s76, v188' % PA); a('v_xor_b32 v%d, 64, v%d' % (PB, PA))
    a('v_lshl_add_u32 v7, v6, 3, v22'); a('v_lshlrev_b32 v186, 6, v7'); a('v_lshl_add_u32 v186, v24, 3, v186'); a('v_add_u32 v186, s76, v186')
    a('v_lshlrev_b32 v7, 7, v7'); a('v_lshl_add_u32 v23, v21, 1, v23'); a('v_xor_b32 v23, s48, v23'); a('v_lshl_add_u32 v7, v23, 5, v7')
    a('v_lshl_add_u32 v7, v24, 3, v7'); a('v_add_u32 v26, %d, v7' % L_K); a('v_xor_b32 v27, 64, v26')
    a('v_lshlrev_b32 v20, 12, v20'); a('s_lshl_b32 s53, s49, 7'); a('v_lshl_add_u32 v7, v6, 4, s53')
    a('v_add_u32 v28, v20, v7'); a('v_add_u32 v28, 0x%x, v28' % XT)
    a('v_sub_u32 v29, v20, v7'); a('v_add_u32 v29, %d, v29' % (4080 - 64 + KVR))
    a('v_and_b32 v4, 31, v1'); a('v_lshlrev_b32 v4, 3, v4'); a('v_mov_b32 v0, 0')
    if 'front' in EXP: a.stamp('addr done')
    a.fs('f0', 'addr done')
    a.wait('kvx')
    if 'front' in EXP: a.stamp('own landed')
    a.fs('f0', 'landed')
    a('s_barrier')
    a.vm('global_load_dwordx2 v[2:3], v0, s[28:29] sc1', 'tag')
    a.stamp('k landed')
    if KWHEN == 2: kloads()
    if PWHEN == 2: ploads()
    for o in range(2):
        a(TR % (vr(30 + 6 * o, 2), 26, 512 + 4096 * o))
        a(TR % (vr(32 + 6 * o, 2), 27, 1024 + 4096 * o)); a(TR % (vr(34 + 6 * o, 2), 27, 1536 + 4096 * o))
    for o in range(2):
        for z in range(2): a(TR % (vr(112 + 4 * o + 2 * z, 2), 26, L_V - L_K + 512 * z + 4096 * o))
    for o in range(2):
        for z in range(2): a(TR % (vr(120 + 4 * o + 2 * z, 2), 26, L_X - L_K + 512 * z + 4096 * o))
    a(lo(70, 44)); a(hi(71, 44)); a(lo(72, 45)); a(hi(73, 45))
    a('s_waitcnt lgkmcnt(8)')
    for t in range(1, 12):
        for o in range(2): a((hi if t & 1 else lo)(46 + 2 * t + o, 30 + 6 * o + (t >> 1)))
    a('s_waitcnt lgkmcnt(0)')
    a.vm('buffer_store_dwordx4 v[120:123], v28, s[32:35], 0 offen sc1')
    a.vm('buffer_store_dwordx4 v[124:127], v28, s[32:35], 0 offen offset:64 sc1')
    for i in range(8): a(pk('v_pk_mul_f32', 94 + 2 * i, [48 + 2 * i, bc(73)]))
    for t in (1, 2, 3):
        for i in range(8): a(pk('v_pk_fma_f32', 94 + 2 * i, [48 + 2 * (i + t), bc(73 - t), 94 + 2 * i]))
    for i in range(8):
        for o in range(2): a((hi if i & 1 else lo)(78 + 2 * i + o, 112 + 4 * o + (i >> 1)))
    for i in range(8): a(pk('v_pk_mul_f32', 94 + 2 * i, [94 + 2 * i, 78 + 2 * i]))
    for o in range(2):
        for i in range(4): a('v_cvt_pk_bf16_f32 v%d, v%d, v%d' % (112 + 4 * o + i, 94 + 2 * (7 - 2 * i) + o, 94 + 2 * (6 - 2 * i) + o))
    a.vm('buffer_store_dwordx4 v[112:115], v29, s[32:35], 0 offen offset:64 sc1')
    a.vm('buffer_store_dwordx4 v[116:119], v29, s[32:35], 0 offen sc1', 'st')
    a.stamp('kv stored')
    if KWHEN == 1: kloads()
    if PWHEN == 1: ploads()
    a.wait('xr')
    for r in range(2):
        for i in range(4): a(lo(48 + 8 * r + 2 * i, 128 + 4 * r + i)); a(hi(49 + 8 * r + 2 * i, 128 + 4 * r + i))
    for r in range(2):
        b = 48 + 8 * r
        a(pk('v_pk_add_f32', 70 + 2 * r, [b, b + 2])); a(pk('v_pk_add_f32', 74 + 2 * r, [b + 4, b + 6]))
    for r in range(2): a(pk('v_pk_add_f32', 70 + 2 * r, [70 + 2 * r, 74 + 2 * r]))
    for r in range(2): a('v_add_f32 v%d, v%d, v%d' % (64 + r, 70 + 2 * r, 71 + 2 * r))
    allreduce(a, [64, 65], [66, 67])
    for r in range(2): a('v_mul_f32 v%d, s60, v%d' % (64 + r, 64 + r))
    for r in range(2):
        for i in range(0, 8, 2): a(pk('v_pk_add_f32', 48 + 8 * r + i, [48 + 8 * r + i, bc(64 + r)], neg=[0, 1]))
    for r in range(2):
        b = 48 + 8 * r
        a(pk('v_pk_mul_f32', 70 + 2 * r, [b, b]))
        for i in (2, 4, 6): a(pk('v_pk_fma_f32', 70 + 2 * r, [b + i, b + i, 70 + 2 * r]))
    for r in range(2): a('v_add_f32 v%d, v%d, v%d' % (68 + r, 70 + 2 * r, 71 + 2 * r))
    allreduce(a, [68, 69], [66, 67])
    for r in range(2): a('v_mul_f32 v%d, s60, v%d' % (68 + r, 68 + r))
    a('v_cvt_pk_bf16_f32 v68, v68, v69'); a(hi(69, 68)); a(lo(68, 68))
    for r in range(2): a('v_add_f32 v%d, 0x%x, v%d' % (68 + r, f2u(EPS), 68 + r))
    a('v_cvt_pk_bf16_f32 v68, v68, v69'); a(hi(69, 68)); a(lo(68, 68))
    for r in range(2): a('v_sqrt_f32 v%d, v%d' % (68 + r, 68 + r))
    a('s_lshl_b32 s53, s48, 3'); a('s_add_u32 s53, s53, %d' % L_CRED); a('v_mov_b32 v7, s53')
    a('v_cvt_pk_bf16_f32 v72, v68, v64'); a('v_cvt_pk_bf16_f32 v73, v69, v65')
    a('ds_write_b64 v7, v[72:73]')
    a('s_lshl_b32 s53, s49, 3'); a('s_add_u32 s87, s53, s72')
    a('s_mov_b32 s82, 0')
    a.wait('tag' if 'nd0' in EXP else 'st', 'lgkmcnt(0)')
    a('Ltag:')
    a('v_readfirstlane_b32 s80, v2'); a('v_readfirstlane_b32 s81, v3')
    a('s_or_b32 s53, s80, s81'); a('s_cbranch_scc1 Ltagok')
    a('global_load_dwordx2 v[2:3], v0, s[28:29] sc1')
    a.guard()
    a('s_waitcnt vmcnt(0)')
    a('s_branch Ltag')
    a('Ltagok:')
    a.stamp('drained')
    a.signal('s87', eager='0' in EAGER)
    a('s_cmp_lg_u32 s48, 1'); a('s_cbranch_scc1 Lnost')
    a('v_lshlrev_b32 v7, 3, v1'); a('ds_read_b64 v[72:73], v7 offset:%d' % L_CRED)
    a('s_lshl_b32 s53, s2, 6'); a('s_add_u32 s53, s53, 0x%x' % ST0); a('v_mov_b32 v75, s80')
    a('s_mov_b64 exec, 15'); a('s_waitcnt lgkmcnt(0)')
    a('v_mov_b32 v74, v73'); a('v_mov_b32 v73, s80')
    a('buffer_store_dwordx4 v[72:75], v14, s[32:35], s53 offen sc1'); a('s_mov_b64 exec, -1')
    a('Lnost:')
    def ptr():
        a(TR % ('v[192:193]', PA, 0)); a(TR % ('v[194:195]', PA, 512)); a(TR % ('v[196:197]', PB, 0)); a(TR % ('v[198:199]', PB, 512))
        for e in range(2):
            for z in range(2): a(TR % (vr(200 + 4 * e + 2 * z, 2), 186, 2048 + 32 * e + 256 * z))
    def late():
        if PWHEN != 3 and not (E4EARLY and PWHEN == 1 and KWHEN == 0): ptr()
        a('v_add_u32 v7, s71, v10')
        for i in range(2):
            W = 136 + 6 * i; b = 20 + 12 * i
            for x in range(4): a('v_alignbit_b32 v%d, v%d, v%d, 16' % (b + x, W + x + 1, W + x))
            for x in range(4): a('v_mov_b32 v%d, v%d' % (b + 4 + x, W + x + 1))
            for x in range(4): a('v_alignbit_b32 v%d, v%d, v%d, 16' % (b + 8 + x, W + x + 2, W + x + 1))
            o = L_E4 + 32 + 1024 * i
            a('ds_write_b128 v7, %s offset:%d' % (vr(W + 2, 4), o + 3 * CS))
            a('ds_write_b128 v7, %s offset:%d' % (vr(b, 4), o))
            a('ds_write_b128 v7, %s offset:%d' % (vr(b + 4, 4), o + CS))
            a('ds_write_b128 v7, %s offset:%d' % (vr(b + 8, 4), o + 2 * CS))
    if (KWHEN != 1 and PWHEN != 1) or (E4EARLY and PWHEN == 1 and KWHEN == 0): late()
    a('s_add_u32 s56, s70, s67'); a('s_mov_b32 m0, s56'); a('s_add_u32 s57, s66, %d' % KVR); a('s_add_u32 s58, s66, 0x%x' % XT)
    a.poll(4, 's72', 's87')
    a.stamp('X0 seen')
    if KWHEN == 3: kl2()
    a.vm('buffer_load_dwordx4 v10, s[32:35], s57 offen sc1 lds')
    a.vm('buffer_load_dwordx4 v10, s[32:35], s57 offen offset:1024 sc1 lds', 'kv')
    for i in range(4): a.vm('buffer_load_dwordx2 %s, v8, s[32:35], s58 offen offset:%d sc1' % (vr(208 + 2 * i, 2), 512 * i), 'xT')
    if '0' not in EAGER: a.late('s87')
    if E4EARLY and PWHEN == 1 and KWHEN == 0: ptr()
    elif KWHEN == 1 or PWHEN == 1:
        if KWHEN == 3: a.wait('K')
        late()
    if PWHEN == 3:
        ploads(); a('v_add_u32 v%d, s76, v188' % PA); a('v_xor_b32 v%d, 64, v%d' % (PB, PA))
    pst = [[('buffer_store_dwordx4 %s, v14, s[32:35], %s offen offset:%d sc1' % (vr(192 + 4 * z, 4), ('s88', 's88', 's89', 's59')[z], 1024 if z == 1 else 0), None)] for z in range(4)]
    pst.append(['s_mov_b64 exec, 0xffff', ('buffer_store_dwordx4 v[252:255], v191, s[32:35], s79 offen sc1', None), 's_mov_b64 exec, -1'])
    def wdma(srdn, label, ngrp, mask, ldsbase, srcoff):
        l = []
        for i in range(4 * ngrp):
            it = []
            if i % 4 == 0:
                it += ['s_add_u32 s55, s92, %d' % (1024 * i), 's_and_b32 s55, s55, 0x%x' % mask, 's_add_u32 s53, %s, s55' % ldsbase, 's_mov_b32 m0, s53',
                       's_lshl_b32 s55, s55, 3', 's_add_u32 s93, s78, s55']
                if srcoff: it.append('s_add_u32 s93, s93, %d' % srcoff)
            it.append(('buffer_load_dwordx4 v%d, s[%d:%d], s93 offen offset:%d lds' % (248 + (i & 3) if i & 3 else 184, srdn, srdn + 3, 1024 * (i & 3)), label))
            l.append(it)
        return l
    def stloads(fl=''):
        return [['s_mov_b32 s54, 0x%x' % (ST0 + 4096 * (i >> 2)),
                 ('buffer_load_dwordx4 %s, v9, s[32:35], s54 offen offset:%d %s' % (vr(216 + 4 * i, 4), 1024 * (i & 3), fl), 'st0')] for i in range(8)]
    w1l = wdma(44, 'w1', 4, 0x3fff, 's77', 0)
    bg = w1l; stl = stloads()
    if W2A: a('s_lshl_b32 s87, s48, 13'); a('s_add_u32 s87, s87, %d' % L_S2); bg += wdma(40, 'w1', 2, 0x1fff, 's87', 0)
    a('s_waitcnt lgkmcnt(0)')
    a('s_barrier')
    a.take(bg, PRE0)
    a('s_lshl_b32 s56, s65, 16'); a('s_and_b32 s57, s65, 0xffff0000'); a('s_cmp_eq_u32 s52, 0'); a('s_cselect_b32 s65, s56, s57')
    a('s_lshl_b32 s57, s51, 20'); a('s_lshl_b32 s58, s64, 7'); a('s_add_u32 s57, s57, s58'); a('s_add_u32 s57, s57, 0x%x' % HT)
    a('s_add_u32 s58, s57, 0x80000')
    a('s_lshl_b32 s53, s48, 12'); a('s_add_u32 s53, s53, %d' % L_CRED); a('v_add_u32 v190, s53, v14'); a('v_xor_b32 v189, 0x1000, v14')
    a('s_lshl_b32 s53, s48, 12'); a('v_xor_b32 v189, s53, v189'); a('v_add_u32 v189, %d, v189' % L_CRED)
    CA = 16; FR = 48
    def A(st, x): return FR + 64 * st + 4 * x
    def B(st, x): return FR + 64 * st + 32 + 4 * x
    def reads(rho):
        st = rho & 1; l = []
        for x in range(8):
            l.append('ds_read_b64 %s, v11 offset:%d' % (vr(A(st, x), 2), 512 * x + 64 * rho))
            l.append('ds_read_b64 %s, v11 offset:%d' % (vr(A(st, x) + 2, 2), 512 * x + 64 * rho + 8))
            l.append('ds_read_b128 %s, v12 offset:%d' % (vr(B(st, x), 4), 512 * (7 - x) + 64 * rho))
        return l
    XF = 48; XN = 64; KD = 80
    def tagscan():
        l = ['v_min3_u32 v7, v217, v219, v221', 'v_max3_u32 v0, v217, v219, v221']
        for i in range(3, 15, 2):
            l += ['v_min3_u32 v7, v7, v%d, v%d' % (217 + 2 * i, 219 + 2 * i), 'v_max3_u32 v0, v0, v%d, v%d' % (217 + 2 * i, 219 + 2 * i)]
        return l + ['v_min_u32 v7, v7, v247', 'v_max_u32 v0, v0, v247']
    def check():
        a('s_mov_b32 s82, 0')
        a('Lst0:')
        a('v_cmp_ne_u32 vcc, s80, v7'); a('v_cmp_ne_u32 s[54:55], s80, v0'); a('s_or_b64 vcc, vcc, s[54:55]')
        a('s_cbranch_vccz Lst0ok')
        for it in stloads('sc1'):
            for x in it: a(x[0] if isinstance(x, tuple) else x)
        a.guard()
        a('s_waitcnt vmcnt(0)')
        for x in tagscan(): a(x)
        a('s_branch Lst0')
        a('Lst0ok:'); a.count(30)
    sh1 = [('wait', 'st0')] + tagscan() + [('check',)]
    for i in range(0, 16, 4):
        sh1 += [lo(217 + 2 * (i + e), 216 + 2 * (i + e)) for e in range(4)]
        for e in range(4): sh1 += ['v_rcp_f32 v%d, v%d' % (217 + 2 * (i + e), 217 + 2 * (i + e)), hi(216 + 2 * (i + e), 216 + 2 * (i + e))]
    sh3 = [(hi if i & 1 else lo)(XF + i, 208 + (i >> 1)) for i in range(16)]
    sh3 += ['v_sub_f32 v%d, v%d, v%d' % (XN + i, XF + i, 216 + 2 * i) for i in range(16)]
    sh3 += ['s_waitcnt lgkmcnt(0)']
    for i in range(4):
        sh3 += [hi(KD + 4 * i, 177 + 2 * i), lo(KD + 4 * i + 1, 177 + 2 * i), hi(KD + 4 * i + 2, 176 + 2 * i), lo(KD + 4 * i + 3, 176 + 2 * i)]
    nkd = len(sh3)
    sh3 += ['v_mul_f32 v%d, v%d, v%d' % (XN + i, XN + i, 217 + 2 * i) for i in range(16)]
    def emit_sh(x):
        if isinstance(x, str): a(x)
        elif x[0] == 'wait': a.wait(x[1])
        else: check()
    r0 = reads(0)
    for r in r0:
        if 'b64' in r: a(r)
    a.wait('kv')
    a('s_barrier')
    a.stamp('conv go')
    for r in r0:
        if 'b64' not in r: a(r)
    started = set(); sh = sh3; n3 = [0]
    for rho in range(4):
        st = rho & 1
        nxt = reads(rho + 1) if rho < 3 else ['ds_read_b64 %s, v13 offset:%d' % (vr(176 + 2 * i, 2), 512 * (3 - i)) for i in range(4)]
        issued = 0; cnt = 0
        for x in range(8):
            pairs = [(x, b) for b in range(x + 1) if x + b <= 7] + [(aa, x) for aa in range(x) if aa + x <= 7]
            if rho == 0: a('s_waitcnt lgkmcnt(%d)' % min(15, 7 - x + issued))
            elif x == 0: a('s_waitcnt lgkmcnt(0)')
            for (aa, bb) in pairs:
                t = aa + bb
                c = vr(CA + 4 * t, 4) if t in started else '0'
                started.add(t)
                a(M16 % (vr(CA + 4 * t, 4), vr(A(st, aa), 4), vr(B(st, bb), 4), c))
                cnt += 1
                if (rho > 0 or x >= 2) and issued < len(nxt) and cnt <= 30:
                    a(nxt[issued]); issued += 1
                g = cnt + 36 * rho
                if g >= ST_AT and g % 3 == 0: a.take(stl)
                if PWHEN == 3 and g == PST_AT - 8:
                    a.wait('pk'); ptr()
                if PWHEN == 3 and g == PST_AT - 1: a('s_waitcnt lgkmcnt(0)')
                if g >= PST_AT and g % 4 == 1: a.take(pst)
                if g >= BG0 and g % PACE == 0 and (g < ST_AT or not stl): a.take(bg)
                budget = 1 if (rho < 3 and cnt <= 24) or (rho == 3 and cnt <= 4) else 2
                while budget > 0 and g >= SH0 and sh1:
                    x = sh1.pop(0); emit_sh(x); budget -= 2 if isinstance(x, str) and x.startswith('v_rcp') else 1
                while budget > 0 and rho == 3 and cnt >= SH3 and not sh1 and sh:
                    emit_sh(sh.pop(0)); budget -= 1; n3[0] += 1
        while issued < len(nxt): a(nxt[issued]); issued += 1
        if 'rho' in EXP and rho < 3: a.stamp('rho%d' % rho)
    a.stamp('conv mfma')
    while sh1: emit_sh(sh1.pop(0))
    while n3[0] < nkd: emit_sh(sh.pop(0)); n3[0] += 1
    a('s_cmp_eq_u32 s51, 0'); a('s_cbranch_scc1 Lck0')
    for v, lab in ((1, None), (0, 'Lck0')):
        if lab: a(lab + ':')
        snd = 0 if v else 4; keep = 4 - snd
        for i in range(4): a('ds_write_b128 v189, %s offset:%d' % (vr(CA + 4 * (snd + i), 4), 1024 * i))
        for i in range(0, 16, 2): a(pk('v_pk_fma_f32', KD + i, [KD + i, ('s[64:65]', 1), CA + 4 * keep + i]))
        if v: a('s_branch Lck1')
    a('Lck1:')
    a.take(pst, 7)
    while sh:
        emit_sh(sh.pop(0))
        if len(sh) % 9 == 0: a.take(bg)
    a.take(bg, 24)
    a('s_waitcnt lgkmcnt(0)'); a('s_barrier')
    for i in range(4): a('ds_read_b128 %s, v190 offset:%d' % (vr(112 + 4 * i, 4), 1024 * i))
    a.stamp('conv red')
    for i in range(4):
        a('s_waitcnt lgkmcnt(%d)' % (3 - i))
        for r in (0, 2): a(pk('v_pk_add_f32', KD + 4 * i + r, [KD + 4 * i + r, 112 + 4 * i + r]))
        for r in (0, 2): a(pk('v_pk_fma_f32', XF + 4 * i + r, [XN + 4 * i + r, KD + 4 * i + r, XF + 4 * i + r]))
        o = 128 + 2 * i
        a('v_cvt_pk_bf16_f32 v%d, v%d, v%d' % (o, XF + 4 * i, XF + 4 * i + 1)); a('v_cvt_pk_bf16_f32 v%d, v%d, v%d' % (o + 1, XF + 4 * i + 2, XF + 4 * i + 3))
        if i & 1:
            a('v_permlane16_swap_b32 v%d, v%d' % (o - 2, o)); a('v_permlane16_swap_b32 v%d, v%d' % (o - 1, o + 1))
            a.vm('buffer_store_dwordx4 %s, v185, s[32:35], s%d offen sc1' % (vr(o - 2, 4), 57 + (i >> 1)), 'h')
    assert not bg
    a.stamp('h stored')
    a('s_lshl_b32 s53, s52, 6'); a('s_add_u32 s54, s53, s77'); a('v_xor_b32 v9, s54, v188'); a('v_xor_b32 v8, 64, v9')
    def wtr(dst, n, va):
        for s in range(n):
            for ch in range(2):
                a(TR % (ur(dst + 8 * s + 4 * ch, 2), va + ch, 2048 * s)); a(TR % (ur(dst + 8 * s + 4 * ch + 2, 2), va + ch, 2048 * s + 512))
    if W2A: a('s_add_u32 s54, s53, s87'); a('v_xor_b32 v186, s54, v188'); a('v_xor_b32 v185, 64, v186')
    a.wait('w1')
    wtr(256, 8, 8)
    if W2A: wtr(256 + 64, 4, 185)
    a('s_lshl_b32 s53, s50, 5'); a('s_add_u32 s53, s53, s49'); a('s_mul_i32 s53, s53, %d' % HFS); a('s_add_u32 s58, s53, 0x%x' % F_H)
    a('v_mul_u32_u24 v7, %d, v1' % (256 * HFS))
    for slot in range(3):
        th, ch = slot >> 1, slot & 1
        a('s_xor_b32 s53, s48, %d' % ((1 - th) + 2 * (1 - ch))); a('s_mul_i32 s53, s53, 12288'); a('s_add_u32 s53, s53, %d' % (G_RED + 4096 * slot))
        a('v_add_u32 v%d, s53, v14' % (10 + slot))
    a('s_mul_i32 s53, s48, 12288'); a('s_add_u32 s53, s53, %d' % G_RED); a('v_add_u32 v13, s53, v14')
    ONES = 160; CSUM = 144
    for i in range(4): a('v_mov_b32 v%d, 0x3f803f80' % (ONES + i))
    w2l = wdma(40, 'w2', 2, 0x1fff, 's77', 65536) if W2A else wdma(40, 'w2', 4, 0x3fff, 's77', 0)
    a('s_waitcnt lgkmcnt(0)')
    a.take(w2l, W2PRE)
    if 'nd1' not in EXP: a.wait('h')
    a.stamp('h drained')
    a.signal('s58', 7)
    a.take(w2l, 4)
    a('v_and_b32 v164, 31, v1'); a('v_lshlrev_b32 v164, 2, v164'); a('s_lshl_b32 s53, s52, 7'); a('s_add_u32 s53, s53, %d' % L_S2); a('v_add_u32 v165, s53, v164')
    a('s_lshl_b32 s53, s48, 8'); a('v_add_u32 v166, s53, v165'); a('v_xor_b32 v167, 0x80, v166')
    a('s_lshl_b32 s53, s48, 7'); a('s_add_u32 s53, s53, %d' % (L_S2 + 1024)); a('v_add_u32 v168, s53, v164')
    a('v_lshrrev_b32 v169, 5, v1'); a('v_lshl_add_u32 v169, v169, 4, s53')
    for s in range(8):
        for ch in range(2):
            a(M32 % (vr(acc(0, ch), 16), vr(ONES, 4), ur(256 + 8 * s + 4 * ch, 4), vr(acc(0, ch), 16) if s else '0'))
            if ch: a.take(w2l)
    a.take(w2l, 4)
    srd(a, 36, 30, 8 * 86 * 2048, '0x%x' % W4P); srd(a, 40, 30, 86 * 16384, '0x%x' % W3P)
    a('ds_write_b32 v167, v%d' % acc(0, 0)); a('ds_write_b32 v166, v%d' % acc(0, 1))
    a('v_lshlrev_b32 v189, 6, v6'); a('v_and_b32 v189, 64, v189'); a('v_xor_b32 v189, v189, v14')
    a('s_lshl_b32 s56, s48, 14')
    a('s_lshl_b32 s53, s51, 6'); a('s_add_u32 s54, s53, s56'); a('v_xor_b32 v191, s54, v187'); a('v_xor_b32 v190, 64, v191')
    a('s_lshl_b32 s54, s69, 13'); a('s_add_u32 s53, s53, s54'); a('s_lshl_b32 s54, s52, 12'); a('s_add_u32 s53, s53, s54'); a('v_xor_b32 v187, s53, v187')
    a('s_and_b32 s57, s50, %d' % (HREP - 1)); a('s_lshl_b32 s57, s57, 2'); a('s_add_u32 s53, s57, s48'); a('s_mul_i32 s53, s53, %d' % (64 * HFS)); a('s_add_u32 s58, s53, 0x%x' % F_H)
    a('v_lshlrev_b32 v4, 3, v1'); a('v_mul_u32_u24 v0, %d, v1' % HFS)
    a('s_lshl_b32 s57, s68, 16'); a('s_add_u32 s57, s57, s56'); a('s_add_u32 s57, s57, 0x%x' % HT)
    a('s_waitcnt lgkmcnt(0)'); a('s_barrier')
    for w in range(4): a('ds_read_b32 v%d, v165 offset:%d' % (80 + w, 256 * w))
    a('s_xor_b32 s53, s51, 1'); a('s_lshl_b32 s53, s53, 8'); a('v_xor_b32 v184, s53, v4')
    a('s_lshl_b32 s53, s48, 9'); a('s_add_u32 s53, s53, %d' % G_ST); a('v_add_u32 v184, s53, v184')
    a('v_and_b32 v7, 31, v1'); a('s_lshl_b32 s53, s51, 5'); a('v_add_u32 v7, s53, v7'); a('v_lshlrev_b32 v185, 3, v7'); a('v_add_u32 v185, %d, v185' % G_ST)
    a('s_waitcnt lgkmcnt(0)')
    a('v_add_f32 v80, v80, v81'); a('v_add_f32 v82, v82, v83'); a('v_add_f32 v80, v80, v82')
    a('ds_write_b32 v168, v80')
    for q in range(4): a('ds_read_b128 %s, v169 offset:%d' % (vr(CSUM + 4 * q, 4), 32 * q))
    a('s_lshl_b32 s53, s69, 12'); a('s_lshl_b32 s54, s52, 11'); a('s_add_u32 s70, s53, s54')
    a('s_mul_i32 s73, s69, 11'); a('s_mul_i32 s53, s48, 3'); a('s_add_u32 s73, s73, s53')
    a('s_lshl_b32 s74, s73, 14'); a('s_add_u32 s75, s74, 0x8000'); a('s_cmp_eq_u32 s48, 3'); a('s_cselect_b32 s75, 0x400000, s75')
    a('s_lshl_b32 s72, s68, 8'); a('s_lshl_b32 s53, s69, 3'); a('s_add_u32 s79, s72, s53')
    a('s_lshl_b32 s53, s48, 4'); a('s_add_u32 s72, s72, s53')
    a('s_lshl_b32 s66, s68, 1'); a('s_add_u32 s66, s66, s51')
    a('s_lshl_b32 s71, s66, 15'); a('s_add_u32 s71, s71, s70'); a('s_add_u32 s71, s71, 0x%x' % ZB)
    BF = 80; ST = 172
    for i in range(4): a('v_mov_b32 v%d, 0' % (ST + i))
    a('s_mov_b32 m0, s56')
    a.stamp('X1 poll')
    a.wait('w2')
    a.poll(0, 's58', False, sleep=SLEEP, between=lambda: wtr(256 + 64, 8, 8))
    a.count(63); a.stamp('X1 seen')
    hl = []
    for i in range(16):
        it = []
        if i and i % 4 == 0: it += ['s_add_u32 s53, s56, %d' % (1024 * i), 's_mov_b32 m0, s53', 's_add_u32 s57, s57, 4096']
        it.append(('buffer_load_dwordx4 v189, s[32:35], s57 offen offset:%d sc1 lds' % (1024 * (i & 3)), 'h%d' % (i >> 1)))
        hl.append(it)
    a.take(hl, PH)
    WR3 = [192, 256 + 128, 256 + 192]
    w3l = []
    for j in (1, 2, 0):
        for s in range(16):
            w3l.append(['s_add_u32 s87, s%d, %d' % (75 if j == 2 else 74, (16384 if j == 1 else 0) + 1024 * s),
                        ('buffer_load_dwordx4 %s, v14, s[40:43], s87 offen' % ur(WR3[j] + 4 * s, 4), 'w3')])
    if 'now3' in EXP: w3l = [['s_nop 0'] for it in w3l]
    def btr(s):
        for th in range(2):
            a(TR % (vr(BF + 32 * th + 4 * s, 2), 190 + th, 2048 * s)); a(TR % (vr(BF + 32 * th + 4 * s + 2, 2), 190 + th, 2048 * s + 512))
    a.wait('h0'); btr(0)
    a.stamp('h0 landed')
    for s in range(8):
        if s < 7:
            a.wait('h%d' % (s + 1)); btr(s + 1)
        a('s_waitcnt lgkmcnt(%d)' % (4 if s < 7 else 0))
        if s == 4: a('s_barrier')
        for th in range(2):
            for ch in range(2):
                a(M32 % (vr(acc(th, ch), 16), ur(256 + 8 * s + 4 * ch, 4), vr(BF + 32 * th + 4 * s, 4), vr(acc(th, ch), 16) if s else '0'))
                if ch == 0:
                    if hl: a.take(hl)
                    elif s >= 6: a.take(w3l)
            if SUMM:
                a(M32 % (vr(192 + 16 * th, 16), vr(ONES, 4), vr(BF + 32 * th + 4 * s, 4), vr(192 + 16 * th, 16) if s else '0'))
    a.stamp('g1 mfma')
    wr = red_write(0) + red_write(1) + red_write(2)
    n = 0
    for s in range(8):
        for th in range(2):
            for i in range(4):
                b = BF + 32 * th + 4 * s + i
                if not SUMM: a('v_dot2c_f32_bf16 v%d, v%d, v%d' % (ST + th, b, ONES))
                a('v_dot2c_f32_bf16 v%d, v%d, v%d' % (ST + 2 + th, b, b))
                n += 1
                if not SUMM and n >= 6 and n % 4 == 2 and wr: a(wr.pop(0))
                if SUMM and n % WRS == 0 and wr: a(wr.pop(0))
                if n % 6 == 0 and len(w3l) > 48 - W3A: a.take(w3l)
    assert not wr
    assert W3A <= 32
    if SUMM:
        a('v_permlane32_swap_b32 v192, v208'); a('v_permlane32_swap_b32 v%d, v%d' % (ST + 2, ST + 3))
        a('v_mov_b32 v%d, v192' % ST); a('v_add_f32 v%d, v%d, v%d' % (ST + 1, ST + 2, ST + 3))
    else:
        a('v_permlane32_swap_b32 v%d, v%d' % (ST, ST + 1)); a('v_permlane32_swap_b32 v%d, v%d' % (ST + 2, ST + 3))
        a('v_add_f32 v%d, v%d, v%d' % (ST, ST, ST + 1)); a('v_add_f32 v%d, v%d, v%d' % (ST + 1, ST + 2, ST + 3))
    a('ds_write_b64 v184, %s' % vr(ST, 2))
    a('s_waitcnt lgkmcnt(0)'); a('s_barrier')
    a.stamp('g1 red')
    for w in range(4): a('ds_read_b64 %s, v185 offset:%d' % (vr(164 + 2 * w, 2), 512 * w))
    rr = red_reads(80)
    for r in rr[:10]: a(r)
    M1 = 164; R1 = 166; RI = 168; CAa = 169; CBb = 170
    a('s_waitcnt lgkmcnt(10)')
    a(pk('v_pk_add_f32', 164, [164, 166])); a(pk('v_pk_add_f32', 168, [168, 170])); a(pk('v_pk_add_f32', 164, [164, 168]))
    for r in rr[10:]: a(r)
    for l in ['v_mul_f32 v164, s60, v164', 'v_mul_f32 v166, v164, v164', 'v_fma_f32 v165, v165, s60, -v166', 'v_max_f32 v165, 0, v165',
              'v_add_f32 v166, 0x%x, v165' % f2u(EPS), 'v_rsq_f32 v166, v166',
              'v_mul_f32 v167, v166, v166', 'v_mul_f32 v167, v167, v165', 'v_add_f32 v167, 0x%x, v167' % f2u(EPS), 'v_rsq_f32 v167, v167',
              'v_mul_f32 v167, v167, v166', 'v_rcp_f32 v168, v167', 'v_mul_f32 v169, 0x%x, v167' % f2u(C0),
              'v_mul_f32 v170, v167, v167', 'v_mul_f32 v170, v170, v167', 'v_mul_f32 v170, 0x%x, v170' % f2u(C1)]: a(l)
    o = acc(1, 1)
    for i in range(0, 16, 2): a(pk('v_pk_fma_f32', o + i, [bc(M1), CSUM + i, o + i], neg=[1, 0, 0]))
    red_adds(a, 80)
    HO = 176
    for s in range(2):
        a(TR % (vr(HO + 4 * s, 2), 187, 2048 * s)); a(TR % (vr(HO + 4 * s + 2, 2), 187, 2048 * s + 512))
    g = gelu_pk(o, CAa, CBb, RI, 80, 16)
    for i, l in enumerate(g):
        a(l)
        if i % 10 == 9 and len(w3l) > 48 - W3A: a.take(w3l)
    for i in range(8): a('v_cvt_pk_bf16_f32 v%d, v%d, v%d' % (96 + i, o + 2 * i, o + 2 * i + 1))
    for i in range(8): a('v_min_u32 v%d, -2, v%d' % (96 + i, 96 + i))
    a.vm('buffer_store_dwordx4 v[96:99], v14, s[32:35], s71 offen sc1')
    a.vm('buffer_store_dwordx4 v[100:103], v14, s[32:35], s71 offen offset:1024 sc1', 'z')
    a.stamp('z stored')
    a.take(w3l, W3B)
    HF = 144; HN = 176
    a('s_waitcnt lgkmcnt(0)')
    for i in range(8): a(lo(HF + 2 * i, HO + i)); a(hi(HF + 2 * i + 1, HO + i))
    for i in range(0, 16, 2): a(pk('v_pk_add_f32', HN + i, [HF + i, bc(M1)], neg=[0, 1]))
    for i in range(0, 16, 2): a(pk('v_pk_mul_f32', HN + i, [HN + i, bc(R1)]))
    a('s_add_u32 s59, s79, 0x%x' % F_Z); a('s_add_u32 s58, s72, 0x%x' % F_Z)
    a('v_and_b32 v4, 1, v1'); a('v_lshlrev_b32 v4, 3, v4')
    a('s_lshl_b32 s56, s66, 15'); a('s_add_u32 s64, s56, s70'); a('s_add_u32 s64, s64, 0x%x' % X1B)
    srd(a, 44, 30, 2 * MB, '0x%x' % ZB)
    a('s_lshl_b32 s56, s48, 13'); a('s_mov_b32 s57, s56')
    a('s_lshl_b32 s53, s48, 3'); a('s_lshr_b32 s53, 0xfe02ff01, s53'); a('s_sext_i32_i8 s53, s53')
    a('v_and_b32 v7, 31, v1'); a('v_subrev_u32 v7, s53, v7'); a('v_lshrrev_b32 v172, 5, v1'); a('v_lshlrev_b32 v172, 9, v172')
    for th in range(2):
        a('s_xor_b32 s54, s66, %d' % (1 - th)); a('s_lshl_b32 s54, s54, 5'); a('v_add_u32 v173, s54, v7')
        a('v_lshrrev_b32 v174, 5, v173'); a('v_lshl_add_u32 v174, v174, 15, v172'); a('v_and_b32 v173, 31, v173'); a('v_lshl_add_u32 v%d, v173, 4, v174' % (8 + th))
    a('s_lshl_b32 s54, s68, 13'); a('s_lshr_b32 s55, s70, 2'); a('s_add_u32 s54, s54, s55'); a('s_lshl_b32 s55, s51, 8'); a('s_add_u32 s54, s54, s55')
    a('s_add_u32 s65, s54, 0x%x' % ST1); a('v_lshlrev_b32 v0, 3, v1')
    if 'nd2' not in EXP: a.wait('z')
    a.stamp('z drained')
    a.signal('s59', eager='2' in EAGER)
    a.poll(4, 's58', 's59')
    a.stamp('X2 seen')
    def bitems(nks, dst, lab):
        l = []
        for th in range(2):
            for s in range(nks):
                it = []
                if s % 4 == 0: it.append('s_add_u32 s93, s%d, %d' % (57 - th, 1024 * s))
                va, sd = (8 + th, 's[44:47]') if lab == 'b' else (14, 's[32:35]')
                if OWNH and lab == 'f': it.append('s_mov_b64 exec, s[%d:%d]' % ((96, 97) if s < 11 else (98, 99)))
                it.append(('buffer_load_dwordx4 %s, v%d, %s, s93 offen offset:%d sc1' % (ur(dst(nks * th + s), 4), va, sd, 1024 * (s & 3)), '%s%d' % (lab, nks * th + s)))
                if OWNH and lab == 'f': it.append('s_mov_b64 exec, -1')
                l.append(it)
        return l
    def ksplit(nks, wreg, breg, lab, bgl, nbg, check):
        bl = bitems(nks, breg, lab)
        a.take(bl, PB2 if check else PB4)
        for th in range(2):
            wr = (red_write(0) + red_write(1)) if th else []
            if th and check:
                assert not bl
                if '2' not in EAGER: a.late('s59')
                a('s_mov_b32 s82, 0'); a('Lhalo:'); a('v_mov_b32 v7, 0')
            for s in range(nks):
                k = nks * th + s
                a.wait('%s%d' % (lab, k))
                for ch in range(2):
                    a(M32 % (vr(acc(th, ch), 16), ur(wreg(s, ch), 4), ur(breg(k), 4), vr(acc(th, ch), 16) if s else '0'))
                    if th and check: a('v_max3_u32 v7, v7, v%d, v%d' % (breg(k) + 2 * ch, breg(k) + 2 * ch + 1))
                    if ch == 0 and bl: a.take(bl)
                    elif not bl and nbg > 0 and (ch or nbg > nks - s): a.take(bgl); nbg -= 1
                if wr and s >= 1: a(wr.pop(0))
                if wr and s >= nks - 1: a(wr.pop(0))
                if th and not check and s == nks - LATE4 and '4' not in EAGER: a.late('s59')
        if check:
            a('v_cmp_eq_u32 vcc, -1, v7'); a('s_cbranch_vccz Lhalook')
            for it in bitems(nks, breg, lab)[nks:]:
                for x in it: a(x[0] if isinstance(x, tuple) else x)
            a.guard(0x8000)
            a('s_waitcnt vmcnt(0)'); a('s_branch Lhalo')
            a('Lhalook:'); a.count(62)
        for w in red_write(2): a(w)
        a('s_waitcnt lgkmcnt(0)'); a('s_barrier')
    ksplit(8, lambda s, ch: 256 + 64 + 8 * s + 4 * ch, lambda k: 80 + 4 * k, 'b', w3l, W3C, True)
    a.stamp('g2 mfma')
    for r in red_reads(80): a(r)
    for i in range(0, 16, 2): a(pk('v_pk_add_f32', o + i, [o + i, HN + i]))
    red_adds(a, 80)
    for i in range(8): a('v_cvt_pk_bf16_f32 v%d, v%d, v%d' % (96 + i, o + 2 * i, o + 2 * i + 1))
    a.vm('buffer_store_dwordx4 v[96:99], v14, s[32:35], s64 offen sc1')
    a.vm('buffer_store_dwordx4 v[100:103], v14, s[32:35], s64 offen offset:1024 sc1')
    a('v_mov_b32 v104, 0'); a('v_mov_b32 v105, 0')
    for i in range(8):
        a('v_dot2c_f32_bf16 v104, v%d, v%d' % (96 + i, ONES)); a('v_dot2c_f32_bf16 v105, v%d, v%d' % (96 + i, 96 + i))
    a('v_mov_b32 v106, v104'); a('v_mov_b32 v107, v105')
    a('v_permlane32_swap_b32 v104, v106'); a('v_permlane32_swap_b32 v105, v107')
    a(pk('v_pk_add_f32', 104, [104, 106]))
    a('s_mov_b32 exec_hi, 0')
    a.vm('buffer_store_dwordx2 v[104:105], v0, s[32:35], s65 offen sc1', 'x1')
    a('s_mov_b32 exec_hi, -1')
    if 'front' not in EXP and 'rho' not in EXP: a.stamp('x1 stored')
    a.take(w3l, 48)
    RES = 128
    for i in range(8): a(lo(80 + 2 * i, 96 + i)); a(hi(81 + 2 * i, 96 + i))
    for i in range(0, 16, 2): a(pk('v_pk_add_f32', RES + i, [HF + i, 80 + i]))
    a('s_add_u32 s59, s79, 0x%x' % F_X); a('s_add_u32 s58, s72, 0x%x' % F_X)
    a('s_lshl_b32 s64, s48, 13'); a('s_lshl_b32 s65, s68, 16'); a('s_add_u32 s65, s65, s64'); a('s_add_u32 s65, s65, 0x%x' % X1B)
    a('s_lshl_b32 s67, s68, 13'); a('s_lshl_b32 s54, s48, 11'); a('s_add_u32 s67, s67, s54'); a('s_add_u32 s67, s67, 0x%x' % ST1)
    a('v_lshlrev_b32 v8, 9, v6'); a('v_lshl_add_u32 v8, v5, 4, v8'); a('v_add_u32 v9, 0x8000, v8')
    a('s_mul_i32 s74, s69, %d' % (86 * 2048)); a('s_mul_i32 s53, s48, %d' % (22 * 2048)); a('s_add_u32 s74, s74, s53')
    a('s_add_u32 s75, s74, %d' % (20 * 2048)); a('s_cmp_eq_u32 s48, 3'); a('s_cselect_b32 s75, 0x400000, s75')
    a('s_lshl_b32 s53, s52, 10'); a('v_add_u32 v113, s53, v14'); a('v_xor_b32 v112, 0x400, v113')
    srd(a, 44, 30, 64 * HTH, '0x%x' % HB)
    a('s_lshl_b32 s53, s68, 1'); a('s_mul_i32 s53, s53, %d' % HTH); a('s_lshl_b32 s54, s73, 10'); a('s_add_u32 s56, s53, s54')
    a('s_add_u32 s57, s56, %d' % HTH)
    a('s_cmp_eq_u32 s48, 3'); a('s_cselect_b32 s76, 0x%x, s56' % (64 * HTH)); a('s_cselect_b32 s77, 0x%x, s57' % (64 * HTH))
    a('s_lshl_b32 s53, s48, 3'); a('s_add_u32 s53, s53, %d' % G_ST); a('v_lshlrev_b32 v115, 5, v1'); a('v_add_u32 v114, s53, v115'); a('v_add_u32 v115, %d, v115' % G_ST)
    a('s_mov_b32 m0, s64')
    if 'nd3' not in EXP: a.wait('x1')
    a.stamp('x1 drained')
    a.signal('s59', eager='3' in EAGER)
    CS3 = 116
    def cs3(js):
        for s in range(16):
            for j in js: a(M16 % (vr(CS3 + 4 * j, 4), ur(WR3[j] + 4 * s, 4), vr(ONES, 4), vr(CS3 + 4 * j, 4) if s else '0'))
    assert W3A + W3B + W3C >= 16 * CSE or CSE == 0
    a.poll(4, 's58', 's59', between=lambda: cs3((1, 2, 0)[:CSE]))
    a.stamp('X3 seen')
    for p in range(4): a.vm('buffer_load_dwordx2 %s, v0, s[32:35], s67 offen offset:%d sc1' % (vr(80 + 2 * p, 2), 512 * p), 'sp')
    xl = []
    for i in range(16):
        it = []
        if i % 4 == 0:
            oo = 32768 * (i >> 3) + 1024 * (i & 7)
            if i: it += ['s_add_u32 s53, s64, %d' % oo, 's_mov_b32 m0, s53']
            it.append('s_add_u32 s93, s65, %d' % oo)
        it.append(('buffer_load_dwordx4 v14, s[32:35], s93 offen offset:%d sc1 lds' % (1024 * (i & 3)), 'x%d' % (i >> 3)))
        xl.append(it)
    a.take(xl, PX3)
    if '3' not in EAGER: a.late('s59')
    cs3((1, 2, 0)[CSE:])
    def w4reg(s, ch): return (256 + 8 * s + 4 * ch) if s < 16 else (144 + 8 * (s - 16) + 4 * ch)
    w4l = []
    for s in range(22):
        for ch in range(2):
            it = []
            if s % 2 == 0 and ch == 0: it.append('s_add_u32 s87, s74, %d' % (2048 * s) if s < 20 else 's_mov_b32 s87, s75')
            it.append(('buffer_load_dwordx4 %s, v%d, s[36:39], s87 offen offset:%d' % (ur(w4reg(s, ch), 4), 112 + ch, 2048 * (s & 1)), 'w4'))
            w4l.append(it)
    if 'now4' in EXP: w4l = []
    if 'hit4' in EXP: w4l = [[('s_mov_b32 s87, s74' if isinstance(x, str) else (x[0].replace('offset:2048', 'offset:0'), x[1])) for x in it] for it in w4l]
    a.wait('sp')
    a(pk('v_pk_add_f32', 80, [80, 82])); a(pk('v_pk_add_f32', 84, [84, 86])); a(pk('v_pk_add_f32', 80, [80, 84]))
    a('ds_write_b64 v114, v[80:81]')
    a('s_lshl_b32 s53, s48, 10'); a('s_add_u32 s53, s53, %d' % G_ST2); a('v_add_u32 v7, s53, v14'); a('v_lshl_add_u32 v0, v5, 4, s53')
    a.wait('x0', 'lgkmcnt(0)')
    a('s_barrier')
    a.stamp('x0 landed')
    A3 = 16; BR = 40; TMP = 72; PK = 84; STT = 96
    a('ds_read_b128 v[72:75], v115'); a('ds_read_b128 v[76:79], v115 offset:16')
    if OWNH: a('s_mul_i32 s53, s48, 3072'); a('s_add_u32 s53, s53, %d' % L_S2); a('v_add_u32 v114, s53, v14')
    def rd(k):
        tt, s = k >> 4, k & 15
        return 'ds_read_b128 %s, v%d offset:%d' % (vr(BR + 4 * (k & 7), 4), 8 + (tt >> 1), 2048 * s + 256 * (tt & 1))
    for k in range(6): a(rd(k))
    st = ['v_add_f32 v72, v72, v74', 'v_add_f32 v73, v73, v75', 'v_add_f32 v76, v76, v78', 'v_add_f32 v77, v77, v79',
          'v_add_f32 v72, v72, v76', 'v_add_f32 v73, v73, v77',
          'v_mul_f32 v72, s60, v72', 'v_mul_f32 v74, v72, v72', 'v_fma_f32 v73, v73, s60, -v74', 'v_max_f32 v73, 0, v73',
          'v_add_f32 v73, 0x%x, v73' % f2u(EPS), 'v_rsq_f32 v76, v73', 'v_sqrt_f32 v75, v73', 'v_mul_f32 v73, 0x%x, v76' % f2u(C0),
          'v_mul_f32 v74, v76, v76', 'v_mul_f32 v74, v74, v76', 'v_mul_f32 v74, 0x%x, v74' % f2u(C1), 'v_sub_f32 v72, 0, v72',
          ('ds', 'ds_write_b128 v7, v[72:75]')] + [('ds', 'ds_read_b128 %s, v0 offset:%d' % (vr(STT + 4 * tt, 4), 256 * tt)) for tt in range(4)]
    def epi(tt, packed):
        o3 = A3 + 12 * (tt & 1); m = STT + 4 * tt
        if packed:
            l = [pk('v_pk_fma_f32', o3 + i, [bc(m), CS3 + i, o3 + i]) for i in range(0, 12, 2)]
            l += gelu_pk(o3, m + 1, m + 2, m + 3, TMP, 12)
        else:
            l = ['v_fmac_f32 v%d, v%d, v%d' % (o3 + i, m, CS3 + i) for i in range(12)]
            l += gelu_plain(o3, m + 1, m + 2, m + 3, TMP, 12)
        for j in range(3):
            for i in range(2): l.append('v_cvt_pk_bf16_f32 v%d, v%d, v%d' % (PK + 4 * j + 2 * (tt & 1) + i, o3 + 4 * j + 2 * i, o3 + 4 * j + 2 * i + 1))
        if tt & 1:
            for j in range(3):
                l.append('v_permlane16_swap_b32 v%d, v%d' % (PK + 4 * j, PK + 4 * j + 2)); l.append('v_permlane16_swap_b32 v%d, v%d' % (PK + 4 * j + 1, PK + 4 * j + 3))
            for j in range(3):
                l.append(('vm', 'buffer_store_dwordx4 %s, v14, s[44:47], s%d offen offset:%d sc1' % (vr(PK + 4 * j, 4), (76 if j == 2 else 56) + (tt >> 1), 1024 * j), 'H%d' % (tt >> 1)))
                if OWNH: l.append(('ds', 'ds_write_b128 v114, %s offset:%d' % (vr(PK + 4 * j, 4), 12288 * (tt >> 1) + 1024 * j)))
        return l
    def g0sig():
        a('s_add_u32 s59, s79, 0x%x' % F_G); a('s_add_u32 s58, s72, 0x%x' % F_G)
        a.wait('H0'); a.signal('s59', eager=True)
    pend = st
    lg = [('r', k) for k in range(6)]
    def cost(x): return 2 if isinstance(x, str) and x.startswith(('v_exp', 'v_rcp', 'v_rsq', 'v_sqrt')) else 1
    def emit_p(x):
        if isinstance(x, str): a(x)
        elif x[0] == 'vm': a.vm(x[1], x[2])
        elif x[0] == 'ds': a(x[1]); lg.append(('o', 0))
    for k in range(64):
        tt, s = k >> 4, k & 15
        if k % 8 == 0: a.fs('g3', 'k%d' % k)
        if k == 26:
            a.wait('x1'); a('s_barrier')
        if k == G0AT: g0sig()
        if k % 2 == 0:
            for kk in (k + 6, k + 7):
                if kk < 64: a(rd(kk)); lg.append(('r', kk))
            idx = lg.index(('r', k + 1)); a('s_waitcnt lgkmcnt(%d)' % (len(lg) - 1 - idx)); del lg[:idx + 1]
        left = sum(cost(x) for x in pend); slots = 3 * (16 - s)
        for j in range(3):
            o3 = A3 + 12 * (tt & 1) + 4 * j
            a(M16 % (vr(o3, 4), ur(WR3[j] + 4 * s, 4), vr(BR + 4 * (k & 7), 4), vr(o3, 4) if s else '0'))
            if s >= 1 or (tt == 0 and j):
                budget = max(2, -(-left // slots)) if tt else 2
                while pend and budget >= cost(pend[0]):
                    budget -= cost(pend[0]); emit_p(pend.pop(0))
            if j == 2 and xl: a.take(xl)
            elif j == 2 and len(w4l) > W4TAIL and (k - 8) * (44 - W4TAIL) >= (44 - len(w4l)) * (W4END - 8): a.take(w4l)
        if s == 15:
            while pend: emit_p(pend.pop(0))
            pend = epi(tt, tt == 3)
            if 'nogelu' in EXP and tt < 3: pend = [x for x in pend if not isinstance(x, str)]
    a.stamp('g3 mfma'); a.fs('g4', 'mfma end')
    a.take(w4l, 44)
    if G0AT == 64: g0sig()
    def flagcheck(name):
        a.wait(name)
        a('v_cmp_ne_u64 vcc, %s, v[114:115]' % TAG); a('s_cbranch_vccz Lfc%s' % name)
        q = list(a.q); a.poll(4, 's58', 's59', tmp=114); a.q = q
        if a.stamp_on: a('s_add_u32 s82, s82, 1'); a.count(30 if name == 'G0' else 63)
        a('Lfc%s:' % name)
    st_ = [x for x in pend if not isinstance(x, str)]; va_ = [x for x in pend if isinstance(x, str)]
    for i, x in enumerate(va_):
        a(x)
        if i == G0N: a.vm('buffer_load_dwordx2 v[114:115], v4, s[32:35], s58 offen sc1', 'G0')
    for x in st_: emit_p(x)
    if 'front' not in EXP and 'rho' not in EXP: a.stamp('H stored')
    a.fs('g4', 'H st')
    a('s_lshl_b32 s53, s68, 1'); a('s_mul_i32 s57, s53, %d' % HTH)
    a('s_mul_i32 s54, s48, %d' % (22 * 1024)); a('s_add_u32 s54, s54, 0x%x' % HB); a('s_add_u32 s57, s57, s54'); a('s_add_u32 s56, s57, %d' % HTH)
    def b4(k): return (256 + 128 + 4 * k) if k < 32 else (192 + 4 * (k - 32))
    bl = bitems(22, b4, 'f'); bl1 = bl[22:]; bl = bl[:22]
    flagcheck('G0')
    a.fs('g4', 'G0 ok')
    a.take(bl, PRE4)
    a('s_add_u32 s59, s79, 0x%x' % F_F); a('s_add_u32 s58, s72, 0x%x' % F_F)
    srd(a, 40, 26, 2 * MB)
    a('v_lshlrev_b32 v7, 10, v5'); a('v_lshrrev_b32 v8, 5, v1'); a('v_lshl_add_u32 v7, v8, 4, v7'); a('v_and_b32 v8, 1, v6'); a('v_lshl_add_u32 v7, v8, 5, v7')
    a('s_lshl_b32 s64, s66, 15'); a('s_lshr_b32 s54, s70, 5'); a('s_add_u32 s64, s64, s54')
    a('s_sub_u32 s96, 0, s51'); a('s_mov_b32 s97, s96'); a('s_not_b64 s[98:99], s[96:97]')
    a('v_cndmask_b32 v8, v12, v10, s[96:97]'); a('v_cndmask_b32 v9, v10, v12, s[96:97]')
    a.wait('H1')
    a.stamp('H drained'); a.fs('g4', 'drained')
    a.signal('s59', eager=bool(FE))
    def wr4(p):
        l = [['ds_write_b128 v%d, %s offset:%d' % (8 + p, vr(acc(p, 0) + 4 * q, 4), 1024 * q)] for q in range(4)]
        l += [['s_mov_b64 exec, s[%d:%d]' % (96 + 2 * p, 97 + 2 * p), 'ds_write_b128 v11, %s offset:%d' % (vr(acc(p, 1) + 4 * q, 4), 1024 * q), 's_mov_b64 exec, -1'] for q in range(4)]
        return l
    for p in range(2):
        wr = wr4(0) if p else []
        for s in range(22):
            k = 22 * p + s
            a.wait('f%d' % k)
            if k in (0, 8, 13, 21, 22, 30, 43): a.fs('g4', 'f%d' % k)
            if k == F1POLL: a.vm('buffer_load_dwordx2 v[114:115], v4, s[32:35], s58 offen sc1', 'F1')
            if k == F1CHK:
                flagcheck('F1'); a.stamp('X4 seen')
            for ch in range(2):
                a(M32 % (vr(acc(p, ch), 16), ur(w4reg(s, ch), 4), ur(b4(k), 4), vr(acc(p, ch), 16) if s else '0'))
                if ch == 0:
                    if bl: a.take(bl)
                    elif k >= F1CHK: a.take(bl1)
            if wr and s >= 1: a.take(wr)
            if not FE and k == 38: a.late('s59')
    assert not bl and not bl1
    a.take(wr4(1), 8)
    a('s_waitcnt lgkmcnt(0)'); a('s_barrier')
    a.stamp('g4 mfma'); a.fs('g4', 'bar')
    for r in red_reads(80): a(r)
    a('s_cmp_eq_u32 s51, 0'); a('s_cbranch_scc1 Lg40')
    for i in range(0, 16, 2): a(pk('v_pk_add_f32', o + i, [o + i, RES + i]))
    a('s_branch Lg41')
    a('Lg40:')
    for i in range(0, 16, 2): a(pk('v_pk_add_f32', o + i, [acc(0, 1) + i, RES + i]))
    a('Lg41:')
    red_adds(a, 80)
    if E('OSC', 0.0):
        for i in range(16): a('v_mul_f32 v%d, 0x%x, v%d' % (o + i, f2u(1.0 + E('OSC', 0.0)), o + i))
    for i in range(8): a('v_cvt_pk_bf16_f32 v%d, v%d, v%d' % (96 + i, o + 2 * i, o + 2 * i + 1))
    if OUT64:
        a('s_add_u32 s65, s64, 0x4000')
        for i in range(4): a('v_permlane16_swap_b32 v%d, v%d' % (96 + i, 100 + i))
        a.vm('buffer_store_dwordx4 v[96:99], v7, s[40:43], s64 offen ' + OUTF)
        a.vm('buffer_store_dwordx4 v[100:103], v7, s[40:43], s65 offen ' + OUTF)
    else:
        a.vm('buffer_store_dwordx4 v[96:99], v7, s[40:43], s64 offen ' + OUTF)
        a.vm('buffer_store_dwordx4 v[100:103], v7, s[40:43], s64 offen offset:32 ' + OUTF)
    if stamp or SPIN:
        a.wait0(); a.stamp('end')
    if FINE:
        a('s_waitcnt vmcnt(0) lgkmcnt(0)'); a('v_mov_b32 v15, 0')
        for i in range(len(a.fnames)):
            a('v_writelane_b32 v15, s%d, %d' % (FREGS[i], i)); a('v_writelane_b32 v15, s%d, %d' % (FREGS[i], 32 + i))
        a.names = a.fnames
    if stamp or FINE:
        a('s_lshl_b32 s53, s63, 8'); a('s_add_u32 s53, s53, 0x%x' % STAMPS); a('v_lshlrev_b32 v7, 2, v1')
        a('buffer_store_dword v15, v7, s[32:35], s53 offen')
    if SPIN:
        a('s_sub_u32 s96, s97, s96'); a('s_mul_i32 s96, s96, %s' % SPIN[2])
        a('s_memrealtime s[90:91]'); a('s_waitcnt lgkmcnt(0)'); a('s_mov_b32 s97, s90')
        a('Lspin:'); a('s_memrealtime s[90:91]'); a('s_waitcnt lgkmcnt(0)'); a('s_sub_u32 s90, s90, s97'); a('s_cmp_lt_u32 s90, s96'); a('s_cbranch_scc1 Lspin')
    a('Lend:')
    a('s_endpgm')
    body = a.a.finish()
    print('instrs', len(a.a.L), 'nops', a.a.nops, file=sys.stderr)
    hdr = open('sequential_preLN__ssm_conv_h3__mixer_s_mlp__prompt.s.ref').read().split('; Override')[0]
    out = hdr + DOC + '; @launch grid=(256,1,1) block=(256,1,1) lds=%d\n' % LDS_BYTES
    if stamp or FINE: out += '; stamps: ' + '|'.join(a.names) + '\n'
    out += '.amdgcn_target "amdgcn-amd-amdhsa--gfx950"\n.text\n.globl %s\n.p2align 8\n.type %s,@function\n%s:\n' % (NAME, NAME, NAME)
    out += body
    out += '.fill 4096, 4, 0xbf810000\n'
    out += '''.section .rodata,"a"
.p2align 6
.amdhsa_kernel %s
  .amdhsa_next_free_vgpr 512
  .amdhsa_next_free_sgpr 102
  .amdhsa_accum_offset 256
  .amdhsa_group_segment_fixed_size 0
  .amdhsa_kernarg_size 112
  .amdhsa_user_sgpr_count 2
  .amdhsa_user_sgpr_kernarg_segment_ptr 1
  .amdhsa_system_sgpr_workgroup_id_x 1
  .amdhsa_float_denorm_mode_32 3
.end_amdhsa_kernel
''' % NAME
    return out

if __name__ == '__main__':
    open(sys.argv[1], 'w').write(build(len(sys.argv) > 2))
```

```python
import sys, struct, os
from asmlib import *

E = lambda n, d: type(d)(os.environ.get(n, d))
NT = E('NT', ''); NTX = E('NTX', ''); PACE = E('PACE', 6); PRE0 = E('PRE0', 0); NST = E('NST', 8); SLEEP = E('SLEEP', 0)
W4TAIL = E('W4TAIL', 0); W4END = E('W4END', 52); OUTF = E('OUTF', '')
TWHEN = E('TWHEN', 2); BG0 = E('BG0', 28); ST_AT = E('ST_AT', 3); PST_AT = E('PST_AT', 110); W2A = E('W2A', 0); ZT = E('ZT', 0); W2PRE = E('W2PRE', 0); RR = E('RR', ''); HFS = E('HFS', 8); HREP = E('HREP', 8)
KWHEN = E('KWHEN', 0); PWHEN = E('PWHEN', 1)
W3A = E('W3A', 18); W3B = E('W3B', 4); W3C = E('W3C', 16)
EXP = E('EXP', '').split(',')
ONLY = [x for x in E('ONLY', '').split(',') if x]
FINE = E('FINE', ''); FREGS = [4, 6, 8, 10, 12, 14, 16, 18, 20, 22, 24, 84, 90, 94, 96, 100]
if FINE == 'f0': FREGS = [90, 94, 96, 100, 16]
PB2 = E('PB2', 8); PB4 = E('PB4', 8); PH = E('PH', 8); PX3 = E('PX3', 8); OWNH = E('OWNH', 0); G0AT = E('G0AT', 60); G0N = E('G0N', 10); PRE4 = E('PRE4', 8); F1POLL = E('F1POLL', 8); F1CHK = E('F1CHK', 13); GE = E('GE', 1); FE = E('FE', 1); WARM = E('WARM', 0); CPF = E('CPF', 2); ALIGN = E('ALIGN', 0); SUMM = E('SUMM', 0); WRS = E('WRS', 5); CSE = E('CSE', 2); SH0 = E('SH0', 66); SH3 = E('SH3', 5); EAGER = E('EAGER', '0234'); E4EARLY = E('E4EARLY', 1); XTLATE = E('XTLATE', 0); ENTRY = E('ENTRY', 1); LATE4 = E('LATE4', 8); OUT64 = E('OUT64', 1); PUBK = E('PUBK', 30)
SPIN = os.environ['SPIN'].split(',') if os.environ.get('SPIN') else None

MB = 1 << 20
KVR = 0; XT = 2 * MB; HT = 4 * MB; ZB = 6 * MB; X1B = 8 * MB; HB = 10 * MB
W3P = 16 * MB; W4P = W3P + 1408 * 1024
ST0 = 20 * MB
ST1 = ST0 + 65536
FL = ST1 + 262144
FGL = 0x10000
F_A = FL; F_Z = FL + 0x2000; F_X = FL + 0x4000; F_F = FL + 0x6000; F_G = FL + 0x8000
F_H = FL + 0x20000
STAMPS = 64 * MB
DUMP = 0x10000000
HTH = 176 * 512
EPS = 1e-5
def f2u(f): return struct.unpack('<I', struct.pack('<f', f))[0]
C0 = -2.0 * 0.7978845608028654 * 1.4426950408889634
C1 = C0 * 0.044715
NAME = 'sequential_preLN__ssm_conv_h3__mixer_s_mlp__prompt_kernel'

CS = 4160
L_E4 = 0; L_KV = 33280; L_CRED = L_KV + 2 * 4608
L_S = 65536
L_S2 = 131072
L_K = L_S; L_V = L_K + 9216; L_X = L_V + 8192; L_PK = (L_S2 + 4096) if E('PWHEN', 1) == 3 else (L_S + 32768)
G_RED = 65536; G_ST = G_RED + 49152; G_ST2 = G_ST + 2048
LDS_BYTES = 163840

TAG = 's[80:81]'
class G:
    def __init__(self, stamp=False):
        self.a = Asm(); self.stamp_on = stamp; self.q = []; self.nst = 0; self.names = []; self.np = 0; self.fnames = []
    def __call__(self, t): self.a(t)
    def vm(self, text, label=None):
        self.a(text); self.q.append(label)
    def item(self, it):
        for x in it:
            if isinstance(x, tuple): self.vm(x[0], x[1])
            else: self.a(x)
    def take(self, lst, n=1):
        for _ in range(n):
            if lst: self.item(lst.pop(0))
    def wait(self, label, extra=''):
        if label not in self.q:
            if extra: self.a('s_waitcnt ' + extra)
            return
        idx = max(i for i, l in enumerate(self.q) if l == label)
        n = len(self.q) - 1 - idx
        assert n < 64
        self.a('s_waitcnt vmcnt(%d) %s' % (n, extra)); self.q = self.q[idx + 1:]
    def wait0(self, extra=''):
        self.a('s_waitcnt vmcnt(0) %s' % extra); self.q = []
    def count(self, lane):
        if self.stamp_on: self.a('v_writelane_b32 v15, s82, %d' % lane)
    def stamp(self, name):
        if SPIN and name in SPIN:
            self.a('s_memrealtime s[90:91]'); self.a('s_waitcnt lgkmcnt(0)'); self.a('s_mov_b32 s%d, s90' % (96 + SPIN.index(name)))
        if self.stamp_on and (not ONLY or name in ONLY):
            self.a('s_memrealtime s[90:91]'); self.a('s_memtime s[94:95]'); self.a('s_waitcnt lgkmcnt(0)'); self.a('v_writelane_b32 v15, s90, %d' % self.nst)
            self.a('v_writelane_b32 v15, s94, %d' % (32 + self.nst)); assert self.nst < 30
            self.names.append(name); self.nst += 1
    def fs(self, region, name):
        if FINE == region:
            r = FREGS[len(self.fnames)]
            self.a('s_memtime s[%d:%d]' % (r, r + 1)); self.fnames.append(name)
    def guard(self, limit=0x20000):
        self.a('s_add_u32 s82, s82, 1'); self.a('s_cmp_gt_u32 s82, 0x%x' % limit); self.a('s_cbranch_scc1 Lend')
    def publish(self, mine):
        a = self
        a('s_add_u32 s83, %s, 0x%x' % (mine, FGL)); a('s_mov_b64 exec, 1')
        a('buffer_store_dwordx2 v[2:3], off, s[32:35], s83 sc1'); a('s_mov_b64 exec, -1')
    def wsig(self, mine, label=None):
        a = self
        a('s_mov_b64 exec, 1'); a.vm('buffer_store_dwordx2 v[2:3], off, s[32:35], %s' % mine, label); a('s_mov_b64 exec, -1')
    def wpub(self, mine):
        a = self
        a('s_add_u32 s83, %s, 0x%x' % (mine, FGL)); a('s_mov_b64 exec, 1')
        a.vm('buffer_store_dwordx2 v[2:3], off, s[32:35], s83 sc1'); a('s_mov_b64 exec, -1')
    def late(self, mine):
        a = self; n = self.np; self.np += 1
        a('s_cmp_lg_u32 s48, 3'); a('s_cbranch_scc1 Llate%d' % n)
        a.publish(mine)
        a('Llate%d:' % n)
    def poll(self, vaddr, soff, dual, sleep=0, tmp=16, between=None):
        a = self; n = self.np; self.np += 1
        a('s_mov_b32 s82, 0')
        a('buffer_load_dwordx2 %s, v%d, s[32:35], %s offen sc1' % (vr(tmp, 2), vaddr, soff))
        if between: between()
        a('Lpoll%d:' % n)
        a.wait0()
        a('v_cmp_ne_u64 vcc, %s, %s' % (TAG, vr(tmp, 2)))
        a('s_cbranch_vccz Lpolld%d' % n)
        if sleep: a('s_sleep %d' % sleep)
        so = soff
        if dual:
            a('s_cmp_lg_u32 s82, 32'); a('s_cbranch_scc1 Lpollp%d' % n)
            a.publish(dual)
            a('Lpollp%d:' % n)
            a('s_cmp_lt_u32 s82, 32'); a('s_cselect_b32 s83, 0, 0x%x' % FGL); a('s_add_u32 s83, s83, %s' % soff); so = 's83'
        a('buffer_load_dwordx2 %s, v%d, s[32:35], %s offen sc1' % (vr(tmp, 2), vaddr, so))
        a.guard()
        a('s_branch Lpoll%d' % n)
        a('Lpolld%d:' % n)
    def signal(self, soff, rep=None, eager=False):
        a = self; n = self.np; self.np += 1
        a('s_barrier')
        a('s_cmp_lg_u32 s48, 0'); a('s_cbranch_scc1 Lsig%d' % n)
        if rep is None:
            a('s_mov_b64 exec, 1')
            a('buffer_store_dwordx2 v[2:3], off, s[32:35], %s' % soff)
            if eager:
                a('s_add_u32 s83, %s, 0x%x' % (soff, FGL))
                a('buffer_store_dwordx2 v[2:3], off, s[32:35], s83 sc1')
        else:
            a('s_mov_b64 exec, %d' % ((1 << HREP) - 1))
            a('buffer_store_dwordx2 v[2:3], v%d, s[32:35], %s offen sc1' % (rep, soff))
        a('s_mov_b64 exec, -1')
        a('Lsig%d:' % n)

def srd(a, d, p, size, off=None):
    if off is None:
        a('s_mov_b32 s%d, s%d' % (d, p)); a('s_mov_b32 s%d, s%d' % (d + 1, p + 1))
    else:
        a('s_add_u32 s%d, s%d, %s' % (d, p, off)); a('s_addc_u32 s%d, s%d, 0' % (d + 1, p + 1))
    a('s_mov_b32 s%d, 0x%x' % (d + 2, size)); a('s_mov_b32 s%d, 0x20000' % (d + 3))

def allreduce(a, regs, tmps):
    for m in ('quad_perm:[1,0,3,2]', 'quad_perm:[2,3,0,1]', 'row_half_mirror', 'row_mirror'):
        for r in regs: a('v_add_f32_dpp v%d, v%d, v%d %s row_mask:0xf bank_mask:0xf' % (r, r, r, m))
    for sw in ('v_permlane16_swap_b32', 'v_permlane32_swap_b32'):
        for r, t in zip(regs, tmps): a('v_mov_b32 v%d, v%d' % (t, r))
        for r, t in zip(regs, tmps): a('%s v%d, v%d' % (sw, r, t))
        for r, t in zip(regs, tmps): a('v_add_f32 v%d, v%d, v%d' % (r, r, t))

ACC = 16
def acc(th, ch): return ACC + 32 * th + 16 * ch
def red_write(slot):
    th, ch = slot >> 1, slot & 1
    return ['ds_write_b128 v%d, %s offset:%d' % (10 + slot, vr(acc(th, ch) + 4 * q, 4), 1024 * q) for q in range(4)]
def red_reads(tmp): return ['ds_read_b128 %s, v13 offset:%d' % (vr(tmp + 4 * i, 4), 1024 * i) for i in range(12)]
def red_adds(a, tmp, dst=None):
    o = acc(1, 1)
    for i in range(12):
        if i % 2 == 0: a('s_waitcnt lgkmcnt(%d)' % (10 - i))
        d = dst if (dst is not None and i >= 8) else o
        for r in (0, 2): a('v_pk_add_f32 %s, %s, %s' % (vr(d + 4 * (i & 3) + r, 2), vr(o + 4 * (i & 3) + r, 2), vr(tmp + 4 * i + r, 2)))

def lo(d, s): return 'v_lshlrev_b32 v%d, 16, v%d' % (d, s)
def hi(d, s): return 'v_and_b32 v%d, s61, v%d' % (d, s)
def bc(r): return vr(r & ~1, 2), r & 1
def pk(op, d, srcs, neg=None):
    names = []; l = []; h = []
    for s in srcs:
        if isinstance(s, tuple): names.append(s[0]); l.append(s[1]); h.append(s[1])
        else: names.append(vr(s, 2)); l.append(0); h.append(1)
    t = '%s %s, %s' % (op, vr(d, 2), ', '.join(names))
    if l != [0] * len(l) or h != [1] * len(h):
        t += ' op_sel:[%s] op_sel_hi:[%s]' % (','.join(map(str, l)), ','.join(map(str, h)))
    if neg: t += ' neg_lo:[%s] neg_hi:[%s]' % (','.join(map(str, neg)), ','.join(map(str, neg)))
    return t
def gelu_plain(t, ca, cb, ri, tmp, n):
    l = []
    for i in range(n): l.append('v_mul_f32 v%d, v%d, v%d' % (tmp + i, t + i, t + i))
    for i in range(n): l.append('v_fma_f32 v%d, v%d, v%d, v%d' % (tmp + i, tmp + i, cb, ca))
    for i in range(n): l.append('v_mul_f32 v%d, v%d, v%d' % (tmp + i, tmp + i, t + i))
    for i in range(n): l.append('v_exp_f32 v%d, v%d' % (tmp + i, tmp + i))
    for i in range(n): l.append('v_fma_f32 v%d, v%d, v%d, v%d' % (tmp + i, tmp + i, ri, ri))
    for i in range(n): l.append('v_rcp_f32 v%d, v%d' % (tmp + i, tmp + i))
    for i in range(n): l.append('v_mul_f32 v%d, v%d, v%d' % (t + i, t + i, tmp + i))
    return l
def gelu_pk(t, ca, cb, ri, tmp, n):
    l = []
    for i in range(0, n, 2): l.append(pk('v_pk_mul_f32', tmp + i, [t + i, t + i]))
    for i in range(0, n, 2): l.append(pk('v_pk_fma_f32', tmp + i, [tmp + i, bc(cb), bc(ca)]))
    for i in range(0, n, 2): l.append(pk('v_pk_mul_f32', tmp + i, [tmp + i, t + i]))
    for i in range(n): l.append('v_exp_f32 v%d, v%d' % (tmp + i, tmp + i))
    for i in range(0, n, 2): l.append(pk('v_pk_fma_f32', tmp + i, [tmp + i, bc(ri), bc(ri)]))
    for i in range(n): l.append('v_rcp_f32 v%d, v%d' % (tmp + i, tmp + i))
    for i in range(0, n, 2): l.append(pk('v_pk_mul_f32', t + i, [t + i, tmp + i]))
    return l
M32 = 'v_mfma_f32_32x32x16_bf16 %s, %s, %s, %s'
M16 = 'v_mfma_f32_16x16x32_bf16 %s, %s, %s, %s'
TR = 'ds_read_b64_tr_b16 %s, v%d offset:%d'

DOC = '''; One persistent launch, 256 workgroups (one per CU) x 4 waves. Phases, separated by flag hand-offs through d_ws:
'''

def build(stamp=False):
    a = G(stamp)
    a('s_cmp_ge_u32 s2, 256'); a('s_cbranch_scc1 Lend')
    if SPIN and SPIN[0] == 'entry': a.stamp('entry')
    a.fs('f0', 'entry')
    if ENTRY:
        a('s_load_dwordx2 s[36:37], s[0:1], 8'); a('s_load_dwordx2 s[40:41], s[0:1], 16'); a('s_load_dwordx2 s[44:45], s[0:1], 0')
        a('s_getpc_b64 s[84:85]')
        a('s_lshr_b32 s49, s2, 3'); a('s_lshl_b32 s53, s49, 10'); a('v_lshlrev_b32 v7, 2, v0'); a('v_and_b32 v7, 0x380, v7'); a('v_add_u32 v7, s53, v7')
        if CPF == 1: a.vm('global_load_dword v148, v7, s[84:85]')
        if CPF == 2:
            a('v_mov_b32 v9, s85'); a('v_add_co_u32 v8, vcc, s84, v7'); a('v_addc_co_u32 v9, vcc, 0, v9, vcc')
            a.vm('global_load_dword v148, v[8:9], off')
        a('v_lshrrev_b32 v1, 6, v0'); a('v_readfirstlane_b32 s48, v1'); a('v_and_b32 v1, 63, v0')
        a('s_mov_b32 s38, 0x200000'); a('s_mov_b32 s39, 0x20000'); a('s_mov_b32 s42, 0x200000'); a('s_mov_b32 s43, 0x20000'); a('s_mov_b32 s46, 0x200000'); a('s_mov_b32 s47, 0x20000')
        a('v_lshrrev_b32 v7, 3, v1'); a('v_lshlrev_b32 v7, 10, v7'); a('v_and_b32 v8, 7, v1'); a('v_lshl_add_u32 v7, v8, 4, v7')
        a('v_bfe_u32 v8, v1, 4, 1'); a('v_lshlrev_b32 v9, 5, v8'); a('v_xor_b32 v16, v9, v7'); a('v_xor_b32 v17, 64, v16')
        a('v_add_u32 v18, 0x1c00, v17'); a('v_add_u32 v19, 0x1c00, v16')
        a('s_and_b32 s50, s2, 7'); a('s_lshl_b32 s53, s49, 16'); a('s_lshl_b32 s54, s48, 14'); a('s_add_u32 s53, s53, s54'); a('s_lshl_b32 s54, s50, 7'); a('s_add_u32 s55, s53, s54')
        a('s_lshl_b32 s56, s48, 11'); a('s_add_u32 s53, s56, %d' % (L_K + 1024)); a('s_mov_b32 m0, s53')
        if stamp: a('v_mov_b32 v15, 0')
        a('s_waitcnt lgkmcnt(0)')
        a.stamp('start'); a.fs('f0', 'karg')
        a.vm('buffer_load_dwordx4 v17, s[36:39], s55 offen %s lds' % NT)
        a.vm('buffer_load_dwordx4 v19, s[36:39], s55 offen offset:1024 %s lds' % NT)
        a('s_add_u32 s53, s56, %d' % L_V); a('s_mov_b32 m0, s53')
        a('s_load_dwordx16 s[4:19], s[0:1], 0')
        a.vm('buffer_load_dwordx4 v16, s[40:43], s55 offen %s lds' % NT)
        a.vm('buffer_load_dwordx4 v18, s[40:43], s55 offen offset:1024 %s lds' % NT)
        a('s_add_u32 s53, s56, %d' % L_X); a('s_mov_b32 m0, s53')
        a('s_load_dwordx8 s[20:27], s[0:1], 64')
        a.vm('buffer_load_dwordx4 v16, s[44:47], s55 offen %s lds' % NTX)
        a.vm('buffer_load_dwordx4 v18, s[44:47], s55 offen offset:1024 %s lds' % NTX)
        a('s_load_dwordx4 s[28:31], s[0:1], 96')
        a('s_memrealtime s[80:81]'); a.fs('f0', 'kvx issued')
        a('s_cmp_lg_u32 s48, 0'); a('s_cbranch_scc1 Lnoh')
        a('s_sub_u32 s53, s55, 0x2000'); a('s_cselect_b32 s53, 0x400000, s53'); a('s_mov_b32 m0, %d' % L_K)
        a('buffer_load_dwordx4 v16, s[36:39], s53 offen %s lds' % NT)
        a('Lnoh:')
        a('s_and_b32 s51, s48, 1'); a('s_lshr_b32 s52, s48, 1')
        a('v_and_b32 v5, 15, v1'); a('v_lshrrev_b32 v6, 4, v1'); a('v_lshlrev_b32 v14, 4, v1')
        a('v_lshlrev_b32 v9, 6, v8'); a('v_xor_b32 v184, v9, v7')
        a('s_mov_b32 s60, 0x%x' % f2u(1.0 / 512)); a('s_mov_b32 s61, 0xffff0000')
        a('s_lshl_b32 s63, s2, 2'); a('s_add_u32 s63, s63, s48')
        a('s_waitcnt lgkmcnt(0)')
        a('s_cmp_lg_u32 s63, 0'); a('s_cbranch_scc1 Lnotag')
        a('v_mov_b32 v2, s80'); a('v_mov_b32 v3, s81'); a('v_mov_b32 v4, 0'); a('s_mov_b64 exec, 1')
        a('global_store_dwordx2 v4, v[2:3], s[28:29] sc1'); a('s_mov_b64 exec, -1')
        a('Lnotag:')
    else:
        a('s_load_dwordx16 s[4:19], s[0:1], 0')
        a('s_getpc_b64 s[84:85]')
        a('s_lshr_b32 s49, s2, 3'); a('s_lshl_b32 s53, s49, 10'); a('v_lshlrev_b32 v7, 2, v0'); a('v_and_b32 v7, 0x380, v7'); a('v_add_u32 v7, s53, v7')
        a.vm('global_load_dword v148, v7, s[84:85]')
        a('s_load_dwordx8 s[20:27], s[0:1], 64')
        a('s_load_dwordx4 s[28:31], s[0:1], 96')
        a('s_memrealtime s[80:81]')
        a('v_lshrrev_b32 v1, 6, v0'); a('v_readfirstlane_b32 s48, v1'); a('v_and_b32 v1, 63, v0')
        if stamp: a('v_mov_b32 v15, 0')
        a('s_and_b32 s50, s2, 7')
        a('s_and_b32 s51, s48, 1'); a('s_lshr_b32 s52, s48, 1')
        a('v_and_b32 v5, 15, v1'); a('v_lshrrev_b32 v6, 4, v1'); a('v_lshlrev_b32 v14, 4, v1')
        a('v_lshrrev_b32 v7, 3, v1'); a('v_lshlrev_b32 v7, 10, v7'); a('v_and_b32 v8, 7, v1'); a('v_lshl_add_u32 v7, v8, 4, v7')
        a('v_and_b32 v8, 1, v6'); a('v_lshlrev_b32 v9, 6, v8'); a('v_xor_b32 v184, v9, v7')
        a('v_lshlrev_b32 v9, 5, v8'); a('v_xor_b32 v16, v9, v7'); a('v_xor_b32 v17, 64, v16'); a('v_add_u32 v18, 0x1c00, v17')
        a('s_lshl_b32 s53, s49, 16'); a('s_lshl_b32 s54, s48, 14'); a('s_add_u32 s53, s53, s54'); a('s_lshl_b32 s54, s50, 7'); a('s_add_u32 s55, s53, s54')
        a('s_lshl_b32 s56, s48, 11')
        a('v_add_u32 v19, 0x1c00, v16')
        a('s_movk_i32 s62, 0x1000'); a('s_mov_b32 s60, 0x%x' % f2u(1.0 / 512)); a('s_mov_b32 s61, 0xffff0000')
        a('s_lshl_b32 s63, s2, 2'); a('s_add_u32 s63, s63, s48')
        a('s_waitcnt lgkmcnt(0)')
        a.stamp('start')
        srd(a, 36, 6, 2 * MB)
        a('s_add_u32 s53, s56, %d' % (L_K + 1024)); a('s_mov_b32 m0, s53')
        a.vm('buffer_load_dwordx4 v17, s[36:39], s55 offen %s lds' % NT)
        a.vm('buffer_load_dwordx4 v19, s[36:39], s55 offen offset:1024 %s lds' % NT)
        srd(a, 40, 8, 2 * MB)
        a('s_add_u32 s53, s56, %d' % L_V); a('s_mov_b32 m0, s53')
        a.vm('buffer_load_dwordx4 v16, s[40:43], s55 offen %s lds' % NT)
        a.vm('buffer_load_dwordx4 v18, s[40:43], s55 offen offset:1024 %s lds' % NT)
        a('s_cmp_lg_u32 s48, 0'); a('s_cbranch_scc1 Lnoh')
        a('s_sub_u32 s53, s55, 0x2000'); a('s_cselect_b32 s53, 0x400000, s53'); a('s_mov_b32 m0, %d' % L_K)
        a('buffer_load_dwordx4 v16, s[36:39], s53 offen %s lds' % NT)
        a('s_cmp_lg_u32 s2, 0'); a('s_cbranch_scc1 Lnoh')
        a('v_mov_b32 v2, s80'); a('v_mov_b32 v3, s81'); a('v_mov_b32 v4, 0'); a('s_mov_b64 exec, 1')
        a('global_store_dwordx2 v4, v[2:3], s[28:29] sc1'); a('s_mov_b64 exec, -1')
        a('Lnoh:')
        srd(a, 44, 4, 2 * MB)
        a('s_add_u32 s53, s56, %d' % L_X); a('s_mov_b32 m0, s53')
        a.vm('buffer_load_dwordx4 v16, s[44:47], s55 offen %s lds' % NTX)
        a.vm('buffer_load_dwordx4 v18, s[44:47], s55 offen offset:1024 %s lds' % NTX)
    a('s_lshl_b32 s53, s50, 2'); a('s_add_u32 s53, s53, s48'); a('s_lshl_b32 s53, s53, 4'); a('v_add_u32 v20, s53, v5')
    a('v_lshlrev_b32 v7, 3, v20')
    a.vm('global_load_dwordx2 v[44:45], v7, s[10:11]', 'kvx')
    a('s_lshr_b32 s53, s2, 5'); a('s_lshl_b32 s53, s53, 18'); a('s_and_b32 s54, s63, 15'); a('s_lshl_b32 s54, s54, 14'); a('s_add_u32 s53, s53, s54')
    a('s_bfe_u32 s54, s2, 0x20002'); a('s_lshl_b32 s54, s54, 12'); a('s_add_u32 s53, s53, s54')
    a('s_bfe_u32 s54, s2, 0x10004'); a('s_lshl_b32 s54, s54, 11'); a('s_add_u32 s53, s53, s54'); a('v_add_u32 v7, s53, v14')
    a.vm('global_load_dwordx4 v[128:131], v7, s[4:5] ' + NTX); a.vm('global_load_dwordx4 v[132:135], v7, s[4:5] offset:1024 ' + NTX, 'xr')
    def kloads():
        a('s_lshl_b32 s64, s50, 6'); a('s_lshl_b32 s53, s49, 1'); a('s_add_u32 s64, s64, s53')
        a('s_lshl_b32 s53, s64, 1'); a('s_load_dword s65, s[14:15], s53')
        a('s_add_u32 s64, s64, s52'); a('s_lshl_b32 s66, s64, 12')
        a('s_lshl_b32 s67, s51, 11'); a('v_add_u32 v10, s67, v14')
        if KWHEN != 3: kl2()
    def kl2():
        srd(a, 36, 12, 4096, 's66')
        a('v_add_u32 v150, -8, v10'); a('v_add_u32 v151, 1016, v10')
        a.vm('buffer_load_dwordx2 v[136:137], v150, s[36:39], 0 offen ' + NT)
        a.vm('buffer_load_dwordx4 v[138:141], v10, s[36:39], 0 offen ' + NT)
        a.vm('buffer_load_dwordx2 v[142:143], v151, s[36:39], 0 offen ' + NT)
        a.vm('buffer_load_dwordx4 v[144:147], v10, s[36:39], 0 offen offset:1024 ' + NT, 'K')
    if KWHEN in (0, 3): kloads()
    srd(a, 32, 30, 0x10000000)
    a('s_lshl_b32 s68, s50, 2'); a('s_and_b32 s53, s49, 3'); a('s_add_u32 s68, s68, s53')
    a('s_lshl_b32 s53, s50, 9'); a('s_add_u32 s72, s53, 0x%x' % F_A); a('s_lshl_b32 s54, s68, 8'); a('s_sub_u32 s54, s54, s53')
    a('v_bfe_u32 v7, v1, 1, 3'); a('v_min_u32 v7, 4, v7'); a('v_cmp_ne_u32 vcc, 0, v7'); a('v_lshlrev_b32 v7, 13, v7'); a('v_and_b32 v8, 1, v1'); a('v_lshl_add_u32 v7, v8, 7, v7')
    a('v_mov_b32 v8, s54'); a('v_cndmask_b32 v8, 0, v8, vcc'); a('v_add_u32 v7, v7, v8')
    a.vm('buffer_load_dword v149, v7, s[32:35], s72 offen sc1')
    a('s_lshl_b32 s76, s48, 12'); a('s_add_u32 s76, s76, %d' % L_PK); a('s_sub_u32 s74, 1023, s63')
    for i in range(1, 4): a('v_add_u32 v%d, %d, v184' % (248 + i, 7168 * i))
    def ploads():
        srd(a, 36, 24, 1376 * 1024)
        a('s_and_b32 s53, s63, 7'); a('s_lshl_b32 s53, s53, 7'); a('s_lshr_b32 s54, s63, 3'); a('s_lshl_b32 s54, s54, 14'); a('s_add_u32 s73, s53, s54')
        a('s_mov_b32 m0, s76')
        a.vm('buffer_load_dwordx4 v184, s[36:39], s73 offen %s lds' % NT)
        a.vm('buffer_load_dwordx4 v249, s[36:39], s73 offen offset:1024 %s lds' % NT)
        srd(a, 36, 22, 512 * 2752)
        a('s_and_b32 s53, s74, 15'); a('s_mul_i32 s53, s53, %d' % (32 * 2752)); a('s_lshr_b32 s54, s74, 4'); a('s_lshl_b32 s54, s54, 6')
        a('s_add_u32 s75, s53, s54'); a('s_cmp_lt_u32 s74, 688'); a('s_cselect_b32 s75, s75, 0x400000')
        a('v_lshrrev_b32 v150, 2, v1'); a('v_mul_u32_u24 v150, 2752, v150'); a('v_and_b32 v151, 3, v1'); a('v_lshl_add_u32 v150, v151, 4, v150')
        a('s_add_u32 s53, s76, 2048'); a('s_mov_b32 m0, s53'); a('s_add_u32 s54, s75, %d' % (16 * 2752 - 1024))
        a.vm('buffer_load_dwordx4 v150, s[36:39], s75 offen %s lds' % NT)
        a.vm('buffer_load_dwordx4 v150, s[36:39], s54 offen offset:1024 %s lds' % NT, 'pk')
    if PWHEN == 0: ploads()
    if 'front' in EXP: a.stamp('issued')
    a('s_and_b32 s53, s63, 7'); a('s_mul_i32 s53, s53, %d' % (86 * 2048)); a('s_lshr_b32 s54, s63, 3'); a('s_lshl_b32 s54, s54, 11'); a('s_add_u32 s53, s53, s54')
    a('s_add_u32 s53, s53, 0x%x' % W4P); a('s_cmp_lt_u32 s63, 688'); a('s_cselect_b32 s88, s53, 0x%x' % DUMP)
    a('s_lshr_b32 s54, s74, 4'); a('s_lshl_b32 s54, s54, 15'); a('s_and_b32 s55, s74, 15'); a('s_lshl_b32 s55, s55, 10'); a('s_add_u32 s54, s54, s55')
    a('s_add_u32 s54, s54, 0x%x' % W3P); a('s_cmp_lt_u32 s74, 688'); a('s_cselect_b32 s89, s54, 0x%x' % DUMP); a('s_add_u32 s59, s89, 0x4000')
    a('s_and_b32 s53, s49, 3')
    a('s_lshr_b32 s69, s2, 5')
    a('s_lshl_b32 s92, s53, 12')
    a('s_lshl_b32 s77, s48, 14'); a('s_add_u32 s77, s77, %d' % L_S)
    a('s_lshl_b32 s78, s48, 17'); a('s_lshl_b32 s53, s69, 7'); a('s_add_u32 s78, s78, s53')
    srd(a, 40, 20, 512 * 1024); srd(a, 44, 18, 512 * 1024)
    for i in range(4): a('v_mov_b32 v%d, 0' % (152 + i))
    a('s_mul_i32 s70, s52, 4608'); a('s_add_u32 s70, s70, %d' % L_KV)
    a('s_mul_i32 s71, s52, %d' % (4 * CS))
    a('v_and_b32 v7, 31, v1'); a('v_lshl_add_u32 v7, v7, 4, s70')
    a('ds_write_b128 v7, v[152:155] offset:4096')
    a('v_and_b32 v7, 1, v1'); a('v_lshlrev_b32 v7, 4, v7'); a('v_bfe_u32 v8, v1, 1, 2'); a('v_mul_u32_u24 v8, %d, v8' % CS)
    a('v_add3_u32 v7, v7, v8, s71')
    a('ds_write_b128 v7, v[152:155] offset:%d' % L_E4)
    for i in range(4): a('v_mov_b32 v%d, -1' % (252 + i))
    a('s_bfe_u32 s53, s69, 0x10001'); a('s_xor_b32 s53, s53, 1')
    a('v_bfe_u32 v7, v1, 3, 1'); a('s_mul_i32 s54, s53, 31'); a('v_xor_b32 v7, s54, v7'); a('v_lshlrev_b32 v7, 4, v7')
    a('v_and_b32 v8, 7, v1'); a('v_lshl_add_u32 v191, v8, 9, v7')
    a('s_lshl_b32 s54, s68, 1'); a('s_add_u32 s53, s53, s54'); a('s_lshl_b32 s53, s53, 15'); a('s_lshl_b32 s54, s69, 12'); a('s_add_u32 s53, s53, s54')
    a('s_add_u32 s79, s53, 0x%x' % ZB)
    a('v_and_b32 v11, 3, v5'); a('v_mul_u32_u24 v11, %d, v11' % CS); a('v_and_b32 v12, 12, v5'); a('v_lshl_add_u32 v11, v12, 1, v11')
    a('v_lshl_add_u32 v11, v6, 4, v11'); a('s_lshl_b32 s56, s51, 8'); a('s_add_u32 s57, s56, s71'); a('s_add_u32 s57, s57, %d' % (L_E4 + 8))
    a('v_add_u32 v11, s57, v11')
    a('v_lshlrev_b32 v12, 4, v6'); a('v_lshlrev_b32 v13, 5, v5'); a('v_sub_u32 v12, v12, v13')
    a('s_add_u32 s57, s56, s70'); a('s_add_u32 s57, s57, 480'); a('v_add_u32 v12, s57, v12')
    a('v_lshlrev_b32 v7, 4, v5'); a('v_lshl_add_u32 v7, v6, 2, v7'); a('s_lshl_b32 s56, s51, 10'); a('v_add_u32 v7, s56, v7')
    a('v_lshlrev_b32 v8, 1, v7'); a('s_lshl_b32 s56, s51, 13'); a('v_add_u32 v9, s56, v14')
    a('s_add_u32 s57, s70, %d' % (2 * (2044 - 768))); a('v_sub_u32 v13, s57, v8')
    a('v_and_b32 v185, 1, v6'); a('v_lshlrev_b32 v185, 18, v185'); a('v_lshrrev_b32 v7, 2, v5'); a('v_lshl_add_u32 v185, v7, 16, v185')
    a('v_and_b32 v7, 3, v5'); a('v_lshl_add_u32 v185, v7, 5, v185'); a('v_lshrrev_b32 v7, 1, v6'); a('v_lshl_add_u32 v185, v7, 4, v185')
    a('v_lshrrev_b32 v21, 5, v1'); a('v_bfe_u32 v22, v1, 2, 2')
    a('v_lshl_add_u32 v7, v21, 3, v22'); a('v_lshlrev_b32 v7, 7, v7'); a('v_lshrrev_b32 v23, 1, v22'); a('v_lshl_add_u32 v7, v23, 6, v7')
    a('v_and_b32 v21, 1, v6'); a('v_lshl_add_u32 v7, v21, 5, v7')
    a('v_and_b32 v24, 3, v1'); a('v_lshl_add_u32 v187, v24, 3, v7')
    a('v_and_b32 v25, 1, v1'); a('v_lshl_add_u32 v7, v25, 4, v7'); a('v_bfe_u32 v25, v1, 1, 1'); a('v_lshl_add_u32 v188, v25, 3, v7')
    PA, PB = (189, 190) if PWHEN != 3 else (10, 4)
    if PWHEN != 3: a('v_add_u32 v%d, s76, v188' % PA); a('v_xor_b32 v%d, 64, v%d' % (PB, PA))
    a('v_lshl_add_u32 v7, v6, 3, v22'); a('v_lshlrev_b32 v186, 6, v7'); a('v_lshl_add_u32 v186, v24, 3, v186'); a('v_add_u32 v186, s76, v186')
    a('v_lshlrev_b32 v7, 7, v7'); a('v_lshl_add_u32 v23, v21, 1, v23'); a('v_xor_b32 v23, s48, v23'); a('v_lshl_add_u32 v7, v23, 5, v7')
    a('v_lshl_add_u32 v7, v24, 3, v7'); a('v_add_u32 v26, %d, v7' % L_K); a('v_xor_b32 v27, 64, v26')
    a('v_lshlrev_b32 v20, 12, v20'); a('s_lshl_b32 s53, s49, 7'); a('v_lshl_add_u32 v7, v6, 4, s53')
    a('v_add_u32 v28, v20, v7'); a('v_add_u32 v28, 0x%x, v28' % XT)
    a('v_sub_u32 v29, v20, v7'); a('v_add_u32 v29, %d, v29' % (4080 - 64 + KVR))
    a('v_and_b32 v4, 31, v1'); a('v_lshlrev_b32 v4, 3, v4'); a('v_mov_b32 v0, 0')
    if 'front' in EXP: a.stamp('addr done')
    a.fs('f0', 'addr done')
    a.wait('kvx')
    if 'front' in EXP: a.stamp('own landed')
    a.fs('f0', 'landed')
    a('s_barrier')
    a.vm('global_load_dwordx2 v[2:3], v0, s[28:29] sc1', 'tag')
    a.stamp('k landed')
    if KWHEN == 2: kloads()
    if PWHEN == 2: ploads()
    for o in range(2):
        a(TR % (vr(30 + 6 * o, 2), 26, 512 + 4096 * o))
        a(TR % (vr(32 + 6 * o, 2), 27, 1024 + 4096 * o)); a(TR % (vr(34 + 6 * o, 2), 27, 1536 + 4096 * o))
    for o in range(2):
        for z in range(2): a(TR % (vr(112 + 4 * o + 2 * z, 2), 26, L_V - L_K + 512 * z + 4096 * o))
    for o in range(2):
        for z in range(2): a(TR % (vr(120 + 4 * o + 2 * z, 2), 26, L_X - L_K + 512 * z + 4096 * o))
    a(lo(70, 44)); a(hi(71, 44)); a(lo(72, 45)); a(hi(73, 45))
    a('s_waitcnt lgkmcnt(8)')
    for t in range(1, 12):
        for o in range(2): a((hi if t & 1 else lo)(46 + 2 * t + o, 30 + 6 * o + (t >> 1)))
    a('s_waitcnt lgkmcnt(0)')
    a.vm('buffer_store_dwordx4 v[120:123], v28, s[32:35], 0 offen sc1')
    a.vm('buffer_store_dwordx4 v[124:127], v28, s[32:35], 0 offen offset:64 sc1')
    for i in range(8): a(pk('v_pk_mul_f32', 94 + 2 * i, [48 + 2 * i, bc(73)]))
    for t in (1, 2, 3):
        for i in range(8): a(pk('v_pk_fma_f32', 94 + 2 * i, [48 + 2 * (i + t), bc(73 - t), 94 + 2 * i]))
    for i in range(8):
        for o in range(2): a((hi if i & 1 else lo)(78 + 2 * i + o, 112 + 4 * o + (i >> 1)))
    for i in range(8): a(pk('v_pk_mul_f32', 94 + 2 * i, [94 + 2 * i, 78 + 2 * i]))
    for o in range(2):
        for i in range(4): a('v_cvt_pk_bf16_f32 v%d, v%d, v%d' % (112 + 4 * o + i, 94 + 2 * (7 - 2 * i) + o, 94 + 2 * (6 - 2 * i) + o))
    a.vm('buffer_store_dwordx4 v[112:115], v29, s[32:35], 0 offen offset:64 sc1')
    a.vm('buffer_store_dwordx4 v[116:119], v29, s[32:35], 0 offen sc1', 'st')
    a.stamp('kv stored')
    if KWHEN == 1: kloads()
    if PWHEN == 1: ploads()
    if WARM:
        a('v_and_b32 v150, 3, v1'); a('v_lshlrev_b32 v150, 7, v150'); a('s_lshl_b32 s53, s63, 9')
        if WARM & 1: a.vm('buffer_load_dword v151, v150, s[44:47], s53 offen')
        if WARM & 2: a.vm('buffer_load_dword v151, v150, s[40:43], s53 offen')
    a.wait('xr')
    for r in range(2):
        for i in range(4): a(lo(48 + 8 * r + 2 * i, 128 + 4 * r + i)); a(hi(49 + 8 * r + 2 * i, 128 + 4 * r + i))
    for r in range(2):
        b = 48 + 8 * r
        a(pk('v_pk_add_f32', 70 + 2 * r, [b, b + 2])); a(pk('v_pk_add_f32', 74 + 2 * r, [b + 4, b + 6]))
    for r in range(2): a(pk('v_pk_add_f32', 70 + 2 * r, [70 + 2 * r, 74 + 2 * r]))
    for r in range(2): a('v_add_f32 v%d, v%d, v%d' % (64 + r, 70 + 2 * r, 71 + 2 * r))
    allreduce(a, [64, 65], [66, 67])
    for r in range(2): a('v_mul_f32 v%d, s60, v%d' % (64 + r, 64 + r))
    for r in range(2):
        for i in range(0, 8, 2): a(pk('v_pk_add_f32', 48 + 8 * r + i, [48 + 8 * r + i, bc(64 + r)], neg=[0, 1]))
    for r in range(2):
        b = 48 + 8 * r
        a(pk('v_pk_mul_f32', 70 + 2 * r, [b, b]))
        for i in (2, 4, 6): a(pk('v_pk_fma_f32', 70 + 2 * r, [b + i, b + i, 70 + 2 * r]))
    for r in range(2): a('v_add_f32 v%d, v%d, v%d' % (68 + r, 70 + 2 * r, 71 + 2 * r))
    allreduce(a, [68, 69], [66, 67])
    for r in range(2): a('v_mul_f32 v%d, s60, v%d' % (68 + r, 68 + r))
    a('v_cvt_pk_bf16_f32 v68, v68, v69'); a(hi(69, 68)); a(lo(68, 68))
    for r in range(2): a('v_add_f32 v%d, 0x%x, v%d' % (68 + r, f2u(EPS), 68 + r))
    a('v_cvt_pk_bf16_f32 v68, v68, v69'); a(hi(69, 68)); a(lo(68, 68))
    for r in range(2): a('v_sqrt_f32 v%d, v%d' % (68 + r, 68 + r))
    a('s_lshl_b32 s53, s48, 3'); a('s_add_u32 s53, s53, %d' % L_CRED); a('v_mov_b32 v7, s53')
    a('v_cvt_pk_bf16_f32 v72, v68, v64'); a('v_cvt_pk_bf16_f32 v73, v69, v65')
    a('ds_write_b64 v7, v[72:73]')
    a('s_lshl_b32 s53, s49, 3'); a('s_add_u32 s87, s53, s72')
    a('s_mov_b32 s82, 0')
    a.wait('tag' if 'nd0' in EXP else 'st', 'lgkmcnt(0)')
    a('Ltag:')
    a('v_readfirstlane_b32 s80, v2'); a('v_readfirstlane_b32 s81, v3')
    a('s_or_b32 s53, s80, s81'); a('s_cbranch_scc1 Ltagok')
    a('global_load_dwordx2 v[2:3], v0, s[28:29] sc1')
    a.guard()
    a('s_waitcnt vmcnt(0)')
    a('s_branch Ltag')
    a('Ltagok:')
    a.stamp('drained')
    a.signal('s87', eager='0' in EAGER)
    a('s_cmp_lg_u32 s48, 1'); a('s_cbranch_scc1 Lnost')
    a('v_lshlrev_b32 v7, 3, v1'); a('ds_read_b64 v[72:73], v7 offset:%d' % L_CRED)
    a('s_lshl_b32 s53, s2, 6'); a('s_add_u32 s53, s53, 0x%x' % ST0); a('v_mov_b32 v75, s80')
    a('s_mov_b64 exec, 15'); a('s_waitcnt lgkmcnt(0)')
    a('v_mov_b32 v74, v73'); a('v_mov_b32 v73, s80')
    a('buffer_store_dwordx4 v[72:75], v14, s[32:35], s53 offen sc1'); a('s_mov_b64 exec, -1')
    a('Lnost:')
    def ptr():
        a(TR % ('v[192:193]', PA, 0)); a(TR % ('v[194:195]', PA, 512)); a(TR % ('v[196:197]', PB, 0)); a(TR % ('v[198:199]', PB, 512))
        for e in range(2):
            for z in range(2): a(TR % (vr(200 + 4 * e + 2 * z, 2), 186, 2048 + 32 * e + 256 * z))
    def late():
        if PWHEN != 3 and not (E4EARLY and PWHEN == 1 and KWHEN == 0): ptr()
        a('v_add_u32 v7, s71, v10')
        for i in range(2):
            W = 136 + 6 * i; b = 20 + 12 * i
            for x in range(4): a('v_alignbit_b32 v%d, v%d, v%d, 16' % (b + x, W + x + 1, W + x))
            for x in range(4): a('v_mov_b32 v%d, v%d' % (b + 4 + x, W + x + 1))
            for x in range(4): a('v_alignbit_b32 v%d, v%d, v%d, 16' % (b + 8 + x, W + x + 2, W + x + 1))
            o = L_E4 + 32 + 1024 * i
            a('ds_write_b128 v7, %s offset:%d' % (vr(W + 2, 4), o + 3 * CS))
            a('ds_write_b128 v7, %s offset:%d' % (vr(b, 4), o))
            a('ds_write_b128 v7, %s offset:%d' % (vr(b + 4, 4), o + CS))
            a('ds_write_b128 v7, %s offset:%d' % (vr(b + 8, 4), o + 2 * CS))
    if (KWHEN != 1 and PWHEN != 1) or (E4EARLY and PWHEN == 1 and KWHEN == 0): late()
    a('s_add_u32 s56, s70, s67'); a('s_mov_b32 m0, s56'); a('s_add_u32 s57, s66, %d' % KVR); a('s_add_u32 s58, s66, 0x%x' % XT)
    a.poll(4, 's72', 's87')
    a.stamp('X0 seen')
    if KWHEN == 3: kl2()
    a.vm('buffer_load_dwordx4 v10, s[32:35], s57 offen sc1 lds')
    a.vm('buffer_load_dwordx4 v10, s[32:35], s57 offen offset:1024 sc1 lds', 'kv')
    for i in range(4): a.vm('buffer_load_dwordx2 %s, v8, s[32:35], s58 offen offset:%d sc1' % (vr(208 + 2 * i, 2), 512 * i), 'xT')
    if '0' not in EAGER: a.late('s87')
    if E4EARLY and PWHEN == 1 and KWHEN == 0: ptr()
    elif KWHEN == 1 or PWHEN == 1:
        if KWHEN == 3: a.wait('K')
        late()
    if PWHEN == 3:
        ploads(); a('v_add_u32 v%d, s76, v188' % PA); a('v_xor_b32 v%d, 64, v%d' % (PB, PA))
    pst = [[('buffer_store_dwordx4 %s, v14, s[32:35], %s offen offset:%d sc1' % (vr(192 + 4 * z, 4), ('s88', 's88', 's89', 's59')[z], 1024 if z == 1 else 0), None)] for z in range(4)]
    pst.append(['s_mov_b64 exec, 0xffff', ('buffer_store_dwordx4 v[252:255], v191, s[32:35], s79 offen sc1', None), 's_mov_b64 exec, -1'])
    def wdma(srdn, label, ngrp, mask, ldsbase, srcoff):
        l = []
        for i in range(4 * ngrp):
            it = []
            if i % 4 == 0:
                it += ['s_add_u32 s55, s92, %d' % (1024 * i), 's_and_b32 s55, s55, 0x%x' % mask, 's_add_u32 s53, %s, s55' % ldsbase, 's_mov_b32 m0, s53',
                       's_lshl_b32 s55, s55, 3', 's_add_u32 s93, s78, s55']
                if srcoff: it.append('s_add_u32 s93, s93, %d' % srcoff)
            it.append(('buffer_load_dwordx4 v%d, s[%d:%d], s93 offen offset:%d lds' % (248 + (i & 3) if i & 3 else 184, srdn, srdn + 3, 1024 * (i & 3)), label))
            l.append(it)
        return l
    def stloads(fl=''):
        return [['s_mov_b32 s54, 0x%x' % (ST0 + 4096 * (i >> 2)),
                 ('buffer_load_dwordx4 %s, v9, s[32:35], s54 offen offset:%d %s' % (vr(216 + 4 * i, 4), 1024 * (i & 3), fl), 'st0')] for i in range(8)]
    w1l = wdma(44, 'w1', 4, 0x3fff, 's77', 0)
    bg = w1l; stl = stloads()
    if W2A: a('s_lshl_b32 s87, s48, 13'); a('s_add_u32 s87, s87, %d' % L_S2); bg += wdma(40, 'w1', 2, 0x1fff, 's87', 0)
    a('s_waitcnt lgkmcnt(0)')
    a('s_barrier')
    a.take(bg, PRE0)
    a('s_lshl_b32 s56, s65, 16'); a('s_and_b32 s57, s65, 0xffff0000'); a('s_cmp_eq_u32 s52, 0'); a('s_cselect_b32 s65, s56, s57')
    a('s_lshl_b32 s57, s51, 20'); a('s_lshl_b32 s58, s64, 7'); a('s_add_u32 s57, s57, s58'); a('s_add_u32 s57, s57, 0x%x' % HT)
    a('s_add_u32 s58, s57, 0x80000')
    a('s_lshl_b32 s53, s48, 12'); a('s_add_u32 s53, s53, %d' % L_CRED); a('v_add_u32 v190, s53, v14'); a('v_xor_b32 v189, 0x1000, v14')
    a('s_lshl_b32 s53, s48, 12'); a('v_xor_b32 v189, s53, v189'); a('v_add_u32 v189, %d, v189' % L_CRED)
    CA = 16; FR = 48
    def A(st, x): return FR + 64 * st + 4 * x
    def B(st, x): return FR + 64 * st + 32 + 4 * x
    def reads(rho):
        st = rho & 1; l = []
        for x in range(8):
            l.append('ds_read_b64 %s, v11 offset:%d' % (vr(A(st, x), 2), 512 * x + 64 * rho))
            l.append('ds_read_b64 %s, v11 offset:%d' % (vr(A(st, x) + 2, 2), 512 * x + 64 * rho + 8))
            l.append('ds_read_b128 %s, v12 offset:%d' % (vr(B(st, x), 4), 512 * (7 - x) + 64 * rho))
        return l
    XF = 48; XN = 64; KD = 80
    def tagscan():
        l = ['v_min3_u32 v7, v217, v219, v221', 'v_max3_u32 v0, v217, v219, v221']
        for i in range(3, 15, 2):
            l += ['v_min3_u32 v7, v7, v%d, v%d' % (217 + 2 * i, 219 + 2 * i), 'v_max3_u32 v0, v0, v%d, v%d' % (217 + 2 * i, 219 + 2 * i)]
        return l + ['v_min_u32 v7, v7, v247', 'v_max_u32 v0, v0, v247']
    def check():
        a('s_mov_b32 s82, 0')
        a('Lst0:')
        a('v_cmp_ne_u32 vcc, s80, v7'); a('v_cmp_ne_u32 s[54:55], s80, v0'); a('s_or_b64 vcc, vcc, s[54:55]')
        a('s_cbranch_vccz Lst0ok')
        for it in stloads('sc1'):
            for x in it: a(x[0] if isinstance(x, tuple) else x)
        a.guard()
        a('s_waitcnt vmcnt(0)')
        for x in tagscan(): a(x)
        a('s_branch Lst0')
        a('Lst0ok:'); a.count(30)
    sh1 = [('wait', 'st0')] + tagscan() + [('check',)]
    for i in range(0, 16, 4):
        sh1 += [lo(217 + 2 * (i + e), 216 + 2 * (i + e)) for e in range(4)]
        for e in range(4): sh1 += ['v_rcp_f32 v%d, v%d' % (217 + 2 * (i + e), 217 + 2 * (i + e)), hi(216 + 2 * (i + e), 216 + 2 * (i + e))]
    sh3 = [(hi if i & 1 else lo)(XF + i, 208 + (i >> 1)) for i in range(16)]
    sh3 += ['v_sub_f32 v%d, v%d, v%d' % (XN + i, XF + i, 216 + 2 * i) for i in range(16)]
    sh3 += ['s_waitcnt lgkmcnt(0)']
    for i in range(4):
        sh3 += [hi(KD + 4 * i, 177 + 2 * i), lo(KD + 4 * i + 1, 177 + 2 * i), hi(KD + 4 * i + 2, 176 + 2 * i), lo(KD + 4 * i + 3, 176 + 2 * i)]
    nkd = len(sh3)
    sh3 += ['v_mul_f32 v%d, v%d, v%d' % (XN + i, XN + i, 217 + 2 * i) for i in range(16)]
    def emit_sh(x):
        if isinstance(x, str): a(x)
        elif x[0] == 'wait': a.wait(x[1])
        else: check()
    r0 = reads(0)
    for r in r0:
        if 'b64' in r: a(r)
    a.wait('kv')
    a('s_barrier')
    a.stamp('conv go')
    for r in r0:
        if 'b64' not in r: a(r)
    started = set(); sh = sh3; n3 = [0]
    for rho in range(4):
        st = rho & 1
        nxt = reads(rho + 1) if rho < 3 else ['ds_read_b64 %s, v13 offset:%d' % (vr(176 + 2 * i, 2), 512 * (3 - i)) for i in range(4)]
        issued = 0; cnt = 0
        for x in range(8):
            pairs = [(x, b) for b in range(x + 1) if x + b <= 7] + [(aa, x) for aa in range(x) if aa + x <= 7]
            if rho == 0: a('s_waitcnt lgkmcnt(%d)' % min(15, 7 - x + issued))
            elif x == 0: a('s_waitcnt lgkmcnt(0)')
            for (aa, bb) in pairs:
                t = aa + bb
                c = vr(CA + 4 * t, 4) if t in started else '0'
                started.add(t)
                a(M16 % (vr(CA + 4 * t, 4), vr(A(st, aa), 4), vr(B(st, bb), 4), c))
                cnt += 1
                if (rho > 0 or x >= 2) and issued < len(nxt) and cnt <= 30:
                    a(nxt[issued]); issued += 1
                g = cnt + 36 * rho
                if g >= ST_AT and g % 3 == 0: a.take(stl)
                if PWHEN == 3 and g == PST_AT - 8:
                    a.wait('pk'); ptr()
                if PWHEN == 3 and g == PST_AT - 1: a('s_waitcnt lgkmcnt(0)')
                if g >= PST_AT and g % 4 == 1: a.take(pst)
                if g >= BG0 and g % PACE == 0 and (g < ST_AT or not stl): a.take(bg)
                budget = 1 if (rho < 3 and cnt <= 24) or (rho == 3 and cnt <= 4) else 2
                while budget > 0 and g >= SH0 and sh1:
                    x = sh1.pop(0); emit_sh(x); budget -= 2 if isinstance(x, str) and x.startswith('v_rcp') else 1
                while budget > 0 and rho == 3 and cnt >= SH3 and not sh1 and sh:
                    emit_sh(sh.pop(0)); budget -= 1; n3[0] += 1
        while issued < len(nxt): a(nxt[issued]); issued += 1
        if 'rho' in EXP and rho < 3: a.stamp('rho%d' % rho)
    a.stamp('conv mfma')
    while sh1: emit_sh(sh1.pop(0))
    while n3[0] < nkd: emit_sh(sh.pop(0)); n3[0] += 1
    a('s_cmp_eq_u32 s51, 0'); a('s_cbranch_scc1 Lck0')
    for v, lab in ((1, None), (0, 'Lck0')):
        if lab: a(lab + ':')
        snd = 0 if v else 4; keep = 4 - snd
        for i in range(4): a('ds_write_b128 v189, %s offset:%d' % (vr(CA + 4 * (snd + i), 4), 1024 * i))
        for i in range(0, 16, 2): a(pk('v_pk_fma_f32', KD + i, [KD + i, ('s[64:65]', 1), CA + 4 * keep + i]))
        if v: a('s_branch Lck1')
    a('Lck1:')
    a.take(pst, 7)
    while sh:
        emit_sh(sh.pop(0))
        if len(sh) % 9 == 0: a.take(bg)
    a.take(bg, 24)
    a('s_waitcnt lgkmcnt(0)'); a('s_barrier')
    for i in range(4): a('ds_read_b128 %s, v190 offset:%d' % (vr(112 + 4 * i, 4), 1024 * i))
    a.stamp('conv red')
    for i in range(4):
        a('s_waitcnt lgkmcnt(%d)' % (3 - i))
        for r in (0, 2): a(pk('v_pk_add_f32', KD + 4 * i + r, [KD + 4 * i + r, 112 + 4 * i + r]))
        for r in (0, 2): a(pk('v_pk_fma_f32', XF + 4 * i + r, [XN + 4 * i + r, KD + 4 * i + r, XF + 4 * i + r]))
        o = 128 + 2 * i
        a('v_cvt_pk_bf16_f32 v%d, v%d, v%d' % (o, XF + 4 * i, XF + 4 * i + 1)); a('v_cvt_pk_bf16_f32 v%d, v%d, v%d' % (o + 1, XF + 4 * i + 2, XF + 4 * i + 3))
        if i & 1:
            a('v_permlane16_swap_b32 v%d, v%d' % (o - 2, o)); a('v_permlane16_swap_b32 v%d, v%d' % (o - 1, o + 1))
            a.vm('buffer_store_dwordx4 %s, v185, s[32:35], s%d offen sc1' % (vr(o - 2, 4), 57 + (i >> 1)), 'h')
    assert not bg
    a.stamp('h stored')
    a('s_lshl_b32 s53, s52, 6'); a('s_add_u32 s54, s53, s77'); a('v_xor_b32 v9, s54, v188'); a('v_xor_b32 v8, 64, v9')
    def wtr(dst, n, va):
        for s in range(n):
            for ch in range(2):
                a(TR % (ur(dst + 8 * s + 4 * ch, 2), va + ch, 2048 * s)); a(TR % (ur(dst + 8 * s + 4 * ch + 2, 2), va + ch, 2048 * s + 512))
    if W2A: a('s_add_u32 s54, s53, s87'); a('v_xor_b32 v186, s54, v188'); a('v_xor_b32 v185, 64, v186')
    a.wait('w1')
    wtr(256, 8, 8)
    if W2A: wtr(256 + 64, 4, 185)
    a('s_lshl_b32 s53, s50, 5'); a('s_add_u32 s53, s53, s49'); a('s_mul_i32 s53, s53, %d' % HFS); a('s_add_u32 s58, s53, 0x%x' % F_H)
    a('v_mul_u32_u24 v7, %d, v1' % (256 * HFS))
    for slot in range(3):
        th, ch = slot >> 1, slot & 1
        a('s_xor_b32 s53, s48, %d' % ((1 - th) + 2 * (1 - ch))); a('s_mul_i32 s53, s53, 12288'); a('s_add_u32 s53, s53, %d' % (G_RED + 4096 * slot))
        a('v_add_u32 v%d, s53, v14' % (10 + slot))
    a('s_mul_i32 s53, s48, 12288'); a('s_add_u32 s53, s53, %d' % G_RED); a('v_add_u32 v13, s53, v14')
    ONES = 160; CSUM = 144
    for i in range(4): a('v_mov_b32 v%d, 0x3f803f80' % (ONES + i))
    w2l = wdma(40, 'w2', 2, 0x1fff, 's77', 65536) if W2A else wdma(40, 'w2', 4, 0x3fff, 's77', 0)
    a('s_waitcnt lgkmcnt(0)')
    a.take(w2l, W2PRE)
    if 'nd1' not in EXP: a.wait('h')
    a.stamp('h drained')
    a.signal('s58', 7)
    a.take(w2l, 4)
    a('v_and_b32 v164, 31, v1'); a('v_lshlrev_b32 v164, 2, v164'); a('s_lshl_b32 s53, s52, 7'); a('s_add_u32 s53, s53, %d' % L_S2); a('v_add_u32 v165, s53, v164')
    a('s_lshl_b32 s53, s48, 8'); a('v_add_u32 v166, s53, v165'); a('v_xor_b32 v167, 0x80, v166')
    a('s_lshl_b32 s53, s48, 7'); a('s_add_u32 s53, s53, %d' % (L_S2 + 1024)); a('v_add_u32 v168, s53, v164')
    a('v_lshrrev_b32 v169, 5, v1'); a('v_lshl_add_u32 v169, v169, 4, s53')
    for s in range(8):
        for ch in range(2):
            a(M32 % (vr(acc(0, ch), 16), vr(ONES, 4), ur(256 + 8 * s + 4 * ch, 4), vr(acc(0, ch), 16) if s else '0'))
            if ch: a.take(w2l)
    a.take(w2l, 4)
    srd(a, 36, 30, 8 * 86 * 2048, '0x%x' % W4P); srd(a, 40, 30, 86 * 16384, '0x%x' % W3P)
    a('ds_write_b32 v167, v%d' % acc(0, 0)); a('ds_write_b32 v166, v%d' % acc(0, 1))
    a('v_lshlrev_b32 v189, 6, v6'); a('v_and_b32 v189, 64, v189'); a('v_xor_b32 v189, v189, v14')
    a('s_lshl_b32 s56, s48, 14')
    a('s_lshl_b32 s53, s51, 6'); a('s_add_u32 s54, s53, s56'); a('v_xor_b32 v191, s54, v187'); a('v_xor_b32 v190, 64, v191')
    a('s_lshl_b32 s54, s69, 13'); a('s_add_u32 s53, s53, s54'); a('s_lshl_b32 s54, s52, 12'); a('s_add_u32 s53, s53, s54'); a('v_xor_b32 v187, s53, v187')
    a('s_and_b32 s57, s50, %d' % (HREP - 1)); a('s_lshl_b32 s57, s57, 2'); a('s_add_u32 s53, s57, s48'); a('s_mul_i32 s53, s53, %d' % (64 * HFS)); a('s_add_u32 s58, s53, 0x%x' % F_H)
    a('v_lshlrev_b32 v4, 3, v1'); a('v_mul_u32_u24 v0, %d, v1' % HFS)
    a('s_lshl_b32 s57, s68, 16'); a('s_add_u32 s57, s57, s56'); a('s_add_u32 s57, s57, 0x%x' % HT)
    a('s_waitcnt lgkmcnt(0)'); a('s_barrier')
    for w in range(4): a('ds_read_b32 v%d, v165 offset:%d' % (80 + w, 256 * w))
    a('s_xor_b32 s53, s51, 1'); a('s_lshl_b32 s53, s53, 8'); a('v_xor_b32 v184, s53, v4')
    a('s_lshl_b32 s53, s48, 9'); a('s_add_u32 s53, s53, %d' % G_ST); a('v_add_u32 v184, s53, v184')
    a('v_and_b32 v7, 31, v1'); a('s_lshl_b32 s53, s51, 5'); a('v_add_u32 v7, s53, v7'); a('v_lshlrev_b32 v185, 3, v7'); a('v_add_u32 v185, %d, v185' % G_ST)
    a('s_waitcnt lgkmcnt(0)')
    a('v_add_f32 v80, v80, v81'); a('v_add_f32 v82, v82, v83'); a('v_add_f32 v80, v80, v82')
    a('ds_write_b32 v168, v80')
    for q in range(4): a('ds_read_b128 %s, v169 offset:%d' % (vr(CSUM + 4 * q, 4), 32 * q))
    a('s_lshl_b32 s53, s69, 12'); a('s_lshl_b32 s54, s52, 11'); a('s_add_u32 s70, s53, s54')
    a('s_mul_i32 s73, s69, 11'); a('s_mul_i32 s53, s48, 3'); a('s_add_u32 s73, s73, s53')
    a('s_lshl_b32 s74, s73, 14'); a('s_add_u32 s75, s74, 0x8000'); a('s_cmp_eq_u32 s48, 3'); a('s_cselect_b32 s75, 0x400000, s75')
    a('s_lshl_b32 s72, s68, 8'); a('s_lshl_b32 s53, s69, 3'); a('s_add_u32 s79, s72, s53')
    a('s_lshl_b32 s53, s48, 4'); a('s_add_u32 s72, s72, s53')
    a('s_lshl_b32 s66, s68, 1'); a('s_add_u32 s66, s66, s51')
    a('s_lshl_b32 s71, s66, 15'); a('s_add_u32 s71, s71, s70'); a('s_add_u32 s71, s71, 0x%x' % ZB)
    BF = 80; ST = 172
    for i in range(4): a('v_mov_b32 v%d, 0' % (ST + i))
    a('s_mov_b32 m0, s56')
    a.stamp('X1 poll')
    a.wait('w2')
    a.poll(0, 's58', False, sleep=SLEEP, between=lambda: wtr(256 + 64, 8, 8))
    a.count(63); a.stamp('X1 seen')
    hl = []
    for i in range(16):
        it = []
        if i and i % 4 == 0: it += ['s_add_u32 s53, s56, %d' % (1024 * i), 's_mov_b32 m0, s53', 's_add_u32 s57, s57, 4096']
        it.append(('buffer_load_dwordx4 v189, s[32:35], s57 offen offset:%d sc1 lds' % (1024 * (i & 3)), 'h%d' % (i >> 1)))
        hl.append(it)
    a.take(hl, PH)
    WR3 = [192, 256 + 128, 256 + 192]
    w3l = []
    for j in (1, 2, 0):
        for s in range(16):
            w3l.append(['s_add_u32 s87, s%d, %d' % (75 if j == 2 else 74, (16384 if j == 1 else 0) + 1024 * s),
                        ('buffer_load_dwordx4 %s, v14, s[40:43], s87 offen' % ur(WR3[j] + 4 * s, 4), 'w3')])
    if 'now3' in EXP: w3l = [['s_nop 0'] for it in w3l]
    def btr(s):
        for th in range(2):
            a(TR % (vr(BF + 32 * th + 4 * s, 2), 190 + th, 2048 * s)); a(TR % (vr(BF + 32 * th + 4 * s + 2, 2), 190 + th, 2048 * s + 512))
    a.wait('h0'); btr(0)
    a.stamp('h0 landed')
    for s in range(8):
        if s < 7:
            a.wait('h%d' % (s + 1)); btr(s + 1)
        a('s_waitcnt lgkmcnt(%d)' % (4 if s < 7 else 0))
        if s == 4: a('s_barrier')
        for th in range(2):
            for ch in range(2):
                a(M32 % (vr(acc(th, ch), 16), ur(256 + 8 * s + 4 * ch, 4), vr(BF + 32 * th + 4 * s, 4), vr(acc(th, ch), 16) if s else '0'))
                if ch == 0:
                    if hl: a.take(hl)
                    elif s >= 6: a.take(w3l)
            if SUMM:
                a(M32 % (vr(192 + 16 * th, 16), vr(ONES, 4), vr(BF + 32 * th + 4 * s, 4), vr(192 + 16 * th, 16) if s else '0'))
    a.stamp('g1 mfma')
    wr = red_write(0) + red_write(1) + red_write(2)
    n = 0
    for s in range(8):
        for th in range(2):
            for i in range(4):
                b = BF + 32 * th + 4 * s + i
                if not SUMM: a('v_dot2c_f32_bf16 v%d, v%d, v%d' % (ST + th, b, ONES))
                a('v_dot2c_f32_bf16 v%d, v%d, v%d' % (ST + 2 + th, b, b))
                n += 1
                if not SUMM and n >= 6 and n % 4 == 2 and wr: a(wr.pop(0))
                if SUMM and n % WRS == 0 and wr: a(wr.pop(0))
                if n % 6 == 0 and len(w3l) > 48 - W3A: a.take(w3l)
    assert not wr
    assert W3A <= 32
    if SUMM:
        a('v_permlane32_swap_b32 v192, v208'); a('v_permlane32_swap_b32 v%d, v%d' % (ST + 2, ST + 3))
        a('v_mov_b32 v%d, v192' % ST); a('v_add_f32 v%d, v%d, v%d' % (ST + 1, ST + 2, ST + 3))
    else:
        a('v_permlane32_swap_b32 v%d, v%d' % (ST, ST + 1)); a('v_permlane32_swap_b32 v%d, v%d' % (ST + 2, ST + 3))
        a('v_add_f32 v%d, v%d, v%d' % (ST, ST, ST + 1)); a('v_add_f32 v%d, v%d, v%d' % (ST + 1, ST + 2, ST + 3))
    a('ds_write_b64 v184, %s' % vr(ST, 2))
    a('s_waitcnt lgkmcnt(0)'); a('s_barrier')
    a.stamp('g1 red')
    for w in range(4): a('ds_read_b64 %s, v185 offset:%d' % (vr(164 + 2 * w, 2), 512 * w))
    rr = red_reads(80)
    for r in rr[:10]: a(r)
    M1 = 164; R1 = 166; RI = 168; CAa = 169; CBb = 170
    a('s_waitcnt lgkmcnt(10)')
    a(pk('v_pk_add_f32', 164, [164, 166])); a(pk('v_pk_add_f32', 168, [168, 170])); a(pk('v_pk_add_f32', 164, [164, 168]))
    for r in rr[10:]: a(r)
    for l in ['v_mul_f32 v164, s60, v164', 'v_mul_f32 v166, v164, v164', 'v_fma_f32 v165, v165, s60, -v166', 'v_max_f32 v165, 0, v165',
              'v_add_f32 v166, 0x%x, v165' % f2u(EPS), 'v_rsq_f32 v166, v166',
              'v_mul_f32 v167, v166, v166', 'v_mul_f32 v167, v167, v165', 'v_add_f32 v167, 0x%x, v167' % f2u(EPS), 'v_rsq_f32 v167, v167',
              'v_mul_f32 v167, v167, v166', 'v_rcp_f32 v168, v167', 'v_mul_f32 v169, 0x%x, v167' % f2u(C0),
              'v_mul_f32 v170, v167, v167', 'v_mul_f32 v170, v170, v167', 'v_mul_f32 v170, 0x%x, v170' % f2u(C1)]: a(l)
    o = acc(1, 1)
    for i in range(0, 16, 2): a(pk('v_pk_fma_f32', o + i, [bc(M1), CSUM + i, o + i], neg=[1, 0, 0]))
    red_adds(a, 80)
    HO = 176
    for s in range(2):
        a(TR % (vr(HO + 4 * s, 2), 187, 2048 * s)); a(TR % (vr(HO + 4 * s + 2, 2), 187, 2048 * s + 512))
    g = gelu_pk(o, CAa, CBb, RI, 80, 16)
    for i, l in enumerate(g):
        a(l)
        if i % 10 == 9 and len(w3l) > 48 - W3A: a.take(w3l)
    for i in range(8): a('v_cvt_pk_bf16_f32 v%d, v%d, v%d' % (96 + i, o + 2 * i, o + 2 * i + 1))
    for i in range(8): a('v_min_u32 v%d, -2, v%d' % (96 + i, 96 + i))
    a.vm('buffer_store_dwordx4 v[96:99], v14, s[32:35], s71 offen sc1')
    a.vm('buffer_store_dwordx4 v[100:103], v14, s[32:35], s71 offen offset:1024 sc1', 'z')
    a.stamp('z stored')
    a.take(w3l, W3B)
    HF = 144; HN = 176
    a('s_waitcnt lgkmcnt(0)')
    for i in range(8): a(lo(HF + 2 * i, HO + i)); a(hi(HF + 2 * i + 1, HO + i))
    for i in range(0, 16, 2): a(pk('v_pk_add_f32', HN + i, [HF + i, bc(M1)], neg=[0, 1]))
    for i in range(0, 16, 2): a(pk('v_pk_mul_f32', HN + i, [HN + i, bc(R1)]))
    a('s_add_u32 s59, s79, 0x%x' % F_Z); a('s_add_u32 s58, s72, 0x%x' % F_Z)
    a('v_and_b32 v4, 1, v1'); a('v_lshlrev_b32 v4, 3, v4')
    a('s_lshl_b32 s56, s66, 15'); a('s_add_u32 s64, s56, s70'); a('s_add_u32 s64, s64, 0x%x' % X1B)
    srd(a, 44, 30, 2 * MB, '0x%x' % ZB)
    a('s_lshl_b32 s56, s48, 13'); a('s_mov_b32 s57, s56')
    a('s_lshl_b32 s53, s48, 3'); a('s_lshr_b32 s53, 0xfe02ff01, s53'); a('s_sext_i32_i8 s53, s53')
    a('v_and_b32 v7, 31, v1'); a('v_subrev_u32 v7, s53, v7'); a('v_lshrrev_b32 v172, 5, v1'); a('v_lshlrev_b32 v172, 9, v172')
    for th in range(2):
        a('s_xor_b32 s54, s66, %d' % (1 - th)); a('s_lshl_b32 s54, s54, 5'); a('v_add_u32 v173, s54, v7')
        a('v_lshrrev_b32 v174, 5, v173'); a('v_lshl_add_u32 v174, v174, 15, v172'); a('v_and_b32 v173, 31, v173'); a('v_lshl_add_u32 v%d, v173, 4, v174' % (8 + th))
    a('s_lshl_b32 s54, s68, 13'); a('s_lshr_b32 s55, s70, 2'); a('s_add_u32 s54, s54, s55'); a('s_lshl_b32 s55, s51, 8'); a('s_add_u32 s54, s54, s55')
    a('s_add_u32 s65, s54, 0x%x' % ST1); a('v_lshlrev_b32 v0, 3, v1')
    if 'nd2' not in EXP: a.wait('z')
    a.stamp('z drained')
    a.signal('s59', eager='2' in EAGER)
    a.poll(4, 's58', 's59')
    a.stamp('X2 seen')
    def bitems(nks, dst, lab):
        l = []
        for th in range(2):
            for s in range(nks):
                it = []
                if s % 4 == 0: it.append('s_add_u32 s93, s%d, %d' % (57 - th, 1024 * s))
                va, sd = (8 + th, 's[44:47]') if lab == 'b' else (14, 's[32:35]')
                if OWNH and lab == 'f': it.append('s_mov_b64 exec, s[%d:%d]' % ((96, 97) if s < 11 else (98, 99)))
                it.append(('buffer_load_dwordx4 %s, v%d, %s, s93 offen offset:%d sc1' % (ur(dst(nks * th + s), 4), va, sd, 1024 * (s & 3)), '%s%d' % (lab, nks * th + s)))
                if OWNH and lab == 'f': it.append('s_mov_b64 exec, -1')
                l.append(it)
        return l
    def ksplit(nks, wreg, breg, lab, bgl, nbg, check):
        bl = bitems(nks, breg, lab)
        a.take(bl, PB2 if check else PB4)
        for th in range(2):
            wr = (red_write(0) + red_write(1)) if th else []
            if th and check:
                assert not bl
                if '2' not in EAGER: a.late('s59')
                a('s_mov_b32 s82, 0'); a('Lhalo:'); a('v_mov_b32 v7, 0')
            for s in range(nks):
                k = nks * th + s
                a.wait('%s%d' % (lab, k))
                for ch in range(2):
                    a(M32 % (vr(acc(th, ch), 16), ur(wreg(s, ch), 4), ur(breg(k), 4), vr(acc(th, ch), 16) if s else '0'))
                    if th and check: a('v_max3_u32 v7, v7, v%d, v%d' % (breg(k) + 2 * ch, breg(k) + 2 * ch + 1))
                    if ch == 0 and bl: a.take(bl)
                    elif not bl and nbg > 0 and (ch or nbg > nks - s): a.take(bgl); nbg -= 1
                if wr and s >= 1: a(wr.pop(0))
                if wr and s >= nks - 1: a(wr.pop(0))
                if th and not check and s == nks - LATE4 and '4' not in EAGER: a.late('s59')
        if check:
            a('v_cmp_eq_u32 vcc, -1, v7'); a('s_cbranch_vccz Lhalook')
            for it in bitems(nks, breg, lab)[nks:]:
                for x in it: a(x[0] if isinstance(x, tuple) else x)
            a.guard(0x8000)
            a('s_waitcnt vmcnt(0)'); a('s_branch Lhalo')
            a('Lhalook:'); a.count(62)
        for w in red_write(2): a(w)
        a('s_waitcnt lgkmcnt(0)'); a('s_barrier')
    ksplit(8, lambda s, ch: 256 + 64 + 8 * s + 4 * ch, lambda k: 80 + 4 * k, 'b', w3l, W3C, True)
    a.stamp('g2 mfma')
    for r in red_reads(80): a(r)
    for i in range(0, 16, 2): a(pk('v_pk_add_f32', o + i, [o + i, HN + i]))
    red_adds(a, 80)
    for i in range(8): a('v_cvt_pk_bf16_f32 v%d, v%d, v%d' % (96 + i, o + 2 * i, o + 2 * i + 1))
    a.vm('buffer_store_dwordx4 v[96:99], v14, s[32:35], s64 offen sc1')
    a.vm('buffer_store_dwordx4 v[100:103], v14, s[32:35], s64 offen offset:1024 sc1')
    a('v_mov_b32 v104, 0'); a('v_mov_b32 v105, 0')
    for i in range(8):
        a('v_dot2c_f32_bf16 v104, v%d, v%d' % (96 + i, ONES)); a('v_dot2c_f32_bf16 v105, v%d, v%d' % (96 + i, 96 + i))
    a('v_mov_b32 v106, v104'); a('v_mov_b32 v107, v105')
    a('v_permlane32_swap_b32 v104, v106'); a('v_permlane32_swap_b32 v105, v107')
    a(pk('v_pk_add_f32', 104, [104, 106]))
    a('s_mov_b32 exec_hi, 0')
    a.vm('buffer_store_dwordx2 v[104:105], v0, s[32:35], s65 offen sc1', 'x1')
    a('s_mov_b32 exec_hi, -1')
    if 'front' not in EXP and 'rho' not in EXP: a.stamp('x1 stored')
    a.take(w3l, 48)
    RES = 128
    for i in range(8): a(lo(80 + 2 * i, 96 + i)); a(hi(81 + 2 * i, 96 + i))
    for i in range(0, 16, 2): a(pk('v_pk_add_f32', RES + i, [HF + i, 80 + i]))
    a('s_add_u32 s59, s79, 0x%x' % F_X); a('s_add_u32 s58, s72, 0x%x' % F_X)
    a('s_lshl_b32 s64, s48, 13'); a('s_lshl_b32 s65, s68, 16'); a('s_add_u32 s65, s65, s64'); a('s_add_u32 s65, s65, 0x%x' % X1B)
    a('s_lshl_b32 s67, s68, 13'); a('s_lshl_b32 s54, s48, 11'); a('s_add_u32 s67, s67, s54'); a('s_add_u32 s67, s67, 0x%x' % ST1)
    a('v_lshlrev_b32 v8, 9, v6'); a('v_lshl_add_u32 v8, v5, 4, v8'); a('v_add_u32 v9, 0x8000, v8')
    a('s_mul_i32 s74, s69, %d' % (86 * 2048)); a('s_mul_i32 s53, s48, %d' % (22 * 2048)); a('s_add_u32 s74, s74, s53')
    a('s_add_u32 s75, s74, %d' % (20 * 2048)); a('s_cmp_eq_u32 s48, 3'); a('s_cselect_b32 s75, 0x400000, s75')
    a('s_lshl_b32 s53, s52, 10'); a('v_add_u32 v113, s53, v14'); a('v_xor_b32 v112, 0x400, v113')
    srd(a, 44, 30, 64 * HTH, '0x%x' % HB)
    a('s_lshl_b32 s53, s68, 1'); a('s_mul_i32 s53, s53, %d' % HTH); a('s_lshl_b32 s54, s73, 10'); a('s_add_u32 s56, s53, s54')
    a('s_add_u32 s57, s56, %d' % HTH)
    a('s_cmp_eq_u32 s48, 3'); a('s_cselect_b32 s76, 0x%x, s56' % (64 * HTH)); a('s_cselect_b32 s77, 0x%x, s57' % (64 * HTH))
    a('s_lshl_b32 s53, s48, 3'); a('s_add_u32 s53, s53, %d' % G_ST); a('v_lshlrev_b32 v115, 5, v1'); a('v_add_u32 v114, s53, v115'); a('v_add_u32 v115, %d, v115' % G_ST)
    a('s_mov_b32 m0, s64')
    if 'nd3' not in EXP: a.wait('x1')
    a.stamp('x1 drained')
    a.signal('s59', eager='3' in EAGER)
    CS3 = 116
    def cs3(js):
        for s in range(16):
            for j in js: a(M16 % (vr(CS3 + 4 * j, 4), ur(WR3[j] + 4 * s, 4), vr(ONES, 4), vr(CS3 + 4 * j, 4) if s else '0'))
    assert W3A + W3B + W3C >= 16 * CSE or CSE == 0
    a.poll(4, 's58', 's59', between=lambda: cs3((1, 2, 0)[:CSE]))
    a.stamp('X3 seen')
    for p in range(4): a.vm('buffer_load_dwordx2 %s, v0, s[32:35], s67 offen offset:%d sc1' % (vr(80 + 2 * p, 2), 512 * p), 'sp')
    xl = []
    for i in range(16):
        it = []
        if i % 4 == 0:
            oo = 32768 * (i >> 3) + 1024 * (i & 7)
            if i: it += ['s_add_u32 s53, s64, %d' % oo, 's_mov_b32 m0, s53']
            it.append('s_add_u32 s93, s65, %d' % oo)
        it.append(('buffer_load_dwordx4 v14, s[32:35], s93 offen offset:%d sc1 lds' % (1024 * (i & 3)), 'x%d' % (i >> 3)))
        xl.append(it)
    a.take(xl, PX3)
    if '3' not in EAGER: a.late('s59')
    cs3((1, 2, 0)[CSE:])
    def w4reg(s, ch): return (256 + 8 * s + 4 * ch) if s < 16 else (144 + 8 * (s - 16) + 4 * ch)
    w4l = []
    for s in range(22):
        for ch in range(2):
            it = []
            if s % 2 == 0 and ch == 0: it.append('s_add_u32 s87, s74, %d' % (2048 * s) if s < 20 else 's_mov_b32 s87, s75')
            it.append(('buffer_load_dwordx4 %s, v%d, s[36:39], s87 offen offset:%d' % (ur(w4reg(s, ch), 4), 112 + ch, 2048 * (s & 1)), 'w4'))
            w4l.append(it)
    if 'now4' in EXP: w4l = []
    if 'hit4' in EXP: w4l = [[('s_mov_b32 s87, s74' if isinstance(x, str) else (x[0].replace('offset:2048', 'offset:0'), x[1])) for x in it] for it in w4l]
    a.wait('sp')
    a(pk('v_pk_add_f32', 80, [80, 82])); a(pk('v_pk_add_f32', 84, [84, 86])); a(pk('v_pk_add_f32', 80, [80, 84]))
    a('ds_write_b64 v114, v[80:81]')
    a('s_lshl_b32 s53, s48, 10'); a('s_add_u32 s53, s53, %d' % G_ST2); a('v_add_u32 v7, s53, v14'); a('v_lshl_add_u32 v0, v5, 4, s53')
    a.wait('x0', 'lgkmcnt(0)')
    a('s_barrier')
    a.stamp('x0 landed')
    A3 = 16; BR = 40; TMP = 72; PK = 84; STT = 96
    a('ds_read_b128 v[72:75], v115'); a('ds_read_b128 v[76:79], v115 offset:16')
    if OWNH: a('s_mul_i32 s53, s48, 3072'); a('s_add_u32 s53, s53, %d' % L_S2); a('v_add_u32 v114, s53, v14')
    def rd(k):
        tt, s = k >> 4, k & 15
        return 'ds_read_b128 %s, v%d offset:%d' % (vr(BR + 4 * (k & 7), 4), 8 + (tt >> 1), 2048 * s + 256 * (tt & 1))
    for k in range(6): a(rd(k))
    st = ['v_add_f32 v72, v72, v74', 'v_add_f32 v73, v73, v75', 'v_add_f32 v76, v76, v78', 'v_add_f32 v77, v77, v79',
          'v_add_f32 v72, v72, v76', 'v_add_f32 v73, v73, v77',
          'v_mul_f32 v72, s60, v72', 'v_mul_f32 v74, v72, v72', 'v_fma_f32 v73, v73, s60, -v74', 'v_max_f32 v73, 0, v73',
          'v_add_f32 v73, 0x%x, v73' % f2u(EPS), 'v_rsq_f32 v76, v73', 'v_sqrt_f32 v75, v73', 'v_mul_f32 v73, 0x%x, v76' % f2u(C0),
          'v_mul_f32 v74, v76, v76', 'v_mul_f32 v74, v74, v76', 'v_mul_f32 v74, 0x%x, v74' % f2u(C1), 'v_sub_f32 v72, 0, v72',
          ('ds', 'ds_write_b128 v7, v[72:75]')] + [('ds', 'ds_read_b128 %s, v0 offset:%d' % (vr(STT + 4 * tt, 4), 256 * tt)) for tt in range(4)]
    def epi(tt, packed):
        o3 = A3 + 12 * (tt & 1); m = STT + 4 * tt
        if packed:
            l = [pk('v_pk_fma_f32', o3 + i, [bc(m), CS3 + i, o3 + i]) for i in range(0, 12, 2)]
            l += gelu_pk(o3, m + 1, m + 2, m + 3, TMP, 12)
        else:
            l = ['v_fmac_f32 v%d, v%d, v%d' % (o3 + i, m, CS3 + i) for i in range(12)]
            l += gelu_plain(o3, m + 1, m + 2, m + 3, TMP, 12)
        for j in range(3):
            for i in range(2): l.append('v_cvt_pk_bf16_f32 v%d, v%d, v%d' % (PK + 4 * j + 2 * (tt & 1) + i, o3 + 4 * j + 2 * i, o3 + 4 * j + 2 * i + 1))
        if tt & 1:
            for j in range(3):
                l.append('v_permlane16_swap_b32 v%d, v%d' % (PK + 4 * j, PK + 4 * j + 2)); l.append('v_permlane16_swap_b32 v%d, v%d' % (PK + 4 * j + 1, PK + 4 * j + 3))
            for j in range(3):
                l.append(('vm', 'buffer_store_dwordx4 %s, v14, s[44:47], s%d offen offset:%d sc1' % (vr(PK + 4 * j, 4), (76 if j == 2 else 56) + (tt >> 1), 1024 * j), 'H%d' % (tt >> 1)))
                if OWNH: l.append(('ds', 'ds_write_b128 v114, %s offset:%d' % (vr(PK + 4 * j, 4), 12288 * (tt >> 1) + 1024 * j)))
        return l
    def g0sig():
        a('s_add_u32 s59, s79, 0x%x' % F_G); a('s_add_u32 s58, s72, 0x%x' % F_G)
        a.wait('H0'); a.signal('s59', eager=True)
    pend = st
    lg = [('r', k) for k in range(6)]
    def cost(x): return 2 if isinstance(x, str) and x.startswith(('v_exp', 'v_rcp', 'v_rsq', 'v_sqrt')) else 1
    def emit_p(x):
        if isinstance(x, str): a(x)
        elif x[0] == 'vm': a.vm(x[1], x[2])
        elif x[0] == 'ds': a(x[1]); lg.append(('o', 0))
    for k in range(64):
        tt, s = k >> 4, k & 15
        if k % 8 == 0: a.fs('g3', 'k%d' % k)
        if k == 26:
            a.wait('x1'); a('s_barrier')
        if k == G0AT: g0sig()
        if k % 2 == 0:
            for kk in (k + 6, k + 7):
                if kk < 64: a(rd(kk)); lg.append(('r', kk))
            idx = lg.index(('r', k + 1)); a('s_waitcnt lgkmcnt(%d)' % (len(lg) - 1 - idx)); del lg[:idx + 1]
        left = sum(cost(x) for x in pend); slots = 3 * (16 - s)
        for j in range(3):
            o3 = A3 + 12 * (tt & 1) + 4 * j
            a(M16 % (vr(o3, 4), ur(WR3[j] + 4 * s, 4), vr(BR + 4 * (k & 7), 4), vr(o3, 4) if s else '0'))
            if s >= 1 or (tt == 0 and j):
                budget = max(2, -(-left // slots)) if tt else 2
                while pend and budget >= cost(pend[0]):
                    budget -= cost(pend[0]); emit_p(pend.pop(0))
            if j == 2 and xl: a.take(xl)
            elif j == 2 and len(w4l) > W4TAIL and (k - 8) * (44 - W4TAIL) >= (44 - len(w4l)) * (W4END - 8): a.take(w4l)
        if s == 15:
            while pend: emit_p(pend.pop(0))
            pend = epi(tt, tt == 3)
            if 'nogelu' in EXP and tt < 3: pend = [x for x in pend if not isinstance(x, str)]
    a.stamp('g3 mfma'); a.fs('g4', 'mfma end')
    a.take(w4l, 44)
    if G0AT == 64: g0sig()
    def flagcheck(name):
        a.wait(name)
        a('v_cmp_ne_u64 vcc, %s, v[114:115]' % TAG); a('s_cbranch_vccz Lfc%s' % name)
        q = list(a.q); a.poll(4, 's58', 's59', tmp=114); a.q = q
        if a.stamp_on: a('s_add_u32 s82, s82, 1'); a.count(30 if name == 'G0' else 63)
        a('Lfc%s:' % name)
    st_ = [x for x in pend if not isinstance(x, str)]; va_ = [x for x in pend if isinstance(x, str)]
    for i, x in enumerate(va_):
        a(x)
        if i == G0N: a.vm('buffer_load_dwordx2 v[114:115], v4, s[32:35], s58 offen sc1', 'G0')
    for x in st_: emit_p(x)
    if 'front' not in EXP and 'rho' not in EXP: a.stamp('H stored')
    a.fs('g4', 'H st')
    a('s_lshl_b32 s53, s68, 1'); a('s_mul_i32 s57, s53, %d' % HTH)
    a('s_mul_i32 s54, s48, %d' % (22 * 1024)); a('s_add_u32 s54, s54, 0x%x' % HB); a('s_add_u32 s57, s57, s54'); a('s_add_u32 s56, s57, %d' % HTH)
    def b4(k): return (256 + 128 + 4 * k) if k < 32 else (192 + 4 * (k - 32))
    bl = bitems(22, b4, 'f'); bl1 = bl[22:]; bl = bl[:22]
    flagcheck('G0')
    a.fs('g4', 'G0 ok')
    a.take(bl, PRE4)
    a('s_add_u32 s59, s79, 0x%x' % F_F); a('s_add_u32 s58, s72, 0x%x' % F_F)
    srd(a, 40, 26, 2 * MB)
    a('v_lshlrev_b32 v7, 10, v5'); a('v_lshrrev_b32 v8, 5, v1'); a('v_lshl_add_u32 v7, v8, 4, v7'); a('v_and_b32 v8, 1, v6'); a('v_lshl_add_u32 v7, v8, 5, v7')
    a('s_lshl_b32 s64, s66, 15'); a('s_lshr_b32 s54, s70, 5'); a('s_add_u32 s64, s64, s54')
    a('s_sub_u32 s96, 0, s51'); a('s_mov_b32 s97, s96'); a('s_not_b64 s[98:99], s[96:97]')
    a('v_cndmask_b32 v8, v12, v10, s[96:97]'); a('v_cndmask_b32 v9, v10, v12, s[96:97]')
    a.wait('H1')
    a.stamp('H drained'); a.fs('g4', 'drained')
    a.signal('s59', eager=bool(FE))
    def wr4(p):
        l = [['ds_write_b128 v%d, %s offset:%d' % (8 + p, vr(acc(p, 0) + 4 * q, 4), 1024 * q)] for q in range(4)]
        l += [['s_mov_b64 exec, s[%d:%d]' % (96 + 2 * p, 97 + 2 * p), 'ds_write_b128 v11, %s offset:%d' % (vr(acc(p, 1) + 4 * q, 4), 1024 * q), 's_mov_b64 exec, -1'] for q in range(4)]
        return l
    for p in range(2):
        wr = wr4(0) if p else []
        for s in range(22):
            k = 22 * p + s
            a.wait('f%d' % k)
            if k in (0, 8, 13, 21, 22, 30, 43): a.fs('g4', 'f%d' % k)
            if k == F1POLL: a.vm('buffer_load_dwordx2 v[114:115], v4, s[32:35], s58 offen sc1', 'F1')
            if k == F1CHK:
                flagcheck('F1'); a.stamp('X4 seen')
            for ch in range(2):
                a(M32 % (vr(acc(p, ch), 16), ur(w4reg(s, ch), 4), ur(b4(k), 4), vr(acc(p, ch), 16) if s else '0'))
                if ch == 0:
                    if bl: a.take(bl)
                    elif k >= F1CHK: a.take(bl1)
            if wr and s >= 1: a.take(wr)
            if not FE and k == 38: a.late('s59')
    assert not bl and not bl1
    a.take(wr4(1), 8)
    a('s_waitcnt lgkmcnt(0)'); a('s_barrier')
    a.stamp('g4 mfma'); a.fs('g4', 'bar')
    for r in red_reads(80): a(r)
    a('s_cmp_eq_u32 s51, 0'); a('s_cbranch_scc1 Lg40')
    for i in range(0, 16, 2): a(pk('v_pk_add_f32', o + i, [o + i, RES + i]))
    a('s_branch Lg41')
    a('Lg40:')
    for i in range(0, 16, 2): a(pk('v_pk_add_f32', o + i, [acc(0, 1) + i, RES + i]))
    a('Lg41:')
    red_adds(a, 80)
    if E('OSC', 0.0):
        for i in range(16): a('v_mul_f32 v%d, 0x%x, v%d' % (o + i, f2u(1.0 + E('OSC', 0.0)), o + i))
    for i in range(8): a('v_cvt_pk_bf16_f32 v%d, v%d, v%d' % (96 + i, o + 2 * i, o + 2 * i + 1))
    if OUT64:
        a('s_add_u32 s65, s64, 0x4000')
        for i in range(4): a('v_permlane16_swap_b32 v%d, v%d' % (96 + i, 100 + i))
        a.vm('buffer_store_dwordx4 v[96:99], v7, s[40:43], s64 offen ' + OUTF)
        a.vm('buffer_store_dwordx4 v[100:103], v7, s[40:43], s65 offen ' + OUTF)
    else:
        a.vm('buffer_store_dwordx4 v[96:99], v7, s[40:43], s64 offen ' + OUTF)
        a.vm('buffer_store_dwordx4 v[100:103], v7, s[40:43], s64 offen offset:32 ' + OUTF)
    if stamp or SPIN:
        a.wait0(); a.stamp('end')
    if FINE:
        a('s_waitcnt vmcnt(0) lgkmcnt(0)'); a('v_mov_b32 v15, 0')
        for i in range(len(a.fnames)):
            a('v_writelane_b32 v15, s%d, %d' % (FREGS[i], i)); a('v_writelane_b32 v15, s%d, %d' % (FREGS[i], 32 + i))
        a.names = a.fnames
    if stamp or FINE:
        a('s_lshl_b32 s53, s63, 8'); a('s_add_u32 s53, s53, 0x%x' % STAMPS); a('v_lshlrev_b32 v7, 2, v1')
        a('buffer_store_dword v15, v7, s[32:35], s53 offen')
    if SPIN:
        a('s_sub_u32 s96, s97, s96'); a('s_mul_i32 s96, s96, %s' % SPIN[2])
        a('s_memrealtime s[90:91]'); a('s_waitcnt lgkmcnt(0)'); a('s_mov_b32 s97, s90')
        a('Lspin:'); a('s_memrealtime s[90:91]'); a('s_waitcnt lgkmcnt(0)'); a('s_sub_u32 s90, s90, s97'); a('s_cmp_lt_u32 s90, s96'); a('s_cbranch_scc1 Lspin')
    a('Lend:')
    a('s_endpgm')
    body = a.a.finish()
    if ALIGN:
        body, nfix = align_runs(body, ALIGN); print('aligned runs', nfix, file=sys.stderr)
    print('instrs', len(a.a.L), 'nops', a.a.nops, file=sys.stderr)
    hdr = open('sequential_preLN__ssm_conv_h3__mixer_s_mlp__prompt.s.ref').read().split('; Override')[0]
    out = hdr + DOC + '; @launch grid=(256,1,1) block=(256,1,1) lds=%d\n' % LDS_BYTES
    if stamp or FINE: out += '; stamps: ' + '|'.join(a.names) + '\n'
    out += '.amdgcn_target "amdgcn-amd-amdhsa--gfx950"\n.text\n.globl %s\n.p2align 8\n.type %s,@function\n%s:\n' % (NAME, NAME, NAME)
    out += body
    out += '.fill 4096, 4, 0xbf810000\n'
    out += '''.section .rodata,"a"
.p2align 6
.amdhsa_kernel %s
  .amdhsa_next_free_vgpr 512
  .amdhsa_next_free_sgpr 102
  .amdhsa_accum_offset 256
  .amdhsa_group_segment_fixed_size 0
  .amdhsa_kernarg_size 112
  .amdhsa_user_sgpr_count 2
  .amdhsa_user_sgpr_kernarg_segment_ptr 1
  .amdhsa_system_sgpr_workgroup_id_x 1
  .amdhsa_float_denorm_mode_32 3
.end_amdhsa_kernel
''' % NAME
    return out

if __name__ == '__main__':
    open(sys.argv[1], 'w').write(build(len(sys.argv) > 2))
```

```python
import re

TRANS = ('v_exp_f32', 'v_log_f32', 'v_rcp_f32', 'v_rsq_f32', 'v_sqrt_f32', 'v_sin_f32', 'v_cos_f32')

def regs_of(op):
    op = op.strip()
    op = re.sub(r'^-|^\||\|$', '', op)
    m = re.match(r'^abs\((.*)\)$', op)
    if m: op = m.group(1)
    m = re.match(r'^([vas])(\d+)$', op)
    if m: return {(m.group(1), int(m.group(2)))}
    m = re.match(r'^([vas])\[(\d+):(\d+)\]$', op)
    if m: return {(m.group(1), i) for i in range(int(m.group(2)), int(m.group(3)) + 1)}
    if op in ('vcc', 'vcc_lo', 'vcc_hi'): return {('vcc', 0)}
    if op == 'm0': return {('m0', 0)}
    if op in ('exec', 'exec_lo', 'exec_hi'): return {('exec', 0)}
    return set()

def split_ops(s):
    out = []; depth = 0; cur = ''
    for c in s:
        if c in '[(': depth += 1
        if c in '])': depth -= 1
        if c == ',' and depth == 0:
            out.append(cur.strip()); cur = ''
        else: cur += c
    if cur.strip(): out.append(cur.strip())
    return out

class Ins:
    def __init__(self, text):
        self.text = text
        t = text.split(';')[0].strip()
        self.label = t.endswith(':')
        self.directive = t.startswith('.')
        self.op = ''
        self.w = set(); self.r = set()
        self.kind = 'other'
        self.passes = 0
        self.srcc = set(); self.srcab = set(); self.sdata = set()
        self.dpp = False
        if self.label or self.directive or not t:
            self.kind = 'meta'; return
        parts = t.split(None, 1)
        op = self.op = parts[0]
        rest = parts[1] if len(parts) > 1 else ''
        ops = split_ops(rest)
        mods = ''
        if ops:
            sp = ops[-1].split(None, 1)
            if len(sp) > 1 and not ops[-1].startswith('hwreg') and not op.startswith('s_waitcnt'):
                ops[-1] = sp[0]; mods = sp[1]
        self.mods = mods
        R = [regs_of(o) for o in ops]
        allr = lambda l: set().union(*l) if l else set()
        if op.startswith('v_mfma'):
            self.kind = 'mfma'
            self.passes = 8 if '32x32x16' in op else (4 if '16x16x32' in op else 16)
            self.w = R[0]; self.srcab = R[1] | R[2]; self.srcc = R[3]; self.r = self.srcab | self.srcc
        elif op.startswith('v_'):
            self.kind = 'valu'
            self.r = {('exec', 0)}
            if op.startswith('v_cmp'):
                self.w = R[0]; self.r |= allr(R[1:])
                if op.startswith('v_cmpx'): self.w |= {('exec', 0)}
            elif op.startswith('v_permlane'):
                self.w = R[0] | R[1]; self.r |= R[0] | R[1]
            elif '_co_' in op:
                self.w = R[0] | R[1]; self.r |= allr(R[2:])
            elif op.startswith(('v_fmac', 'v_dot2c', 'v_writelane', 'v_pk_fmac')):
                self.w = R[0]; self.r |= allr(R)
            elif op == 'v_nop':
                pass
            else:
                self.w = R[0]; self.r |= allr(R[1:])
                if op.startswith('v_cndmask') and len(ops) == 3: self.r |= {('vcc', 0)}
            if any(k in mods for k in ('quad_perm', 'row_', 'wave_', 'bcast')):
                self.dpp = True; self.r |= R[0]
        elif op.startswith('ds_'):
            self.kind = 'ds'
            if op.startswith(('ds_read', 'ds_bpermute', 'ds_permute', 'ds_swizzle')):
                self.w = R[0]; self.r = allr(R[1:])
            else: self.r = allr(R)
        elif op.startswith(('buffer_', 'global_')):
            self.kind = 'vmem'
            if op.startswith(('buffer_wbl2', 'buffer_inv')): pass
            elif 'load' in op and (' lds' in ' ' + mods or '_lds_' in op):
                self.r = allr(R) | {('m0', 0)}; self.kind = 'vmem'; self.dma = True
            elif 'load' in op:
                self.w = R[0]; self.r = allr(R[1:])
            elif 'atomic' in op:
                self.r = allr(R)
                if 'sc0' in mods: self.w = R[0]
            else:
                self.r = allr(R)
                if 'x3' in op or 'x4' in op:
                    self.sdata = R[0] if op.startswith('buffer') else R[1]
        elif op.startswith('s_'):
            self.kind = 'salu'
            if op.startswith(('s_cmp', 's_cbranch', 's_branch', 's_waitcnt', 's_barrier', 's_nop', 's_endpgm', 's_sleep', 's_setprio', 's_bitcmp')):
                self.r = allr(R)
            else:
                self.w = R[0] if R else set(); self.r = allr(R[1:])
                if 'saveexec' in op: self.w |= {('exec', 0)}
        self.nstates = 1
        if op == 's_nop': self.nstates = int(rest) + 1

def vg(s): return {x for x in s if x[0] in 'va' and x[0] != 'vcc'}
def sg(s): return {x for x in s if x[0] in ('s', 'vcc')}

def need(p, c):
    n = 0
    if p.kind == 'valu':
        pv = vg(p.w); ps = sg(p.w)
        if c.kind == 'mfma' and pv & c.r: n = max(n, 2)
        if c.kind == 'valu':
            if c.op.startswith('v_permlane') and pv & c.r: n = max(n, 2)
            if c.dpp and pv & c.r: n = max(n, 2)
            if c.op.startswith(('v_readlane', 'v_readfirstlane')) and pv & c.r: n = max(n, 1)
            if ps & c.r:
                n = max(n, 4 if c.op.startswith(('v_readlane', 'v_writelane')) else 2)
            if p.op.replace('_e32', '').replace('_e64', '') in TRANS and pv & c.r and c.op.replace('_e32', '').replace('_e64', '') not in TRANS: n = max(n, 1)
            if p.op.startswith('v_dot') and (pv & (c.r | c.w)):
                if not (c.op == p.op and not (pv & (c.r - vg(c.w)))): n = max(n, 3)
            if ('op_sel' in p.mods or 'sdwa' in p.op or 'dst_sel' in p.mods) and pv & c.r: n = max(n, 1)
            if ('exec', 0) in p.w:
                if c.dpp: n = max(n, 5)
                elif c.op.startswith(('v_readlane', 'v_readfirstlane', 'v_writelane', 'v_permlane')): n = max(n, 4)
        if p.op.startswith('v_dot') and c.kind in ('ds', 'vmem', 'mfma') and pv & (c.r | c.w): n = max(n, 3)
        if c.kind == 'vmem' and ps & c.r: n = max(n, 5)
        if c.kind == 'mfma' and ('exec', 0) in p.w: n = max(n, 4)
        if c.kind == 'salu' and ps & c.r: n = max(n, 1)
    if p.kind == 'mfma':
        t1 = {2: 5, 4: 8, 8: 12, 16: 20}[p.passes]
        t2 = {2: 4, 4: 6, 8: 10, 16: 18}[p.passes]
        t3 = {2: 1, 4: 3, 8: 7, 16: 15}[p.passes]
        if c.kind == 'mfma':
            if p.w & c.srcab: n = max(n, t1)
            if p.w & c.srcc:
                if p.w == c.srcc and p.passes == c.passes: n = max(n, 2 if p.passes == 2 else 0)
                else: n = max(n, t2)
            elif p.w & c.w: n = max(n, t1)
        elif c.kind in ('valu', 'ds', 'vmem'):
            if p.w & (c.r | c.w): n = max(n, t1)
            if c.kind == 'valu' and p.srcc & c.w: n = max(n, t3)
    if p.kind == 'vmem' and p.sdata and c.kind != 'meta':
        if p.sdata & c.w: n = max(n, 2)
    if p.kind == 'salu' and ('m0', 0) in p.w and ('m0', 0) in c.r and c.kind in ('vmem', 'ds', 'valu'): n = max(n, 1)
    return n

class Asm:
    def __init__(self):
        self.L = []
    def __call__(self, text):
        for line in text.split('\n'):
            line = line.strip()
            if line: self.L.append(line)
    def finish(self):
        ins = [Ins(t) for t in self.L]
        labels = {i.text.split(':')[0]: k for k, i in enumerate(ins) if i.label}
        W = 24
        def preds(k):
            chains = []
            def walk(pos, acc, states):
                while True:
                    pos -= 1
                    if pos < 0 or states >= W:
                        chains.append(acc); return
                    i = ins[pos]
                    if i.label:
                        name = i.text.split(':')[0]
                        for b in branches.get(name, []):
                            if (b, name) not in seen:
                                seen.add((b, name)); walk(b + 1, list(acc), states); seen.discard((b, name))
                        continue
                    if i.kind == 'meta': continue
                    if i.op in ('s_branch', 's_endpgm') and acc_is_fallthrough(pos, acc, start):
                        return
                    acc = acc + [pos]; states += i.nstates + extra.get(pos, 0)
            seen = set(); start = k
            walk(k, [], 0)
            return chains
        def acc_is_fallthrough(pos, acc, start):
            nxt = acc[-1] if acc else start
            tgt = ins[pos].text.split()[-1] if ins[pos].op == 's_branch' else None
            if tgt is None: return True
            lab = labels[tgt]
            if lab < nxt and all(ins[j].kind == 'meta' for j in range(lab, nxt)): return False
            return True
        branches = {}
        for k, i in enumerate(ins):
            if i.op.startswith(('s_cbranch', 's_branch')):
                branches.setdefault(i.text.split(';')[0].split()[-1], []).append(k)
        extra = {}
        changed = True
        while changed:
            changed = False
            for k, c in enumerate(ins):
                if c.kind == 'meta': continue
                req = 0
                for ch in preds(k):
                    dist = 0
                    for p in ch:
                        n = need(ins[p], c)
                        if n > dist: req = max(req, n - dist)
                        dist += ins[p].nstates + extra.get(p, 0)
                if req > extra.get(k, 0):
                    extra[k] = req; changed = True
        out = []; self.nops = 0
        for k, i in enumerate(ins):
            e = extra.get(k, 0)
            self.nops += e
            while e > 0:
                n = min(e, 16); out.append('s_nop %d' % (n - 1)); e -= n
            out.append(i.text)
        return '\n'.join(('' if (l.endswith(':') or l.startswith('.')) else '  ') + l for l in out) + '\n'

def vr(a, n=1): return 'v%d' % a if n == 1 else 'v[%d:%d]' % (a, a + n - 1)
def ar(a, n=1): return 'a%d' % a if n == 1 else 'a[%d:%d]' % (a, a + n - 1)
def sr(a, n=1): return 's%d' % a if n == 1 else 's[%d:%d]' % (a, a + n - 1)
def ur(a, n=1):
    return vr(a, n) if a < 256 else ar(a - 256, n)


import subprocess, tempfile, os
PROMOTE = ('v_add_f32', 'v_sub_f32', 'v_mul_f32', 'v_mov_b32', 'v_lshlrev_b32', 'v_lshrrev_b32', 'v_and_b32', 'v_or_b32', 'v_xor_b32',
           'v_add_u32', 'v_sub_u32', 'v_exp_f32', 'v_rcp_f32', 'v_rsq_f32', 'v_sqrt_f32', 'v_max_f32', 'v_min_u32', 'v_max_u32', 'v_fmac_f32')
def align_runs(body, minrun=5):
    lines = body.rstrip('\n').split('\n')
    d = tempfile.mkdtemp()
    open(d + '/t.s', 'w').write('.amdgcn_target "amdgcn-amd-amdhsa--gfx950"\n.text\n' + body)
    subprocess.run(['clang', '-x', 'assembler', '-target', 'amdgcn-amd-amdhsa', '-mcpu=gfx950', '-c', d + '/t.s', '-o', d + '/t.o'], check=True)
    dis = subprocess.run(['llvm-objdump', '-d', '--mcpu=gfx950', d + '/t.o'], capture_output=True, text=True, check=True).stdout
    sizes = [4 * len(l.split('//')[1].split(':')[1].split('<')[0].split()) for l in dis.split('\n') if '//' in l]
    idx = [i for i, l in enumerate(lines) if not l.endswith(':') and not l.startswith('.')]
    assert len(idx) == len(sizes), (len(idx), len(sizes))
    size = dict(zip(idx, sizes))
    big = lambda i: i in size and size[i] == 8 and 'mfma' not in lines[i]
    out = []; off = 0; i = 0; nfix = 0; last = None
    while i < len(lines):
        if big(i) and not (i - 1 in size and big(i - 1)):
            j = i
            while big(j): j += 1
            if j - i >= minrun and off % 8 == 4:
                op = out[last].split()[0] if last is not None else ''
                if last == len(out) - 1 and op in PROMOTE and size[i - 1] == 4:
                    out[last] = out[last].replace(op, op + '_e64', 1)
                else: out.append('  s_nop 0')
                off += 4; nfix += 1
        out.append(lines[i])
        if i in size: off += size[i]; last = len(out) - 1
        i += 1
    return '\n'.join(out) + '\n', nfix
```

```python
import sys, struct, os
from asmlib import *

E = lambda n, d: type(d)(os.environ.get(n, d))
NT = E('NT', ''); NTX = E('NTX', ''); PACE = E('PACE', 6); PRE0 = E('PRE0', 0); NST = E('NST', 8); SLEEP = E('SLEEP', 0)
W4TAIL = E('W4TAIL', 0); W4END = E('W4END', 52); OUTF = E('OUTF', '')
TWHEN = E('TWHEN', 2); BG0 = E('BG0', 28); ST_AT = E('ST_AT', 3); PST_AT = E('PST_AT', 110); W2A = E('W2A', 0); ZT = E('ZT', 0); W2PRE = E('W2PRE', 0); RR = E('RR', ''); HFS = E('HFS', 8); HREP = E('HREP', 8)
KWHEN = E('KWHEN', 0); PWHEN = E('PWHEN', 1)
W3A = E('W3A', 18); W3B = E('W3B', 4); W3C = E('W3C', 16)
EXP = E('EXP', '').split(',')
ONLY = [x for x in E('ONLY', '').split(',') if x]
FINE = E('FINE', ''); FREGS = [4, 6, 8, 10, 12, 14, 16, 18, 20, 22, 24, 84, 90, 94, 96, 100]
if FINE == 'f0': FREGS = [90, 94, 96, 100, 16]
PB2 = E('PB2', 8); PB4 = E('PB4', 8); PH = E('PH', 8); PX3 = E('PX3', 8); OWNH = E('OWNH', 0); G0AT = E('G0AT', 60); G0N = E('G0N', 10); PRE4 = E('PRE4', 8); F1POLL = E('F1POLL', 8); F1CHK = E('F1CHK', 13); GE = E('GE', 1); FE = E('FE', 1); WARM = E('WARM', 0); CPF = E('CPF', 2); ALIGN = E('ALIGN', 0); W3ORD = E('W3ORD', 't'); CSN = E('CSN', 32); ROT3 = E('ROT3', 1); ROT4 = E('ROT4', 0); R4S = E('R4S', 2); PADS = E('PADS', '000000'); R4C = E('R4C', 0); ROTX = E('ROTX', 0); ROTA = E('ROTA', 1); SUMM = E('SUMM', 0); WRS = E('WRS', 5); CSE = E('CSE', 2); SH0 = E('SH0', 66); SH3 = E('SH3', 5); EAGER = E('EAGER', '0234'); E4EARLY = E('E4EARLY', 1); XTLATE = E('XTLATE', 0); ENTRY = E('ENTRY', 1); LATE4 = E('LATE4', 8); OUT64 = E('OUT64', 1); PUBK = E('PUBK', 30)
SPIN = os.environ['SPIN'].split(',') if os.environ.get('SPIN') else None

MB = 1 << 20
KVR = 0; XT = 2 * MB; HT = 4 * MB; ZB = 6 * MB; X1B = 8 * MB; HB = 10 * MB
W3P = 16 * MB; W4P = W3P + 1408 * 1024
ST0 = 20 * MB
ST1 = ST0 + 65536
FL = ST1 + 262144
FGL = 0x10000
F_A = FL; F_Z = FL + 0x2000; F_X = FL + 0x4000; F_F = FL + 0x6000; F_G = FL + 0x8000
F_H = FL + 0x20000
STAMPS = 64 * MB
DUMP = 0x10000000
HTH = 176 * 512
EPS = 1e-5
def f2u(f): return struct.unpack('<I', struct.pack('<f', f))[0]
C0 = -2.0 * 0.7978845608028654 * 1.4426950408889634
C1 = C0 * 0.044715
NAME = 'sequential_preLN__ssm_conv_h3__mixer_s_mlp__prompt_kernel'

CS = 4160
L_E4 = 0; L_KV = 33280; L_CRED = L_KV + 2 * 4608
L_S = 65536
L_S2 = 131072
L_K = L_S; L_V = L_K + 9216; L_X = L_V + 8192; L_PK = (L_S2 + 4096) if E('PWHEN', 1) == 3 else (L_S + 32768)
G_RED = 65536; G_ST = G_RED + 49152; G_ST2 = G_ST + 2048
LDS_BYTES = 163840

TAG = 's[80:81]'
class G:
    def __init__(self, stamp=False):
        self.a = Asm(); self.stamp_on = stamp; self.q = []; self.nst = 0; self.names = []; self.np = 0; self.fnames = []
    def __call__(self, t): self.a(t)
    def vm(self, text, label=None):
        self.a(text); self.q.append(label)
    def item(self, it):
        for x in it:
            if isinstance(x, tuple): self.vm(x[0], x[1])
            else: self.a(x)
    def take(self, lst, n=1):
        for _ in range(n):
            if lst: self.item(lst.pop(0))
    def wait(self, label, extra=''):
        if label not in self.q:
            if extra: self.a('s_waitcnt ' + extra)
            return
        idx = max(i for i, l in enumerate(self.q) if l == label)
        n = len(self.q) - 1 - idx
        assert n < 64
        self.a('s_waitcnt vmcnt(%d) %s' % (n, extra)); self.q = self.q[idx + 1:]
    def wait0(self, extra=''):
        self.a('s_waitcnt vmcnt(0) %s' % extra); self.q = []
    def count(self, lane):
        if self.stamp_on: self.a('v_writelane_b32 v15, s82, %d' % lane)
    def stamp(self, name):
        if SPIN and name in SPIN:
            self.a('s_memrealtime s[90:91]'); self.a('s_waitcnt lgkmcnt(0)'); self.a('s_mov_b32 s%d, s90' % (96 + SPIN.index(name)))
        if self.stamp_on and (not ONLY or name in ONLY):
            self.a('s_memrealtime s[90:91]'); self.a('s_memtime s[94:95]'); self.a('s_waitcnt lgkmcnt(0)'); self.a('v_writelane_b32 v15, s90, %d' % self.nst)
            self.a('v_writelane_b32 v15, s94, %d' % (32 + self.nst)); assert self.nst < 30
            self.names.append(name); self.nst += 1
    def fs(self, region, name):
        if FINE == region:
            r = FREGS[len(self.fnames)]
            self.a('s_memtime s[%d:%d]' % (r, r + 1)); self.fnames.append(name)
    def guard(self, limit=0x20000):
        self.a('s_add_u32 s82, s82, 1'); self.a('s_cmp_gt_u32 s82, 0x%x' % limit); self.a('s_cbranch_scc1 Lend')
    def publish(self, mine):
        a = self
        a('s_add_u32 s83, %s, 0x%x' % (mine, FGL)); a('s_mov_b64 exec, 1')
        a('buffer_store_dwordx2 v[2:3], off, s[32:35], s83 sc1'); a('s_mov_b64 exec, -1')
    def wsig(self, mine, label=None):
        a = self
        a('s_mov_b64 exec, 1'); a.vm('buffer_store_dwordx2 v[2:3], off, s[32:35], %s' % mine, label); a('s_mov_b64 exec, -1')
    def wpub(self, mine):
        a = self
        a('s_add_u32 s83, %s, 0x%x' % (mine, FGL)); a('s_mov_b64 exec, 1')
        a.vm('buffer_store_dwordx2 v[2:3], off, s[32:35], s83 sc1'); a('s_mov_b64 exec, -1')
    def late(self, mine):
        a = self; n = self.np; self.np += 1
        a('s_cmp_lg_u32 s48, 3'); a('s_cbranch_scc1 Llate%d' % n)
        a.publish(mine)
        a('Llate%d:' % n)
    def poll(self, vaddr, soff, dual, sleep=0, tmp=16, between=None):
        a = self; n = self.np; self.np += 1
        a('s_mov_b32 s82, 0')
        a('buffer_load_dwordx2 %s, v%d, s[32:35], %s offen sc1' % (vr(tmp, 2), vaddr, soff))
        if between: between()
        a('Lpoll%d:' % n)
        a.wait0()
        a('v_cmp_ne_u64 vcc, %s, %s' % (TAG, vr(tmp, 2)))
        a('s_cbranch_vccz Lpolld%d' % n)
        if sleep: a('s_sleep %d' % sleep)
        so = soff
        if dual:
            a('s_cmp_lg_u32 s82, 32'); a('s_cbranch_scc1 Lpollp%d' % n)
            a.publish(dual)
            a('Lpollp%d:' % n)
            a('s_cmp_lt_u32 s82, 32'); a('s_cselect_b32 s83, 0, 0x%x' % FGL); a('s_add_u32 s83, s83, %s' % soff); so = 's83'
        a('buffer_load_dwordx2 %s, v%d, s[32:35], %s offen sc1' % (vr(tmp, 2), vaddr, so))
        a.guard()
        a('s_branch Lpoll%d' % n)
        a('Lpolld%d:' % n)
    def signal(self, soff, rep=None, eager=False):
        a = self; n = self.np; self.np += 1
        a('s_barrier')
        a('s_cmp_lg_u32 s48, 0'); a('s_cbranch_scc1 Lsig%d' % n)
        if rep is None:
            a('s_mov_b64 exec, 1')
            a('buffer_store_dwordx2 v[2:3], off, s[32:35], %s' % soff)
            if eager:
                a('s_add_u32 s83, %s, 0x%x' % (soff, FGL))
                a('buffer_store_dwordx2 v[2:3], off, s[32:35], s83 sc1')
        else:
            a('s_mov_b64 exec, %d' % ((1 << HREP) - 1))
            a('buffer_store_dwordx2 v[2:3], v%d, s[32:35], %s offen sc1' % (rep, soff))
        a('s_mov_b64 exec, -1')
        a('Lsig%d:' % n)

def srd(a, d, p, size, off=None):
    if off is None:
        a('s_mov_b32 s%d, s%d' % (d, p)); a('s_mov_b32 s%d, s%d' % (d + 1, p + 1))
    else:
        a('s_add_u32 s%d, s%d, %s' % (d, p, off)); a('s_addc_u32 s%d, s%d, 0' % (d + 1, p + 1))
    a('s_mov_b32 s%d, 0x%x' % (d + 2, size)); a('s_mov_b32 s%d, 0x20000' % (d + 3))

def allreduce(a, regs, tmps):
    for m in ('quad_perm:[1,0,3,2]', 'quad_perm:[2,3,0,1]', 'row_half_mirror', 'row_mirror'):
        for r in regs: a('v_add_f32_dpp v%d, v%d, v%d %s row_mask:0xf bank_mask:0xf' % (r, r, r, m))
    for sw in ('v_permlane16_swap_b32', 'v_permlane32_swap_b32'):
        for r, t in zip(regs, tmps): a('v_mov_b32 v%d, v%d' % (t, r))
        for r, t in zip(regs, tmps): a('%s v%d, v%d' % (sw, r, t))
        for r, t in zip(regs, tmps): a('v_add_f32 v%d, v%d, v%d' % (r, r, t))

ACC = 16
def acc(th, ch): return ACC + 32 * th + 16 * ch
def red_write(slot):
    th, ch = slot >> 1, slot & 1
    return ['ds_write_b128 v%d, %s offset:%d' % (10 + slot, vr(acc(th, ch) + 4 * q, 4), 1024 * q) for q in range(4)]
def red_reads(tmp): return ['ds_read_b128 %s, v13 offset:%d' % (vr(tmp + 4 * i, 4), 1024 * i) for i in range(12)]
def red_adds(a, tmp, dst=None):
    o = acc(1, 1)
    for i in range(12):
        if i % 2 == 0: a('s_waitcnt lgkmcnt(%d)' % (10 - i))
        d = dst if (dst is not None and i >= 8) else o
        for r in (0, 2): a('v_pk_add_f32 %s, %s, %s' % (vr(d + 4 * (i & 3) + r, 2), vr(o + 4 * (i & 3) + r, 2), vr(tmp + 4 * i + r, 2)))

def lo(d, s): return 'v_lshlrev_b32 v%d, 16, v%d' % (d, s)
def hi(d, s): return 'v_and_b32 v%d, s61, v%d' % (d, s)
def bc(r): return vr(r & ~1, 2), r & 1
def pk(op, d, srcs, neg=None):
    names = []; l = []; h = []
    for s in srcs:
        if isinstance(s, tuple): names.append(s[0]); l.append(s[1]); h.append(s[1])
        else: names.append(vr(s, 2)); l.append(0); h.append(1)
    t = '%s %s, %s' % (op, vr(d, 2), ', '.join(names))
    if l != [0] * len(l) or h != [1] * len(h):
        t += ' op_sel:[%s] op_sel_hi:[%s]' % (','.join(map(str, l)), ','.join(map(str, h)))
    if neg: t += ' neg_lo:[%s] neg_hi:[%s]' % (','.join(map(str, neg)), ','.join(map(str, neg)))
    return t
def gelu_plain(t, ca, cb, ri, tmp, n):
    l = []
    for i in range(n): l.append('v_mul_f32 v%d, v%d, v%d' % (tmp + i, t + i, t + i))
    for i in range(n): l.append('v_fma_f32 v%d, v%d, v%d, v%d' % (tmp + i, tmp + i, cb, ca))
    for i in range(n): l.append('v_mul_f32 v%d, v%d, v%d' % (tmp + i, tmp + i, t + i))
    for i in range(n): l.append('v_exp_f32 v%d, v%d' % (tmp + i, tmp + i))
    for i in range(n): l.append('v_fma_f32 v%d, v%d, v%d, v%d' % (tmp + i, tmp + i, ri, ri))
    for i in range(n): l.append('v_rcp_f32 v%d, v%d' % (tmp + i, tmp + i))
    for i in range(n): l.append('v_mul_f32 v%d, v%d, v%d' % (t + i, t + i, tmp + i))
    return l
def gelu_pk(t, ca, cb, ri, tmp, n):
    l = []
    for i in range(0, n, 2): l.append(pk('v_pk_mul_f32', tmp + i, [t + i, t + i]))
    for i in range(0, n, 2): l.append(pk('v_pk_fma_f32', tmp + i, [tmp + i, bc(cb), bc(ca)]))
    for i in range(0, n, 2): l.append(pk('v_pk_mul_f32', tmp + i, [tmp + i, t + i]))
    for i in range(n): l.append('v_exp_f32 v%d, v%d' % (tmp + i, tmp + i))
    for i in range(0, n, 2): l.append(pk('v_pk_fma_f32', tmp + i, [tmp + i, bc(ri), bc(ri)]))
    for i in range(n): l.append('v_rcp_f32 v%d, v%d' % (tmp + i, tmp + i))
    for i in range(0, n, 2): l.append(pk('v_pk_mul_f32', t + i, [t + i, tmp + i]))
    return l
M32 = 'v_mfma_f32_32x32x16_bf16 %s, %s, %s, %s'
M16 = 'v_mfma_f32_16x16x32_bf16 %s, %s, %s, %s'
TR = 'ds_read_b64_tr_b16 %s, v%d offset:%d'

DOC = '''; One persistent launch, 256 workgroups (one per CU) x 4 waves. Phases, separated by flag hand-offs through d_ws:
'''

def build(stamp=False):
    a = G(stamp)
    def pad(i):
        m = PADS[i]
        if m in '12': a('.p2align 3, , 4')
        if m == '2': a('s_nop 0')
        if m == '3': a('.p2align 6')
    a('s_cmp_ge_u32 s2, 256'); a('s_cbranch_scc1 Lend')
    if SPIN and SPIN[0] == 'entry': a.stamp('entry')
    a.fs('f0', 'entry')
    if ENTRY:
        a('s_load_dwordx2 s[36:37], s[0:1], 8'); a('s_load_dwordx2 s[40:41], s[0:1], 16'); a('s_load_dwordx2 s[44:45], s[0:1], 0')
        a('s_getpc_b64 s[84:85]')
        a('s_lshr_b32 s49, s2, 3'); a('s_lshl_b32 s53, s49, 10'); a('v_lshlrev_b32 v7, 2, v0'); a('v_and_b32 v7, 0x380, v7'); a('v_add_u32 v7, s53, v7')
        if CPF == 1: a.vm('global_load_dword v148, v7, s[84:85]')
        if CPF == 2:
            a('v_mov_b32 v9, s85'); a('v_add_co_u32 v8, vcc, s84, v7'); a('v_addc_co_u32 v9, vcc, 0, v9, vcc')
            a.vm('global_load_dword v148, v[8:9], off')
        a('v_lshrrev_b32 v1, 6, v0'); a('v_readfirstlane_b32 s48, v1'); a('v_and_b32 v1, 63, v0')
        a('s_mov_b32 s38, 0x200000'); a('s_mov_b32 s39, 0x20000'); a('s_mov_b32 s42, 0x200000'); a('s_mov_b32 s43, 0x20000'); a('s_mov_b32 s46, 0x200000'); a('s_mov_b32 s47, 0x20000')
        a('v_lshrrev_b32 v7, 3, v1'); a('v_lshlrev_b32 v7, 10, v7'); a('v_and_b32 v8, 7, v1'); a('v_lshl_add_u32 v7, v8, 4, v7')
        a('v_bfe_u32 v8, v1, 4, 1'); a('v_lshlrev_b32 v9, 5, v8'); a('v_xor_b32 v16, v9, v7'); a('v_xor_b32 v17, 64, v16')
        a('v_add_u32 v18, 0x1c00, v17'); a('v_add_u32 v19, 0x1c00, v16')
        a('s_and_b32 s50, s2, 7'); a('s_lshl_b32 s53, s49, 16'); a('s_lshl_b32 s54, s48, 14'); a('s_add_u32 s53, s53, s54'); a('s_lshl_b32 s54, s50, 7'); a('s_add_u32 s55, s53, s54')
        a('s_lshl_b32 s56, s48, 11'); a('s_add_u32 s53, s56, %d' % (L_K + 1024)); a('s_mov_b32 m0, s53')
        if stamp: a('v_mov_b32 v15, 0')
        a('s_waitcnt lgkmcnt(0)')
        a.stamp('start'); a.fs('f0', 'karg')
        a.vm('buffer_load_dwordx4 v17, s[36:39], s55 offen %s lds' % NT)
        a.vm('buffer_load_dwordx4 v19, s[36:39], s55 offen offset:1024 %s lds' % NT)
        a('s_add_u32 s53, s56, %d' % L_V); a('s_mov_b32 m0, s53')
        a('s_load_dwordx16 s[4:19], s[0:1], 0')
        a.vm('buffer_load_dwordx4 v16, s[40:43], s55 offen %s lds' % NT)
        a.vm('buffer_load_dwordx4 v18, s[40:43], s55 offen offset:1024 %s lds' % NT)
        a('s_add_u32 s53, s56, %d' % L_X); a('s_mov_b32 m0, s53')
        a('s_load_dwordx8 s[20:27], s[0:1], 64')
        a.vm('buffer_load_dwordx4 v16, s[44:47], s55 offen %s lds' % NTX)
        a.vm('buffer_load_dwordx4 v18, s[44:47], s55 offen offset:1024 %s lds' % NTX)
        a('s_load_dwordx4 s[28:31], s[0:1], 96')
        a('s_memrealtime s[80:81]'); a.fs('f0', 'kvx issued')
        a('s_cmp_lg_u32 s48, 0'); a('s_cbranch_scc1 Lnoh')
        a('s_sub_u32 s53, s55, 0x2000'); a('s_cselect_b32 s53, 0x400000, s53'); a('s_mov_b32 m0, %d' % L_K)
        a('buffer_load_dwordx4 v16, s[36:39], s53 offen %s lds' % NT)
        a('Lnoh:')
        a('s_and_b32 s51, s48, 1'); a('s_lshr_b32 s52, s48, 1')
        a('v_and_b32 v5, 15, v1'); a('v_lshrrev_b32 v6, 4, v1'); a('v_lshlrev_b32 v14, 4, v1')
        a('v_lshlrev_b32 v9, 6, v8'); a('v_xor_b32 v184, v9, v7')
        a('s_mov_b32 s60, 0x%x' % f2u(1.0 / 512)); a('s_mov_b32 s61, 0xffff0000')
        a('s_lshl_b32 s63, s2, 2'); a('s_add_u32 s63, s63, s48')
        a('s_waitcnt lgkmcnt(0)')
        a('s_cmp_lg_u32 s63, 0'); a('s_cbranch_scc1 Lnotag')
        a('v_mov_b32 v2, s80'); a('v_mov_b32 v3, s81'); a('v_mov_b32 v4, 0'); a('s_mov_b64 exec, 1')
        a('global_store_dwordx2 v4, v[2:3], s[28:29] sc1'); a('s_mov_b64 exec, -1')
        a('Lnotag:')
    else:
        a('s_load_dwordx16 s[4:19], s[0:1], 0')
        a('s_getpc_b64 s[84:85]')
        a('s_lshr_b32 s49, s2, 3'); a('s_lshl_b32 s53, s49, 10'); a('v_lshlrev_b32 v7, 2, v0'); a('v_and_b32 v7, 0x380, v7'); a('v_add_u32 v7, s53, v7')
        a.vm('global_load_dword v148, v7, s[84:85]')
        a('s_load_dwordx8 s[20:27], s[0:1], 64')
        a('s_load_dwordx4 s[28:31], s[0:1], 96')
        a('s_memrealtime s[80:81]')
        a('v_lshrrev_b32 v1, 6, v0'); a('v_readfirstlane_b32 s48, v1'); a('v_and_b32 v1, 63, v0')
        if stamp: a('v_mov_b32 v15, 0')
        a('s_and_b32 s50, s2, 7')
        a('s_and_b32 s51, s48, 1'); a('s_lshr_b32 s52, s48, 1')
        a('v_and_b32 v5, 15, v1'); a('v_lshrrev_b32 v6, 4, v1'); a('v_lshlrev_b32 v14, 4, v1')
        a('v_lshrrev_b32 v7, 3, v1'); a('v_lshlrev_b32 v7, 10, v7'); a('v_and_b32 v8, 7, v1'); a('v_lshl_add_u32 v7, v8, 4, v7')
        a('v_and_b32 v8, 1, v6'); a('v_lshlrev_b32 v9, 6, v8'); a('v_xor_b32 v184, v9, v7')
        a('v_lshlrev_b32 v9, 5, v8'); a('v_xor_b32 v16, v9, v7'); a('v_xor_b32 v17, 64, v16'); a('v_add_u32 v18, 0x1c00, v17')
        a('s_lshl_b32 s53, s49, 16'); a('s_lshl_b32 s54, s48, 14'); a('s_add_u32 s53, s53, s54'); a('s_lshl_b32 s54, s50, 7'); a('s_add_u32 s55, s53, s54')
        a('s_lshl_b32 s56, s48, 11')
        a('v_add_u32 v19, 0x1c00, v16')
        a('s_movk_i32 s62, 0x1000'); a('s_mov_b32 s60, 0x%x' % f2u(1.0 / 512)); a('s_mov_b32 s61, 0xffff0000')
        a('s_lshl_b32 s63, s2, 2'); a('s_add_u32 s63, s63, s48')
        a('s_waitcnt lgkmcnt(0)')
        a.stamp('start')
        srd(a, 36, 6, 2 * MB)
        a('s_add_u32 s53, s56, %d' % (L_K + 1024)); a('s_mov_b32 m0, s53')
        a.vm('buffer_load_dwordx4 v17, s[36:39], s55 offen %s lds' % NT)
        a.vm('buffer_load_dwordx4 v19, s[36:39], s55 offen offset:1024 %s lds' % NT)
        srd(a, 40, 8, 2 * MB)
        a('s_add_u32 s53, s56, %d' % L_V); a('s_mov_b32 m0, s53')
        a.vm('buffer_load_dwordx4 v16, s[40:43], s55 offen %s lds' % NT)
        a.vm('buffer_load_dwordx4 v18, s[40:43], s55 offen offset:1024 %s lds' % NT)
        a('s_cmp_lg_u32 s48, 0'); a('s_cbranch_scc1 Lnoh')
        a('s_sub_u32 s53, s55, 0x2000'); a('s_cselect_b32 s53, 0x400000, s53'); a('s_mov_b32 m0, %d' % L_K)
        a('buffer_load_dwordx4 v16, s[36:39], s53 offen %s lds' % NT)
        a('s_cmp_lg_u32 s2, 0'); a('s_cbranch_scc1 Lnoh')
        a('v_mov_b32 v2, s80'); a('v_mov_b32 v3, s81'); a('v_mov_b32 v4, 0'); a('s_mov_b64 exec, 1')
        a('global_store_dwordx2 v4, v[2:3], s[28:29] sc1'); a('s_mov_b64 exec, -1')
        a('Lnoh:')
        srd(a, 44, 4, 2 * MB)
        a('s_add_u32 s53, s56, %d' % L_X); a('s_mov_b32 m0, s53')
        a.vm('buffer_load_dwordx4 v16, s[44:47], s55 offen %s lds' % NTX)
        a.vm('buffer_load_dwordx4 v18, s[44:47], s55 offen offset:1024 %s lds' % NTX)
    a('s_lshl_b32 s53, s50, 2'); a('s_add_u32 s53, s53, s48'); a('s_lshl_b32 s53, s53, 4'); a('v_add_u32 v20, s53, v5')
    a('v_lshlrev_b32 v7, 3, v20')
    a.vm('global_load_dwordx2 v[44:45], v7, s[10:11]', 'kvx')
    a('s_lshr_b32 s53, s2, 5'); a('s_lshl_b32 s53, s53, 18'); a('s_and_b32 s54, s63, 15'); a('s_lshl_b32 s54, s54, 14'); a('s_add_u32 s53, s53, s54')
    a('s_bfe_u32 s54, s2, 0x20002'); a('s_lshl_b32 s54, s54, 12'); a('s_add_u32 s53, s53, s54')
    a('s_bfe_u32 s54, s2, 0x10004'); a('s_lshl_b32 s54, s54, 11'); a('s_add_u32 s53, s53, s54'); a('v_add_u32 v7, s53, v14')
    a.vm('global_load_dwordx4 v[128:131], v7, s[4:5] ' + NTX); a.vm('global_load_dwordx4 v[132:135], v7, s[4:5] offset:1024 ' + NTX, 'xr')
    def kloads():
        a('s_lshl_b32 s64, s50, 6'); a('s_lshl_b32 s53, s49, 1'); a('s_add_u32 s64, s64, s53')
        a('s_lshl_b32 s53, s64, 1'); a('s_load_dword s65, s[14:15], s53')
        a('s_add_u32 s64, s64, s52'); a('s_lshl_b32 s66, s64, 12')
        a('s_lshl_b32 s67, s51, 11'); a('v_add_u32 v10, s67, v14')
        if KWHEN != 3: kl2()
    def kl2():
        srd(a, 36, 12, 4096, 's66')
        a('v_add_u32 v150, -8, v10'); a('v_add_u32 v151, 1016, v10')
        a.vm('buffer_load_dwordx2 v[136:137], v150, s[36:39], 0 offen ' + NT)
        a.vm('buffer_load_dwordx4 v[138:141], v10, s[36:39], 0 offen ' + NT)
        a.vm('buffer_load_dwordx2 v[142:143], v151, s[36:39], 0 offen ' + NT)
        a.vm('buffer_load_dwordx4 v[144:147], v10, s[36:39], 0 offen offset:1024 ' + NT, 'K')
    if KWHEN in (0, 3): kloads()
    srd(a, 32, 30, 0x10000000)
    a('s_lshl_b32 s68, s50, 2'); a('s_and_b32 s53, s49, 3'); a('s_add_u32 s68, s68, s53')
    a('s_lshl_b32 s53, s50, 9'); a('s_add_u32 s72, s53, 0x%x' % F_A); a('s_lshl_b32 s54, s68, 8'); a('s_sub_u32 s54, s54, s53')
    a('v_bfe_u32 v7, v1, 1, 3'); a('v_min_u32 v7, 4, v7'); a('v_cmp_ne_u32 vcc, 0, v7'); a('v_lshlrev_b32 v7, 13, v7'); a('v_and_b32 v8, 1, v1'); a('v_lshl_add_u32 v7, v8, 7, v7')
    a('v_mov_b32 v8, s54'); a('v_cndmask_b32 v8, 0, v8, vcc'); a('v_add_u32 v7, v7, v8')
    a.vm('buffer_load_dword v149, v7, s[32:35], s72 offen sc1')
    a('s_lshl_b32 s76, s48, 12'); a('s_add_u32 s76, s76, %d' % L_PK); a('s_sub_u32 s74, 1023, s63')
    for i in range(1, 4): a('v_add_u32 v%d, %d, v184' % (248 + i, 7168 * i))
    def ploads():
        srd(a, 36, 24, 1376 * 1024)
        a('s_and_b32 s53, s63, 7'); a('s_lshl_b32 s53, s53, 7'); a('s_lshr_b32 s54, s63, 3'); a('s_lshl_b32 s54, s54, 14'); a('s_add_u32 s73, s53, s54')
        a('s_mov_b32 m0, s76')
        a.vm('buffer_load_dwordx4 v184, s[36:39], s73 offen %s lds' % NT)
        a.vm('buffer_load_dwordx4 v249, s[36:39], s73 offen offset:1024 %s lds' % NT)
        srd(a, 36, 22, 512 * 2752)
        a('s_and_b32 s53, s74, 15'); a('s_mul_i32 s53, s53, %d' % (32 * 2752)); a('s_lshr_b32 s54, s74, 4'); a('s_lshl_b32 s54, s54, 6')
        a('s_add_u32 s75, s53, s54'); a('s_cmp_lt_u32 s74, 688'); a('s_cselect_b32 s75, s75, 0x400000')
        a('v_lshrrev_b32 v150, 2, v1'); a('v_mul_u32_u24 v150, 2752, v150'); a('v_and_b32 v151, 3, v1'); a('v_lshl_add_u32 v150, v151, 4, v150')
        a('s_add_u32 s53, s76, 2048'); a('s_mov_b32 m0, s53'); a('s_add_u32 s54, s75, %d' % (16 * 2752 - 1024))
        a.vm('buffer_load_dwordx4 v150, s[36:39], s75 offen %s lds' % NT)
        a.vm('buffer_load_dwordx4 v150, s[36:39], s54 offen offset:1024 %s lds' % NT, 'pk')
    if PWHEN == 0: ploads()
    if 'front' in EXP: a.stamp('issued')
    a('s_and_b32 s53, s63, 7'); a('s_mul_i32 s53, s53, %d' % (86 * 2048)); a('s_lshr_b32 s54, s63, 3'); a('s_lshl_b32 s54, s54, 11'); a('s_add_u32 s53, s53, s54')
    a('s_add_u32 s53, s53, 0x%x' % W4P); a('s_cmp_lt_u32 s63, 688'); a('s_cselect_b32 s88, s53, 0x%x' % DUMP)
    a('s_lshr_b32 s54, s74, 4'); a('s_lshl_b32 s54, s54, 15'); a('s_and_b32 s55, s74, 15'); a('s_lshl_b32 s55, s55, 10'); a('s_add_u32 s54, s54, s55')
    a('s_add_u32 s54, s54, 0x%x' % W3P); a('s_cmp_lt_u32 s74, 688'); a('s_cselect_b32 s89, s54, 0x%x' % DUMP); a('s_add_u32 s59, s89, 0x4000')
    a('s_and_b32 s53, s49, 3')
    a('s_lshr_b32 s69, s2, 5')
    a('s_lshl_b32 s92, s53, 12')
    a('s_lshl_b32 s77, s48, 14'); a('s_add_u32 s77, s77, %d' % L_S)
    a('s_lshl_b32 s78, s48, 17'); a('s_lshl_b32 s53, s69, 7'); a('s_add_u32 s78, s78, s53')
    srd(a, 40, 20, 512 * 1024); srd(a, 44, 18, 512 * 1024)
    a('s_and_b32 s86, s69, 3'); a('s_lshl_b32 s86, s86, 12')
    for i in range(4): a('v_mov_b32 v%d, 0' % (152 + i))
    a('s_mul_i32 s70, s52, 4608'); a('s_add_u32 s70, s70, %d' % L_KV)
    a('s_mul_i32 s71, s52, %d' % (4 * CS))
    a('v_and_b32 v7, 31, v1'); a('v_lshl_add_u32 v7, v7, 4, s70')
    a('ds_write_b128 v7, v[152:155] offset:4096')
    a('v_and_b32 v7, 1, v1'); a('v_lshlrev_b32 v7, 4, v7'); a('v_bfe_u32 v8, v1, 1, 2'); a('v_mul_u32_u24 v8, %d, v8' % CS)
    a('v_add3_u32 v7, v7, v8, s71')
    a('ds_write_b128 v7, v[152:155] offset:%d' % L_E4)
    for i in range(4): a('v_mov_b32 v%d, -1' % (252 + i))
    a('s_bfe_u32 s53, s69, 0x10001'); a('s_xor_b32 s53, s53, 1')
    a('v_bfe_u32 v7, v1, 3, 1'); a('s_mul_i32 s54, s53, 31'); a('v_xor_b32 v7, s54, v7'); a('v_lshlrev_b32 v7, 4, v7')
    a('v_and_b32 v8, 7, v1'); a('v_lshl_add_u32 v191, v8, 9, v7')
    a('s_lshl_b32 s54, s68, 1'); a('s_add_u32 s53, s53, s54'); a('s_lshl_b32 s53, s53, 15'); a('s_lshl_b32 s54, s69, 12'); a('s_add_u32 s53, s53, s54')
    a('s_add_u32 s79, s53, 0x%x' % ZB)
    a('v_and_b32 v11, 3, v5'); a('v_mul_u32_u24 v11, %d, v11' % CS); a('v_and_b32 v12, 12, v5'); a('v_lshl_add_u32 v11, v12, 1, v11')
    a('v_lshl_add_u32 v11, v6, 4, v11'); a('s_lshl_b32 s56, s51, 8'); a('s_add_u32 s57, s56, s71'); a('s_add_u32 s57, s57, %d' % (L_E4 + 8))
    a('v_add_u32 v11, s57, v11')
    a('v_lshlrev_b32 v12, 4, v6'); a('v_lshlrev_b32 v13, 5, v5'); a('v_sub_u32 v12, v12, v13')
    a('s_add_u32 s57, s56, s70'); a('s_add_u32 s57, s57, 480'); a('v_add_u32 v12, s57, v12')
    a('v_lshlrev_b32 v7, 4, v5'); a('v_lshl_add_u32 v7, v6, 2, v7'); a('s_lshl_b32 s56, s51, 10'); a('v_add_u32 v7, s56, v7')
    a('v_lshlrev_b32 v8, 1, v7'); a('s_lshl_b32 s56, s51, 13'); a('v_add_u32 v9, s56, v14')
    a('s_add_u32 s57, s70, %d' % (2 * (2044 - 768))); a('v_sub_u32 v13, s57, v8')
    a('v_and_b32 v185, 1, v6'); a('v_lshlrev_b32 v185, 18, v185'); a('v_lshrrev_b32 v7, 2, v5'); a('v_lshl_add_u32 v185, v7, 16, v185')
    a('v_and_b32 v7, 3, v5'); a('v_lshl_add_u32 v185, v7, 5, v185'); a('v_lshrrev_b32 v7, 1, v6'); a('v_lshl_add_u32 v185, v7, 4, v185')
    a('v_lshrrev_b32 v21, 5, v1'); a('v_bfe_u32 v22, v1, 2, 2')
    a('v_lshl_add_u32 v7, v21, 3, v22'); a('v_lshlrev_b32 v7, 7, v7'); a('v_lshrrev_b32 v23, 1, v22'); a('v_lshl_add_u32 v7, v23, 6, v7')
    a('v_and_b32 v21, 1, v6'); a('v_lshl_add_u32 v7, v21, 5, v7')
    a('v_and_b32 v24, 3, v1'); a('v_lshl_add_u32 v187, v24, 3, v7')
    a('v_and_b32 v25, 1, v1'); a('v_lshl_add_u32 v7, v25, 4, v7'); a('v_bfe_u32 v25, v1, 1, 1'); a('v_lshl_add_u32 v188, v25, 3, v7')
    PA, PB = (189, 190) if PWHEN != 3 else (10, 4)
    if PWHEN != 3: a('v_add_u32 v%d, s76, v188' % PA); a('v_xor_b32 v%d, 64, v%d' % (PB, PA))
    a('v_lshl_add_u32 v7, v6, 3, v22'); a('v_lshlrev_b32 v186, 6, v7'); a('v_lshl_add_u32 v186, v24, 3, v186'); a('v_add_u32 v186, s76, v186')
    a('v_lshlrev_b32 v7, 7, v7'); a('v_lshl_add_u32 v23, v21, 1, v23'); a('v_xor_b32 v23, s48, v23'); a('v_lshl_add_u32 v7, v23, 5, v7')
    a('v_lshl_add_u32 v7, v24, 3, v7'); a('v_add_u32 v26, %d, v7' % L_K); a('v_xor_b32 v27, 64, v26')
    a('v_lshlrev_b32 v20, 12, v20'); a('s_lshl_b32 s53, s49, 7'); a('v_lshl_add_u32 v7, v6, 4, s53')
    a('v_add_u32 v28, v20, v7'); a('v_add_u32 v28, 0x%x, v28' % XT)
    a('v_sub_u32 v29, v20, v7'); a('v_add_u32 v29, %d, v29' % (4080 - 64 + KVR))
    a('v_and_b32 v4, 31, v1'); a('v_lshlrev_b32 v4, 3, v4'); a('v_mov_b32 v0, 0')
    if 'front' in EXP: a.stamp('addr done')
    a.fs('f0', 'addr done')
    pad(0)
    a.wait('kvx')
    if 'front' in EXP: a.stamp('own landed')
    a.fs('f0', 'landed')
    a('s_barrier')
    a.vm('global_load_dwordx2 v[2:3], v0, s[28:29] sc1', 'tag')
    a.stamp('k landed')
    if KWHEN == 2: kloads()
    if PWHEN == 2: ploads()
    for o in range(2):
        a(TR % (vr(30 + 6 * o, 2), 26, 512 + 4096 * o))
        a(TR % (vr(32 + 6 * o, 2), 27, 1024 + 4096 * o)); a(TR % (vr(34 + 6 * o, 2), 27, 1536 + 4096 * o))
    for o in range(2):
        for z in range(2): a(TR % (vr(112 + 4 * o + 2 * z, 2), 26, L_V - L_K + 512 * z + 4096 * o))
    for o in range(2):
        for z in range(2): a(TR % (vr(120 + 4 * o + 2 * z, 2), 26, L_X - L_K + 512 * z + 4096 * o))
    a(lo(70, 44)); a(hi(71, 44)); a(lo(72, 45)); a(hi(73, 45))
    a('s_waitcnt lgkmcnt(8)')
    for t in range(1, 12):
        for o in range(2): a((hi if t & 1 else lo)(46 + 2 * t + o, 30 + 6 * o + (t >> 1)))
    a('s_waitcnt lgkmcnt(0)')
    a.vm('buffer_store_dwordx4 v[120:123], v28, s[32:35], 0 offen sc1')
    a.vm('buffer_store_dwordx4 v[124:127], v28, s[32:35], 0 offen offset:64 sc1')
    for i in range(8): a(pk('v_pk_mul_f32', 94 + 2 * i, [48 + 2 * i, bc(73)]))
    for t in (1, 2, 3):
        for i in range(8): a(pk('v_pk_fma_f32', 94 + 2 * i, [48 + 2 * (i + t), bc(73 - t), 94 + 2 * i]))
    for i in range(8):
        for o in range(2): a((hi if i & 1 else lo)(78 + 2 * i + o, 112 + 4 * o + (i >> 1)))
    for i in range(8): a(pk('v_pk_mul_f32', 94 + 2 * i, [94 + 2 * i, 78 + 2 * i]))
    for o in range(2):
        for i in range(4): a('v_cvt_pk_bf16_f32 v%d, v%d, v%d' % (112 + 4 * o + i, 94 + 2 * (7 - 2 * i) + o, 94 + 2 * (6 - 2 * i) + o))
    a.vm('buffer_store_dwordx4 v[112:115], v29, s[32:35], 0 offen offset:64 sc1')
    a.vm('buffer_store_dwordx4 v[116:119], v29, s[32:35], 0 offen sc1', 'st')
    a.stamp('kv stored')
    if KWHEN == 1: kloads()
    if PWHEN == 1: ploads()
    if WARM:
        a('v_and_b32 v150, 3, v1'); a('v_lshlrev_b32 v150, 7, v150'); a('s_lshl_b32 s53, s63, 9')
        if WARM & 1: a.vm('buffer_load_dword v151, v150, s[44:47], s53 offen')
        if WARM & 2: a.vm('buffer_load_dword v151, v150, s[40:43], s53 offen')
    a.wait('xr')
    for r in range(2):
        for i in range(4): a(lo(48 + 8 * r + 2 * i, 128 + 4 * r + i)); a(hi(49 + 8 * r + 2 * i, 128 + 4 * r + i))
    for r in range(2):
        b = 48 + 8 * r
        a(pk('v_pk_add_f32', 70 + 2 * r, [b, b + 2])); a(pk('v_pk_add_f32', 74 + 2 * r, [b + 4, b + 6]))
    for r in range(2): a(pk('v_pk_add_f32', 70 + 2 * r, [70 + 2 * r, 74 + 2 * r]))
    for r in range(2): a('v_add_f32 v%d, v%d, v%d' % (64 + r, 70 + 2 * r, 71 + 2 * r))
    allreduce(a, [64, 65], [66, 67])
    for r in range(2): a('v_mul_f32 v%d, s60, v%d' % (64 + r, 64 + r))
    for r in range(2):
        for i in range(0, 8, 2): a(pk('v_pk_add_f32', 48 + 8 * r + i, [48 + 8 * r + i, bc(64 + r)], neg=[0, 1]))
    for r in range(2):
        b = 48 + 8 * r
        a(pk('v_pk_mul_f32', 70 + 2 * r, [b, b]))
        for i in (2, 4, 6): a(pk('v_pk_fma_f32', 70 + 2 * r, [b + i, b + i, 70 + 2 * r]))
    for r in range(2): a('v_add_f32 v%d, v%d, v%d' % (68 + r, 70 + 2 * r, 71 + 2 * r))
    allreduce(a, [68, 69], [66, 67])
    for r in range(2): a('v_mul_f32 v%d, s60, v%d' % (68 + r, 68 + r))
    a('v_cvt_pk_bf16_f32 v68, v68, v69'); a(hi(69, 68)); a(lo(68, 68))
    for r in range(2): a('v_add_f32 v%d, 0x%x, v%d' % (68 + r, f2u(EPS), 68 + r))
    a('v_cvt_pk_bf16_f32 v68, v68, v69'); a(hi(69, 68)); a(lo(68, 68))
    for r in range(2): a('v_sqrt_f32 v%d, v%d' % (68 + r, 68 + r))
    a('s_lshl_b32 s53, s48, 3'); a('s_add_u32 s53, s53, %d' % L_CRED); a('v_mov_b32 v7, s53')
    a('v_cvt_pk_bf16_f32 v72, v68, v64'); a('v_cvt_pk_bf16_f32 v73, v69, v65')
    a('ds_write_b64 v7, v[72:73]')
    a('s_lshl_b32 s53, s49, 3'); a('s_add_u32 s87, s53, s72')
    a('s_mov_b32 s82, 0')
    a.wait('tag' if 'nd0' in EXP else 'st', 'lgkmcnt(0)')
    a('Ltag:')
    a('v_readfirstlane_b32 s80, v2'); a('v_readfirstlane_b32 s81, v3')
    a('s_or_b32 s53, s80, s81'); a('s_cbranch_scc1 Ltagok')
    a('global_load_dwordx2 v[2:3], v0, s[28:29] sc1')
    a.guard()
    a('s_waitcnt vmcnt(0)')
    a('s_branch Ltag')
    a('Ltagok:')
    a.stamp('drained')
    a.signal('s87', eager='0' in EAGER)
    a('s_cmp_lg_u32 s48, 1'); a('s_cbranch_scc1 Lnost')
    a('v_lshlrev_b32 v7, 3, v1'); a('ds_read_b64 v[72:73], v7 offset:%d' % L_CRED)
    a('s_lshl_b32 s53, s2, 6'); a('s_add_u32 s53, s53, 0x%x' % ST0); a('v_mov_b32 v75, s80')
    a('s_mov_b64 exec, 15'); a('s_waitcnt lgkmcnt(0)')
    a('v_mov_b32 v74, v73'); a('v_mov_b32 v73, s80')
    a('buffer_store_dwordx4 v[72:75], v14, s[32:35], s53 offen sc1'); a('s_mov_b64 exec, -1')
    a('Lnost:')
    def ptr():
        a(TR % ('v[192:193]', PA, 0)); a(TR % ('v[194:195]', PA, 512)); a(TR % ('v[196:197]', PB, 0)); a(TR % ('v[198:199]', PB, 512))
        for e in range(2):
            for z in range(2): a(TR % (vr(200 + 4 * e + 2 * z, 2), 186, 2048 + 32 * e + 256 * z))
    def late():
        if PWHEN != 3 and not (E4EARLY and PWHEN == 1 and KWHEN == 0): ptr()
        a('v_add_u32 v7, s71, v10')
        for i in range(2):
            W = 136 + 6 * i; b = 20 + 12 * i
            for x in range(4): a('v_alignbit_b32 v%d, v%d, v%d, 16' % (b + x, W + x + 1, W + x))
            for x in range(4): a('v_mov_b32 v%d, v%d' % (b + 4 + x, W + x + 1))
            for x in range(4): a('v_alignbit_b32 v%d, v%d, v%d, 16' % (b + 8 + x, W + x + 2, W + x + 1))
            o = L_E4 + 32 + 1024 * i
            a('ds_write_b128 v7, %s offset:%d' % (vr(W + 2, 4), o + 3 * CS))
            a('ds_write_b128 v7, %s offset:%d' % (vr(b, 4), o))
            a('ds_write_b128 v7, %s offset:%d' % (vr(b + 4, 4), o + CS))
            a('ds_write_b128 v7, %s offset:%d' % (vr(b + 8, 4), o + 2 * CS))
    if (KWHEN != 1 and PWHEN != 1) or (E4EARLY and PWHEN == 1 and KWHEN == 0): late()
    a('s_add_u32 s56, s70, s67'); a('s_mov_b32 m0, s56'); a('s_add_u32 s57, s66, %d' % KVR); a('s_add_u32 s58, s66, 0x%x' % XT)
    a.poll(4, 's72', 's87')
    a.stamp('X0 seen')
    if KWHEN == 3: kl2()
    a.vm('buffer_load_dwordx4 v10, s[32:35], s57 offen sc1 lds')
    a.vm('buffer_load_dwordx4 v10, s[32:35], s57 offen offset:1024 sc1 lds', 'kv')
    for i in range(4): a.vm('buffer_load_dwordx2 %s, v8, s[32:35], s58 offen offset:%d sc1' % (vr(208 + 2 * i, 2), 512 * i), 'xT')
    if '0' not in EAGER: a.late('s87')
    if E4EARLY and PWHEN == 1 and KWHEN == 0: ptr()
    elif KWHEN == 1 or PWHEN == 1:
        if KWHEN == 3: a.wait('K')
        late()
    if PWHEN == 3:
        ploads(); a('v_add_u32 v%d, s76, v188' % PA); a('v_xor_b32 v%d, 64, v%d' % (PB, PA))
    pst = [[('buffer_store_dwordx4 %s, v14, s[32:35], %s offen offset:%d sc1' % (vr(192 + 4 * z, 4), ('s88', 's88', 's89', 's59')[z], 1024 if z == 1 else 0), None)] for z in range(4)]
    pst.append(['s_mov_b64 exec, 0xffff', ('buffer_store_dwordx4 v[252:255], v191, s[32:35], s79 offen sc1', None), 's_mov_b64 exec, -1'])
    def wdma(srdn, label, ngrp, mask, ldsbase, srcoff):
        l = []
        for i in range(4 * ngrp):
            it = []
            if i % 4 == 0:
                it += ['s_add_u32 s55, s92, %d' % (1024 * i), 's_and_b32 s55, s55, 0x%x' % mask, 's_add_u32 s53, %s, s55' % ldsbase, 's_mov_b32 m0, s53',
                       ] + (['s_xor_b32 s55, s55, s86'] if ROTA & (1 if label == 'w1' else 2) else []) + ['s_lshl_b32 s55, s55, 3', 's_add_u32 s93, s78, s55']
                if srcoff: it.append('s_add_u32 s93, s93, %d' % srcoff)
            it.append(('buffer_load_dwordx4 v%d, s[%d:%d], s93 offen offset:%d lds' % (248 + (i & 3) if i & 3 else 184, srdn, srdn + 3, 1024 * (i & 3)), label))
            l.append(it)
        return l
    def stloads(fl=''):
        return [['s_mov_b32 s54, 0x%x' % (ST0 + 4096 * (i >> 2)),
                 ('buffer_load_dwordx4 %s, v9, s[32:35], s54 offen offset:%d %s' % (vr(216 + 4 * i, 4), 1024 * (i & 3), fl), 'st0')] for i in range(8)]
    w1l = wdma(44, 'w1', 4, 0x3fff, 's77', 0)
    bg = w1l; stl = stloads()
    if W2A: a('s_lshl_b32 s87, s48, 13'); a('s_add_u32 s87, s87, %d' % L_S2); bg += wdma(40, 'w1', 2, 0x1fff, 's87', 0)
    a('s_waitcnt lgkmcnt(0)')
    a('s_barrier')
    a.take(bg, PRE0)
    a('s_lshl_b32 s56, s65, 16'); a('s_and_b32 s57, s65, 0xffff0000'); a('s_cmp_eq_u32 s52, 0'); a('s_cselect_b32 s65, s56, s57')
    a('s_lshl_b32 s57, s51, 20'); a('s_lshl_b32 s58, s64, 7'); a('s_add_u32 s57, s57, s58'); a('s_add_u32 s57, s57, 0x%x' % HT)
    a('s_add_u32 s58, s57, 0x80000')
    a('s_lshl_b32 s53, s48, 12'); a('s_add_u32 s53, s53, %d' % L_CRED); a('v_add_u32 v190, s53, v14'); a('v_xor_b32 v189, 0x1000, v14')
    a('s_lshl_b32 s53, s48, 12'); a('v_xor_b32 v189, s53, v189'); a('v_add_u32 v189, %d, v189' % L_CRED)
    CA = 16; FR = 48
    def A(st, x): return FR + 64 * st + 4 * x
    def B(st, x): return FR + 64 * st + 32 + 4 * x
    def reads(rho):
        st = rho & 1; l = []
        for x in range(8):
            l.append('ds_read_b64 %s, v11 offset:%d' % (vr(A(st, x), 2), 512 * x + 64 * rho))
            l.append('ds_read_b64 %s, v11 offset:%d' % (vr(A(st, x) + 2, 2), 512 * x + 64 * rho + 8))
            l.append('ds_read_b128 %s, v12 offset:%d' % (vr(B(st, x), 4), 512 * (7 - x) + 64 * rho))
        return l
    XF = 48; XN = 64; KD = 80
    def tagscan():
        l = ['v_min3_u32 v7, v217, v219, v221', 'v_max3_u32 v0, v217, v219, v221']
        for i in range(3, 15, 2):
            l += ['v_min3_u32 v7, v7, v%d, v%d' % (217 + 2 * i, 219 + 2 * i), 'v_max3_u32 v0, v0, v%d, v%d' % (217 + 2 * i, 219 + 2 * i)]
        return l + ['v_min_u32 v7, v7, v247', 'v_max_u32 v0, v0, v247']
    def check():
        a('s_mov_b32 s82, 0')
        a('Lst0:')
        a('v_cmp_ne_u32 vcc, s80, v7'); a('v_cmp_ne_u32 s[54:55], s80, v0'); a('s_or_b64 vcc, vcc, s[54:55]')
        a('s_cbranch_vccz Lst0ok')
        for it in stloads('sc1'):
            for x in it: a(x[0] if isinstance(x, tuple) else x)
        a.guard()
        a('s_waitcnt vmcnt(0)')
        for x in tagscan(): a(x)
        a('s_branch Lst0')
        a('Lst0ok:'); a.count(30)
    sh1 = [('wait', 'st0')] + tagscan() + [('check',)]
    for i in range(0, 16, 4):
        sh1 += [lo(217 + 2 * (i + e), 216 + 2 * (i + e)) for e in range(4)]
        for e in range(4): sh1 += ['v_rcp_f32 v%d, v%d' % (217 + 2 * (i + e), 217 + 2 * (i + e)), hi(216 + 2 * (i + e), 216 + 2 * (i + e))]
    sh3 = [(hi if i & 1 else lo)(XF + i, 208 + (i >> 1)) for i in range(16)]
    sh3 += ['v_sub_f32 v%d, v%d, v%d' % (XN + i, XF + i, 216 + 2 * i) for i in range(16)]
    sh3 += ['s_waitcnt lgkmcnt(0)']
    for i in range(4):
        sh3 += [hi(KD + 4 * i, 177 + 2 * i), lo(KD + 4 * i + 1, 177 + 2 * i), hi(KD + 4 * i + 2, 176 + 2 * i), lo(KD + 4 * i + 3, 176 + 2 * i)]
    nkd = len(sh3)
    sh3 += ['v_mul_f32 v%d, v%d, v%d' % (XN + i, XN + i, 217 + 2 * i) for i in range(16)]
    def emit_sh(x):
        if isinstance(x, str): a(x)
        elif x[0] == 'wait': a.wait(x[1])
        else: check()
    r0 = reads(0)
    for r in r0:
        if 'b64' in r: a(r)
    pad(1)
    a.wait('kv')
    a('s_barrier')
    a.stamp('conv go')
    for r in r0:
        if 'b64' not in r: a(r)
    started = set(); sh = sh3; n3 = [0]
    for rho in range(4):
        st = rho & 1
        nxt = reads(rho + 1) if rho < 3 else ['ds_read_b64 %s, v13 offset:%d' % (vr(176 + 2 * i, 2), 512 * (3 - i)) for i in range(4)]
        issued = 0; cnt = 0
        for x in range(8):
            pairs = [(x, b) for b in range(x + 1) if x + b <= 7] + [(aa, x) for aa in range(x) if aa + x <= 7]
            if rho == 0: a('s_waitcnt lgkmcnt(%d)' % min(15, 7 - x + issued))
            elif x == 0: a('s_waitcnt lgkmcnt(0)')
            for (aa, bb) in pairs:
                t = aa + bb
                c = vr(CA + 4 * t, 4) if t in started else '0'
                started.add(t)
                a(M16 % (vr(CA + 4 * t, 4), vr(A(st, aa), 4), vr(B(st, bb), 4), c))
                cnt += 1
                if (rho > 0 or x >= 2) and issued < len(nxt) and cnt <= 30:
                    a(nxt[issued]); issued += 1
                g = cnt + 36 * rho
                if g >= ST_AT and g % 3 == 0: a.take(stl)
                if PWHEN == 3 and g == PST_AT - 8:
                    a.wait('pk'); ptr()
                if PWHEN == 3 and g == PST_AT - 1: a('s_waitcnt lgkmcnt(0)')
                if g >= PST_AT and g % 4 == 1: a.take(pst)
                if g >= BG0 and g % PACE == 0 and (g < ST_AT or not stl): a.take(bg)
                budget = 1 if (rho < 3 and cnt <= 24) or (rho == 3 and cnt <= 4) else 2
                while budget > 0 and g >= SH0 and sh1:
                    x = sh1.pop(0); emit_sh(x); budget -= 2 if isinstance(x, str) and x.startswith('v_rcp') else 1
                while budget > 0 and rho == 3 and cnt >= SH3 and not sh1 and sh:
                    emit_sh(sh.pop(0)); budget -= 1; n3[0] += 1
        while issued < len(nxt): a(nxt[issued]); issued += 1
        if 'rho' in EXP and rho < 3: a.stamp('rho%d' % rho)
    a.stamp('conv mfma')
    while sh1: emit_sh(sh1.pop(0))
    while n3[0] < nkd: emit_sh(sh.pop(0)); n3[0] += 1
    a('s_cmp_eq_u32 s51, 0'); a('s_cbranch_scc1 Lck0')
    for v, lab in ((1, None), (0, 'Lck0')):
        if lab: a(lab + ':')
        snd = 0 if v else 4; keep = 4 - snd
        for i in range(4): a('ds_write_b128 v189, %s offset:%d' % (vr(CA + 4 * (snd + i), 4), 1024 * i))
        for i in range(0, 16, 2): a(pk('v_pk_fma_f32', KD + i, [KD + i, ('s[64:65]', 1), CA + 4 * keep + i]))
        if v: a('s_branch Lck1')
    a('Lck1:')
    a.take(pst, 7)
    while sh:
        emit_sh(sh.pop(0))
        if len(sh) % 9 == 0: a.take(bg)
    a.take(bg, 24)
    a('s_waitcnt lgkmcnt(0)'); a('s_barrier')
    for i in range(4): a('ds_read_b128 %s, v190 offset:%d' % (vr(112 + 4 * i, 4), 1024 * i))
    a.stamp('conv red')
    for i in range(4):
        a('s_waitcnt lgkmcnt(%d)' % (3 - i))
        for r in (0, 2): a(pk('v_pk_add_f32', KD + 4 * i + r, [KD + 4 * i + r, 112 + 4 * i + r]))
        for r in (0, 2): a(pk('v_pk_fma_f32', XF + 4 * i + r, [XN + 4 * i + r, KD + 4 * i + r, XF + 4 * i + r]))
        o = 128 + 2 * i
        a('v_cvt_pk_bf16_f32 v%d, v%d, v%d' % (o, XF + 4 * i, XF + 4 * i + 1)); a('v_cvt_pk_bf16_f32 v%d, v%d, v%d' % (o + 1, XF + 4 * i + 2, XF + 4 * i + 3))
        if i & 1:
            a('v_permlane16_swap_b32 v%d, v%d' % (o - 2, o)); a('v_permlane16_swap_b32 v%d, v%d' % (o - 1, o + 1))
            a.vm('buffer_store_dwordx4 %s, v185, s[32:35], s%d offen sc1' % (vr(o - 2, 4), 57 + (i >> 1)), 'h')
    assert not bg
    a.stamp('h stored')
    a('s_lshl_b32 s53, s52, 6'); a('s_add_u32 s54, s53, s77'); a('v_xor_b32 v9, s54, v188'); a('v_xor_b32 v8, 64, v9')
    def wtr(dst, n, va):
        for s in range(n):
            for ch in range(2):
                a(TR % (ur(dst + 8 * s + 4 * ch, 2), va + ch, 2048 * s)); a(TR % (ur(dst + 8 * s + 4 * ch + 2, 2), va + ch, 2048 * s + 512))
    if W2A: a('s_add_u32 s54, s53, s87'); a('v_xor_b32 v186, s54, v188'); a('v_xor_b32 v185, 64, v186')
    a.wait('w1')
    wtr(256, 8, 8)
    if W2A: wtr(256 + 64, 4, 185)
    a('s_lshl_b32 s53, s50, 5'); a('s_add_u32 s53, s53, s49'); a('s_mul_i32 s53, s53, %d' % HFS); a('s_add_u32 s58, s53, 0x%x' % F_H)
    a('v_mul_u32_u24 v7, %d, v1' % (256 * HFS))
    for slot in range(3):
        th, ch = slot >> 1, slot & 1
        a('s_xor_b32 s53, s48, %d' % ((1 - th) + 2 * (1 - ch))); a('s_mul_i32 s53, s53, 12288'); a('s_add_u32 s53, s53, %d' % (G_RED + 4096 * slot))
        a('v_add_u32 v%d, s53, v14' % (10 + slot))
    a('s_mul_i32 s53, s48, 12288'); a('s_add_u32 s53, s53, %d' % G_RED); a('v_add_u32 v13, s53, v14')
    ONES = 160; CSUM = 144
    for i in range(4): a('v_mov_b32 v%d, 0x3f803f80' % (ONES + i))
    w2l = wdma(40, 'w2', 2, 0x1fff, 's77', 65536) if W2A else wdma(40, 'w2', 4, 0x3fff, 's77', 0)
    a('s_waitcnt lgkmcnt(0)')
    a.take(w2l, W2PRE)
    if 'nd1' not in EXP: a.wait('h')
    a.stamp('h drained')
    a.signal('s58', 7)
    a.take(w2l, 4)
    a('v_and_b32 v164, 31, v1'); a('v_lshlrev_b32 v164, 2, v164'); a('s_lshl_b32 s53, s52, 7'); a('s_add_u32 s53, s53, %d' % L_S2); a('v_add_u32 v165, s53, v164')
    a('s_lshl_b32 s53, s48, 8'); a('v_add_u32 v166, s53, v165'); a('v_xor_b32 v167, 0x80, v166')
    a('s_lshl_b32 s53, s48, 7'); a('s_add_u32 s53, s53, %d' % (L_S2 + 1024)); a('v_add_u32 v168, s53, v164')
    a('v_lshrrev_b32 v169, 5, v1'); a('v_lshl_add_u32 v169, v169, 4, s53')
    for s in range(8):
        for ch in range(2):
            a(M32 % (vr(acc(0, ch), 16), vr(ONES, 4), ur(256 + 8 * s + 4 * ch, 4), vr(acc(0, ch), 16) if s else '0'))
            if ch: a.take(w2l)
    a.take(w2l, 4)
    srd(a, 36, 30, 8 * 86 * 2048, '0x%x' % W4P); srd(a, 40, 30, 86 * 16384, '0x%x' % W3P)
    a('ds_write_b32 v167, v%d' % acc(0, 0)); a('ds_write_b32 v166, v%d' % acc(0, 1))
    a('v_lshlrev_b32 v189, 6, v6'); a('v_and_b32 v189, 64, v189'); a('v_xor_b32 v189, v189, v14')
    a('s_lshl_b32 s56, s48, 14')
    a('s_lshl_b32 s53, s51, 6'); a('s_add_u32 s54, s53, s56'); a('v_xor_b32 v191, s54, v187'); a('v_xor_b32 v190, 64, v191')
    a('s_lshl_b32 s54, s69, 13'); a('s_add_u32 s53, s53, s54'); a('s_lshl_b32 s54, s52, 12'); a('s_add_u32 s53, s53, s54'); a('v_xor_b32 v187, s53, v187')
    a('s_and_b32 s57, s50, %d' % (HREP - 1)); a('s_lshl_b32 s57, s57, 2'); a('s_add_u32 s53, s57, s48'); a('s_mul_i32 s53, s53, %d' % (64 * HFS)); a('s_add_u32 s58, s53, 0x%x' % F_H)
    a('v_lshlrev_b32 v4, 3, v1'); a('v_mul_u32_u24 v0, %d, v1' % HFS)
    a('s_lshl_b32 s57, s68, 16'); a('s_add_u32 s57, s57, s56'); a('s_add_u32 s57, s57, 0x%x' % HT)
    if ROTA & 1: a('s_or_b32 s57, s57, s86'); a('v_xor_b32 v187, s86, v187')
    a('s_waitcnt lgkmcnt(0)'); a('s_barrier')
    for w in range(4): a('ds_read_b32 v%d, v165 offset:%d' % (80 + w, 256 * w))
    a('s_xor_b32 s53, s51, 1'); a('s_lshl_b32 s53, s53, 8'); a('v_xor_b32 v184, s53, v4')
    a('s_lshl_b32 s53, s48, 9'); a('s_add_u32 s53, s53, %d' % G_ST); a('v_add_u32 v184, s53, v184')
    a('v_and_b32 v7, 31, v1'); a('s_lshl_b32 s53, s51, 5'); a('v_add_u32 v7, s53, v7'); a('v_lshlrev_b32 v185, 3, v7'); a('v_add_u32 v185, %d, v185' % G_ST)
    a('s_waitcnt lgkmcnt(0)')
    a('v_add_f32 v80, v80, v81'); a('v_add_f32 v82, v82, v83'); a('v_add_f32 v80, v80, v82')
    a('ds_write_b32 v168, v80')
    for q in range(4): a('ds_read_b128 %s, v169 offset:%d' % (vr(CSUM + 4 * q, 4), 32 * q))
    a('s_lshl_b32 s53, s69, 12'); a('s_lshl_b32 s54, s52, 11'); a('s_add_u32 s70, s53, s54')
    a('s_mul_i32 s73, s69, 11'); a('s_mul_i32 s53, s48, 3'); a('s_add_u32 s73, s73, s53')
    a('s_lshl_b32 s74, s73, 14'); a('s_add_u32 s75, s74, 0x8000'); a('s_cmp_eq_u32 s48, 3'); a('s_cselect_b32 s75, 0x400000, s75')
    if ROT3: a('s_or_b32 s74, s74, s92'); a('s_or_b32 s75, s75, s92'); a('s_add_u32 s88, s74, 0x4000')
    a('s_lshl_b32 s72, s68, 8'); a('s_lshl_b32 s53, s69, 3'); a('s_add_u32 s79, s72, s53')
    a('s_lshl_b32 s53, s48, 4'); a('s_add_u32 s72, s72, s53')
    a('s_lshl_b32 s66, s68, 1'); a('s_add_u32 s66, s66, s51')
    a('s_lshl_b32 s71, s66, 15'); a('s_add_u32 s71, s71, s70'); a('s_add_u32 s71, s71, 0x%x' % ZB)
    BF = 80; ST = 172
    for i in range(4): a('v_mov_b32 v%d, 0' % (ST + i))
    a('s_mov_b32 m0, s56')
    a.stamp('X1 poll')
    a.wait('w2')
    a.poll(0, 's58', False, sleep=SLEEP, between=lambda: wtr(256 + 64, 8, 8))
    a.count(63); a.stamp('X1 seen')
    hl = []
    for i in range(16):
        it = []
        if i and i % 4 == 0: it += ['s_add_u32 s53, s56, %d' % (1024 * i), 's_mov_b32 m0, s53']
        if i % 4 == 0: it.append('s_xor_b32 s93, s57, %d' % (1024 * i))
        it.append(('buffer_load_dwordx4 v189, s[32:35], s93 offen offset:%d sc1 lds' % (1024 * (i & 3)), 'h%d' % (i >> 1)))
        hl.append(it)
    a.take(hl, PH)
    WR3 = [192, 256 + 128, 256 + 192]
    w3l = []
    if W3ORD == 't': order = [(j, s) for j in (1, 2, 0) for s in range(16)]
    elif W3ORD == 'q': order = [(j, 4 * q + i) for q in range(4) for j in (1, 2, 0) for i in range(4)]
    elif W3ORD == 'm':
        order = [(1, i) for i in range(4)] + [(2, i) for i in range(4)] + [(1, i) for i in range(4, 16)] + [(0, i) for i in range(4)] + [(2, i) for i in range(4, 16)] + [(0, i) for i in range(4, 16)]
    elif W3ORD == 'i':
        miss = [(j, i) for j in (1, 2, 0) for i in range(4)]; hit = [(j, i) for j in (1, 2, 0) for i in range(4, 16)]
        order = miss[:4]; miss = miss[4:]
        while hit:
            if miss: order.append(miss.pop(0))
            order += hit[:2]; hit = hit[2:]
    for (j, s) in order:
        if True:
            w3l.append([('s_xor_b32 s87, s%d, %d' % ((74, 88, 75)[j], 1024 * s)) if ROT3 else ('s_add_u32 s87, s%d, %d' % (75 if j == 2 else 74, (16384 if j == 1 else 0) + 1024 * s)),
                        ('buffer_load_dwordx4 %s, v14, s[40:43], s87 offen' % ur(WR3[j] + 4 * s, 4), 'w3')])
    if 'now3' in EXP: w3l = [['s_nop 0'] for it in w3l]
    if 'hit3' in EXP: w3l = [['s_mov_b32 s87, s74', it[1]] for it in w3l]
    def btr(s):
        for th in range(2):
            a(TR % (vr(BF + 32 * th + 4 * s, 2), 190 + th, 2048 * s)); a(TR % (vr(BF + 32 * th + 4 * s + 2, 2), 190 + th, 2048 * s + 512))
    pad(2)
    a.wait('h0'); btr(0)
    a.stamp('h0 landed')
    for s in range(8):
        if s < 7:
            a.wait('h%d' % (s + 1)); btr(s + 1)
        a('s_waitcnt lgkmcnt(%d)' % (4 if s < 7 else 0))
        if s == 4: a('s_barrier')
        for th in range(2):
            for ch in range(2):
                a(M32 % (vr(acc(th, ch), 16), ur(256 + 8 * s + 4 * ch, 4), vr(BF + 32 * th + 4 * s, 4), vr(acc(th, ch), 16) if s else '0'))
                if ch == 0:
                    if hl: a.take(hl)
                    elif s >= 6: a.take(w3l)
            if SUMM:
                a(M32 % (vr(192 + 16 * th, 16), vr(ONES, 4), vr(BF + 32 * th + 4 * s, 4), vr(192 + 16 * th, 16) if s else '0'))
    a.stamp('g1 mfma')
    wr = red_write(0) + red_write(1) + red_write(2)
    n = 0
    for s in range(8):
        for th in range(2):
            for i in range(4):
                b = BF + 32 * th + 4 * s + i
                if not SUMM: a('v_dot2c_f32_bf16 v%d, v%d, v%d' % (ST + th, b, ONES))
                a('v_dot2c_f32_bf16 v%d, v%d, v%d' % (ST + 2 + th, b, b))
                n += 1
                if not SUMM and n >= 6 and n % 4 == 2 and wr: a(wr.pop(0))
                if SUMM and n % WRS == 0 and wr: a(wr.pop(0))
                if n % 6 == 0 and len(w3l) > 48 - W3A: a.take(w3l)
    assert not wr
    assert W3A <= 32
    if SUMM:
        a('v_permlane32_swap_b32 v192, v208'); a('v_permlane32_swap_b32 v%d, v%d' % (ST + 2, ST + 3))
        a('v_mov_b32 v%d, v192' % ST); a('v_add_f32 v%d, v%d, v%d' % (ST + 1, ST + 2, ST + 3))
    else:
        a('v_permlane32_swap_b32 v%d, v%d' % (ST, ST + 1)); a('v_permlane32_swap_b32 v%d, v%d' % (ST + 2, ST + 3))
        a('v_add_f32 v%d, v%d, v%d' % (ST, ST, ST + 1)); a('v_add_f32 v%d, v%d, v%d' % (ST + 1, ST + 2, ST + 3))
    a('ds_write_b64 v184, %s' % vr(ST, 2))
    a('s_waitcnt lgkmcnt(0)'); a('s_barrier')
    a.stamp('g1 red')
    for w in range(4): a('ds_read_b64 %s, v185 offset:%d' % (vr(164 + 2 * w, 2), 512 * w))
    rr = red_reads(80)
    for r in rr[:10]: a(r)
    M1 = 164; R1 = 166; RI = 168; CAa = 169; CBb = 170
    a('s_waitcnt lgkmcnt(10)')
    a(pk('v_pk_add_f32', 164, [164, 166])); a(pk('v_pk_add_f32', 168, [168, 170])); a(pk('v_pk_add_f32', 164, [164, 168]))
    for r in rr[10:]: a(r)
    for l in ['v_mul_f32 v164, s60, v164', 'v_mul_f32 v166, v164, v164', 'v_fma_f32 v165, v165, s60, -v166', 'v_max_f32 v165, 0, v165',
              'v_add_f32 v166, 0x%x, v165' % f2u(EPS), 'v_rsq_f32 v166, v166',
              'v_mul_f32 v167, v166, v166', 'v_mul_f32 v167, v167, v165', 'v_add_f32 v167, 0x%x, v167' % f2u(EPS), 'v_rsq_f32 v167, v167',
              'v_mul_f32 v167, v167, v166', 'v_rcp_f32 v168, v167', 'v_mul_f32 v169, 0x%x, v167' % f2u(C0),
              'v_mul_f32 v170, v167, v167', 'v_mul_f32 v170, v170, v167', 'v_mul_f32 v170, 0x%x, v170' % f2u(C1)]: a(l)
    o = acc(1, 1)
    for i in range(0, 16, 2): a(pk('v_pk_fma_f32', o + i, [bc(M1), CSUM + i, o + i], neg=[1, 0, 0]))
    red_adds(a, 80)
    HO = 176
    for s in range(2):
        a(TR % (vr(HO + 4 * s, 2), 187, 2048 * s)); a(TR % (vr(HO + 4 * s + 2, 2), 187, 2048 * s + 512))
    g = gelu_pk(o, CAa, CBb, RI, 80, 16)
    for i, l in enumerate(g):
        a(l)
        if i % 10 == 9 and len(w3l) > 48 - W3A: a.take(w3l)
    for i in range(8): a('v_cvt_pk_bf16_f32 v%d, v%d, v%d' % (96 + i, o + 2 * i, o + 2 * i + 1))
    for i in range(8): a('v_min_u32 v%d, -2, v%d' % (96 + i, 96 + i))
    a.vm('buffer_store_dwordx4 v[96:99], v14, s[32:35], s71 offen sc1')
    a.vm('buffer_store_dwordx4 v[100:103], v14, s[32:35], s71 offen offset:1024 sc1', 'z')
    a.stamp('z stored')
    a.take(w3l, W3B)
    HF = 144; HN = 176
    a('s_waitcnt lgkmcnt(0)')
    for i in range(8): a(lo(HF + 2 * i, HO + i)); a(hi(HF + 2 * i + 1, HO + i))
    for i in range(0, 16, 2): a(pk('v_pk_add_f32', HN + i, [HF + i, bc(M1)], neg=[0, 1]))
    for i in range(0, 16, 2): a(pk('v_pk_mul_f32', HN + i, [HN + i, bc(R1)]))
    a('s_add_u32 s59, s79, 0x%x' % F_Z); a('s_add_u32 s58, s72, 0x%x' % F_Z)
    a('v_and_b32 v4, 1, v1'); a('v_lshlrev_b32 v4, 3, v4')
    a('s_lshl_b32 s56, s66, 15'); a('s_add_u32 s64, s56, s70'); a('s_add_u32 s64, s64, 0x%x' % X1B)
    srd(a, 44, 30, 2 * MB, '0x%x' % ZB)
    a('s_lshl_b32 s56, s48, 13'); a('s_mov_b32 s57, s56')
    if ROTA & 2: a('s_lshr_b32 s53, s86, 1'); a('s_or_b32 s57, s57, s53')
    a('s_lshl_b32 s53, s48, 3'); a('s_lshr_b32 s53, 0xfe02ff01, s53'); a('s_sext_i32_i8 s53, s53')
    a('v_and_b32 v7, 31, v1'); a('v_subrev_u32 v7, s53, v7'); a('v_lshrrev_b32 v172, 5, v1'); a('v_lshlrev_b32 v172, 9, v172')
    for th in range(2):
        a('s_xor_b32 s54, s66, %d' % (1 - th)); a('s_lshl_b32 s54, s54, 5'); a('v_add_u32 v173, s54, v7')
        a('v_lshrrev_b32 v174, 5, v173'); a('v_lshl_add_u32 v174, v174, 15, v172'); a('v_and_b32 v173, 31, v173'); a('v_lshl_add_u32 v%d, v173, 4, v174' % (8 + th))
    a('s_lshl_b32 s54, s68, 13'); a('s_lshr_b32 s55, s70, 2'); a('s_add_u32 s54, s54, s55'); a('s_lshl_b32 s55, s51, 8'); a('s_add_u32 s54, s54, s55')
    a('s_add_u32 s65, s54, 0x%x' % ST1); a('v_lshlrev_b32 v0, 3, v1')
    if 'nd2' not in EXP: a.wait('z')
    a.stamp('z drained')
    a.signal('s59', eager='2' in EAGER)
    a.poll(4, 's58', 's59')
    a.stamp('X2 seen')
    def bitems(nks, dst, lab):
        l = []
        for th in range(2):
            for s in range(nks):
                it = []
                gb = (1 << R4S) if (ROT4 and lab == 'f' and s < 16) else 4
                if lab == 'b' and ROTA & 2:
                    gb = 2
                    if s % 2 == 0: it.append('s_xor_b32 s93, s57, %d' % (1024 * s))
                elif s % gb == 0:
                    if ROT4 and lab == 'f' and s < 16: it += ['s_xor_b32 s93, s92, %d' % (1024 * s), 's_add_u32 s93, s93, s%d' % (57 - th)]
                    else: it.append('s_add_u32 s93, s%d, %d' % (57 - th, 1024 * s))
                va, sd = (8 + th, 's[44:47]') if lab == 'b' else (14, 's[32:35]')
                if OWNH and lab == 'f': it.append('s_mov_b64 exec, s[%d:%d]' % ((96, 97) if s < 11 else (98, 99)))
                it.append(('buffer_load_dwordx4 %s, v%d, %s, s93 offen offset:%d sc1' % (ur(dst(nks * th + s), 4), va, sd, 1024 * (s % gb)), '%s%d' % (lab, nks * th + s)))
                if OWNH and lab == 'f': it.append('s_mov_b64 exec, -1')
                l.append(it)
        return l
    def ksplit(nks, wreg, breg, lab, bgl, nbg, check):
        bl = bitems(nks, breg, lab)
        a.take(bl, PB2 if check else PB4)
        pad(3)
        for th in range(2):
            wr = (red_write(0) + red_write(1)) if th else []
            if th and check:
                assert not bl
                if '2' not in EAGER: a.late('s59')
                a('s_mov_b32 s82, 0'); a('Lhalo:'); a('v_mov_b32 v7, 0')
            for s in range(nks):
                k = nks * th + s
                a.wait('%s%d' % (lab, k))
                for ch in range(2):
                    a(M32 % (vr(acc(th, ch), 16), ur(wreg(s, ch), 4), ur(breg(k), 4), vr(acc(th, ch), 16) if s else '0'))
                    if th and check: a('v_max3_u32 v7, v7, v%d, v%d' % (breg(k) + 2 * ch, breg(k) + 2 * ch + 1))
                    if ch == 0 and bl: a.take(bl)
                    elif not bl and nbg > 0 and (ch or nbg > nks - s): a.take(bgl); nbg -= 1
                if wr and s >= 1: a(wr.pop(0))
                if wr and s >= nks - 1: a(wr.pop(0))
                if th and not check and s == nks - LATE4 and '4' not in EAGER: a.late('s59')
        if check:
            a('v_cmp_eq_u32 vcc, -1, v7'); a('s_cbranch_vccz Lhalook')
            for it in bitems(nks, breg, lab)[nks:]:
                for x in it: a(x[0] if isinstance(x, tuple) else x)
            a.guard(0x8000)
            a('s_waitcnt vmcnt(0)'); a('s_branch Lhalo')
            a('Lhalook:'); a.count(62)
        for w in red_write(2): a(w)
        a('s_waitcnt lgkmcnt(0)'); a('s_barrier')
    ksplit(8, lambda s, ch: 256 + 64 + 8 * s + 4 * ch, lambda k: 80 + 4 * k, 'b', w3l, W3C, True)
    a.stamp('g2 mfma')
    for r in red_reads(80): a(r)
    for i in range(0, 16, 2): a(pk('v_pk_add_f32', o + i, [o + i, HN + i]))
    red_adds(a, 80)
    for i in range(8): a('v_cvt_pk_bf16_f32 v%d, v%d, v%d' % (96 + i, o + 2 * i, o + 2 * i + 1))
    a.vm('buffer_store_dwordx4 v[96:99], v14, s[32:35], s64 offen sc1')
    a.vm('buffer_store_dwordx4 v[100:103], v14, s[32:35], s64 offen offset:1024 sc1')
    a('v_mov_b32 v104, 0'); a('v_mov_b32 v105, 0')
    for i in range(8):
        a('v_dot2c_f32_bf16 v104, v%d, v%d' % (96 + i, ONES)); a('v_dot2c_f32_bf16 v105, v%d, v%d' % (96 + i, 96 + i))
    a('v_mov_b32 v106, v104'); a('v_mov_b32 v107, v105')
    a('v_permlane32_swap_b32 v104, v106'); a('v_permlane32_swap_b32 v105, v107')
    a(pk('v_pk_add_f32', 104, [104, 106]))
    a('s_mov_b32 exec_hi, 0')
    a.vm('buffer_store_dwordx2 v[104:105], v0, s[32:35], s65 offen sc1', 'x1')
    a('s_mov_b32 exec_hi, -1')
    if 'front' not in EXP and 'rho' not in EXP: a.stamp('x1 stored')
    a.take(w3l, 48)
    RES = 128
    for i in range(8): a(lo(80 + 2 * i, 96 + i)); a(hi(81 + 2 * i, 96 + i))
    for i in range(0, 16, 2): a(pk('v_pk_add_f32', RES + i, [HF + i, 80 + i]))
    a('s_add_u32 s59, s79, 0x%x' % F_X); a('s_add_u32 s58, s72, 0x%x' % F_X)
    a('s_lshl_b32 s64, s48, 13'); a('s_lshl_b32 s65, s68, 16'); a('s_add_u32 s65, s65, s64'); a('s_add_u32 s65, s65, 0x%x' % X1B)
    if ROT3: a('s_lshl_b32 s53, s92, 1'); a('s_xor_b32 s64, s64, s53')
    a('s_lshl_b32 s67, s68, 13'); a('s_lshl_b32 s54, s48, 11'); a('s_add_u32 s67, s67, s54'); a('s_add_u32 s67, s67, 0x%x' % ST1)
    a('v_lshlrev_b32 v8, 9, v6'); a('v_lshl_add_u32 v8, v5, 4, v8'); a('v_add_u32 v9, 0x8000, v8')
    a('s_mul_i32 s74, s69, %d' % (86 * 2048)); a('s_mul_i32 s53, s48, %d' % (22 * 2048)); a('s_add_u32 s74, s74, s53')
    a('s_add_u32 s75, s74, %d' % (20 * 2048)); a('s_cmp_eq_u32 s48, 3'); a('s_cselect_b32 s75, 0x400000, s75')
    a('s_lshl_b32 s53, s52, 10'); a('v_add_u32 v113, s53, v14'); a('v_xor_b32 v112, 0x400, v113')
    srd(a, 44, 30, 64 * HTH, '0x%x' % HB)
    a('s_lshl_b32 s53, s68, 1'); a('s_mul_i32 s53, s53, %d' % HTH); a('s_lshl_b32 s54, s73, 10'); a('s_add_u32 s56, s53, s54')
    a('s_add_u32 s57, s56, %d' % HTH)
    a('s_cmp_eq_u32 s48, 3'); a('s_cselect_b32 s76, 0x%x, s56' % (64 * HTH)); a('s_cselect_b32 s77, 0x%x, s57' % (64 * HTH))
    a('s_lshl_b32 s53, s48, 3'); a('s_add_u32 s53, s53, %d' % G_ST); a('v_lshlrev_b32 v115, 5, v1'); a('v_add_u32 v114, s53, v115'); a('v_add_u32 v115, %d, v115' % G_ST)
    a('s_mov_b32 m0, s64'); a('s_lshr_b32 s92, %s, %d' % ('s86' if R4C else 's92', 2 - R4S)); a('s_lshl_b32 s89, s92, 1')
    if 'nd3' not in EXP: a.wait('x1')
    a.stamp('x1 drained')
    a.signal('s59', eager='3' in EAGER)
    CS3 = 116
    seen = set()
    def cs3(items):
        for (j, s) in items:
            a(M16 % (vr(CS3 + 4 * j, 4), ur(WR3[j] + 4 * s, 4), vr(ONES, 4), vr(CS3 + 4 * j, 4) if j in seen else '0')); seen.add(j)
    csn = min(CSN, W3A + W3B + W3C)
    a.poll(4, 's58', 's59', between=lambda: cs3(order[:csn]))
    a.stamp('X3 seen')
    for p in range(4): a.vm('buffer_load_dwordx2 %s, v0, s[32:35], s67 offen offset:%d sc1' % (vr(80 + 2 * p, 2), 512 * p), 'sp')
    xl = []
    for i in range(16):
        it = []
        if i % 4 == 0:
            oo = 32768 * (i >> 3) + 1024 * (i & 7)
            if ROTX:
                it += ['s_and_b32 s55, s86, 0x1000', 's_xor_b32 s55, s55, %d' % oo, 's_add_u32 s53, s64, s55', 's_mov_b32 m0, s53', 's_add_u32 s93, s65, s55']
            else:
                if i: it += ['s_add_u32 s53, s64, %d' % oo, 's_mov_b32 m0, s53']
                it.append('s_add_u32 s93, s65, %d' % oo)
        it.append(('buffer_load_dwordx4 v14, s[32:35], s93 offen offset:%d sc1 lds' % (1024 * (i & 3)), 'x%d' % (i >> 3)))
        xl.append(it)
    a.take(xl, PX3)
    if '3' not in EAGER: a.late('s59')
    cs3(order[csn:])
    def w4reg(s, ch): return (256 + 8 * s + 4 * ch) if s < 16 else (144 + 8 * (s - 16) + 4 * ch)
    w4l = []
    for s in range(22):
        for ch in range(2):
            it = []
            g4 = 1 if (ROT4 and R4S == 0 and s < 16) else 2
            if s % g4 == 0 and ch == 0:
                if ROT4 and s < 16: it += ['s_xor_b32 s87, s89, %d' % (2048 * s), 's_add_u32 s87, s87, s74']
                else: it.append('s_add_u32 s87, s74, %d' % (2048 * s) if s < 20 else 's_mov_b32 s87, s75')
            it.append(('buffer_load_dwordx4 %s, v%d, s[36:39], s87 offen offset:%d' % (ur(w4reg(s, ch), 4), 112 + ch, 2048 * (s % g4)), 'w4'))
            w4l.append(it)
    if 'now4' in EXP: w4l = []
    if 'hit4' in EXP: w4l = [[('s_mov_b32 s87, s74' if isinstance(x, str) else (x[0].replace('offset:2048', 'offset:0'), x[1])) for x in it] for it in w4l]
    a.wait('sp')
    a(pk('v_pk_add_f32', 80, [80, 82])); a(pk('v_pk_add_f32', 84, [84, 86])); a(pk('v_pk_add_f32', 80, [80, 84]))
    a('ds_write_b64 v114, v[80:81]')
    a('s_lshl_b32 s53, s48, 10'); a('s_add_u32 s53, s53, %d' % G_ST2); a('v_add_u32 v7, s53, v14'); a('v_lshl_add_u32 v0, v5, 4, s53')
    pad(4)
    a.wait('x0', 'lgkmcnt(0)')
    a('s_barrier')
    a.stamp('x0 landed')
    A3 = 16; BR = 40; TMP = 72; PK = 84; STT = 96
    a('ds_read_b128 v[72:75], v115'); a('ds_read_b128 v[76:79], v115 offset:16')
    if OWNH: a('s_mul_i32 s53, s48, 3072'); a('s_add_u32 s53, s53, %d' % L_S2); a('v_add_u32 v114, s53, v14')
    def rd(k):
        tt, s = k >> 4, k & 15
        return 'ds_read_b128 %s, v%d offset:%d' % (vr(BR + 4 * (k & 7), 4), 8 + (tt >> 1), 2048 * s + 256 * (tt & 1))
    for k in range(6): a(rd(k))
    st = ['v_add_f32 v72, v72, v74', 'v_add_f32 v73, v73, v75', 'v_add_f32 v76, v76, v78', 'v_add_f32 v77, v77, v79',
          'v_add_f32 v72, v72, v76', 'v_add_f32 v73, v73, v77',
          'v_mul_f32 v72, s60, v72', 'v_mul_f32 v74, v72, v72', 'v_fma_f32 v73, v73, s60, -v74', 'v_max_f32 v73, 0, v73',
          'v_add_f32 v73, 0x%x, v73' % f2u(EPS), 'v_rsq_f32 v76, v73', 'v_sqrt_f32 v75, v73', 'v_mul_f32 v73, 0x%x, v76' % f2u(C0),
          'v_mul_f32 v74, v76, v76', 'v_mul_f32 v74, v74, v76', 'v_mul_f32 v74, 0x%x, v74' % f2u(C1), 'v_sub_f32 v72, 0, v72',
          ('ds', 'ds_write_b128 v7, v[72:75]')] + [('ds', 'ds_read_b128 %s, v0 offset:%d' % (vr(STT + 4 * tt, 4), 256 * tt)) for tt in range(4)]
    def epi(tt, packed):
        o3 = A3 + 12 * (tt & 1); m = STT + 4 * tt
        if packed:
            l = [pk('v_pk_fma_f32', o3 + i, [bc(m), CS3 + i, o3 + i]) for i in range(0, 12, 2)]
            l += gelu_pk(o3, m + 1, m + 2, m + 3, TMP, 12)
        else:
            l = ['v_fmac_f32 v%d, v%d, v%d' % (o3 + i, m, CS3 + i) for i in range(12)]
            l += gelu_plain(o3, m + 1, m + 2, m + 3, TMP, 12)
        for j in range(3):
            for i in range(2): l.append('v_cvt_pk_bf16_f32 v%d, v%d, v%d' % (PK + 4 * j + 2 * (tt & 1) + i, o3 + 4 * j + 2 * i, o3 + 4 * j + 2 * i + 1))
        if tt & 1:
            for j in range(3):
                l.append('v_permlane16_swap_b32 v%d, v%d' % (PK + 4 * j, PK + 4 * j + 2)); l.append('v_permlane16_swap_b32 v%d, v%d' % (PK + 4 * j + 1, PK + 4 * j + 3))
            for j in range(3):
                l.append(('vm', 'buffer_store_dwordx4 %s, v14, s[44:47], s%d offen offset:%d sc1' % (vr(PK + 4 * j, 4), (76 if j == 2 else 56) + (tt >> 1), 1024 * j), 'H%d' % (tt >> 1)))
                if OWNH: l.append(('ds', 'ds_write_b128 v114, %s offset:%d' % (vr(PK + 4 * j, 4), 12288 * (tt >> 1) + 1024 * j)))
        return l
    def g0sig():
        a('s_add_u32 s59, s79, 0x%x' % F_G); a('s_add_u32 s58, s72, 0x%x' % F_G)
        a.wait('H0'); a.signal('s59', eager=True)
    pend = st
    lg = [('r', k) for k in range(6)]
    def cost(x): return 2 if isinstance(x, str) and x.startswith(('v_exp', 'v_rcp', 'v_rsq', 'v_sqrt')) else 1
    def emit_p(x):
        if isinstance(x, str): a(x)
        elif x[0] == 'vm': a.vm(x[1], x[2])
        elif x[0] == 'ds': a(x[1]); lg.append(('o', 0))
    for k in range(64):
        tt, s = k >> 4, k & 15
        if k % 8 == 0: a.fs('g3', 'k%d' % k)
        if k == 26:
            a.wait('x1'); a('s_barrier')
        if k == G0AT: g0sig()
        if k % 2 == 0:
            for kk in (k + 6, k + 7):
                if kk < 64: a(rd(kk)); lg.append(('r', kk))
            idx = lg.index(('r', k + 1)); a('s_waitcnt lgkmcnt(%d)' % (len(lg) - 1 - idx)); del lg[:idx + 1]
        left = sum(cost(x) for x in pend); slots = 3 * (16 - s)
        for j in range(3):
            o3 = A3 + 12 * (tt & 1) + 4 * j
            a(M16 % (vr(o3, 4), ur(WR3[j] + 4 * s, 4), vr(BR + 4 * (k & 7), 4), vr(o3, 4) if s else '0'))
            if s >= 1 or (tt == 0 and j):
                budget = max(2, -(-left // slots)) if tt else 2
                while pend and budget >= cost(pend[0]):
                    budget -= cost(pend[0]); emit_p(pend.pop(0))
            if j == 2 and xl: a.take(xl)
            elif j == 2 and len(w4l) > W4TAIL and (k - 8) * (44 - W4TAIL) >= (44 - len(w4l)) * (W4END - 8): a.take(w4l)
        if s == 15:
            while pend: emit_p(pend.pop(0))
            pend = epi(tt, tt == 3)
            if 'nogelu' in EXP and tt < 3: pend = [x for x in pend if not isinstance(x, str)]
    a.stamp('g3 mfma'); a.fs('g4', 'mfma end')
    a.take(w4l, 44)
    if G0AT == 64: g0sig()
    def flagcheck(name):
        a.wait(name)
        a('v_cmp_ne_u64 vcc, %s, v[114:115]' % TAG); a('s_cbranch_vccz Lfc%s' % name)
        q = list(a.q); a.poll(4, 's58', 's59', tmp=114); a.q = q
        if a.stamp_on: a('s_add_u32 s82, s82, 1'); a.count(30 if name == 'G0' else 63)
        a('Lfc%s:' % name)
    st_ = [x for x in pend if not isinstance(x, str)]; va_ = [x for x in pend if isinstance(x, str)]
    for i, x in enumerate(va_):
        a(x)
        if i == G0N: a.vm('buffer_load_dwordx2 v[114:115], v4, s[32:35], s58 offen sc1', 'G0')
    for x in st_: emit_p(x)
    if 'front' not in EXP and 'rho' not in EXP: a.stamp('H stored')
    a.fs('g4', 'H st')
    a('s_lshl_b32 s53, s68, 1'); a('s_mul_i32 s57, s53, %d' % HTH)
    a('s_mul_i32 s54, s48, %d' % (22 * 1024)); a('s_add_u32 s54, s54, 0x%x' % HB); a('s_add_u32 s57, s57, s54'); a('s_add_u32 s56, s57, %d' % HTH)
    def b4(k): return (256 + 128 + 4 * k) if k < 32 else (192 + 4 * (k - 32))
    bl = bitems(22, b4, 'f'); bl1 = bl[22:]; bl = bl[:22]
    flagcheck('G0')
    a.fs('g4', 'G0 ok')
    a.take(bl, PRE4)
    a('s_add_u32 s59, s79, 0x%x' % F_F); a('s_add_u32 s58, s72, 0x%x' % F_F)
    srd(a, 40, 26, 2 * MB)
    a('v_lshlrev_b32 v7, 10, v5'); a('v_lshrrev_b32 v8, 5, v1'); a('v_lshl_add_u32 v7, v8, 4, v7'); a('v_and_b32 v8, 1, v6'); a('v_lshl_add_u32 v7, v8, 5, v7')
    a('s_lshl_b32 s64, s66, 15'); a('s_lshr_b32 s54, s70, 5'); a('s_add_u32 s64, s64, s54')
    a('s_sub_u32 s96, 0, s51'); a('s_mov_b32 s97, s96'); a('s_not_b64 s[98:99], s[96:97]')
    a('v_cndmask_b32 v8, v12, v10, s[96:97]'); a('v_cndmask_b32 v9, v10, v12, s[96:97]')
    pad(5)
    a.wait('H1')
    a.stamp('H drained'); a.fs('g4', 'drained')
    a.signal('s59', eager=bool(FE))
    def wr4(p):
        l = [['ds_write_b128 v%d, %s offset:%d' % (8 + p, vr(acc(p, 0) + 4 * q, 4), 1024 * q)] for q in range(4)]
        l += [['s_mov_b64 exec, s[%d:%d]' % (96 + 2 * p, 97 + 2 * p), 'ds_write_b128 v11, %s offset:%d' % (vr(acc(p, 1) + 4 * q, 4), 1024 * q), 's_mov_b64 exec, -1'] for q in range(4)]
        return l
    for p in range(2):
        wr = wr4(0) if p else []
        for s in range(22):
            k = 22 * p + s
            a.wait('f%d' % k)
            if k in (0, 8, 13, 21, 22, 30, 43): a.fs('g4', 'f%d' % k)
            if k == F1POLL: a.vm('buffer_load_dwordx2 v[114:115], v4, s[32:35], s58 offen sc1', 'F1')
            if k == F1CHK:
                flagcheck('F1'); a.stamp('X4 seen')
            for ch in range(2):
                a(M32 % (vr(acc(p, ch), 16), ur(w4reg(s, ch), 4), ur(b4(k), 4), vr(acc(p, ch), 16) if s else '0'))
                if ch == 0:
                    if bl: a.take(bl)
                    elif k >= F1CHK: a.take(bl1)
            if wr and s >= 1: a.take(wr)
            if not FE and k == 38: a.late('s59')
    assert not bl and not bl1
    a.take(wr4(1), 8)
    a('s_waitcnt lgkmcnt(0)'); a('s_barrier')
    a.stamp('g4 mfma'); a.fs('g4', 'bar')
    for r in red_reads(80): a(r)
    a('s_cmp_eq_u32 s51, 0'); a('s_cbranch_scc1 Lg40')
    for i in range(0, 16, 2): a(pk('v_pk_add_f32', o + i, [o + i, RES + i]))
    a('s_branch Lg41')
    a('Lg40:')
    for i in range(0, 16, 2): a(pk('v_pk_add_f32', o + i, [acc(0, 1) + i, RES + i]))
    a('Lg41:')
    red_adds(a, 80)
    if E('OSC', 0.0):
        for i in range(16): a('v_mul_f32 v%d, 0x%x, v%d' % (o + i, f2u(1.0 + E('OSC', 0.0)), o + i))
    for i in range(8): a('v_cvt_pk_bf16_f32 v%d, v%d, v%d' % (96 + i, o + 2 * i, o + 2 * i + 1))
    if OUT64:
        a('s_add_u32 s65, s64, 0x4000')
        for i in range(4): a('v_permlane16_swap_b32 v%d, v%d' % (96 + i, 100 + i))
        a.vm('buffer_store_dwordx4 v[96:99], v7, s[40:43], s64 offen ' + OUTF)
        a.vm('buffer_store_dwordx4 v[100:103], v7, s[40:43], s65 offen ' + OUTF)
    else:
        a.vm('buffer_store_dwordx4 v[96:99], v7, s[40:43], s64 offen ' + OUTF)
        a.vm('buffer_store_dwordx4 v[100:103], v7, s[40:43], s64 offen offset:32 ' + OUTF)
    if stamp or SPIN:
        a.wait0(); a.stamp('end')
    if FINE:
        a('s_waitcnt vmcnt(0) lgkmcnt(0)'); a('v_mov_b32 v15, 0')
        for i in range(len(a.fnames)):
            a('v_writelane_b32 v15, s%d, %d' % (FREGS[i], i)); a('v_writelane_b32 v15, s%d, %d' % (FREGS[i], 32 + i))
        a.names = a.fnames
    if stamp or FINE:
        a('s_lshl_b32 s53, s63, 8'); a('s_add_u32 s53, s53, 0x%x' % STAMPS); a('v_lshlrev_b32 v7, 2, v1')
        a('buffer_store_dword v15, v7, s[32:35], s53 offen')
    if SPIN:
        a('s_sub_u32 s96, s97, s96'); a('s_mul_i32 s96, s96, %s' % SPIN[2])
        a('s_memrealtime s[90:91]'); a('s_waitcnt lgkmcnt(0)'); a('s_mov_b32 s97, s90')
        a('Lspin:'); a('s_memrealtime s[90:91]'); a('s_waitcnt lgkmcnt(0)'); a('s_sub_u32 s90, s90, s97'); a('s_cmp_lt_u32 s90, s96'); a('s_cbranch_scc1 Lspin')
    a('Lend:')
    a('s_endpgm')
    body = a.a.finish()
    if ALIGN:
        body, nfix = align_runs(body, ALIGN); print('aligned runs', nfix, file=sys.stderr)
    print('instrs', len(a.a.L), 'nops', a.a.nops, file=sys.stderr)
    hdr = open('sequential_preLN__ssm_conv_h3__mixer_s_mlp__prompt.s.ref').read().split('; Override')[0]
    out = hdr + DOC + '; @launch grid=(256,1,1) block=(256,1,1) lds=%d\n' % LDS_BYTES
    if stamp or FINE: out += '; stamps: ' + '|'.join(a.names) + '\n'
    out += '.amdgcn_target "amdgcn-amd-amdhsa--gfx950"\n.text\n.globl %s\n.p2align 8\n.type %s,@function\n%s:\n' % (NAME, NAME, NAME)
    out += body
    out += '.fill 4096, 4, 0xbf810000\n'
    out += '''.section .rodata,"a"
.p2align 6
.amdhsa_kernel %s
  .amdhsa_next_free_vgpr 512
  .amdhsa_next_free_sgpr 102
  .amdhsa_accum_offset 256
  .amdhsa_group_segment_fixed_size 0
  .amdhsa_kernarg_size 112
  .amdhsa_user_sgpr_count 2
  .amdhsa_user_sgpr_kernarg_segment_ptr 1
  .amdhsa_system_sgpr_workgroup_id_x 1
  .amdhsa_float_denorm_mode_32 3
.end_amdhsa_kernel
''' % NAME
    return out

if __name__ == '__main__':
    open(sys.argv[1], 'w').write(build(len(sys.argv) > 2))
```
